```python
import torch

def _softmax(x, axis=-1):
    return torch.softmax(x, dim=axis)
def _gelu(x):
    return torch.nn.functional.gelu(x, approximate="tanh")
def _silu(x):
    return torch.nn.functional.silu(x)
def _sigmoid(x):
    return torch.sigmoid(x)
def _layernorm(x, axis=-1, eps=1e-5):
    m = x.mean(dim=axis, keepdim=True)
    v = x.var(dim=axis, keepdim=True, unbiased=False)
    return (x - m) / torch.sqrt(v + eps)
def _scatter_add(tgt, idx, src, axis=0):
    return tgt.clone().index_add_(axis, idx, src)
def _segment_sum(src, seg, n):
    out = torch.zeros((n,) + src.shape[1:], dtype=src.dtype)
    return out.index_add_(0, seg, src)
def _pad(x, pw):
    flat = tuple(v for pair in reversed(pw) for v in pair)
    return torch.nn.functional.pad(x, flat)

kernel_name = 'sequential_preLN__mha_block_cached__geglu_ffn__decode'

def setup_inputs():

    _w = (lambda a: (lambda t: t.to(torch.bfloat16) if t.is_floating_point() else t)(torch.as_tensor(a)))
    def _A_setup():
        B, Sq, D = 8, 1, 1024
        H, Sk, Dh = 32, 4096, 128
        return {
            "x": _w((lambda *s: torch.randn(*s, dtype=torch.bfloat16) * 0.05)(B, Sq, D)),
            "k_cache": _w((lambda *s: torch.randn(*s, dtype=torch.bfloat16) * 3.2)(B, H, Sk, Dh)),
            "v_cache": _w((lambda *s: torch.randn(*s, dtype=torch.bfloat16) * 0.4)(B, H, Sk, Dh)),
            "wq": _w((lambda *s: torch.randn(*s, dtype=torch.bfloat16) * 3.2)(D, H * Dh) * (D ** -0.5)),
            "wo": _w((lambda *s: torch.randn(*s, dtype=torch.bfloat16) * 0.4)(H * Dh, D) * ((H * Dh) ** -0.5)),
        }
    _A_in = _A_setup()

    def _B_setup():
        B, S, D, F = 8, 1, 1024, 3584
        return {
            "x": _w((lambda *s: torch.randn(*s, dtype=torch.bfloat16) * 0.05)(B, S, D)),
            "w_gate": _w((lambda *s: torch.randn(*s, dtype=torch.bfloat16) * 0.05)(D, F)),
            "w_up": _w((lambda *s: torch.randn(*s, dtype=torch.bfloat16) * 0.05)(D, F)),
            "w_down": _w((lambda *s: torch.randn(*s, dtype=torch.bfloat16) * 0.05)(F, D)),
        }
    _B_in = _B_setup()

    return {
        "A_x": _A_in["x"],
        "A_k_cache": _A_in["k_cache"],
        "A_v_cache": _A_in["v_cache"],
        "A_wq": _A_in["wq"],
        "A_wo": _A_in["wo"],
        "B_x": _B_in["x"],
        "B_w_gate": _B_in["w_gate"],
        "B_w_up": _B_in["w_up"],
        "B_w_down": _B_in["w_down"],
    }

def reference(A_x, A_k_cache, A_v_cache, A_wq, A_wo, B_x, B_w_gate, B_w_up, B_w_down):
    def _A_ref(x, k_cache, v_cache, wq, wo):
        B, Sq, D = x.shape
        H, Dh = 32, 128
        q = (lambda x, *d: x.permute(*d))((x @ wq).reshape(B, Sq, H, Dh), 0, 2, 1, 3)
        scores = torch.einsum("bhqd,bhkd->bhqk", q, k_cache) * (Dh ** -0.5)
        p = _softmax(scores, axis=-1)
        o = torch.einsum("bhqk,bhkd->bhqd", p, v_cache)
        return (lambda x, *d: x.permute(*d))(o, 0, 2, 1, 3).reshape(B, Sq, H * Dh) @ wo

    def _B_ref(x, w_gate, w_up, w_down):
        return (_gelu(x @ w_gate) * (x @ w_up)) @ w_down

    x = A_x
    h = x + _A_ref(_layernorm(x, axis=-1), A_k_cache, A_v_cache, A_wq, A_wo)
    h2 = h + _B_ref(_layernorm(h, axis=-1), B_w_gate, B_w_up, B_w_down)
    return h2
```

```python
import re
KN = "sequential_preLN__mha_block_cached__geglu_ffn__decode_kernel"

TRANS = ("v_exp_f32", "v_log_f32", "v_rcp_f32", "v_rsq_f32", "v_sqrt_f32", "v_sin_f32", "v_cos_f32", "v_rcp_iflag_f32")

def _regs(tok):
    tok = tok.strip()
    neg = tok.lstrip("-")
    m = re.fullmatch(r"(?:abs\()?([vas])(\d+)\)?", neg)
    if m:
        return {(m.group(1), int(m.group(2)))}
    m = re.fullmatch(r"([vas])\[(\d+):(\d+)\]", neg)
    if m:
        return {(m.group(1), i) for i in range(int(m.group(2)), int(m.group(3)) + 1)}
    if neg == "vcc":
        return {("s", 106), ("s", 107)}
    if neg == "vcc_lo":
        return {("s", 106)}
    if neg == "vcc_hi":
        return {("s", 107)}
    if neg == "exec":
        return {("s", 126), ("s", 127)}
    if neg == "m0":
        return {("s", 124)}
    return set()

class Ins:
    def __init__(self, line):
        self.line = line
        body = line.split(";")[0].strip()
        self.body = body
        self.is_label = body.endswith(":")
        self.is_dir = body.startswith(".")
        self.op = ""
        self.ops = []
        self.mods = ""
        if not body or self.is_label or self.is_dir:
            return
        parts = body.split(None, 1)
        self.op = parts[0]
        rest = parts[1] if len(parts) > 1 else ""
        toks = []
        depth = 0
        cur = ""
        for ch in rest:
            if ch == "[":
                depth += 1
            if ch == "]":
                depth -= 1
            if ch == "," and depth == 0:
                toks.append(cur.strip()); cur = ""
            else:
                cur += ch
        if cur.strip():
            toks.append(cur.strip())
        if toks:
            last = toks[-1].split(None, 1)
            toks[-1] = last[0]
            self.mods = last[1] if len(last) > 1 else ""
        self.ops = toks
        self.classify()
    def classify(self):
        op = self.op
        o = self.ops
        self.valu = op.startswith("v_") and not op.startswith("v_mfma")
        self.mfma = op.startswith("v_mfma")
        self.salu = op.startswith("s_")
        self.ds = op.startswith("ds_")
        self.vmem = op.startswith("buffer_") or op.startswith("global_")
        self.dpp = self.valu and ("row_" in self.mods or "quad_perm" in self.mods or op.endswith("_dpp"))
        self.trans = any(op.startswith(t) for t in TRANS)
        self.dot = op.startswith("v_dot")
        self.permlane = op.startswith("v_permlane")
        self.readlane = op.startswith("v_readlane") or op.startswith("v_readfirstlane")
        W = set(); R = set()
        if self.mfma:
            W |= _regs(o[0]); self.A = _regs(o[1]); self.B = _regs(o[2]); self.C = _regs(o[3])
            R |= self.A | self.B | self.C
        elif self.valu:
            if op.startswith("v_cmp"):
                W |= _regs(o[0])
                for t in o[1:]: R |= _regs(t)
                if op.startswith("v_cmpx"): W |= _regs("exec")
            elif self.permlane and "swap" in op:
                W |= _regs(o[0]) | _regs(o[1]); R |= _regs(o[0]) | _regs(o[1])
            elif op.startswith("v_add_co") or op.startswith("v_sub_co") or op.startswith("v_addc_co") or op.startswith("v_div_scale") or op.startswith("v_subb_co"):
                W |= _regs(o[0]) | _regs(o[1])
                for t in o[2:]: R |= _regs(t)
            else:
                W |= _regs(o[0])
                for t in o[1:]: R |= _regs(t)
                if op.startswith("v_fmac") or op.startswith("v_dot2c") or op.startswith("v_mac") or self.dpp or op.startswith("v_writelane"):
                    R |= _regs(o[0])
                if op.startswith("v_cndmask") and len(o) == 3:
                    R |= _regs("vcc")
        elif self.ds:
            if op.startswith("ds_read") or op.startswith("ds_bpermute") or op.startswith("ds_permute") or op.startswith("ds_swizzle") or "_rtn" in op:
                W |= _regs(o[0])
                for t in o[1:]: R |= _regs(t)
            else:
                for t in o: R |= _regs(t)
        elif self.vmem:
            lds = " lds" in (" " + self.mods)
            if op in ("buffer_wbl2", "buffer_inv"):
                pass
            elif op.startswith("buffer_load") and lds:
                for t in o: R |= _regs(t)
                R |= _regs("m0")
            elif op.startswith("global_load_lds"):
                for t in o: R |= _regs(t)
                R |= _regs("m0")
            elif "_load" in op:
                W |= _regs(o[0])
                for t in o[1:]: R |= _regs(t)
            elif "atomic" in op:
                for t in o: R |= _regs(t)
                if "sc0" in self.mods:
                    W |= _regs(o[0])
            else:
                for t in o: R |= _regs(t)
        elif self.salu:
            if op.startswith("s_cmp") or op.startswith("s_cbranch") or op.startswith("s_branch") or op in ("s_waitcnt", "s_nop", "s_barrier", "s_endpgm", "s_sleep", "s_setprio"):
                for t in o: R |= _regs(t)
            else:
                if o:
                    W |= _regs(o[0])
                    for t in o[1:]: R |= _regs(t)
                if "saveexec" in op:
                    W |= _regs("exec"); R |= _regs("exec")
        self.W = W; self.R = R
        self.widestore = self.vmem and ("store_dwordx4" in op or "store_dwordx3" in op)
        self.store_data = set()
        if self.widestore:
            if op.startswith("buffer"):
                self.store_data = _regs(o[0])
            else:
                self.store_data = _regs(o[1])
    def states(self):
        if self.op == "s_nop":
            return int(self.ops[0], 0) + 1
        return 1

def is_vgpr(r): return r[0] in ("v", "a")

def need(prod, cons):
    n = 0
    pW = prod.W
    if not pW and not prod.widestore and not prod.mfma:
        return 0
    vW = {r for r in pW if is_vgpr(r)}
    sW = {r for r in pW if not is_vgpr(r)}
    if prod.mfma:
        D = vW
        if cons.mfma:
            if D & (cons.A | cons.B): n = max(n, 8)
            if D & cons.C:
                if cons.C == D: n = max(n, 0)
                else: n = max(n, 6)
            elif D & cons.W and cons.C != D: n = max(n, 8)
        else:
            if (D & cons.R) or (D & cons.W): n = max(n, 8)
        if cons.valu and (prod.C & cons.W): n = max(n, 3)
    if prod.valu:
        if cons.mfma and (vW & cons.R): n = max(n, 2)
        if cons.dpp and (vW & cons.R): n = max(n, 2)
        if cons.valu and cons.permlane and (vW & cons.R): n = max(n, 2)
        if cons.valu and cons.readlane and (vW & cons.R): n = max(n, 1)
        if prod.trans and cons.valu and not cons.trans and (vW & cons.R): n = max(n, 1)
        if prod.trans and cons.mfma and (vW & cons.R): n = max(n, 2)
        if prod.dot:
            if cons.op == prod.op:
                ab = set()
                for t in cons.ops[1:3]: ab |= _regs(t)
                if vW & ab: n = max(n, 3)
            elif (vW & cons.R) or (vW & cons.W): n = max(n, 3)
        if sW:
            if cons.valu and (sW & cons.R): n = max(n, 4 if cons.readlane else 2)
            if cons.vmem and (sW & cons.R): n = max(n, 5)
            if cons.salu and (sW & cons.R) and not cons.op.startswith("s_cbranch"): n = max(n, 1)
            if cons.dpp and (_regs("exec") & sW): n = max(n, 5)
        if "sdwa" in prod.op and cons.valu and (vW & cons.R): n = max(n, 1)
    if (prod.ds or prod.vmem) and vW:
        if cons.dpp and (vW & cons.R): n = max(n, 2)
    if prod.salu and (("s", 124) in sW):
        if cons.vmem and (("s", 124) in cons.R): n = max(n, 1)
    if prod.widestore:
        if (cons.valu or cons.mfma) and (prod.store_data & cons.W): n = max(n, 2)
        elif (prod.store_data & cons.W): n = max(n, 1)
    return n

class Asm:
    def __init__(self):
        self.L = []
        self.nlab = 0
    def __call__(self, s):
        for line in s.split("\n"):
            line = line.strip()
            if line:
                self.L.append(line)
    def c(self, s):
        self.L.append("; " + s)
    def label(self, name=None):
        if name is None:
            name = f"L{self.nlab}"
            self.nlab += 1
        return name
    def place(self, name):
        self.L.append(f"{name}:")
    def header(self, grid, block, lds, comments=()):
        for cmt in comments:
            self.L.append("; " + cmt)
        self.L.append(f"; @launch grid=({grid},1,1) block=({block},1,1) lds={lds}")
        self.L.append('.amdgcn_target "amdgcn-amd-amdhsa--gfx950"')
        self.L.append(".text")
        self.L.append(f".globl {KN}")
        self.L.append(".p2align 8")
        self.L.append(f".type {KN},@function")
        self.L.append(f"{KN}:")
    def footer(self, nvgpr, nsgpr, accum):
        self.L.append('.section .rodata,"a"')
        self.L.append(".p2align 6")
        self.L.append(f".amdhsa_kernel {KN}")
        self.L.append(f"  .amdhsa_next_free_vgpr {nvgpr}")
        self.L.append(f"  .amdhsa_next_free_sgpr {nsgpr}")
        self.L.append(f"  .amdhsa_accum_offset {accum}")
        self.L.append("  .amdhsa_group_segment_fixed_size 0")
        self.L.append("  .amdhsa_kernarg_size 96")
        self.L.append("  .amdhsa_user_sgpr_count 2")
        self.L.append("  .amdhsa_user_sgpr_kernarg_segment_ptr 1")
        self.L.append("  .amdhsa_system_sgpr_workgroup_id_x 1")
        self.L.append(".end_amdhsa_kernel")
    def fix_hazards(self, window=12):
        ins = [Ins(l) if not l.startswith(";") else None for l in self.L]
        labpos = {}
        for i, x in enumerate(ins):
            if x is not None and x.is_label:
                labpos[x.body[:-1]] = i
        jumps = {}
        for i, x in enumerate(ins):
            if x is not None and x.op and (x.op.startswith("s_cbranch") or x.op == "s_branch"):
                tgt = x.ops[0]
                if tgt in labpos:
                    jumps.setdefault(labpos[tgt], []).append(i)
        extra = {}
        def real(x): return x is not None and x.op != "" and not x.is_label and not x.is_dir
        def back_check(i, cons):
            req = 0
            stack = [(i - 1, 0)]
            seen = set()
            while stack:
                j, dist = stack.pop()
                while j >= 0 and dist < window:
                    if (j, dist) in seen: break
                    seen.add((j, dist))
                    x = ins[j]
                    if x is not None and x.is_label:
                        for b in jumps.get(j, []):
                            stack.append((b, dist))
                        j -= 1
                        continue
                    if not real(x):
                        j -= 1
                        continue
                    if x.op in ("s_branch", "s_endpgm") and j != i - 1 and not (j + 1 <= i - 1 and False):
                        pass
                    nd = need(x, cons)
                    if nd > dist:
                        req = max(req, nd - dist)
                    dist += x.states() + 0
                    dist += extra.get(j, 0)
                    if x.op in ("s_branch", "s_endpgm"):
                        pass
                    j -= 1
            return req
        for i, x in enumerate(ins):
            if not real(x): continue
            r = back_check(i, x)
            if r > 0:
                extra[i] = r
        out = []
        nn = 0
        for i, l in enumerate(self.L):
            if i in extra:
                k = extra[i]
                while k > 0:
                    t = min(k, 16)
                    out.append(f"s_nop {t-1}")
                    k -= t
                nn += 1
            out.append(l)
        self.L = out
        return nn
    def text(self):
        return "\n".join(self.L) + "\n"
```

```python
import sys
from asmlib import *

LDS_TILE = 0
LDS_WQ = 98304
LDS_SC = 131072
LDS_MISC = 147456
LDS_XN = LDS_MISC
LDS_Q = LDS_MISC + 2304
LDS_CNT = LDS_MISC + 2560
LDS_WM = LDS_MISC + 2624
LDS_WS = LDS_MISC + 2688
LDS_ORED = LDS_MISC + 4096
LDS_RED = LDS_SC
LDS_XN2 = LDS_MISC
LDS_BYTES = 163840

WS_QP = 0x000000
WS_SLOT = 0x100000
WS_OB = WS_SLOT + 0x00000
WS_OP = WS_SLOT + 0x10000
WS_H = WS_SLOT + 0x30000
WS_GU = WS_SLOT + 0x34000
WS_DP = WS_SLOT + 0x50000
WS_DBG = 0x200000
WS_SIZE = 0x400000

SPIN = 1 << 20

S_WG = 2
S_X, S_K, S_V, S_WQ, S_WO, S_BX, S_WG_, S_WU, S_WD, S_OUT, S_DBG, S_WS = 16, 18, 20, 22, 24, 26, 28, 30, 32, 34, 36, 38
R_K, R_V, R_X, R_WQ, R_WT, R_WS, R_DBG, R_OUT = 40, 44, 48, 52, 56, 60, 64, 68
S_WAVE, S_H, S_B, S_SW = 72, 73, 74, 75
S_T0, S_T1, S_T2, S_T3, S_T4, S_T5 = 76, 77, 78, 79, 80, 81
S_OFF, S_CNT, S_PITCH, S_NJ, S_ROLE = 82, 83, 84, 85, 86
S_M1, S_M2, S_M3 = 88, 90, 92
S_MJ8 = 94
S_EX = 96
S_STAMP = 4
def srd(r): return f"s[{r}:{r+3}]"

class Gen:
    def __init__(self, N=6, debug=False, stamps=False, stop_after=None):
        self.A = Asm()
        self.N = N
        self.debug = debug
        self.stamps = stamps
        self.stop_after = stop_after
        self.nstamp = 0

    def mk_srd(self, r, ptr, size, add_lo=None):
        A = self.A
        if add_lo is None:
            A(f"s_mov_b32 s{r}, s{ptr}")
            A(f"s_mov_b32 s{r+1}, s{ptr+1}")
        else:
            A(f"s_add_u32 s{r}, s{ptr}, {add_lo}")
            A(f"s_addc_u32 s{r+1}, s{ptr+1}, 0")
        A(f"s_mov_b32 s{r+2}, {size}")
        A(f"s_mov_b32 s{r+3}, 0x20000")

    def lds_signal(self, off, vtmp_a, vtmp_d):
        A = self.A
        A(f"s_mov_b64 s[{S_EX}:{S_EX+1}], exec")
        A(f"s_mov_b64 exec, 1")
        A(f"v_mov_b32 v{vtmp_a}, {off}")
        A(f"v_mov_b32 v{vtmp_d}, 1")
        A(f"ds_add_u32 v{vtmp_a}, v{vtmp_d}")
        A(f"s_mov_b64 exec, s[{S_EX}:{S_EX+1}]")

    def lds_wait(self, off, val, vtmp_a, vtmp_d):
        A = self.A
        lp = A.label(); ex = A.label()
        A(f"v_mov_b32 v{vtmp_a}, {off}")
        A(f"s_mov_b32 s{S_CNT}, 0")
        A.place(lp)
        A(f"ds_read_b32 v{vtmp_d}, v{vtmp_a}")
        A(f"s_waitcnt lgkmcnt(0)")
        A(f"v_readfirstlane_b32 s{S_T5}, v{vtmp_d}")
        A(f"s_cmp_ge_u32 s{S_T5}, {val}")
        A(f"s_cbranch_scc1 {ex}")
        A(f"s_add_u32 s{S_CNT}, s{S_CNT}, 1")
        A(f"s_cmp_gt_u32 s{S_CNT}, {SPIN*4}")
        A(f"s_cbranch_scc1 {ex}")
        A(f"s_sleep 1")
        A(f"s_branch {lp}")
        A.place(ex)

    def allreduce(self, v, t, op="v_add_f32"):
        A = self.A
        for r in (8, 4, 2, 1):
            A(f"{op}_dpp v{v}, v{v}, v{v} row_ror:{r} row_mask:0xf bank_mask:0xf")
        A(f"v_mov_b32 v{t}, v{v}")
        A(f"v_permlane16_swap_b32 v{v}, v{t}")
        A(f"{op} v{v}, v{v}, v{t}")
        A(f"v_mov_b32 v{t}, v{v}")
        A(f"v_permlane32_swap_b32 v{v}, v{t}")
        A(f"{op} v{v}, v{v}, v{t}")

    def rnd_bf16(self, d, s):
        A = self.A
        A(f"v_cvt_pk_bf16_f32 v{d}, v{s}, v{s}")
        A(f"v_lshlrev_b32 v{d}, 16, v{d}")

    def ln_stats(self, F, n, vs, vt, vmb, vrs):
        A = self.A
        A(f"v_add_f32 v{vs}, v{F[0]}, v{F[1]}")
        for f in F[2:]:
            A(f"v_add_f32 v{vs}, v{vs}, v{f}")
        self.allreduce(vs, vt)
        A(f"v_mul_f32 v{vs}, 0x3a800000, v{vs}")
        self.rnd_bf16(vmb, vs)
        A(f"v_sub_f32 v{vt}, v{F[0]}, v{vs}")
        A(f"v_mul_f32 v{vrs}, v{vt}, v{vt}")
        for f in F[1:]:
            A(f"v_sub_f32 v{vt}, v{f}, v{vs}")
            A(f"v_fmac_f32 v{vrs}, v{vt}, v{vt}")
        self.allreduce(vrs, vt)
        A(f"v_mul_f32 v{vrs}, 0x3a800000, v{vrs}")
        self.rnd_bf16(vrs, vrs)
        A(f"v_add_f32 v{vrs}, 0x3727c5ac, v{vrs}")
        self.rnd_bf16(vrs, vrs)
        A(f"v_sqrt_f32 v{vrs}, v{vrs}")
        self.rnd_bf16(vrs, vrs)
        A(f"v_rcp_f32 v{vrs}, v{vrs}")

    def ln_apply_pair(self, d, f0, f1, vmb, vrs, t0, t1):
        A = self.A
        A(f"v_sub_f32 v{t0}, v{f0}, v{vmb}")
        A(f"v_sub_f32 v{t1}, v{f1}, v{vmb}")
        A(f"v_cvt_pk_bf16_f32 v{t0}, v{t0}, v{t1}")
        A(f"v_and_b32 v{t1}, 0xffff0000, v{t0}")
        A(f"v_lshlrev_b32 v{t0}, 16, v{t0}")
        A(f"v_mul_f32 v{t0}, v{t0}, v{vrs}")
        A(f"v_mul_f32 v{t1}, v{t1}, v{vrs}")
        A(f"v_cvt_pk_bf16_f32 v{d}, v{t0}, v{t1}")

    def stamp(self, idx):
        if not self.stamps: return
        A = self.A
        A(f"s_memrealtime s[4:5]")
        A(f"s_waitcnt lgkmcnt(0)")
        A(f"s_lshl_b32 s6, s{S_WG}, 3")
        A(f"s_add_u32 s6, s6, s{S_WAVE}")
        A(f"s_lshl_b32 s6, s6, 7")
        A(f"s_add_u32 s6, s6, {WS_DBG + 0x100000 + idx*4}")
        A(f"s_mov_b64 s[8:9], exec")
        A(f"s_mov_b64 exec, 1")
        A(f"v_mov_b32 v250, s4")
        A(f"v_mov_b32 v251, 0")
        A(f"buffer_store_dword v250, v251, {srd(R_WS)}, s6 offen")
        A(f"s_mov_b64 exec, s[8:9]")

    def poll(self, loads, regs, tmp, mask=None):
        A = self.A
        lp = A.label(); ex = A.label()
        if mask is not None:
            A(f"s_mov_b64 exec, s[{mask}:{mask+1}]")
        A(f"s_mov_b32 s{S_CNT}, 0")
        A.place(lp)
        for l in loads: A(l)
        A("s_waitcnt vmcnt(0)")
        rs = list(regs)
        if len(rs) == 1:
            A(f"v_cmp_eq_u32 vcc, -1, v{rs[0]}")
        else:
            if len(rs) == 2:
                A(f"v_max_u32 v{tmp}, v{rs[0]}, v{rs[1]}")
                rs = []
            else:
                A(f"v_max3_u32 v{tmp}, v{rs[0]}, v{rs[1]}, v{rs[2]}")
                rs = rs[3:]
            while len(rs) >= 2:
                A(f"v_max3_u32 v{tmp}, v{tmp}, v{rs[0]}, v{rs[1]}")
                rs = rs[2:]
            if rs:
                A(f"v_max_u32 v{tmp}, v{tmp}, v{rs[0]}")
            A(f"v_cmp_eq_u32 vcc, -1, v{tmp}")
        A(f"s_cbranch_vccz {ex}")
        A(f"s_mov_b64 exec, vcc")
        A(f"s_add_u32 s{S_CNT}, s{S_CNT}, 1")
        A(f"s_cmp_gt_u32 s{S_CNT}, {SPIN}")
        A(f"s_cbranch_scc0 {lp}")
        A.place(ex)
        A(f"s_mov_b64 exec, -1")

    def entry(self):
        A = self.A
        A.header(256, 512, LDS_BYTES, comments=[
            "Fused decode layer: preLN + MHA over KV cache + out-proj + preLN + GEGLU FFN (single persistent launch, 256 WGs).",
        ])
        A(f"""
        s_cmp_ge_u32 s2, 256
        s_cbranch_scc1 L_end
        s_load_dwordx16 s[16:31], s[0:1], 0
        s_load_dwordx8 s[32:39], s[0:1], 64
        v_and_b32 v1, 63, v0
        v_lshrrev_b32 v4, 6, v0
        v_lshlrev_b32 v2, 4, v1
        v_readfirstlane_b32 s{S_WAVE}, v4
        v_lshlrev_b32 v3, 2, v1
        s_lshr_b32 s{S_H}, s2, 3
        s_and_b32 s{S_B}, s2, 7
        s_mov_b32 s{S_M1}, 0x22222222
        s_mov_b32 s{S_M1+1}, 0x22222222
        s_mov_b32 s{S_M2}, 0x44444444
        s_mov_b32 s{S_M2+1}, 0x44444444
        s_mov_b32 s{S_M3}, 0x88888888
        s_mov_b32 s{S_M3+1}, 0x88888888
        s_mov_b32 s{S_MJ8}, 0x00ff00ff
        s_mov_b32 s{S_MJ8+1}, 0x00ff00ff
        """)
        A(f"""
        v_mov_b32 v4, {LDS_CNT}
        v_mov_b32 v6, 0
        v_mov_b32 v7, 0
        ds_write_b64 v4, v[6:7]
        ds_write_b64 v4, v[6:7] offset:8
        s_waitcnt lgkmcnt(0)
        """)
        self.mk_srd(R_WS, S_WS, WS_SIZE)
        self.mk_srd(R_DBG, S_DBG, 256)
        self.role_params()
        A("s_barrier")
        self.stamp(0)
        A(f"""
        s_cmp_ge_u32 s{S_WAVE}, 4
        s_cbranch_scc1 L_stream
        """)

    def service(self):
        A = self.A
        A.c("==== service waves: LN(x), q partial, exchange ====")
        A(f"s_mov_b32 s{S_SW}, s{S_WAVE}")
        self.mk_srd(R_X, S_X, 16384)
        self.mk_srd(R_WQ, S_WQ, 8 << 20)
        A(f"s_lshl_b32 s{S_T0}, s{S_SW}, 12")
        A(f"buffer_load_dwordx4 v[8:11], v2, {srd(R_X)}, s{S_T0} offen")
        A(f"buffer_load_dwordx4 v[12:15], v2, {srd(R_X)}, s{S_T0} offen offset:1024")
        A(f"buffer_load_dwordx4 v[16:19], v2, {srd(R_X)}, s{S_T0} offen offset:2048")
        A(f"buffer_load_dwordx4 v[20:23], v2, {srd(R_X)}, s{S_T0} offen offset:3072")
        A(f"""
        v_lshrrev_b32 v4, 4, v1
        v_and_b32 v5, 15, v1
        s_lshr_b32 s{S_T0}, s{S_SW}, 1
        s_lshl_b32 s{S_T0}, s{S_T0}, 2
        v_or_b32 v6, s{S_T0}, v4
        v_lshlrev_b32 v6, 1, v6
        v_xor_b32 v6, v6, v5
        v_lshlrev_b32 v6, 4, v6
        v_lshlrev_b32 v7, 13, v4
        v_add_u32 v6, v6, v7
        s_lshl_b32 s{S_T0}, s{S_B}, 20
        s_lshl_b32 s{S_T1}, s{S_SW}, 15
        s_add_u32 s{S_T0}, s{S_T0}, s{S_T1}
        s_lshl_b32 s{S_T1}, s{S_H}, 8
        s_add_u32 s{S_T0}, s{S_T0}, s{S_T1}
        s_lshl_b32 s{S_T1}, s{S_SW}, 10
        s_add_u32 s{S_T1}, s{S_T1}, {LDS_WQ}
        """)
        for j in range(8):
            A(f"s_mov_b32 m0, s{S_T1}")
            A(f"buffer_load_dwordx4 v6, {srd(R_WQ)}, s{S_T0} offen nt lds")
            if j < 7:
                A(f"s_add_u32 s{S_T0}, s{S_T0}, {4*32768}")
                A(f"s_add_u32 s{S_T1}, s{S_T1}, 4096")
        A(f"""
        v_mov_b32 v24, -1
        v_mov_b32 v25, -1
        v_lshlrev_b32 v7, 3, v1
        s_lshl_b32 s{S_T0}, s2, 11
        s_lshl_b32 s{S_T1}, s{S_SW}, 9
        s_add_u32 s{S_T0}, s{S_T0}, s{S_T1}
        s_add_u32 s{S_T0}, s{S_T0}, {WS_SLOT}
        buffer_store_dwordx2 v[24:25], v7, {srd(R_WS)}, s{S_T0} offen sc0 sc1
        """)
        A("s_waitcnt vmcnt(9)")
        F = list(range(32, 48))
        VS, VT, VMB, VRS = 48, 49, 50, 51
        for r in range(2):
            base = 8 + 8 * r
            for i in range(8):
                A(f"v_lshlrev_b32 v{F[2*i]}, 16, v{base+i}")
                A(f"v_and_b32 v{F[2*i+1]}, 0xffff0000, v{base+i}")
            self.ln_stats(F, 16, VS, VT, VMB, VRS)
            lab = A.label()
            A(f"s_cmp_lt_u32 s{S_B}, 4")
            A(f"s_cbranch_scc1 {lab}")
            for i in range(8):
                A(f"v_mov_b32 v{F[i]}, v{F[8+i]}")
            A.place(lab)
            for i in range(4):
                self.ln_apply_pair(52 + i, F[2*i], F[2*i+1], VMB, VRS, 56, 57)
            A(f"""
            s_and_b32 s{S_T0}, s{S_B}, 3
            s_lshl_b32 s{S_T0}, s{S_T0}, 4
            s_mov_b64 s[{S_EX}:{S_EX+1}], 0xffff
            s_lshl_b64 s[{S_EX}:{S_EX+1}], s[{S_EX}:{S_EX+1}], s{S_T0}
            s_lshl_b32 s{S_T1}, s{S_SW}, 1
            s_add_u32 s{S_T1}, s{S_T1}, {r}
            s_mul_i32 s{S_T1}, s{S_T1}, 272
            s_add_u32 s{S_T1}, s{S_T1}, {LDS_XN}
            v_and_b32 v58, 15, v1
            v_lshlrev_b32 v58, 4, v58
            v_add_u32 v58, s{S_T1}, v58
            s_mov_b64 exec, s[{S_EX}:{S_EX+1}]
            ds_write_b128 v58, v[52:55]
            s_mov_b64 exec, -1
            """)
        A("s_waitcnt vmcnt(1) lgkmcnt(0)")
        self.lds_signal(LDS_CNT + 0, 124, 125)
        self.lds_wait(LDS_CNT + 0, 4, 124, 125)
        A(f"""
        v_and_b32 v58, 7, v1
        v_mul_u32_u24 v58, 272, v58
        v_lshrrev_b32 v59, 4, v1
        v_lshlrev_b32 v60, 4, v59
        v_add_u32 v58, v58, v60
        v_add_u32 v58, {LDS_XN}, v58
        """)
        for s in range(4):
            A(f"ds_read_b128 v[{64+4*s}:{67+4*s}], v58 offset:{s*64}")
        A(f"""
        v_and_b32 v60, 15, v1
        v_lshrrev_b32 v61, 2, v60
        v_and_b32 v62, 3, v60
        v_and_b32 v63, 1, v59
        v_lshlrev_b32 v63, 2, v63
        v_or_b32 v63, v63, v61
        v_lshlrev_b32 v80, 3, v59
        v_add_u32 v80, v80, v61
        v_lshlrev_b32 v80, 8, v80
        v_lshlrev_b32 v62, 3, v62
        v_add_u32 v80, v80, v62
        v_add_u32 v80, {LDS_WQ}, v80
        s_lshl_b32 s{S_T0}, s{S_SW}, 1
        v_xor_b32 v81, s{S_T0}, v63
        v_lshlrev_b32 v81, 5, v81
        v_add_u32 v81, v81, v80
        s_add_u32 s{S_T0}, s{S_T0}, 1
        v_xor_b32 v82, s{S_T0}, v63
        v_lshlrev_b32 v82, 5, v82
        v_add_u32 v82, v82, v80
        """)
        for c in range(2):
            for s in range(4):
                r = 84 + (c * 4 + s) * 4
                A(f"ds_read_b64_tr_b16 v[{r}:{r+1}], v{81+c} offset:{s*8192}")
                A(f"ds_read_b64_tr_b16 v[{r+2}:{r+3}], v{81+c} offset:{s*8192+1024}")
        A("s_waitcnt lgkmcnt(0)")
        self.lds_signal(LDS_CNT + 4, 124, 125)
        for c in range(2):
            for s in range(4):
                r = 84 + (c * 4 + s) * 4
                acc = 116 + 4 * c
                src = "0" if s == 0 else f"v[{acc}:{acc+3}]"
                A(f"v_mfma_f32_16x16x32_bf16 v[{acc}:{acc+3}], v[{r}:{r+3}], v[{64+4*s}:{67+4*s}], {src}")
        A(f"""
        v_and_b32 v58, 15, v1
        v_lshlrev_b32 v58, 12, v58
        v_lshlrev_b32 v60, 4, v59
        v_add_u32 v58, v58, v60
        s_lshl_b32 s{S_T0}, s{S_H}, 15
        s_lshl_b32 s{S_T1}, s{S_B}, 9
        s_add_u32 s{S_T0}, s{S_T0}, s{S_T1}
        s_lshl_b32 s{S_T1}, s{S_SW}, 7
        s_add_u32 s{S_T0}, s{S_T0}, s{S_T1}
        s_mov_b64 exec, s[{S_MJ8}:{S_MJ8+1}]
        buffer_store_dwordx4 v[116:119], v58, {srd(R_WS)}, s{S_T0} offen sc0 sc1
        buffer_store_dwordx4 v[120:123], v58, {srd(R_WS)}, s{S_T0} offen offset:64 sc0 sc1
        s_mov_b64 exec, -1
        s_waitcnt vmcnt(0)
        """)
        self.lds_signal(LDS_CNT + 8, 124, 125)
        A(f"s_cmp_eq_u32 s{S_SW}, 0")
        A(f"s_cbranch_scc0 L_svc_done")
        self.lds_wait(LDS_CNT + 8, 4, 124, 125)
        self.stamp(1)
        A(f"""
        v_mov_b32 v58, s2
        v_mov_b32 v59, 1
        s_mov_b64 exec, 1
        buffer_store_byte v59, v58, {srd(R_DBG)}, 0 offen sc0 sc1
        s_mov_b64 exec, -1
        """)
        lp = A.label(); ex = A.label()
        A(f"""
        s_lshl_b32 s{S_T0}, s{S_H}, 3
        v_mov_b32 v58, 0
        s_mov_b32 s{S_CNT}, 0
        """)
        A.place(lp)
        A(f"""
        buffer_load_dwordx2 v[60:61], v58, {srd(R_DBG)}, s{S_T0} offen sc0 sc1
        s_waitcnt vmcnt(0)
        v_and_b32 v60, v60, v61
        v_cmp_eq_u32 vcc, 0x01010101, v60
        s_cbranch_vccnz {ex}
        s_add_u32 s{S_CNT}, s{S_CNT}, 1
        s_cmp_gt_u32 s{S_CNT}, {SPIN}
        s_cbranch_scc0 {lp}
        """)
        A.place(ex)
        A(f"s_lshl_b32 s{S_T0}, s2, 12")
        for j in range(4):
            A(f"buffer_load_dwordx4 v[{64+4*j}:{67+4*j}], v2, {srd(R_WS)}, s{S_T0} offen offset:{j*1024} sc0 sc1")
        A("s_waitcnt vmcnt(0)")
        for e in range(4):
            A(f"v_add_f32 v{64+e}, v{64+e}, v{68+e}")
            A(f"v_add_f32 v{72+e}, v{72+e}, v{76+e}")
        for e in range(4):
            A(f"v_add_f32 v{64+e}, v{64+e}, v{72+e}")
        for e in range(4):
            A(f"v_mov_b32 v{68+e}, v{64+e}")
        for e in range(4):
            A(f"v_permlane32_swap_b32 v{64+e}, v{68+e}")
        for e in range(4):
            A(f"v_add_f32 v{64+e}, v{64+e}, v{68+e}")
        A(f"""
        v_cvt_pk_bf16_f32 v64, v64, v65
        v_cvt_pk_bf16_f32 v65, v66, v67
        v_and_b32 v58, 31, v1
        v_lshlrev_b32 v58, 3, v58
        v_add_u32 v58, {LDS_Q}, v58
        ds_write_b64 v58, v[64:65]
        s_waitcnt lgkmcnt(0)
        """)
        self.lds_signal(LDS_CNT + 12, 124, 125)
        self.stamp(2)
        if self.debug:
            A(f"""
            v_and_b32 v58, 31, v1
            v_lshlrev_b32 v58, 3, v58
            s_lshl_b32 s{S_T0}, s2, 8
            s_add_u32 s{S_T0}, s{S_T0}, {WS_DBG}
            buffer_store_dwordx2 v[64:65], v58, {srd(R_WS)}, s{S_T0} offen
            """)
        lp = A.label(); ex = A.label()
        A(f"s_mov_b32 s{S_CNT}, 0")
        A.place(lp)
        A(f"""
        buffer_load_dword v60, v3, {srd(R_DBG)}, 0 offen sc0 sc1
        s_waitcnt vmcnt(0)
        v_cmp_ne_u32 vcc, 0x01010101, v60
        s_cbranch_vccz {ex}
        s_add_u32 s{S_CNT}, s{S_CNT}, 1
        s_cmp_gt_u32 s{S_CNT}, {SPIN}
        s_cbranch_scc1 {ex}
        s_sleep 8
        s_branch {lp}
        """)
        A.place(ex)
        A.place("L_svc_done")
        A("s_barrier")
        A("s_barrier")
        A("s_branch L_join3")

    def role_params(self):
        A = self.A
        lG, lD, lN, lE = A.label(), A.label(), A.label(), A.label()
        A(f"""
        s_cmp_ge_u32 s2, 64
        s_cbranch_scc1 {lG}
        s_mov_b32 s{S_ROLE}, 0
        s_mov_b32 s{S_PITCH}, 2048
        s_mov_b32 s{S_NJ}, 32
        s_lshr_b32 s{S_T0}, s2, 4
        s_lshl_b32 s{S_T0}, s{S_T0}, 21
        s_and_b32 s{S_T1}, s2, 15
        s_lshl_b32 s{S_T1}, s{S_T1}, 7
        s_add_u32 s{S_T0}, s{S_T0}, s{S_T1}
        s_add_u32 s{R_WT}, s{S_WO}, s{S_T0}
        s_addc_u32 s{R_WT+1}, s{S_WO+1}, 0
        s_sub_u32 s{R_WT+2}, {8<<20}, s{S_T0}
        s_branch {lE}
        """)
        A.place(lG)
        A(f"""
        s_cmp_ge_u32 s2, 176
        s_cbranch_scc1 {lD}
        s_mov_b32 s{S_ROLE}, 1
        s_mov_b32 s{S_PITCH}, 7168
        s_mov_b32 s{S_NJ}, 32
        s_sub_u32 s{S_T0}, s2, 64
        s_lshr_b32 s{S_T1}, s{S_T0}, 1
        s_lshl_b32 s{S_T1}, s{S_T1}, 7
        s_bitcmp1_b32 s{S_T0}, 0
        s_cselect_b32 s{S_T2}, s{S_WU}, s{S_WG_}
        s_cselect_b32 s{S_T3}, s{S_WU+1}, s{S_WG_+1}
        s_add_u32 s{R_WT}, s{S_T2}, s{S_T1}
        s_addc_u32 s{R_WT+1}, s{S_T3}, 0
        s_sub_u32 s{R_WT+2}, {7340032}, s{S_T1}
        s_branch {lE}
        """)
        A.place(lD)
        A(f"""
        s_cmp_ge_u32 s2, 240
        s_cbranch_scc1 {lN}
        s_mov_b32 s{S_ROLE}, 2
        s_mov_b32 s{S_PITCH}, 2048
        s_mov_b32 s{S_NJ}, 28
        s_sub_u32 s{S_T0}, s2, 176
        s_lshr_b32 s{S_T1}, s{S_T0}, 4
        s_mul_i32 s{S_T1}, s{S_T1}, {896*2048}
        s_and_b32 s{S_T0}, s{S_T0}, 15
        s_lshl_b32 s{S_T0}, s{S_T0}, 7
        s_add_u32 s{S_T0}, s{S_T0}, s{S_T1}
        s_add_u32 s{R_WT}, s{S_WD}, s{S_T0}
        s_addc_u32 s{R_WT+1}, s{S_WD+1}, 0
        s_sub_u32 s{R_WT+2}, {7340032}, s{S_T0}
        s_branch {lE}
        """)
        A.place(lN)
        A(f"""
        s_mov_b32 s{S_ROLE}, 3
        s_mov_b32 s{S_PITCH}, 2048
        s_mov_b32 s{S_NJ}, 0
        s_mov_b32 s{R_WT}, s{S_WD}
        s_mov_b32 s{R_WT+1}, s{S_WD+1}
        s_mov_b32 s{R_WT+2}, 0
        """)
        A.place(lE)
        A(f"s_mov_b32 s{R_WT+3}, 0x20000")

    RING = 64
    QF = 8
    def slot(self, t):
        r = self.RING + 4 * (t % 16)
        return r
    def issue(self, t, which):
        A = self.A
        r = self.slot(t)
        A(f"buffer_load_dwordx4 v[{r}:{r+3}], v2, {srd(R_K if which == 'K' else R_V)}, s{S_OFF} offen nt")
        A(f"s_add_u32 s{S_OFF}, s{S_OFF}, 4096")

    def k_block(self, mode):
        A = self.A
        N = self.N
        q = self.QF
        ACC = [12, 13, 14, 15]; B0, B1 = 16, 17; E = [18, 19, 20, 21]; M = 22; T = 23
        MX = 24; SA = 25
        perm = [0, 2, 1, 3]
        def reduce_group(c):
            a0, a1, a2, a3 = ACC
            e = E[c]
            A(f"v_add_f32_dpp v{B0}, v{a0}, v{a0} row_ror:8 row_mask:0xf bank_mask:0x3")
            A(f"v_add_f32_dpp v{B1}, v{a2}, v{a2} row_ror:8 row_mask:0xf bank_mask:0x3")
            A(f"v_add_f32_dpp v{B0}, v{a1}, v{a1} row_ror:8 row_mask:0xf bank_mask:0xc")
            A(f"v_add_f32_dpp v{B1}, v{a3}, v{a3} row_ror:8 row_mask:0xf bank_mask:0xc")
            A(f"v_add_f32_dpp v{e}, v{B0}, v{B0} row_half_mirror row_mask:0xf bank_mask:0x5")
            A(f"v_add_f32_dpp v{e}, v{B1}, v{B1} row_half_mirror row_mask:0xf bank_mask:0xa")
            A(f"v_add_f32_dpp v{e}, v{e}, v{e} quad_perm:[1,0,3,2] row_mask:0xf bank_mask:0xf")
            A(f"v_add_f32_dpp v{e}, v{e}, v{e} quad_perm:[2,3,0,1] row_mask:0xf bank_mask:0xf")
        for t in range(16):
            if mode == "first" and t < 16 - N:
                A(f"s_waitcnt vmcnt({15 - t})")
            else:
                A(f"s_waitcnt vmcnt({N-1})")
                if mode == "last" and t + N >= 16:
                    if t + N == 16:
                        A(f"s_lshl_b32 s{S_OFF}, s{S_SW}, 10")
                    self.issue(t + N, 'V')
                else:
                    self.issue(t + N, 'K')
            r = self.slot(t)
            a = ACC[t % 4]
            A(f"v_dot2_f32_bf16 v{a}, v{r}, v{q}, 0")
            A(f"v_dot2_f32_bf16 v{a}, v{r+1}, v{q+1}, v{a}")
            A(f"v_dot2_f32_bf16 v{a}, v{r+2}, v{q+2}, v{a}")
            A(f"v_dot2_f32_bf16 v{a}, v{r+3}, v{q+3}, v{a}")
            if t % 4 == 3:
                reduce_group(t // 4)
        A(f"v_cndmask_b32 v{M}, v{E[0]}, v{E[1]}, s[{S_M1}:{S_M1+1}]")
        A(f"v_cndmask_b32 v{M}, v{M}, v{E[2]}, s[{S_M2}:{S_M2+1}]")
        A(f"v_cndmask_b32 v{M}, v{M}, v{E[3]}, s[{S_M3}:{S_M3+1}]")
        self.rnd_bf16(M, M)
        A(f"v_mul_f32 v{M}, 0x3db504f3, v{M}")
        self.rnd_bf16(M, M)
        A(f"ds_write_b32 v{SA}, v{M}")
        A(f"v_max_f32 v{MX}, v{MX}, v{M}")
        A(f"v_add_u32 v{SA}, 256, v{SA}")

    def v_block(self, mode):
        A = self.A
        N = self.N
        P, PN = 12, 13
        PA = 14
        MK = [16, 17, 18, 19]
        BS = [[20, 21, 22, 23], [24, 25, 26, 27]]
        ACC = 28
        perm = [0, 2, 1, 3]
        A(f"s_waitcnt lgkmcnt(0)")
        A(f"v_mov_b32 v{P}, v{PN}")
        if mode != "last":
            A(f"ds_read_b32 v{PN}, v{PA}")
            A(f"v_add_u32 v{PA}, 256, v{PA}")
        for t in range(16):
            if mode == "first" and t < 16 - N:
                A(f"s_waitcnt vmcnt({15 - t})")
            elif mode == "last" and t + N >= 16:
                A(f"s_waitcnt vmcnt({15 - t})")
            else:
                A(f"s_waitcnt vmcnt({N-1})")
                self.issue(t + N, 'V')
            pos = t
            B = BS[t % 2]
            for j in range(4):
                A(f"v_and_b32_dpp v{B[j]}, v{P}, v{MK[j]} row_newbcast:{pos} row_mask:0xf bank_mask:0xf")
            r = self.slot(t)
            A(f"v_mfma_f32_16x16x32_bf16 v[{ACC}:{ACC+3}], v[{r}:{r+3}], v[{B[0]}:{B[3]}], v[{ACC}:{ACC+3}]")

    def stream(self):
        A = self.A
        N = self.N
        A.place("L_stream")
        A.c("==== stream waves ====")
        A(f"s_sub_u32 s{S_SW}, s{S_WAVE}, 4")
        A(f"""
        s_lshl_b32 s{S_T0}, s{S_B}, 5
        s_add_u32 s{S_T0}, s{S_T0}, s{S_H}
        s_lshl_b32 s{S_T0}, s{S_T0}, 20
        """)
        self.mk_srd(R_K, S_K, 1 << 20, f"s{S_T0}")
        self.mk_srd(R_V, S_V, 1 << 20, f"s{S_T0}")
        A(f"""
        v_lshrrev_b32 v4, 3, v1
        v_mul_lo_u32 v4, v4, s{S_PITCH}
        v_and_b32 v5, 7, v1
        v_lshrrev_b32 v6, 4, v1
        v_and_b32 v6, 1, v6
        v_lshlrev_b32 v6, 1, v6
        v_xor_b32 v5, v5, v6
        s_and_b32 s{S_T0}, s{S_SW}, 1
        s_lshl_b32 s{S_T0}, s{S_T0}, 2
        v_xor_b32 v5, s{S_T0}, v5
        v_lshlrev_b32 v5, 4, v5
        v_add_u32 v4, v4, v5
        s_lshl_b32 s{S_T0}, s{S_PITCH}, 3
        s_mul_i32 s{S_T1}, s{S_T0}, s{S_SW}
        s_lshl_b32 s{S_T0}, s{S_T0}, 2
        s_lshl_b32 s{S_T2}, s{S_SW}, 10
        s_mov_b32 s{S_T3}, 0
        """)
        lp1, lw, lp2, ld = A.label(), A.label(), A.label(), A.label()
        A(f"s_cmp_eq_u32 s{S_NJ}, 0")
        A(f"s_cbranch_scc1 {ld}")
        A.place(lp1)
        A(f"""
        s_mov_b32 m0, s{S_T2}
        s_waitcnt vmcnt({N-1})
        buffer_load_dwordx4 v4, {srd(R_WT)}, s{S_T1} offen nt lds
        s_add_u32 s{S_T1}, s{S_T1}, s{S_T0}
        s_add_u32 s{S_T2}, s{S_T2}, 4096
        s_add_u32 s{S_T3}, s{S_T3}, 1
        s_cmp_lt_u32 s{S_T3}, 24
        s_cbranch_scc1 {lp1}
        """)
        self.lds_wait(LDS_CNT + 4, 4, 6, 7)
        A.place(lp2)
        A(f"""
        s_mov_b32 m0, s{S_T2}
        s_waitcnt vmcnt({N-1})
        buffer_load_dwordx4 v4, {srd(R_WT)}, s{S_T1} offen nt lds
        s_add_u32 s{S_T1}, s{S_T1}, s{S_T0}
        s_add_u32 s{S_T2}, s{S_T2}, 4096
        s_add_u32 s{S_T3}, s{S_T3}, 1
        s_cmp_lt_u32 s{S_T3}, s{S_NJ}
        s_cbranch_scc1 {lp2}
        """)
        A.place(ld)
        A(f"s_lshl_b32 s{S_OFF}, s{S_SW}, 10")
        for t in range(16):
            A(f"s_waitcnt vmcnt({N-1})")
            self.issue(t, 'K')
        self.lds_wait(LDS_CNT + 12, 1, 6, 7)
        self.stamp(3)
        A(f"""
        v_and_b32 v6, 15, v1
        v_lshlrev_b32 v6, 4, v6
        v_add_u32 v6, {LDS_Q}, v6
        ds_read_b128 v[8:11], v6
        v_mov_b32 v24, 0xff800000
        """)
        A(f"""
        v_and_b32 v6, 3, v1
        v_lshlrev_b32 v6, 2, v6
        v_bfe_u32 v7, v1, 2, 1
        v_lshlrev_b32 v7, 1, v7
        v_bfe_u32 v5, v1, 3, 1
        v_or_b32 v7, v7, v5
        v_add_u32 v6, v6, v7
        v_and_b32 v7, 48, v1
        v_add_u32 v6, v6, v7
        v_lshlrev_b32 v6, 2, v6
        s_lshl_b32 s{S_T0}, s{S_SW}, 12
        s_add_u32 s{S_T0}, s{S_T0}, {LDS_SC}
        v_add_u32 v25, s{S_T0}, v6
        s_waitcnt lgkmcnt(0)
        """)
        self.k_block("first")
        lp = A.label()
        A(f"s_mov_b32 s{S_T3}, 0")
        A.place(lp)
        self.k_block("mid")
        A(f"s_add_u32 s{S_T3}, s{S_T3}, 1")
        A(f"s_cmp_lt_u32 s{S_T3}, 14")
        A(f"s_cbranch_scc1 {lp}")
        self.k_block("last")
        for t in range(N, 16):
            self.issue(t, 'V')
        self.stamp(4)
        MX, T = 24, 23
        for r in (8, 4, 2, 1):
            A(f"v_max_f32_dpp v{MX}, v{MX}, v{MX} row_ror:{r} row_mask:0xf bank_mask:0xf")
        A(f"""
        v_lshrrev_b32 v6, 4, v1
        v_lshlrev_b32 v6, 2, v6
        s_lshl_b32 s{S_T0}, s{S_SW}, 4
        v_add_u32 v6, s{S_T0}, v6
        v_add_u32 v7, {LDS_WM}, v6
        ds_write_b32 v7, v{MX}
        s_waitcnt lgkmcnt(0)
        s_barrier
        v_mov_b32 v7, {LDS_WM}
        ds_read_b128 v[32:35], v7
        ds_read_b128 v[36:39], v7 offset:16
        ds_read_b128 v[40:43], v7 offset:32
        ds_read_b128 v[44:47], v7 offset:48
        s_lshl_b32 s{S_T0}, s{S_SW}, 12
        s_add_u32 s{S_T0}, s{S_T0}, {LDS_SC}
        v_add_u32 v14, s{S_T0}, v3
        """)
        for i in range(16):
            A(f"ds_read_b32 v{48+i}, v14 offset:{i*256}")
        A("s_waitcnt lgkmcnt(0)")
        A(f"v_max3_f32 v{MX}, v32, v33, v34")
        for i in range(35, 47, 2):
            A(f"v_max3_f32 v{MX}, v{MX}, v{i}, v{i+1}")
        A(f"v_max_f32 v{MX}, v{MX}, v47")
        A(f"s_mov_b32 s{S_T1}, 0x3fb8aa3b")
        for i in range(16):
            A(f"v_sub_f32 v{48+i}, v{48+i}, v{MX}")
        for i in range(16):
            A(f"v_mul_f32 v{48+i}, s{S_T1}, v{48+i}")
        for i in range(16):
            A(f"v_exp_f32 v{48+i}, v{48+i}")
        A(f"v_add_f32 v{T}, v48, v49")
        for i in range(2, 16):
            A(f"v_add_f32 v{T}, v{T}, v{48+i}")
        for r in (8, 4, 2, 1):
            A(f"v_add_f32_dpp v{T}, v{T}, v{T} row_ror:{r} row_mask:0xf bank_mask:0xf")
        A(f"""
        v_add_u32 v7, {LDS_WS}, v6
        ds_write_b32 v7, v{T}
        s_waitcnt lgkmcnt(0)
        s_barrier
        v_mov_b32 v7, {LDS_WS}
        ds_read_b128 v[32:35], v7
        ds_read_b128 v[36:39], v7 offset:16
        ds_read_b128 v[40:43], v7 offset:32
        ds_read_b128 v[44:47], v7 offset:48
        s_waitcnt lgkmcnt(0)
        """)
        for i in range(0, 16, 2):
            A(f"v_add_f32 v{32+i}, v{32+i}, v{33+i}")
        for i in range(0, 16, 4):
            A(f"v_add_f32 v{32+i}, v{32+i}, v{34+i}")
        A(f"v_add_f32 v32, v32, v36")
        A(f"v_add_f32 v40, v40, v44")
        A(f"v_add_f32 v32, v32, v40")
        A(f"v_rcp_f32 v32, v32")
        for i in range(16):
            A(f"v_mul_f32 v{48+i}, v{48+i}, v32")
        for i in range(16):
            A(f"v_cvt_pk_bf16_f32 v{48+i}, v{48+i}, v{48+i}")
        for i in range(16):
            A(f"ds_write_b32 v14, v{48+i} offset:{i*256}")
        A(f"""
        v_and_b32 v6, 15, v1
        v_lshrrev_b32 v7, 1, v6
        v_and_b32 v5, 1, v6
        v_lshlrev_b32 v5, 4, v5
        v_mov_b32 v4, 0xffff
        v_lshlrev_b32 v4, v5, v4
        """)
        for j in range(4):
            A(f"v_cmp_eq_u32 vcc, {j}, v7")
            A(f"v_cndmask_b32 v{16+j}, 0, v4, vcc")
        A(f"""
        v_mov_b32 v28, 0
        v_mov_b32 v29, 0
        v_mov_b32 v30, 0
        v_mov_b32 v31, 0
        s_waitcnt lgkmcnt(0)
        ds_read_b32 v13, v14
        v_add_u32 v14, 256, v14
        """)
        self.stamp(5)
        self.v_block("first")
        lp = A.label()
        A(f"s_mov_b32 s{S_T3}, 0")
        A.place(lp)
        self.v_block("mid")
        A(f"s_add_u32 s{S_T3}, s{S_T3}, 1")
        A(f"s_cmp_lt_u32 s{S_T3}, 14")
        A(f"s_cbranch_scc1 {lp}")
        self.v_block("last")
        A(f"""
        v_lshrrev_b32 v6, 4, v1
        v_lshlrev_b32 v6, 7, v6
        v_and_b32 v7, 15, v1
        v_lshlrev_b32 v7, 2, v7
        v_add_u32 v6, v6, v7
        s_lshl_b32 s{S_T0}, s{S_SW}, 9
        s_add_u32 s{S_T0}, s{S_T0}, {LDS_ORED}
        v_add_u32 v6, s{S_T0}, v6
        s_mov_b64 exec, s[{S_MJ8}:{S_MJ8+1}]
        ds_write_b32 v6, v28
        ds_write_b32 v6, v29 offset:32
        ds_write_b32 v6, v30 offset:64
        ds_write_b32 v6, v31 offset:96
        s_mov_b64 exec, -1
        s_waitcnt lgkmcnt(0)
        """)
        self.stamp(6)
        A.place("L_join3")
        A("s_barrier")

    def tile_afrags(self, base):
        A = self.A
        A(f"""
        v_lshrrev_b32 v4, 4, v1
        v_and_b32 v5, 15, v1
        v_lshrrev_b32 v6, 2, v5
        v_and_b32 v5, 3, v5
        v_lshrrev_b32 v7, 1, v6
        v_and_b32 v8, 1, v4
        v_lshlrev_b32 v8, 1, v8
        v_or_b32 v7, v7, v8
        v_lshlrev_b32 v8, 3, v4
        v_add_u32 v8, v8, v6
        v_lshlrev_b32 v8, 7, v8
        v_lshlrev_b32 v5, 3, v5
        v_add_u32 v8, v8, v5
        s_lshl_b32 s{S_T0}, s{S_WAVE}, 14
        v_add_u32 v8, s{S_T0}, v8
        """)
        for cb in range(4):
            A(f"v_xor_b32 v{9+cb}, {cb}, v7")
            A(f"v_lshlrev_b32 v{9+cb}, 5, v{9+cb}")
            A(f"v_add_u32 v{9+cb}, v{9+cb}, v8")
        for s in range(4):
            for cb in range(4):
                r = base + (s * 4 + cb) * 4
                A(f"ds_read_b64_tr_b16 v[{r}:{r+1}], v{9+cb} offset:{s*4096}")
                A(f"ds_read_b64_tr_b16 v[{r+2}:{r+3}], v{9+cb} offset:{s*4096+512}")

    def mfma16(self, abase, bregs, acc):
        A = self.A
        for s in range(4):
            for cb in range(4):
                r = abase + (s * 4 + cb) * 4
                a = acc + 4 * cb
                src = "0" if s == 0 else f"v[{a}:{a+3}]"
                A(f"v_mfma_f32_16x16x32_bf16 v[{a}:{a+3}], v[{r}:{r+3}], v[{bregs[s]}:{bregs[s]+3}], {src}")

    def red_write(self, acc):
        A = self.A
        A(f"""
        v_and_b32 v4, 15, v1
        v_lshrrev_b32 v5, 4, v1
        s_lshl_b32 s{S_T0}, s{S_WAVE}, 11
        s_add_u32 s{S_T0}, s{S_T0}, {LDS_RED}
        v_lshlrev_b32 v6, 8, v4
        v_add_u32 v6, s{S_T0}, v6
        s_mov_b64 exec, s[{S_MJ8}:{S_MJ8+1}]
        """)
        for cb in range(4):
            A(f"v_add_u32 v7, {4*cb}, v5")
            A(f"v_xor_b32 v7, v7, v4")
            A(f"v_lshlrev_b32 v7, 4, v7")
            A(f"v_add_u32 v7, v7, v6")
            A(f"ds_write_b128 v7, v[{acc+4*cb}:{acc+4*cb+3}]")
        A("s_mov_b64 exec, -1")
        A("s_waitcnt lgkmcnt(0)")
        A("s_barrier")

    def red_sum(self, nw, dst):
        A = self.A
        A(f"""
        v_lshrrev_b32 v4, 2, v1
        v_xor_b32 v4, s{S_WAVE}, v4
        v_lshlrev_b32 v4, 4, v4
        v_and_b32 v5, 3, v1
        v_lshlrev_b32 v5, 2, v5
        v_add_u32 v4, v4, v5
        s_lshl_b32 s{S_T0}, s{S_WAVE}, 8
        s_add_u32 s{S_T0}, s{S_T0}, {LDS_RED}
        v_add_u32 v4, s{S_T0}, v4
        """)
        for v in range(nw):
            A(f"ds_read_b32 v{dst+v}, v4 offset:{v*2048}")
        A("s_waitcnt lgkmcnt(0)")
        regs = [dst + v for v in range(nw)]
        while len(regs) > 1:
            nxt = []
            for i in range(0, len(regs) - 1, 2):
                A(f"v_add_f32 v{regs[i]}, v{regs[i]}, v{regs[i+1]}")
                nxt.append(regs[i])
            if len(regs) % 2: nxt.append(regs[-1])
            regs = nxt

    def tail(self):
        A = self.A
        A.c("==== o publish (wave 0) ====")
        lskip = A.label()
        A(f"s_cmp_eq_u32 s{S_WAVE}, 0")
        A(f"s_cbranch_scc0 {lskip}")
        A(f"""
        v_lshlrev_b32 v4, 3, v1
        v_add_u32 v4, {LDS_ORED}, v4
        ds_read_b64 v[8:9], v4
        ds_read_b64 v[10:11], v4 offset:512
        ds_read_b64 v[12:13], v4 offset:1024
        ds_read_b64 v[14:15], v4 offset:1536
        s_waitcnt lgkmcnt(0)
        v_add_f32 v8, v8, v10
        v_add_f32 v9, v9, v11
        v_add_f32 v12, v12, v14
        v_add_f32 v13, v13, v15
        v_add_f32 v8, v8, v12
        v_add_f32 v9, v9, v13
        v_cvt_pk_bf16_f32 v8, v8, v9
        v_min_u32 v8, -2, v8
        s_lshl_b32 s{S_T0}, s{S_B}, 13
        s_lshl_b32 s{S_T1}, s{S_H}, 8
        s_add_u32 s{S_T0}, s{S_T0}, s{S_T1}
        s_add_u32 s{S_T0}, s{S_T0}, {WS_OB}
        buffer_store_dword v8, v3, {srd(R_WS)}, s{S_T0} offen sc0 sc1
        """)
        A.place(lskip)
        self.stamp(7)
        if self.stop_after == "attn":
            A("s_branch L_end")
        A(f"""
        s_cmp_eq_u32 s{S_ROLE}, 0
        s_cbranch_scc1 L_roleO
        s_cmp_eq_u32 s{S_ROLE}, 1
        s_cbranch_scc1 L_roleG
        s_cmp_eq_u32 s{S_ROLE}, 2
        s_cbranch_scc1 L_roleD
        s_branch L_end
        """)
        self.role_O()
        self.role_G()
        self.role_D()

    def role_O(self):
        A = self.A
        A.place("L_roleO")
        AB = 64
        self.tile_afrags(AB)
        A(f"""
        v_and_b32 v4, 15, v1
        v_lshlrev_b32 v4, 13, v4
        v_lshrrev_b32 v5, 4, v1
        v_lshlrev_b32 v5, 4, v5
        v_add_u32 v16, v4, v5
        s_lshr_b32 s{S_T0}, s2, 4
        s_lshl_b32 s{S_T0}, s{S_T0}, 11
        s_lshl_b32 s{S_T1}, s{S_WAVE}, 8
        s_add_u32 s{S_T0}, s{S_T0}, s{S_T1}
        s_add_u32 s{S_T0}, s{S_T0}, {WS_OB}
        """)
        loads = [f"buffer_load_dwordx4 v[{32+4*s}:{35+4*s}], v16, {srd(R_WS)}, s{S_T0} offen offset:{s*64} sc0 sc1" for s in range(4)]
        self.poll(loads, range(32, 48), 17, mask=S_MJ8)
        self.stamp(8)
        A("s_waitcnt lgkmcnt(0)")
        self.mfma16(AB, [32, 36, 40, 44], 48)
        self.red_write(48)
        self.red_sum(8, 16)
        A(f"""
        v_min_u32 v16, -2, v16
        s_lshr_b32 s{S_T0}, s2, 4
        s_lshl_b32 s{S_T0}, s{S_T0}, 15
        s_lshl_b32 s{S_T1}, s{S_WAVE}, 12
        s_add_u32 s{S_T0}, s{S_T0}, s{S_T1}
        s_and_b32 s{S_T1}, s2, 15
        s_lshl_b32 s{S_T1}, s{S_T1}, 8
        s_add_u32 s{S_T0}, s{S_T0}, s{S_T1}
        s_add_u32 s{S_T0}, s{S_T0}, {WS_OP}
        buffer_store_dword v16, v3, {srd(R_WS)}, s{S_T0} offen sc0 sc1
        """)
        self.stamp(9)
        A("s_branch L_end")

    def role_G(self):
        A = self.A
        A.place("L_roleG")
        AB = 160
        self.tile_afrags(AB)
        self.mk_srd(R_X, S_X, 16384)
        A(f"""
        v_lshlrev_b32 v16, 3, v1
        s_lshl_b32 s{S_T0}, s{S_WAVE}, 11
        """)
        for q in range(4):
            A(f"buffer_load_dwordx2 v[{20+2*q}:{21+2*q}], v16, {srd(R_X)}, s{S_T0} offen offset:{q*512}")
        A(f"""
        s_lshl_b32 s{S_T0}, s{S_WAVE}, 12
        s_add_u32 s{S_T0}, s{S_T0}, {WS_OP}
        s_add_u32 s{S_T1}, s{S_T0}, 32768
        s_add_u32 s{S_T2}, s{S_T0}, 65536
        s_add_u32 s{S_T3}, s{S_T0}, 98304
        """)
        loads = []
        soff = [S_T0, S_T1, S_T2, S_T3]
        for ks in range(4):
            for q in range(4):
                r = 32 + (ks * 4 + q) * 4
                loads.append(f"buffer_load_dwordx4 v[{r}:{r+3}], v2, {srd(R_WS)}, s{soff[ks]} offen offset:{q*1024} sc0 sc1")
        self.poll(loads, range(32, 96), 17)
        self.stamp(8)
        F = list(range(96, 112))
        for q in range(4):
            for e in range(4):
                r0 = 32 + q * 4 + e
                A(f"v_add_f32 v{r0}, v{r0}, v{r0+16}")
                A(f"v_add_f32 v{r0+32}, v{r0+32}, v{r0+48}")
        for q in range(4):
            for e in range(4):
                r0 = 32 + q * 4 + e
                A(f"v_add_f32 v{r0}, v{r0}, v{r0+32}")
        for q in range(4):
            for p in range(2):
                r0 = 32 + q * 4 + 2 * p
                xr = 20 + 2 * q + p
                A(f"v_cvt_pk_bf16_f32 v17, v{r0}, v{r0+1}")
                A(f"v_lshlrev_b32 v18, 16, v17")
                A(f"v_and_b32 v17, 0xffff0000, v17")
                A(f"v_lshlrev_b32 v19, 16, v{xr}")
                A(f"v_and_b32 v28, 0xffff0000, v{xr}")
                A(f"v_add_f32 v18, v18, v19")
                A(f"v_add_f32 v17, v17, v28")
                A(f"v_cvt_pk_bf16_f32 v{xr}, v18, v17")
                A(f"v_lshlrev_b32 v{F[q*4+2*p]}, 16, v{xr}")
                A(f"v_and_b32 v{F[q*4+2*p+1]}, 0xffff0000, v{xr}")
        lph = A.label()
        A(f"s_cmp_eq_u32 s2, 64")
        A(f"s_cbranch_scc0 {lph}")
        A(f"""
        s_lshl_b32 s{S_T0}, s{S_WAVE}, 11
        s_add_u32 s{S_T0}, s{S_T0}, {WS_H}
        """)
        for q in range(4):
            A(f"v_min_u32 v28, -2, v{20+2*q}")
            A(f"v_min_u32 v29, -2, v{21+2*q}")
            A(f"buffer_store_dwordx2 v[28:29], v16, {srd(R_WS)}, s{S_T0} offen offset:{q*512} sc0 sc1")
        A.place(lph)
        VS, VT, VMB, VRS = 112, 113, 114, 115
        self.ln_stats(F, 16, VS, VT, VMB, VRS)
        A(f"""
        v_lshrrev_b32 v17, 1, v1
        s_lshl_b32 s{S_T0}, s{S_WAVE}, 1
        v_xor_b32 v17, s{S_T0}, v17
        v_lshlrev_b32 v17, 4, v17
        v_and_b32 v18, 1, v1
        v_lshlrev_b32 v18, 3, v18
        v_add_u32 v17, v17, v18
        s_lshl_b32 s{S_T0}, s{S_WAVE}, 11
        s_add_u32 s{S_T0}, s{S_T0}, {LDS_XN2}
        v_add_u32 v17, s{S_T0}, v17
        """)
        for q in range(4):
            self.ln_apply_pair(28, F[4*q], F[4*q+1], VMB, VRS, 18, 19)
            self.ln_apply_pair(29, F[4*q+2], F[4*q+3], VMB, VRS, 18, 19)
            A(f"ds_write_b64 v17, v[28:29] offset:{q*512}")
        A("s_waitcnt lgkmcnt(0)")
        A("s_barrier")
        A(f"""
        v_and_b32 v17, 7, v1
        v_lshrrev_b32 v18, 4, v1
        v_lshlrev_b32 v19, 11, v17
        s_lshl_b32 s{S_T0}, s{S_WAVE}, 8
        s_add_u32 s{S_T0}, s{S_T0}, {LDS_XN2}
        v_add_u32 v19, s{S_T0}, v19
        v_lshlrev_b32 v17, 1, v17
        """)
        for s in range(4):
            A(f"v_add_u32 v28, {4*s}, v18")
            A(f"v_xor_b32 v28, v28, v17")
            A(f"v_lshlrev_b32 v28, 4, v28")
            A(f"v_add_u32 v28, v28, v19")
            A(f"ds_read_b128 v[{32+4*s}:{35+4*s}], v28")
        A("s_waitcnt lgkmcnt(0)")
        self.mfma16(AB, [32, 36, 40, 44], 48)
        self.red_write(48)
        self.red_sum(8, 16)
        self.rnd_bf16(16, 16)
        lup = A.label()
        A(f"s_bitcmp1_b32 s2, 0")
        A(f"s_cbranch_scc1 {lup}")
        A(f"""
        v_mul_f32 v17, v16, v16
        v_mul_f32 v18, v17, v16
        v_mul_f32 v18, 0x3d372713, v18
        v_add_f32 v18, v16, v18
        v_mul_f32 v18, 0x3f4c422a, v18
        v_mul_f32 v18, 0x4038aa3b, v18
        v_min_f32 v18, 0x42700000, v18
        v_exp_f32 v18, v18
        v_add_f32 v19, 1.0, v18
        v_rcp_f32 v19, v19
        v_mul_f32 v18, v18, v19
        v_mul_f32 v16, v16, v18
        """)
        A.place(lup)
        A(f"""
        v_mov_b32_dpp v17, v16 quad_perm:[1,1,3,3] row_mask:0xf bank_mask:0xf
        v_cvt_pk_bf16_f32 v16, v16, v17
        v_min_u32 v16, -2, v16
        s_sub_u32 s{S_T0}, s2, 64
        s_and_b32 s{S_T1}, s{S_T0}, 1
        s_mul_i32 s{S_T1}, s{S_T1}, 57344
        s_lshr_b32 s{S_T0}, s{S_T0}, 1
        s_lshl_b32 s{S_T0}, s{S_T0}, 7
        s_add_u32 s{S_T0}, s{S_T0}, s{S_T1}
        s_mul_i32 s{S_T1}, s{S_WAVE}, 7168
        s_add_u32 s{S_T0}, s{S_T0}, s{S_T1}
        s_add_u32 s{S_T0}, s{S_T0}, {WS_GU}
        v_lshlrev_b32 v18, 1, v1
        s_mov_b32 s{S_T2}, 0x55555555
        s_mov_b32 s{S_T3}, 0x55555555
        s_mov_b64 exec, s[{S_T2}:{S_T3}]
        buffer_store_dword v16, v18, {srd(R_WS)}, s{S_T0} offen sc0 sc1
        s_mov_b64 exec, -1
        """)
        self.stamp(9)
        A("s_branch L_end")

    def role_D(self):
        A = self.A
        A.place("L_roleD")
        AB = 160
        lno = A.label()
        A(f"s_cmp_eq_u32 s{S_WAVE}, 7")
        A(f"s_cbranch_scc1 {lno}")
        self.tile_afrags(AB)
        A(f"""
        v_and_b32 v4, 15, v1
        v_mul_u32_u24 v4, 7168, v4
        v_lshrrev_b32 v5, 4, v1
        v_lshlrev_b32 v5, 4, v5
        v_add_u32 v16, v4, v5
        s_sub_u32 s{S_T0}, s2, 176
        s_lshr_b32 s{S_T0}, s{S_T0}, 4
        s_mul_i32 s{S_T0}, s{S_T0}, 1792
        s_lshl_b32 s{S_T1}, s{S_WAVE}, 8
        s_add_u32 s{S_T0}, s{S_T0}, s{S_T1}
        s_add_u32 s{S_T0}, s{S_T0}, {WS_GU}
        s_add_u32 s{S_T1}, s{S_T0}, 57344
        """)
        loads = [f"buffer_load_dwordx4 v[{32+4*s}:{35+4*s}], v16, {srd(R_WS)}, s{S_T0} offen offset:{s*64} sc0 sc1" for s in range(4)]
        loads += [f"buffer_load_dwordx4 v[{48+4*s}:{51+4*s}], v16, {srd(R_WS)}, s{S_T1} offen offset:{s*64} sc0 sc1" for s in range(4)]
        self.poll(loads, range(32, 64), 17, mask=S_MJ8)
        self.stamp(8)
        for i in range(16):
            g, u = 32 + i, 48 + i
            A(f"v_lshlrev_b32 v17, 16, v{g}")
            A(f"v_lshlrev_b32 v18, 16, v{u}")
            A(f"v_and_b32 v{g}, 0xffff0000, v{g}")
            A(f"v_and_b32 v{u}, 0xffff0000, v{u}")
            A(f"v_mul_f32 v17, v17, v18")
            A(f"v_mul_f32 v{g}, v{g}, v{u}")
            A(f"v_cvt_pk_bf16_f32 v{g}, v17, v{g}")
        A("s_waitcnt lgkmcnt(0)")
        self.mfma16(AB, [32, 36, 40, 44], 64)
        A(f"""
        v_and_b32 v4, 15, v1
        v_lshrrev_b32 v5, 4, v1
        s_lshl_b32 s{S_T0}, s{S_WAVE}, 11
        s_add_u32 s{S_T0}, s{S_T0}, {LDS_RED}
        v_lshlrev_b32 v6, 8, v4
        v_add_u32 v6, s{S_T0}, v6
        s_mov_b64 exec, s[{S_MJ8}:{S_MJ8+1}]
        """)
        for cb in range(4):
            A(f"v_add_u32 v7, {4*cb}, v5")
            A(f"v_xor_b32 v7, v7, v4")
            A(f"v_lshlrev_b32 v7, 4, v7")
            A(f"v_add_u32 v7, v7, v6")
            A(f"ds_write_b128 v7, v[{64+4*cb}:{67+4*cb}]")
        A("s_mov_b64 exec, -1")
        A("s_waitcnt lgkmcnt(0)")
        A.place(lno)
        A("s_barrier")
        self.red_sum(7, 16)
        lfin = A.label()
        A(f"""
        s_sub_u32 s{S_T2}, s2, 176
        s_lshr_b32 s{S_T3}, s{S_T2}, 4
        s_and_b32 s{S_T2}, s{S_T2}, 15
        s_lshl_b32 s{S_T0}, s{S_WAVE}, 12
        s_lshl_b32 s{S_T1}, s{S_T2}, 8
        s_add_u32 s{S_T0}, s{S_T0}, s{S_T1}
        s_add_u32 s{S_T0}, s{S_T0}, {WS_DP}
        s_cmp_eq_u32 s{S_T3}, 0
        s_cbranch_scc1 {lfin}
        v_min_u32 v16, -2, v16
        s_lshl_b32 s{S_T3}, s{S_T3}, 15
        s_add_u32 s{S_T0}, s{S_T0}, s{S_T3}
        buffer_store_dword v16, v3, {srd(R_WS)}, s{S_T0} offen sc0 sc1
        """)
        self.stamp(9)
        A("s_branch L_end")
        A.place(lfin)
        A(f"""
        s_add_u32 s{S_T1}, s{S_T0}, 32768
        s_add_u32 s{S_T3}, s{S_T0}, 65536
        s_add_u32 s{S_T4}, s{S_T0}, 98304
        s_lshl_b32 s{S_T0}, s{S_WAVE}, 11
        s_lshl_b32 s{S_T5}, s{S_T2}, 7
        s_add_u32 s{S_T0}, s{S_T0}, s{S_T5}
        v_lshrrev_b32 v18, 1, v1
        v_lshlrev_b32 v18, 2, v18
        s_add_u32 s{S_T2}, s{S_T0}, {WS_H}
        """)
        loads = [f"buffer_load_dword v20, v3, {srd(R_WS)}, s{S_T1} offen sc0 sc1",
                 f"buffer_load_dword v21, v3, {srd(R_WS)}, s{S_T3} offen sc0 sc1",
                 f"buffer_load_dword v22, v3, {srd(R_WS)}, s{S_T4} offen sc0 sc1",
                 f"buffer_load_dword v23, v18, {srd(R_WS)}, s{S_T2} offen sc0 sc1"]
        self.poll(loads, range(20, 24), 17)
        self.mk_srd(R_OUT, S_OUT, 16384)
        A(f"""
        v_add_f32 v16, v16, v20
        v_add_f32 v21, v21, v22
        v_add_f32 v16, v16, v21
        """)
        self.rnd_bf16(16, 16)
        A(f"""
        v_and_b32 v17, 1, v1
        v_cmp_eq_u32 vcc, 1, v17
        v_lshlrev_b32 v18, 16, v23
        v_and_b32 v19, 0xffff0000, v23
        v_cndmask_b32 v18, v18, v19, vcc
        v_add_f32 v16, v16, v18
        v_cvt_pk_bf16_f32 v16, v16, v16
        v_lshlrev_b32 v18, 1, v1
        buffer_store_short v16, v18, {srd(R_OUT)}, s{S_T0} offen
        """)
        self.stamp(9)

    def build(self):
        A = self.A
        self.entry_done = True
        self.entry()
        self.service()
        self.stream()
        self.tail()
        A.place("L_end")
        A("s_endpgm")
        A.footer(256, 100, 256)
        n = A.fix_hazards()
        return A.text()

if __name__ == "__main__":
    import argparse
    ap = argparse.ArgumentParser()
    ap.add_argument("-o", default="main.s")
    ap.add_argument("--N", type=int, default=6)
    ap.add_argument("--debug", action="store_true")
    ap.add_argument("--stamps", action="store_true")
    ap.add_argument("--stop", default=None)
    a = ap.parse_args()
    g = Gen(N=a.N, debug=a.debug, stamps=a.stamps, stop_after=a.stop)
    open(a.o, "w").write(g.build())
```

```python
import sys
from asmlib import *

LDS_TILE = 0
LDS_WQ = 98304
LDS_SC = 131072
LDS_MISC = 147456
LDS_XN = LDS_MISC
LDS_Q = LDS_MISC + 2304
LDS_CNT = LDS_MISC + 2560
LDS_WM = LDS_MISC + 2624
LDS_WS = LDS_MISC + 2688
LDS_ORED = LDS_MISC + 4096
LDS_RED = LDS_SC
LDS_XN2 = LDS_MISC
LDS_BYTES = 163840

WS_QP = 0x000000
WS_SLOT = 0x100000
WS_OB = WS_SLOT + 0x00000
WS_OP = WS_SLOT + 0x10000
WS_H = WS_SLOT + 0x30000
WS_GU = WS_SLOT + 0x34000
WS_DP = WS_SLOT + 0x50000
WS_FLAG = 0x180000
WS_EPOCH = 0x1F0000
WS_DBG = 0x200000
WS_SIZE = 0x400000

SPIN = 1 << 20

S_WG = 2
S_X, S_K, S_V, S_WQ, S_WO, S_BX, S_WG_, S_WU, S_WD, S_OUT, S_DBG, S_WS = 16, 18, 20, 22, 24, 26, 28, 30, 32, 34, 36, 38
R_K, R_V, R_X, R_WQ, R_WT, R_WS, R_DBG, R_OUT = 40, 44, 48, 52, 56, 60, 64, 68
S_WAVE, S_H, S_B, S_SW = 72, 73, 74, 75
S_T0, S_T1, S_T2, S_T3, S_T4, S_T5 = 76, 77, 78, 79, 80, 81
S_OFF, S_CNT, S_PITCH, S_NJ, S_ROLE = 82, 83, 84, 85, 86
S_M1, S_M2, S_M3 = 88, 90, 92
S_MJ8 = 94
S_EX = 96
S_TAG = 98
S_STAMP = 4
def srd(r): return f"s[{r}:{r+3}]"

class Gen:
    def __init__(self, N=6, NP=10, LP='sc1', debug=False, stamps=False, stop_after=None):
        self.A = Asm()
        self.N = N
        self.LP = LP
        self.NP = NP
        self.debug = debug
        self.stamps = stamps
        self.stop_after = stop_after
        self.nstamp = 0

    def mk_srd(self, r, ptr, size, add_lo=None):
        A = self.A
        if add_lo is None:
            A(f"s_mov_b32 s{r}, s{ptr}")
            A(f"s_mov_b32 s{r+1}, s{ptr+1}")
        else:
            A(f"s_add_u32 s{r}, s{ptr}, {add_lo}")
            A(f"s_addc_u32 s{r+1}, s{ptr+1}, 0")
        A(f"s_mov_b32 s{r+2}, {size}")
        A(f"s_mov_b32 s{r+3}, 0x20000")

    def lds_signal(self, off, vtmp_a, vtmp_d):
        A = self.A
        A(f"s_mov_b64 s[{S_EX}:{S_EX+1}], exec")
        A(f"s_mov_b64 exec, 1")
        A(f"v_mov_b32 v{vtmp_a}, {off}")
        A(f"v_mov_b32 v{vtmp_d}, 1")
        A(f"ds_add_u32 v{vtmp_a}, v{vtmp_d}")
        A(f"s_mov_b64 exec, s[{S_EX}:{S_EX+1}]")

    def lds_wait(self, off, val, vtmp_a, vtmp_d):
        A = self.A
        lp = A.label(); ex = A.label()
        A(f"v_mov_b32 v{vtmp_a}, {off}")
        A(f"s_mov_b32 s{S_CNT}, 0")
        A.place(lp)
        A(f"ds_read_b32 v{vtmp_d}, v{vtmp_a}")
        A(f"s_waitcnt lgkmcnt(0)")
        A(f"v_readfirstlane_b32 s{S_T5}, v{vtmp_d}")
        A(f"s_cmp_ge_u32 s{S_T5}, {val}")
        A(f"s_cbranch_scc1 {ex}")
        A(f"s_add_u32 s{S_CNT}, s{S_CNT}, 1")
        A(f"s_cmp_gt_u32 s{S_CNT}, {SPIN*4}")
        A(f"s_cbranch_scc1 {ex}")
        A(f"s_sleep 1")
        A(f"s_branch {lp}")
        A.place(ex)

    def allreduce(self, v, t, op="v_add_f32"):
        A = self.A
        for r in (8, 4, 2, 1):
            A(f"{op}_dpp v{v}, v{v}, v{v} row_ror:{r} row_mask:0xf bank_mask:0xf")
        A(f"v_mov_b32 v{t}, v{v}")
        A(f"v_permlane16_swap_b32 v{v}, v{t}")
        A(f"{op} v{v}, v{v}, v{t}")
        A(f"v_mov_b32 v{t}, v{v}")
        A(f"v_permlane32_swap_b32 v{v}, v{t}")
        A(f"{op} v{v}, v{v}, v{t}")

    def rnd_bf16(self, d, s):
        A = self.A
        A(f"v_cvt_pk_bf16_f32 v{d}, v{s}, v{s}")
        A(f"v_lshlrev_b32 v{d}, 16, v{d}")

    def ln_stats(self, F, n, vs, vt, vmb, vrs):
        A = self.A
        A(f"v_add_f32 v{vs}, v{F[0]}, v{F[1]}")
        for f in F[2:]:
            A(f"v_add_f32 v{vs}, v{vs}, v{f}")
        self.allreduce(vs, vt)
        A(f"v_mul_f32 v{vs}, 0x3a800000, v{vs}")
        self.rnd_bf16(vmb, vs)
        A(f"v_sub_f32 v{vt}, v{F[0]}, v{vs}")
        A(f"v_mul_f32 v{vrs}, v{vt}, v{vt}")
        for f in F[1:]:
            A(f"v_sub_f32 v{vt}, v{f}, v{vs}")
            A(f"v_fmac_f32 v{vrs}, v{vt}, v{vt}")
        self.allreduce(vrs, vt)
        A(f"v_mul_f32 v{vrs}, 0x3a800000, v{vrs}")
        self.rnd_bf16(vrs, vrs)
        A(f"v_add_f32 v{vrs}, 0x3727c5ac, v{vrs}")
        self.rnd_bf16(vrs, vrs)
        A(f"v_sqrt_f32 v{vrs}, v{vrs}")
        self.rnd_bf16(vrs, vrs)
        A(f"v_rcp_f32 v{vrs}, v{vrs}")

    def ln_apply_pair(self, d, f0, f1, vmb, vrs, t0, t1):
        A = self.A
        A(f"v_sub_f32 v{t0}, v{f0}, v{vmb}")
        A(f"v_sub_f32 v{t1}, v{f1}, v{vmb}")
        A(f"v_cvt_pk_bf16_f32 v{t0}, v{t0}, v{t1}")
        A(f"v_and_b32 v{t1}, 0xffff0000, v{t0}")
        A(f"v_lshlrev_b32 v{t0}, 16, v{t0}")
        A(f"v_mul_f32 v{t0}, v{t0}, v{vrs}")
        A(f"v_mul_f32 v{t1}, v{t1}, v{vrs}")
        A(f"v_cvt_pk_bf16_f32 v{d}, v{t0}, v{t1}")

    def stamp(self, idx):
        if not self.stamps: return
        A = self.A
        A(f"s_memrealtime s[4:5]")
        A(f"s_waitcnt lgkmcnt(0)")
        A(f"s_lshl_b32 s6, s{S_WG}, 3")
        A(f"s_add_u32 s6, s6, s{S_WAVE}")
        A(f"s_lshl_b32 s6, s6, 7")
        A(f"s_add_u32 s6, s6, {WS_DBG + 0x100000 + idx*4}")
        A(f"s_mov_b64 s[8:9], exec")
        A(f"s_mov_b64 exec, 1")
        A(f"v_mov_b32 v250, s4")
        A(f"v_mov_b32 v251, 0")
        A(f"buffer_store_dword v250, v251, {srd(R_WS)}, s6 offen")
        A(f"s_mov_b64 exec, s[8:9]")

    def prepoll(self, load, reg, mask=None, need_all=False, sleep=4):
        A = self.A
        lp = A.label(); ex = A.label()
        if mask is not None:
            A(f"s_mov_b64 exec, s[{mask}:{mask+1}]")
        A(f"s_mov_b32 s{S_CNT}, 0")
        A.place(lp)
        A(load)
        A("s_waitcnt vmcnt(0)")
        if need_all:
            A(f"v_cmp_eq_u32 vcc, -1, v{reg}")
            A(f"s_cbranch_vccz {ex}")
        else:
            A(f"v_cmp_ne_u32 vcc, -1, v{reg}")
            A(f"s_cbranch_vccnz {ex}")
        A(f"s_add_u32 s{S_CNT}, s{S_CNT}, 1")
        A(f"s_cmp_gt_u32 s{S_CNT}, {SPIN}")
        A(f"s_cbranch_scc1 {ex}")
        A(f"s_sleep {sleep}")
        A(f"s_branch {lp}")
        A.place(ex)
        A(f"s_mov_b64 exec, -1")

    def poll(self, loads, regs, tmp, mask=None):
        A = self.A
        lp = A.label(); ex = A.label()
        if mask is not None:
            A(f"s_mov_b64 exec, s[{mask}:{mask+1}]")
        A(f"s_mov_b32 s{S_CNT}, 0")
        A.place(lp)
        for l in loads: A(l)
        A("s_waitcnt vmcnt(0)")
        rs = list(regs)
        if len(rs) == 1:
            A(f"v_cmp_eq_u32 vcc, -1, v{rs[0]}")
        else:
            if len(rs) == 2:
                A(f"v_max_u32 v{tmp}, v{rs[0]}, v{rs[1]}")
                rs = []
            else:
                A(f"v_max3_u32 v{tmp}, v{rs[0]}, v{rs[1]}, v{rs[2]}")
                rs = rs[3:]
            while len(rs) >= 2:
                A(f"v_max3_u32 v{tmp}, v{tmp}, v{rs[0]}, v{rs[1]}")
                rs = rs[2:]
            if rs:
                A(f"v_max_u32 v{tmp}, v{tmp}, v{rs[0]}")
            A(f"v_cmp_eq_u32 vcc, -1, v{tmp}")
        A(f"s_cbranch_vccz {ex}")
        A(f"s_mov_b64 exec, vcc")
        A(f"s_add_u32 s{S_CNT}, s{S_CNT}, 1")
        A(f"s_cmp_gt_u32 s{S_CNT}, {SPIN}")
        A(f"s_cbranch_scc0 {lp}")
        A.place(ex)
        A(f"s_mov_b64 exec, -1")

    def entry(self):
        A = self.A
        A.header(256, 512, LDS_BYTES, comments=[
            "Fused decode layer: preLN + MHA over KV cache + out-proj + preLN + GEGLU FFN (single persistent launch, 256 WGs).",
        ])
        A(f"""
        s_cmp_ge_u32 s2, 256
        s_cbranch_scc1 L_end
        s_load_dwordx16 s[16:31], s[0:1], 0
        s_load_dwordx8 s[32:39], s[0:1], 64
        v_and_b32 v1, 63, v0
        v_lshrrev_b32 v4, 6, v0
        v_lshlrev_b32 v2, 4, v1
        v_readfirstlane_b32 s{S_WAVE}, v4
        v_lshlrev_b32 v3, 2, v1
        s_lshr_b32 s{S_H}, s2, 3
        s_and_b32 s{S_B}, s2, 7
        s_mov_b32 s{S_M1}, 0x22222222
        s_mov_b32 s{S_M1+1}, 0x22222222
        s_mov_b32 s{S_M2}, 0x44444444
        s_mov_b32 s{S_M2+1}, 0x44444444
        s_mov_b32 s{S_M3}, 0x88888888
        s_mov_b32 s{S_M3+1}, 0x88888888
        s_mov_b32 s{S_MJ8}, 0x00ff00ff
        s_mov_b32 s{S_MJ8+1}, 0x00ff00ff
        """)
        A(f"""
        v_mov_b32 v4, {LDS_CNT}
        v_mov_b32 v6, 0
        v_mov_b32 v7, 0
        ds_write_b64 v4, v[6:7]
        ds_write_b64 v4, v[6:7] offset:8
        s_waitcnt lgkmcnt(0)
        """)
        self.mk_srd(R_WS, S_WS, WS_SIZE)
        self.mk_srd(R_DBG, S_DBG, 256)
        self.role_params()
        A("s_barrier")
        self.stamp(0)
        if self.stamps:
            A("s_getreg_b32 s4, hwreg(HW_REG_XCC_ID)")
            A(f"s_lshl_b32 s6, s{S_WG}, 3")
            A(f"s_add_u32 s6, s6, s{S_WAVE}")
            A(f"s_lshl_b32 s6, s6, 7")
            A(f"s_add_u32 s6, s6, {WS_DBG + 0x100000 + 31*4}")
            A(f"s_mov_b64 exec, 1")
            A(f"v_mov_b32 v250, s4")
            A(f"v_mov_b32 v251, 0")
            A(f"buffer_store_dword v250, v251, {srd(R_WS)}, s6 offen")
            A(f"s_mov_b64 exec, -1")
        A(f"""
        s_cmp_ge_u32 s{S_WAVE}, 4
        s_cbranch_scc1 L_stream
        """)

    def service(self):
        A = self.A
        A.c("==== service waves: LN(x), q partial, exchange ====")
        A(f"s_mov_b32 s{S_SW}, s{S_WAVE}")
        self.mk_srd(R_X, S_X, 16384)
        self.mk_srd(R_WQ, S_WQ, 8 << 20)
        A(f"v_mov_b32 v126, 0")
        A(f"s_mov_b32 s{S_T1}, {WS_EPOCH}")
        A(f"buffer_load_dword v126, v126, {srd(R_WS)}, s{S_T1} offen {self.LP}")
        A(f"s_lshl_b32 s{S_T0}, s{S_SW}, 12")
        A(f"buffer_load_dwordx4 v[8:11], v2, {srd(R_X)}, s{S_T0} offen")
        A(f"buffer_load_dwordx4 v[12:15], v2, {srd(R_X)}, s{S_T0} offen offset:1024")
        A(f"buffer_load_dwordx4 v[16:19], v2, {srd(R_X)}, s{S_T0} offen offset:2048")
        A(f"buffer_load_dwordx4 v[20:23], v2, {srd(R_X)}, s{S_T0} offen offset:3072")
        A(f"""
        v_lshrrev_b32 v4, 4, v1
        v_and_b32 v5, 15, v1
        s_lshr_b32 s{S_T0}, s{S_SW}, 1
        s_lshl_b32 s{S_T0}, s{S_T0}, 2
        v_or_b32 v6, s{S_T0}, v4
        v_lshlrev_b32 v6, 1, v6
        v_xor_b32 v6, v6, v5
        v_lshlrev_b32 v6, 4, v6
        v_lshlrev_b32 v7, 13, v4
        v_add_u32 v6, v6, v7
        s_lshl_b32 s{S_T0}, s{S_B}, 20
        s_lshl_b32 s{S_T1}, s{S_SW}, 15
        s_add_u32 s{S_T0}, s{S_T0}, s{S_T1}
        s_lshl_b32 s{S_T1}, s{S_H}, 8
        s_add_u32 s{S_T0}, s{S_T0}, s{S_T1}
        s_lshl_b32 s{S_T1}, s{S_SW}, 10
        s_add_u32 s{S_T1}, s{S_T1}, {LDS_WQ}
        """)
        for j in range(8):
            A(f"s_mov_b32 m0, s{S_T1}")
            A(f"buffer_load_dwordx4 v6, {srd(R_WQ)}, s{S_T0} offen nt lds")
            if j < 7:
                A(f"s_add_u32 s{S_T0}, s{S_T0}, {4*32768}")
                A(f"s_add_u32 s{S_T1}, s{S_T1}, 4096")
        A(f"""
        v_mov_b32 v24, -1
        v_mov_b32 v25, -1
        v_lshlrev_b32 v7, 3, v1
        s_lshl_b32 s{S_T0}, s2, 11
        s_lshl_b32 s{S_T1}, s{S_SW}, 9
        s_add_u32 s{S_T0}, s{S_T0}, s{S_T1}
        s_add_u32 s{S_T0}, s{S_T0}, {WS_SLOT}
        buffer_store_dwordx2 v[24:25], v7, {srd(R_WS)}, s{S_T0} offen sc0 sc1
        """)
        A("s_waitcnt vmcnt(9)")
        self.stamp(10)
        F = list(range(32, 48))
        VS, VT, VMB, VRS = 48, 49, 50, 51
        for r in range(2):
            base = 8 + 8 * r
            for i in range(8):
                A(f"v_lshlrev_b32 v{F[2*i]}, 16, v{base+i}")
                A(f"v_and_b32 v{F[2*i+1]}, 0xffff0000, v{base+i}")
            self.ln_stats(F, 16, VS, VT, VMB, VRS)
            lab = A.label()
            A(f"s_cmp_lt_u32 s{S_B}, 4")
            A(f"s_cbranch_scc1 {lab}")
            for i in range(8):
                A(f"v_mov_b32 v{F[i]}, v{F[8+i]}")
            A.place(lab)
            for i in range(4):
                self.ln_apply_pair(52 + i, F[2*i], F[2*i+1], VMB, VRS, 56, 57)
            A(f"""
            s_and_b32 s{S_T0}, s{S_B}, 3
            s_lshl_b32 s{S_T0}, s{S_T0}, 4
            s_mov_b64 s[{S_EX}:{S_EX+1}], 0xffff
            s_lshl_b64 s[{S_EX}:{S_EX+1}], s[{S_EX}:{S_EX+1}], s{S_T0}
            s_lshl_b32 s{S_T1}, s{S_SW}, 1
            s_add_u32 s{S_T1}, s{S_T1}, {r}
            s_mul_i32 s{S_T1}, s{S_T1}, 272
            s_add_u32 s{S_T1}, s{S_T1}, {LDS_XN}
            v_and_b32 v58, 15, v1
            v_lshlrev_b32 v58, 4, v58
            v_add_u32 v58, s{S_T1}, v58
            s_mov_b64 exec, s[{S_EX}:{S_EX+1}]
            ds_write_b128 v58, v[52:55]
            s_mov_b64 exec, -1
            """)
        self.stamp(12)
        A("s_waitcnt vmcnt(1) lgkmcnt(0)")
        self.stamp(13)
        self.lds_signal(LDS_CNT + 0, 124, 125)
        self.lds_wait(LDS_CNT + 0, 4, 124, 125)
        A(f"""
        v_and_b32 v58, 7, v1
        v_mul_u32_u24 v58, 272, v58
        v_lshrrev_b32 v59, 4, v1
        v_lshlrev_b32 v60, 4, v59
        v_add_u32 v58, v58, v60
        v_add_u32 v58, {LDS_XN}, v58
        """)
        for s in range(4):
            A(f"ds_read_b128 v[{64+4*s}:{67+4*s}], v58 offset:{s*64}")
        A(f"""
        v_and_b32 v60, 15, v1
        v_lshrrev_b32 v61, 2, v60
        v_and_b32 v62, 3, v60
        v_and_b32 v63, 1, v59
        v_lshlrev_b32 v63, 2, v63
        v_or_b32 v63, v63, v61
        v_lshlrev_b32 v80, 3, v59
        v_add_u32 v80, v80, v61
        v_lshlrev_b32 v80, 8, v80
        v_lshlrev_b32 v62, 3, v62
        v_add_u32 v80, v80, v62
        v_add_u32 v80, {LDS_WQ}, v80
        s_lshl_b32 s{S_T0}, s{S_SW}, 1
        v_xor_b32 v81, s{S_T0}, v63
        v_lshlrev_b32 v81, 5, v81
        v_add_u32 v81, v81, v80
        s_add_u32 s{S_T0}, s{S_T0}, 1
        v_xor_b32 v82, s{S_T0}, v63
        v_lshlrev_b32 v82, 5, v82
        v_add_u32 v82, v82, v80
        """)
        for c in range(2):
            for s in range(4):
                r = 84 + (c * 4 + s) * 4
                A(f"ds_read_b64_tr_b16 v[{r}:{r+1}], v{81+c} offset:{s*8192}")
                A(f"ds_read_b64_tr_b16 v[{r+2}:{r+3}], v{81+c} offset:{s*8192+1024}")
        A("s_waitcnt lgkmcnt(0)")
        self.lds_signal(LDS_CNT + 4, 124, 125)
        for c in range(2):
            for s in range(4):
                r = 84 + (c * 4 + s) * 4
                acc = 116 + 4 * c
                src = "0" if s == 0 else f"v[{acc}:{acc+3}]"
                A(f"v_mfma_f32_16x16x32_bf16 v[{acc}:{acc+3}], v[{r}:{r+3}], v[{64+4*s}:{67+4*s}], {src}")
        A(f"""
        v_and_b32 v58, 15, v1
        v_lshlrev_b32 v58, 12, v58
        v_lshlrev_b32 v60, 4, v59
        v_add_u32 v58, v58, v60
        s_lshl_b32 s{S_T0}, s{S_H}, 15
        s_lshl_b32 s{S_T1}, s{S_B}, 9
        s_add_u32 s{S_T0}, s{S_T0}, s{S_T1}
        s_lshl_b32 s{S_T1}, s{S_SW}, 7
        s_add_u32 s{S_T0}, s{S_T0}, s{S_T1}
        s_mov_b64 exec, s[{S_MJ8}:{S_MJ8+1}]
        buffer_store_dwordx4 v[116:119], v58, {srd(R_WS)}, s{S_T0} offen sc0 sc1
        buffer_store_dwordx4 v[120:123], v58, {srd(R_WS)}, s{S_T0} offen offset:64 sc0 sc1
        s_mov_b64 exec, -1
        s_waitcnt vmcnt(0)
        """)
        self.lds_signal(LDS_CNT + 8, 124, 125)
        A(f"s_cmp_eq_u32 s{S_SW}, 0")
        A(f"s_cbranch_scc0 L_svc_done")
        self.lds_wait(LDS_CNT + 8, 4, 124, 125)
        self.stamp(1)
        A(f"""
        v_readfirstlane_b32 s{S_TAG}, v126
        s_lshl_b32 s{S_T0}, s{S_H}, 7
        s_add_u32 s{S_T0}, s{S_T0}, {WS_FLAG}
        s_lshl_b32 s{S_T1}, s{S_B}, 2
        s_add_u32 s{S_TAG}, s{S_TAG}, 1
        v_mov_b32 v58, s{S_T1}
        v_mov_b32 v59, s{S_TAG}
        s_mov_b64 exec, 1
        buffer_store_dword v59, v58, {srd(R_WS)}, s{S_T0} offen sc0 sc1
        s_mov_b64 exec, 0xff
        """)
        lp = A.label(); ex = A.label()
        A(f"s_mov_b32 s{S_CNT}, 0")
        A.place(lp)
        A(f"""
        buffer_load_dword v60, v3, {srd(R_WS)}, s{S_T0} offen {self.LP}
        s_waitcnt vmcnt(0)
        v_cmp_ne_u32 vcc, s{S_TAG}, v60
        s_cbranch_vccz {ex}
        s_add_u32 s{S_CNT}, s{S_CNT}, 1
        s_cmp_gt_u32 s{S_CNT}, {SPIN}
        s_cbranch_scc0 {lp}
        """)
        A.place(ex)
        A("s_mov_b64 exec, -1")
        self.stamp(11)
        A(f"s_lshl_b32 s{S_T0}, s2, 12")
        for j in range(4):
            A(f"buffer_load_dwordx4 v[{64+4*j}:{67+4*j}], v2, {srd(R_WS)}, s{S_T0} offen offset:{j*1024} {self.LP}")
        A("s_waitcnt vmcnt(0)")
        for e in range(4):
            A(f"v_add_f32 v{64+e}, v{64+e}, v{68+e}")
            A(f"v_add_f32 v{72+e}, v{72+e}, v{76+e}")
        for e in range(4):
            A(f"v_add_f32 v{64+e}, v{64+e}, v{72+e}")
        for e in range(4):
            A(f"v_mov_b32 v{68+e}, v{64+e}")
        for e in range(4):
            A(f"v_permlane32_swap_b32 v{64+e}, v{68+e}")
        for e in range(4):
            A(f"v_add_f32 v{64+e}, v{64+e}, v{68+e}")
        A(f"""
        v_cvt_pk_bf16_f32 v64, v64, v65
        v_cvt_pk_bf16_f32 v65, v66, v67
        v_and_b32 v58, 31, v1
        v_lshlrev_b32 v58, 3, v58
        v_add_u32 v58, {LDS_Q}, v58
        ds_write_b64 v58, v[64:65]
        s_waitcnt lgkmcnt(0)
        """)
        self.lds_signal(LDS_CNT + 12, 124, 125)
        self.stamp(2)
        if self.debug:
            A(f"""
            v_and_b32 v58, 31, v1
            v_lshlrev_b32 v58, 3, v58
            s_lshl_b32 s{S_T0}, s2, 8
            s_add_u32 s{S_T0}, s{S_T0}, {WS_DBG}
            buffer_store_dwordx2 v[64:65], v58, {srd(R_WS)}, s{S_T0} offen
            """)
        lp = A.label(); ex = A.label()
        A(f"""
        v_lshrrev_b32 v58, 1, v1
        v_lshlrev_b32 v58, 7, v58
        v_and_b32 v59, 1, v1
        v_lshlrev_b32 v59, 4, v59
        v_add_u32 v58, v58, v59
        s_mov_b32 s{S_T0}, {WS_FLAG}
        s_mov_b32 s{S_CNT}, 0
        """)
        A.place(lp)
        A(f"""
        buffer_load_dwordx4 v[60:63], v58, {srd(R_WS)}, s{S_T0} offen {self.LP}
        s_waitcnt vmcnt(0)
        v_xor_b32 v60, s{S_TAG}, v60
        v_xor_b32 v61, s{S_TAG}, v61
        v_xor_b32 v62, s{S_TAG}, v62
        v_xor_b32 v63, s{S_TAG}, v63
        v_or_b32 v60, v60, v61
        v_or_b32 v62, v62, v63
        v_or_b32 v60, v60, v62
        v_cmp_ne_u32 vcc, 0, v60
        s_cbranch_vccz {ex}
        s_add_u32 s{S_CNT}, s{S_CNT}, 1
        s_cmp_gt_u32 s{S_CNT}, {SPIN}
        s_cbranch_scc1 {ex}
        s_sleep 16
        s_branch {lp}
        """)
        A.place(ex)
        A.place("L_svc_done")
        A("s_barrier")
        A("s_barrier")
        A("s_branch L_join3")

    def role_params(self):
        A = self.A
        lG, lD, lN, lE = A.label(), A.label(), A.label(), A.label()
        A(f"""
        s_cmp_ge_u32 s2, 64
        s_cbranch_scc1 {lG}
        s_mov_b32 s{S_ROLE}, 0
        s_mov_b32 s{S_PITCH}, 2048
        s_mov_b32 s{S_NJ}, 32
        s_lshr_b32 s{S_T0}, s2, 4
        s_lshl_b32 s{S_T0}, s{S_T0}, 21
        s_and_b32 s{S_T1}, s2, 15
        s_lshl_b32 s{S_T1}, s{S_T1}, 7
        s_add_u32 s{S_T0}, s{S_T0}, s{S_T1}
        s_add_u32 s{R_WT}, s{S_WO}, s{S_T0}
        s_addc_u32 s{R_WT+1}, s{S_WO+1}, 0
        s_sub_u32 s{R_WT+2}, {8<<20}, s{S_T0}
        s_branch {lE}
        """)
        A.place(lG)
        A(f"""
        s_cmp_ge_u32 s2, 176
        s_cbranch_scc1 {lD}
        s_mov_b32 s{S_ROLE}, 1
        s_mov_b32 s{S_PITCH}, 7168
        s_mov_b32 s{S_NJ}, 32
        s_sub_u32 s{S_T0}, s2, 64
        s_lshr_b32 s{S_T1}, s{S_T0}, 1
        s_lshl_b32 s{S_T1}, s{S_T1}, 7
        s_bitcmp1_b32 s{S_T0}, 0
        s_cselect_b32 s{S_T2}, s{S_WU}, s{S_WG_}
        s_cselect_b32 s{S_T3}, s{S_WU+1}, s{S_WG_+1}
        s_add_u32 s{R_WT}, s{S_T2}, s{S_T1}
        s_addc_u32 s{R_WT+1}, s{S_T3}, 0
        s_sub_u32 s{R_WT+2}, {7340032}, s{S_T1}
        s_branch {lE}
        """)
        A.place(lD)
        A(f"""
        s_cmp_ge_u32 s2, 240
        s_cbranch_scc1 {lN}
        s_mov_b32 s{S_ROLE}, 2
        s_mov_b32 s{S_PITCH}, 2048
        s_mov_b32 s{S_NJ}, 28
        s_sub_u32 s{S_T0}, s2, 176
        s_lshr_b32 s{S_T1}, s{S_T0}, 4
        s_mul_i32 s{S_T1}, s{S_T1}, {896*2048}
        s_and_b32 s{S_T0}, s{S_T0}, 15
        s_lshl_b32 s{S_T0}, s{S_T0}, 7
        s_add_u32 s{S_T0}, s{S_T0}, s{S_T1}
        s_add_u32 s{R_WT}, s{S_WD}, s{S_T0}
        s_addc_u32 s{R_WT+1}, s{S_WD+1}, 0
        s_sub_u32 s{R_WT+2}, {7340032}, s{S_T0}
        s_branch {lE}
        """)
        A.place(lN)
        A(f"""
        s_mov_b32 s{S_ROLE}, 3
        s_mov_b32 s{S_PITCH}, 2048
        s_mov_b32 s{S_NJ}, 0
        s_mov_b32 s{R_WT}, s{S_WD}
        s_mov_b32 s{R_WT+1}, s{S_WD+1}
        s_mov_b32 s{R_WT+2}, 0
        """)
        A.place(lE)
        A(f"s_mov_b32 s{R_WT+3}, 0x20000")

    RING = 64
    QF = 8
    def slot(self, t):
        r = self.RING + 4 * (t % 16)
        return r
    def issue(self, t, which):
        A = self.A
        r = self.slot(t)
        A(f"buffer_load_dwordx4 v[{r}:{r+3}], v2, {srd(R_K if which == 'K' else R_V)}, s{S_OFF} offen nt")
        A(f"s_add_u32 s{S_OFF}, s{S_OFF}, 4096")

    def k_block(self, mode):
        A = self.A
        N = self.N
        q = self.QF
        ACC = [12, 13, 14, 15]; B0, B1 = 16, 17; E = [18, 19, 20, 21]; M = 22; T = 23
        MX = 24; SA = 25
        perm = [0, 2, 1, 3]
        def reduce_group(c):
            a0, a1, a2, a3 = ACC
            e = E[c]
            A(f"v_add_f32_dpp v{B0}, v{a0}, v{a0} row_ror:8 row_mask:0xf bank_mask:0x3")
            A(f"v_add_f32_dpp v{B1}, v{a2}, v{a2} row_ror:8 row_mask:0xf bank_mask:0x3")
            A(f"v_add_f32_dpp v{B0}, v{a1}, v{a1} row_ror:8 row_mask:0xf bank_mask:0xc")
            A(f"v_add_f32_dpp v{B1}, v{a3}, v{a3} row_ror:8 row_mask:0xf bank_mask:0xc")
            A(f"v_add_f32_dpp v{e}, v{B0}, v{B0} row_half_mirror row_mask:0xf bank_mask:0x5")
            A(f"v_add_f32_dpp v{e}, v{B1}, v{B1} row_half_mirror row_mask:0xf bank_mask:0xa")
            A(f"v_add_f32_dpp v{e}, v{e}, v{e} quad_perm:[1,0,3,2] row_mask:0xf bank_mask:0xf")
            A(f"v_add_f32_dpp v{e}, v{e}, v{e} quad_perm:[2,3,0,1] row_mask:0xf bank_mask:0xf")
        for t in range(16):
            if mode == "first" and t < 16 - N:
                A(f"s_waitcnt vmcnt({15 - t})")
            else:
                A(f"s_waitcnt vmcnt({N-1})")
                if mode == "last" and t + N >= 16:
                    if t + N == 16:
                        A(f"s_lshl_b32 s{S_OFF}, s{S_SW}, 10")
                    self.issue(t + N, 'V')
                else:
                    self.issue(t + N, 'K')
            r = self.slot(t)
            a = ACC[t % 4]
            A(f"v_dot2_f32_bf16 v{a}, v{r}, v{q}, 0")
            A(f"v_dot2_f32_bf16 v{a}, v{r+1}, v{q+1}, v{a}")
            A(f"v_dot2_f32_bf16 v{a}, v{r+2}, v{q+2}, v{a}")
            A(f"v_dot2_f32_bf16 v{a}, v{r+3}, v{q+3}, v{a}")
            if t % 4 == 3:
                reduce_group(t // 4)
        A(f"v_cndmask_b32 v{M}, v{E[0]}, v{E[1]}, s[{S_M1}:{S_M1+1}]")
        A(f"v_cndmask_b32 v{M}, v{M}, v{E[2]}, s[{S_M2}:{S_M2+1}]")
        A(f"v_cndmask_b32 v{M}, v{M}, v{E[3]}, s[{S_M3}:{S_M3+1}]")
        self.rnd_bf16(M, M)
        A(f"v_mul_f32 v{M}, 0x3db504f3, v{M}")
        self.rnd_bf16(M, M)
        A(f"ds_write_b32 v{SA}, v{M}")
        A(f"v_max_f32 v{MX}, v{MX}, v{M}")
        A(f"v_add_u32 v{SA}, 256, v{SA}")

    def v_block(self, mode):
        A = self.A
        N = self.N
        P, PN = 12, 13
        PA = 14
        MK = [16, 17, 18, 19]
        BS = [[20, 21, 22, 23], [24, 25, 26, 27]]
        ACC = 28
        perm = [0, 2, 1, 3]
        A(f"s_waitcnt lgkmcnt(0)")
        A(f"v_mov_b32 v{P}, v{PN}")
        if mode != "last":
            A(f"ds_read_b32 v{PN}, v{PA}")
            A(f"v_add_u32 v{PA}, 256, v{PA}")
        for t in range(16):
            if mode == "first" and t < 16 - N:
                A(f"s_waitcnt vmcnt({15 - t})")
            elif mode == "last" and t + N >= 16:
                A(f"s_waitcnt vmcnt({15 - t})")
            else:
                A(f"s_waitcnt vmcnt({N-1})")
                self.issue(t + N, 'V')
            pos = t
            B = BS[t % 2]
            for j in range(4):
                A(f"v_and_b32_dpp v{B[j]}, v{P}, v{MK[j]} row_newbcast:{pos} row_mask:0xf bank_mask:0xf")
            r = self.slot(t)
            A(f"v_mfma_f32_16x16x32_bf16 v[{ACC}:{ACC+3}], v[{r}:{r+3}], v[{B[0]}:{B[3]}], v[{ACC}:{ACC+3}]")

    def stream(self):
        A = self.A
        N = self.N
        A.place("L_stream")
        A.c("==== stream waves ====")
        A(f"s_sub_u32 s{S_SW}, s{S_WAVE}, 4")
        A(f"""
        s_lshl_b32 s{S_T0}, s{S_B}, 5
        s_add_u32 s{S_T0}, s{S_T0}, s{S_H}
        s_lshl_b32 s{S_T0}, s{S_T0}, 20
        """)
        self.mk_srd(R_K, S_K, 1 << 20, f"s{S_T0}")
        self.mk_srd(R_V, S_V, 1 << 20, f"s{S_T0}")
        A(f"""
        v_lshrrev_b32 v4, 3, v1
        v_mul_lo_u32 v4, v4, s{S_PITCH}
        v_and_b32 v5, 7, v1
        v_lshrrev_b32 v6, 4, v1
        v_and_b32 v6, 1, v6
        v_lshlrev_b32 v6, 1, v6
        v_xor_b32 v5, v5, v6
        s_and_b32 s{S_T0}, s{S_SW}, 1
        s_lshl_b32 s{S_T0}, s{S_T0}, 2
        v_xor_b32 v5, s{S_T0}, v5
        v_lshlrev_b32 v5, 4, v5
        v_add_u32 v4, v4, v5
        s_lshl_b32 s{S_T0}, s{S_PITCH}, 3
        s_mul_i32 s{S_T1}, s{S_T0}, s{S_SW}
        s_lshl_b32 s{S_T0}, s{S_T0}, 2
        s_lshl_b32 s{S_T2}, s{S_SW}, 10
        s_mov_b32 s{S_T3}, 0
        """)
        lp1, lw, lp2, ld = A.label(), A.label(), A.label(), A.label()
        A(f"s_cmp_eq_u32 s{S_NJ}, 0")
        A(f"s_cbranch_scc1 {ld}")
        A.place(lp1)
        A(f"""
        s_mov_b32 m0, s{S_T2}
        s_waitcnt vmcnt({self.NP-1})
        buffer_load_dwordx4 v4, {srd(R_WT)}, s{S_T1} offen nt lds
        s_add_u32 s{S_T1}, s{S_T1}, s{S_T0}
        s_add_u32 s{S_T2}, s{S_T2}, 4096
        s_add_u32 s{S_T3}, s{S_T3}, 1
        s_cmp_lt_u32 s{S_T3}, 24
        s_cbranch_scc1 {lp1}
        """)
        self.lds_wait(LDS_CNT + 4, 4, 6, 7)
        A.place(lp2)
        A(f"""
        s_mov_b32 m0, s{S_T2}
        s_waitcnt vmcnt({self.NP-1})
        buffer_load_dwordx4 v4, {srd(R_WT)}, s{S_T1} offen nt lds
        s_add_u32 s{S_T1}, s{S_T1}, s{S_T0}
        s_add_u32 s{S_T2}, s{S_T2}, 4096
        s_add_u32 s{S_T3}, s{S_T3}, 1
        s_cmp_lt_u32 s{S_T3}, s{S_NJ}
        s_cbranch_scc1 {lp2}
        """)
        A.place(ld)
        self.stamp(14)
        A(f"s_lshl_b32 s{S_OFF}, s{S_SW}, 10")
        for t in range(16):
            A(f"s_waitcnt vmcnt({self.NP-1})")
            self.issue(t, 'K')
        self.stamp(15)
        self.lds_wait(LDS_CNT + 12, 1, 6, 7)
        self.stamp(3)
        A(f"""
        v_and_b32 v6, 15, v1
        v_lshlrev_b32 v6, 4, v6
        v_add_u32 v6, {LDS_Q}, v6
        ds_read_b128 v[8:11], v6
        v_mov_b32 v24, 0xff800000
        """)
        A(f"""
        v_and_b32 v6, 3, v1
        v_lshlrev_b32 v6, 2, v6
        v_bfe_u32 v7, v1, 2, 1
        v_lshlrev_b32 v7, 1, v7
        v_bfe_u32 v5, v1, 3, 1
        v_or_b32 v7, v7, v5
        v_add_u32 v6, v6, v7
        v_and_b32 v7, 48, v1
        v_add_u32 v6, v6, v7
        v_lshlrev_b32 v6, 2, v6
        s_lshl_b32 s{S_T0}, s{S_SW}, 12
        s_add_u32 s{S_T0}, s{S_T0}, {LDS_SC}
        v_add_u32 v25, s{S_T0}, v6
        s_waitcnt lgkmcnt(0)
        """)
        self.k_block("first")
        lp = A.label()
        A(f"s_mov_b32 s{S_T3}, 0")
        A.place(lp)
        self.k_block("mid")
        A(f"s_add_u32 s{S_T3}, s{S_T3}, 1")
        A(f"s_cmp_lt_u32 s{S_T3}, 14")
        A(f"s_cbranch_scc1 {lp}")
        self.k_block("last")
        for t in range(N, 16):
            self.issue(t, 'V')
        self.stamp(4)
        MX, T = 24, 23
        for r in (8, 4, 2, 1):
            A(f"v_max_f32_dpp v{MX}, v{MX}, v{MX} row_ror:{r} row_mask:0xf bank_mask:0xf")
        A(f"""
        v_lshrrev_b32 v6, 4, v1
        v_lshlrev_b32 v6, 2, v6
        s_lshl_b32 s{S_T0}, s{S_SW}, 4
        v_add_u32 v6, s{S_T0}, v6
        v_add_u32 v7, {LDS_WM}, v6
        ds_write_b32 v7, v{MX}
        s_waitcnt lgkmcnt(0)
        s_barrier
        v_mov_b32 v7, {LDS_WM}
        ds_read_b128 v[32:35], v7
        ds_read_b128 v[36:39], v7 offset:16
        ds_read_b128 v[40:43], v7 offset:32
        ds_read_b128 v[44:47], v7 offset:48
        s_lshl_b32 s{S_T0}, s{S_SW}, 12
        s_add_u32 s{S_T0}, s{S_T0}, {LDS_SC}
        v_add_u32 v14, s{S_T0}, v3
        """)
        for i in range(16):
            A(f"ds_read_b32 v{48+i}, v14 offset:{i*256}")
        A("s_waitcnt lgkmcnt(0)")
        A(f"v_max3_f32 v{MX}, v32, v33, v34")
        for i in range(35, 47, 2):
            A(f"v_max3_f32 v{MX}, v{MX}, v{i}, v{i+1}")
        A(f"v_max_f32 v{MX}, v{MX}, v47")
        A(f"s_mov_b32 s{S_T1}, 0x3fb8aa3b")
        for i in range(16):
            A(f"v_sub_f32 v{48+i}, v{48+i}, v{MX}")
        for i in range(16):
            A(f"v_mul_f32 v{48+i}, s{S_T1}, v{48+i}")
        for i in range(16):
            A(f"v_exp_f32 v{48+i}, v{48+i}")
        A(f"v_add_f32 v{T}, v48, v49")
        for i in range(2, 16):
            A(f"v_add_f32 v{T}, v{T}, v{48+i}")
        for r in (8, 4, 2, 1):
            A(f"v_add_f32_dpp v{T}, v{T}, v{T} row_ror:{r} row_mask:0xf bank_mask:0xf")
        A(f"""
        v_add_u32 v7, {LDS_WS}, v6
        ds_write_b32 v7, v{T}
        s_waitcnt lgkmcnt(0)
        s_barrier
        v_mov_b32 v7, {LDS_WS}
        ds_read_b128 v[32:35], v7
        ds_read_b128 v[36:39], v7 offset:16
        ds_read_b128 v[40:43], v7 offset:32
        ds_read_b128 v[44:47], v7 offset:48
        s_waitcnt lgkmcnt(0)
        """)
        for i in range(0, 16, 2):
            A(f"v_add_f32 v{32+i}, v{32+i}, v{33+i}")
        for i in range(0, 16, 4):
            A(f"v_add_f32 v{32+i}, v{32+i}, v{34+i}")
        A(f"v_add_f32 v32, v32, v36")
        A(f"v_add_f32 v40, v40, v44")
        A(f"v_add_f32 v32, v32, v40")
        A(f"v_rcp_f32 v32, v32")
        for i in range(16):
            A(f"v_mul_f32 v{48+i}, v{48+i}, v32")
        for i in range(16):
            A(f"v_cvt_pk_bf16_f32 v{48+i}, v{48+i}, v{48+i}")
        for i in range(16):
            A(f"ds_write_b32 v14, v{48+i} offset:{i*256}")
        A(f"""
        v_and_b32 v6, 15, v1
        v_lshrrev_b32 v7, 1, v6
        v_and_b32 v5, 1, v6
        v_lshlrev_b32 v5, 4, v5
        v_mov_b32 v4, 0xffff
        v_lshlrev_b32 v4, v5, v4
        """)
        for j in range(4):
            A(f"v_cmp_eq_u32 vcc, {j}, v7")
            A(f"v_cndmask_b32 v{16+j}, 0, v4, vcc")
        A(f"""
        v_mov_b32 v28, 0
        v_mov_b32 v29, 0
        v_mov_b32 v30, 0
        v_mov_b32 v31, 0
        s_waitcnt lgkmcnt(0)
        ds_read_b32 v13, v14
        v_add_u32 v14, 256, v14
        """)
        self.stamp(5)
        self.v_block("first")
        lp = A.label()
        A(f"s_mov_b32 s{S_T3}, 0")
        A.place(lp)
        self.v_block("mid")
        A(f"s_add_u32 s{S_T3}, s{S_T3}, 1")
        A(f"s_cmp_lt_u32 s{S_T3}, 14")
        A(f"s_cbranch_scc1 {lp}")
        self.v_block("last")
        A(f"""
        v_lshrrev_b32 v6, 4, v1
        v_lshlrev_b32 v6, 7, v6
        v_and_b32 v7, 15, v1
        v_lshlrev_b32 v7, 2, v7
        v_add_u32 v6, v6, v7
        s_lshl_b32 s{S_T0}, s{S_SW}, 9
        s_add_u32 s{S_T0}, s{S_T0}, {LDS_ORED}
        v_add_u32 v6, s{S_T0}, v6
        s_mov_b64 exec, s[{S_MJ8}:{S_MJ8+1}]
        ds_write_b32 v6, v28
        ds_write_b32 v6, v29 offset:32
        ds_write_b32 v6, v30 offset:64
        ds_write_b32 v6, v31 offset:96
        s_mov_b64 exec, -1
        s_waitcnt lgkmcnt(0)
        """)
        self.stamp(6)
        A.place("L_join3")
        A("s_barrier")

    def tile_afrags(self, base):
        A = self.A
        A(f"""
        v_lshrrev_b32 v4, 4, v1
        v_and_b32 v5, 15, v1
        v_lshrrev_b32 v6, 2, v5
        v_and_b32 v5, 3, v5
        v_lshrrev_b32 v7, 1, v6
        v_and_b32 v8, 1, v4
        v_lshlrev_b32 v8, 1, v8
        v_or_b32 v7, v7, v8
        v_lshlrev_b32 v8, 3, v4
        v_add_u32 v8, v8, v6
        v_lshlrev_b32 v8, 7, v8
        v_lshlrev_b32 v5, 3, v5
        v_add_u32 v8, v8, v5
        s_lshl_b32 s{S_T0}, s{S_WAVE}, 14
        v_add_u32 v8, s{S_T0}, v8
        """)
        for cb in range(4):
            A(f"v_xor_b32 v{9+cb}, {cb}, v7")
            A(f"v_lshlrev_b32 v{9+cb}, 5, v{9+cb}")
            A(f"v_add_u32 v{9+cb}, v{9+cb}, v8")
        for s in range(4):
            for cb in range(4):
                r = base + (s * 4 + cb) * 4
                A(f"ds_read_b64_tr_b16 v[{r}:{r+1}], v{9+cb} offset:{s*4096}")
                A(f"ds_read_b64_tr_b16 v[{r+2}:{r+3}], v{9+cb} offset:{s*4096+512}")

    def mfma16(self, abase, bregs, acc):
        A = self.A
        for s in range(4):
            for cb in range(4):
                r = abase + (s * 4 + cb) * 4
                a = acc + 4 * cb
                src = "0" if s == 0 else f"v[{a}:{a+3}]"
                A(f"v_mfma_f32_16x16x32_bf16 v[{a}:{a+3}], v[{r}:{r+3}], v[{bregs[s]}:{bregs[s]+3}], {src}")

    def red_write(self, acc):
        A = self.A
        A(f"""
        v_and_b32 v4, 15, v1
        v_lshrrev_b32 v5, 4, v1
        s_lshl_b32 s{S_T0}, s{S_WAVE}, 11
        s_add_u32 s{S_T0}, s{S_T0}, {LDS_RED}
        v_lshlrev_b32 v6, 8, v4
        v_add_u32 v6, s{S_T0}, v6
        s_mov_b64 exec, s[{S_MJ8}:{S_MJ8+1}]
        """)
        for cb in range(4):
            A(f"v_add_u32 v7, {4*cb}, v5")
            A(f"v_xor_b32 v7, v7, v4")
            A(f"v_lshlrev_b32 v7, 4, v7")
            A(f"v_add_u32 v7, v7, v6")
            A(f"ds_write_b128 v7, v[{acc+4*cb}:{acc+4*cb+3}]")
        A("s_mov_b64 exec, -1")
        A("s_waitcnt lgkmcnt(0)")
        A("s_barrier")

    def red_sum(self, nw, dst):
        A = self.A
        A(f"""
        v_lshrrev_b32 v4, 2, v1
        v_xor_b32 v4, s{S_WAVE}, v4
        v_lshlrev_b32 v4, 4, v4
        v_and_b32 v5, 3, v1
        v_lshlrev_b32 v5, 2, v5
        v_add_u32 v4, v4, v5
        s_lshl_b32 s{S_T0}, s{S_WAVE}, 8
        s_add_u32 s{S_T0}, s{S_T0}, {LDS_RED}
        v_add_u32 v4, s{S_T0}, v4
        """)
        for v in range(nw):
            A(f"ds_read_b32 v{dst+v}, v4 offset:{v*2048}")
        A("s_waitcnt lgkmcnt(0)")
        regs = [dst + v for v in range(nw)]
        while len(regs) > 1:
            nxt = []
            for i in range(0, len(regs) - 1, 2):
                A(f"v_add_f32 v{regs[i]}, v{regs[i]}, v{regs[i+1]}")
                nxt.append(regs[i])
            if len(regs) % 2: nxt.append(regs[-1])
            regs = nxt

    def tail(self):
        A = self.A
        A.c("==== o publish (wave 0) ====")
        lskip = A.label()
        A(f"s_cmp_eq_u32 s{S_WAVE}, 0")
        A(f"s_cbranch_scc0 {lskip}")
        A(f"""
        v_lshlrev_b32 v4, 3, v1
        v_add_u32 v4, {LDS_ORED}, v4
        ds_read_b64 v[8:9], v4
        ds_read_b64 v[10:11], v4 offset:512
        ds_read_b64 v[12:13], v4 offset:1024
        ds_read_b64 v[14:15], v4 offset:1536
        s_waitcnt lgkmcnt(0)
        v_add_f32 v8, v8, v10
        v_add_f32 v9, v9, v11
        v_add_f32 v12, v12, v14
        v_add_f32 v13, v13, v15
        v_add_f32 v8, v8, v12
        v_add_f32 v9, v9, v13
        v_cvt_pk_bf16_f32 v8, v8, v9
        v_min_u32 v8, -2, v8
        s_lshl_b32 s{S_T0}, s{S_B}, 13
        s_lshl_b32 s{S_T1}, s{S_H}, 8
        s_add_u32 s{S_T0}, s{S_T0}, s{S_T1}
        s_add_u32 s{S_T0}, s{S_T0}, {WS_OB}
        buffer_store_dword v8, v3, {srd(R_WS)}, s{S_T0} offen sc0 sc1
        """)
        A.place(lskip)
        self.stamp(7)
        if self.stop_after == "attn":
            A("s_branch L_end")
        A(f"""
        s_cmp_eq_u32 s{S_ROLE}, 0
        s_cbranch_scc1 L_roleO
        s_cmp_eq_u32 s{S_ROLE}, 1
        s_cbranch_scc1 L_roleG
        s_cmp_eq_u32 s{S_ROLE}, 2
        s_cbranch_scc1 L_roleD
        s_branch L_end
        """)
        self.role_O()
        self.role_G()
        self.role_D()

    def role_O(self):
        A = self.A
        A.place("L_roleO")
        AB = 64
        self.tile_afrags(AB)
        A(f"""
        v_and_b32 v4, 15, v1
        v_lshlrev_b32 v4, 13, v4
        v_lshrrev_b32 v5, 4, v1
        v_lshlrev_b32 v5, 4, v5
        v_add_u32 v16, v4, v5
        s_lshr_b32 s{S_T0}, s2, 4
        s_lshl_b32 s{S_T0}, s{S_T0}, 11
        s_lshl_b32 s{S_T1}, s{S_WAVE}, 8
        s_add_u32 s{S_T0}, s{S_T0}, s{S_T1}
        s_add_u32 s{S_T0}, s{S_T0}, {WS_OB}
        """)
        self.prepoll(f"buffer_load_dword v18, v16, {srd(R_WS)}, s{S_T0} offen {self.LP}", 18, mask=S_MJ8, sleep=2)
        loads = [f"buffer_load_dwordx4 v[{32+4*s}:{35+4*s}], v16, {srd(R_WS)}, s{S_T0} offen offset:{s*64} {self.LP}" for s in range(4)]
        self.poll(loads, range(32, 48), 17, mask=S_MJ8)
        self.stamp(8)
        A("s_waitcnt lgkmcnt(0)")
        self.mfma16(AB, [32, 36, 40, 44], 48)
        self.red_write(48)
        self.red_sum(8, 16)
        A(f"""
        v_min_u32 v16, -2, v16
        s_lshr_b32 s{S_T0}, s2, 4
        s_lshl_b32 s{S_T0}, s{S_T0}, 15
        s_lshl_b32 s{S_T1}, s{S_WAVE}, 12
        s_add_u32 s{S_T0}, s{S_T0}, s{S_T1}
        s_and_b32 s{S_T1}, s2, 15
        s_lshl_b32 s{S_T1}, s{S_T1}, 8
        s_add_u32 s{S_T0}, s{S_T0}, s{S_T1}
        s_add_u32 s{S_T0}, s{S_T0}, {WS_OP}
        buffer_store_dword v16, v3, {srd(R_WS)}, s{S_T0} offen sc0 sc1
        """)
        self.stamp(9)
        A("s_branch L_end")

    def role_G(self):
        A = self.A
        A.place("L_roleG")
        AB = 160
        self.tile_afrags(AB)
        self.mk_srd(R_X, S_X, 16384)
        A(f"""
        v_lshlrev_b32 v16, 3, v1
        s_lshl_b32 s{S_T0}, s{S_WAVE}, 11
        """)
        for q in range(4):
            A(f"buffer_load_dwordx2 v[{20+2*q}:{21+2*q}], v16, {srd(R_X)}, s{S_T0} offen offset:{q*512}")
        A(f"""
        s_lshl_b32 s{S_T0}, s{S_WAVE}, 12
        s_add_u32 s{S_T0}, s{S_T0}, {WS_OP}
        s_add_u32 s{S_T1}, s{S_T0}, 32768
        s_add_u32 s{S_T2}, s{S_T0}, 65536
        s_add_u32 s{S_T3}, s{S_T0}, 98304
        """)
        A(f"""
        v_lshrrev_b32 v17, 4, v1
        v_lshlrev_b32 v17, 15, v17
        v_and_b32 v18, 15, v1
        v_lshlrev_b32 v18, 8, v18
        v_add_u32 v17, v17, v18
        """)
        self.prepoll(f"buffer_load_dword v18, v17, {srd(R_WS)}, s{S_T0} offen {self.LP}", 18)
        loads = []
        soff = [S_T0, S_T1, S_T2, S_T3]
        for ks in range(4):
            for q in range(4):
                r = 32 + (ks * 4 + q) * 4
                loads.append(f"buffer_load_dwordx4 v[{r}:{r+3}], v2, {srd(R_WS)}, s{soff[ks]} offen offset:{q*1024} {self.LP}")
        self.poll(loads, range(32, 96), 17)
        self.stamp(8)
        F = list(range(96, 112))
        for q in range(4):
            for e in range(4):
                r0 = 32 + q * 4 + e
                A(f"v_add_f32 v{r0}, v{r0}, v{r0+16}")
                A(f"v_add_f32 v{r0+32}, v{r0+32}, v{r0+48}")
        for q in range(4):
            for e in range(4):
                r0 = 32 + q * 4 + e
                A(f"v_add_f32 v{r0}, v{r0}, v{r0+32}")
        for q in range(4):
            for p in range(2):
                r0 = 32 + q * 4 + 2 * p
                xr = 20 + 2 * q + p
                A(f"v_cvt_pk_bf16_f32 v17, v{r0}, v{r0+1}")
                A(f"v_lshlrev_b32 v18, 16, v17")
                A(f"v_and_b32 v17, 0xffff0000, v17")
                A(f"v_lshlrev_b32 v19, 16, v{xr}")
                A(f"v_and_b32 v28, 0xffff0000, v{xr}")
                A(f"v_add_f32 v18, v18, v19")
                A(f"v_add_f32 v17, v17, v28")
                A(f"v_cvt_pk_bf16_f32 v{xr}, v18, v17")
                A(f"v_lshlrev_b32 v{F[q*4+2*p]}, 16, v{xr}")
                A(f"v_and_b32 v{F[q*4+2*p+1]}, 0xffff0000, v{xr}")
        lph = A.label()
        A(f"s_cmp_eq_u32 s2, 64")
        A(f"s_cbranch_scc0 {lph}")
        A(f"""
        s_lshl_b32 s{S_T0}, s{S_WAVE}, 11
        s_add_u32 s{S_T0}, s{S_T0}, {WS_H}
        """)
        for q in range(4):
            A(f"v_min_u32 v28, -2, v{20+2*q}")
            A(f"v_min_u32 v29, -2, v{21+2*q}")
            A(f"buffer_store_dwordx2 v[28:29], v16, {srd(R_WS)}, s{S_T0} offen offset:{q*512} sc0 sc1")
        A.place(lph)
        VS, VT, VMB, VRS = 112, 113, 114, 115
        self.ln_stats(F, 16, VS, VT, VMB, VRS)
        A(f"""
        v_lshrrev_b32 v17, 1, v1
        s_lshl_b32 s{S_T0}, s{S_WAVE}, 1
        v_xor_b32 v17, s{S_T0}, v17
        v_lshlrev_b32 v17, 4, v17
        v_and_b32 v18, 1, v1
        v_lshlrev_b32 v18, 3, v18
        v_add_u32 v17, v17, v18
        s_lshl_b32 s{S_T0}, s{S_WAVE}, 11
        s_add_u32 s{S_T0}, s{S_T0}, {LDS_XN2}
        v_add_u32 v17, s{S_T0}, v17
        """)
        for q in range(4):
            self.ln_apply_pair(28, F[4*q], F[4*q+1], VMB, VRS, 18, 19)
            self.ln_apply_pair(29, F[4*q+2], F[4*q+3], VMB, VRS, 18, 19)
            A(f"ds_write_b64 v17, v[28:29] offset:{q*512}")
        A("s_waitcnt lgkmcnt(0)")
        A("s_barrier")
        A(f"""
        v_and_b32 v17, 7, v1
        v_lshrrev_b32 v18, 4, v1
        v_lshlrev_b32 v19, 11, v17
        s_lshl_b32 s{S_T0}, s{S_WAVE}, 8
        s_add_u32 s{S_T0}, s{S_T0}, {LDS_XN2}
        v_add_u32 v19, s{S_T0}, v19
        v_lshlrev_b32 v17, 1, v17
        """)
        for s in range(4):
            A(f"v_add_u32 v28, {4*s}, v18")
            A(f"v_xor_b32 v28, v28, v17")
            A(f"v_lshlrev_b32 v28, 4, v28")
            A(f"v_add_u32 v28, v28, v19")
            A(f"ds_read_b128 v[{32+4*s}:{35+4*s}], v28")
        A("s_waitcnt lgkmcnt(0)")
        self.mfma16(AB, [32, 36, 40, 44], 48)
        self.red_write(48)
        self.red_sum(8, 16)
        self.rnd_bf16(16, 16)
        lup = A.label()
        A(f"s_bitcmp1_b32 s2, 0")
        A(f"s_cbranch_scc1 {lup}")
        A(f"""
        v_mul_f32 v17, v16, v16
        v_mul_f32 v18, v17, v16
        v_mul_f32 v18, 0x3d372713, v18
        v_add_f32 v18, v16, v18
        v_mul_f32 v18, 0x3f4c422a, v18
        v_mul_f32 v18, 0x4038aa3b, v18
        v_min_f32 v18, 0x42700000, v18
        v_exp_f32 v18, v18
        v_add_f32 v19, 1.0, v18
        v_rcp_f32 v19, v19
        v_mul_f32 v18, v18, v19
        v_mul_f32 v16, v16, v18
        """)
        A.place(lup)
        A(f"""
        v_mov_b32_dpp v17, v16 quad_perm:[1,1,3,3] row_mask:0xf bank_mask:0xf
        v_cvt_pk_bf16_f32 v16, v16, v17
        v_min_u32 v16, -2, v16
        s_sub_u32 s{S_T0}, s2, 64
        s_and_b32 s{S_T1}, s{S_T0}, 1
        s_mul_i32 s{S_T1}, s{S_T1}, 57344
        s_lshr_b32 s{S_T0}, s{S_T0}, 1
        s_lshl_b32 s{S_T0}, s{S_T0}, 7
        s_add_u32 s{S_T0}, s{S_T0}, s{S_T1}
        s_mul_i32 s{S_T1}, s{S_WAVE}, 7168
        s_add_u32 s{S_T0}, s{S_T0}, s{S_T1}
        s_add_u32 s{S_T0}, s{S_T0}, {WS_GU}
        v_lshlrev_b32 v18, 1, v1
        s_mov_b32 s{S_T2}, 0x55555555
        s_mov_b32 s{S_T3}, 0x55555555
        s_mov_b64 exec, s[{S_T2}:{S_T3}]
        buffer_store_dword v16, v18, {srd(R_WS)}, s{S_T0} offen sc0 sc1
        s_mov_b64 exec, -1
        """)
        self.stamp(9)
        A("s_branch L_end")

    def role_D(self):
        A = self.A
        A.place("L_roleD")
        AB = 160
        lno = A.label()
        A(f"s_cmp_eq_u32 s{S_WAVE}, 7")
        A(f"s_cbranch_scc1 {lno}")
        self.tile_afrags(AB)
        A(f"""
        v_and_b32 v4, 15, v1
        v_mul_u32_u24 v4, 7168, v4
        v_lshrrev_b32 v5, 4, v1
        v_lshlrev_b32 v5, 4, v5
        v_add_u32 v16, v4, v5
        s_sub_u32 s{S_T0}, s2, 176
        s_lshr_b32 s{S_T0}, s{S_T0}, 4
        s_mul_i32 s{S_T0}, s{S_T0}, 1792
        s_lshl_b32 s{S_T1}, s{S_WAVE}, 8
        s_add_u32 s{S_T0}, s{S_T0}, s{S_T1}
        s_add_u32 s{S_T0}, s{S_T0}, {WS_GU}
        s_add_u32 s{S_T1}, s{S_T0}, 57344
        """)
        self.prepoll(f"buffer_load_dword v18, v16, {srd(R_WS)}, s{S_T0} offen {self.LP}", 18, mask=S_MJ8)
        loads = [f"buffer_load_dwordx4 v[{32+4*s}:{35+4*s}], v16, {srd(R_WS)}, s{S_T0} offen offset:{s*64} {self.LP}" for s in range(4)]
        loads += [f"buffer_load_dwordx4 v[{48+4*s}:{51+4*s}], v16, {srd(R_WS)}, s{S_T1} offen offset:{s*64} {self.LP}" for s in range(4)]
        self.poll(loads, range(32, 64), 17, mask=S_MJ8)
        self.stamp(8)
        for i in range(16):
            g, u = 32 + i, 48 + i
            A(f"v_lshlrev_b32 v17, 16, v{g}")
            A(f"v_lshlrev_b32 v18, 16, v{u}")
            A(f"v_and_b32 v{g}, 0xffff0000, v{g}")
            A(f"v_and_b32 v{u}, 0xffff0000, v{u}")
            A(f"v_mul_f32 v17, v17, v18")
            A(f"v_mul_f32 v{g}, v{g}, v{u}")
            A(f"v_cvt_pk_bf16_f32 v{g}, v17, v{g}")
        A("s_waitcnt lgkmcnt(0)")
        self.mfma16(AB, [32, 36, 40, 44], 64)
        A(f"""
        v_and_b32 v4, 15, v1
        v_lshrrev_b32 v5, 4, v1
        s_lshl_b32 s{S_T0}, s{S_WAVE}, 11
        s_add_u32 s{S_T0}, s{S_T0}, {LDS_RED}
        v_lshlrev_b32 v6, 8, v4
        v_add_u32 v6, s{S_T0}, v6
        s_mov_b64 exec, s[{S_MJ8}:{S_MJ8+1}]
        """)
        for cb in range(4):
            A(f"v_add_u32 v7, {4*cb}, v5")
            A(f"v_xor_b32 v7, v7, v4")
            A(f"v_lshlrev_b32 v7, 4, v7")
            A(f"v_add_u32 v7, v7, v6")
            A(f"ds_write_b128 v7, v[{64+4*cb}:{67+4*cb}]")
        A("s_mov_b64 exec, -1")
        A("s_waitcnt lgkmcnt(0)")
        A.place(lno)
        A("s_barrier")
        self.red_sum(7, 16)
        lfin = A.label()
        A(f"""
        s_sub_u32 s{S_T2}, s2, 176
        s_lshr_b32 s{S_T3}, s{S_T2}, 4
        s_and_b32 s{S_T2}, s{S_T2}, 15
        s_lshl_b32 s{S_T0}, s{S_WAVE}, 12
        s_lshl_b32 s{S_T1}, s{S_T2}, 8
        s_add_u32 s{S_T0}, s{S_T0}, s{S_T1}
        s_add_u32 s{S_T0}, s{S_T0}, {WS_DP}
        s_cmp_eq_u32 s{S_T3}, 0
        s_cbranch_scc1 {lfin}
        v_min_u32 v16, -2, v16
        s_lshl_b32 s{S_T3}, s{S_T3}, 15
        s_add_u32 s{S_T0}, s{S_T0}, s{S_T3}
        buffer_store_dword v16, v3, {srd(R_WS)}, s{S_T0} offen sc0 sc1
        """)
        self.stamp(9)
        A("s_branch L_end")
        A.place(lfin)
        A(f"""
        s_add_u32 s{S_T1}, s{S_T0}, 32768
        s_add_u32 s{S_T3}, s{S_T0}, 65536
        s_add_u32 s{S_T4}, s{S_T0}, 98304
        s_lshl_b32 s{S_T0}, s{S_WAVE}, 11
        s_lshl_b32 s{S_T5}, s{S_T2}, 7
        s_add_u32 s{S_T0}, s{S_T0}, s{S_T5}
        v_lshrrev_b32 v18, 1, v1
        v_lshlrev_b32 v18, 2, v18
        s_add_u32 s{S_T2}, s{S_T0}, {WS_H}
        """)
        loads = [f"buffer_load_dword v20, v3, {srd(R_WS)}, s{S_T1} offen {self.LP}",
                 f"buffer_load_dword v21, v3, {srd(R_WS)}, s{S_T3} offen {self.LP}",
                 f"buffer_load_dword v22, v3, {srd(R_WS)}, s{S_T4} offen {self.LP}",
                 f"buffer_load_dword v23, v18, {srd(R_WS)}, s{S_T2} offen {self.LP}"]
        self.poll(loads, range(20, 24), 17)
        self.mk_srd(R_OUT, S_OUT, 16384)
        A(f"""
        v_add_f32 v16, v16, v20
        v_add_f32 v21, v21, v22
        v_add_f32 v16, v16, v21
        """)
        self.rnd_bf16(16, 16)
        A(f"""
        v_and_b32 v17, 1, v1
        v_cmp_eq_u32 vcc, 1, v17
        v_lshlrev_b32 v18, 16, v23
        v_and_b32 v19, 0xffff0000, v23
        v_cndmask_b32 v18, v18, v19, vcc
        v_add_f32 v16, v16, v18
        v_cvt_pk_bf16_f32 v16, v16, v16
        v_lshlrev_b32 v18, 1, v1
        buffer_store_short v16, v18, {srd(R_OUT)}, s{S_T0} offen
        """)
        lne = A.label()
        A(f"""
        s_cmp_eq_u32 s2, 176
        s_cbranch_scc0 {lne}
        s_cmp_eq_u32 s{S_WAVE}, 0
        s_cbranch_scc0 {lne}
        v_mov_b32 v20, 0
        v_mov_b32 v21, s{S_TAG}
        s_mov_b32 s{S_T1}, {WS_EPOCH}
        s_mov_b64 exec, 1
        buffer_store_dword v21, v20, {srd(R_WS)}, s{S_T1} offen sc0 sc1
        s_mov_b64 exec, -1
        """)
        A.place(lne)
        self.stamp(9)

    def build(self):
        A = self.A
        self.entry_done = True
        self.entry()
        self.service()
        self.stream()
        self.tail()
        A.place("L_end")
        A("s_endpgm")
        A.footer(256, 102, 256)
        n = A.fix_hazards()
        return A.text()

if __name__ == "__main__":
    import argparse
    ap = argparse.ArgumentParser()
    ap.add_argument("-o", default="main.s")
    ap.add_argument("--N", type=int, default=6)
    ap.add_argument("--NP", type=int, default=10)
    ap.add_argument("--LP", default="sc1")
    ap.add_argument("--debug", action="store_true")
    ap.add_argument("--stamps", action="store_true")
    ap.add_argument("--stop", default=None)
    a = ap.parse_args()
    g = Gen(LP=a.LP, N=a.N, NP=a.NP, debug=a.debug, stamps=a.stamps, stop_after=a.stop)
    open(a.o, "w").write(g.build())
```

```python
import sys
from asmlib import *

LDS_WQ = 98304
LDS_SC = 131072
LDS_MISC = 147456
LDS_XN = LDS_MISC
LDS_Q = LDS_MISC + 2304
LDS_CNT = LDS_MISC + 2560
LDS_WM = LDS_MISC + 2624
LDS_WS = LDS_MISC + 2688
LDS_ORED = LDS_MISC + 4096
LDS_XCC = LDS_MISC + 8192
LDS_RED = LDS_SC
LDS_XN2 = LDS_MISC
LDS_BYTES = 163840

WS_QP = 0x000000
WS_SLOT = 0x100000
WS_OB = WS_SLOT + 0x00000
WS_OP = WS_SLOT + 0x10000
WS_H = WS_SLOT + 0x30000
WS_GU = WS_SLOT + 0x34000
WS_DP = WS_SLOT + 0x50000
WS_C2 = WS_SLOT + 0x70000
WS_C3 = WS_SLOT + 0x70100
WS_FLAG = 0x180000
WS_EPOCH = 0x1F0000
WS_DBG = 0x200000
WS_SIZE = 0x400000
SPIN = 1 << 20

S_WG = 2
S_X, S_K, S_V, S_WQ, S_WO, S_BX, S_WG_, S_WU, S_WD, S_OUT, S_DBG, S_WS = 16, 18, 20, 22, 24, 26, 28, 30, 32, 34, 36, 38
R_K, R_V, R_X, R_WQ, R_WT, R_WS, R_OUT = 40, 44, 48, 52, 56, 60, 68
S_WAVE, S_H, S_B, S_SW = 72, 73, 74, 75
S_T0, S_T1, S_T2, S_T3, S_T4, S_T5 = 76, 77, 78, 79, 80, 81
S_OFF, S_CNT, S_PITCH, S_NJ, S_ROLE = 82, 83, 84, 85, 86
S_M1, S_M2, S_M3 = 88, 90, 92
S_MJ8 = 94
S_EX = 96
S_TAG = 98
S_MQ = 64
S_LOC = 87
S_XCC = 99
S_ME = 66
S_PM = 40
def srd(r): return f"s[{r}:{r+3}]"
def vr(a, n): return f"v[{a}:{a+n-1}]"

class Gen:
    def __init__(self, N=5, NP=8, PV=16, LP='sc1', PD=1, PS=1, HG=64, HD=64, HS=4, nolocal=False, debug=False, stamps=False, stop_after=None):
        self.A = Asm()
        self.N, self.NP, self.PV, self.LP = N, NP, PV, LP
        self.debug, self.stamps, self.stop_after = debug, stamps, stop_after
        self.OSLEEP, self.GSLEEP, self.DSLEEP = 1, 0, 0
        self.PD, self.PS = PD, PS
        self.nolocal = nolocal
        self.HG, self.HD, self.HS = HG, HD, HS

    def mk_srd(self, r, ptr, size, add_lo=None):
        A = self.A
        if add_lo is None:
            A(f"s_mov_b32 s{r}, s{ptr}")
            A(f"s_mov_b32 s{r+1}, s{ptr+1}")
        else:
            A(f"s_add_u32 s{r}, s{ptr}, {add_lo}")
            A(f"s_addc_u32 s{r+1}, s{ptr+1}, 0")
        A(f"s_mov_b32 s{r+2}, {size}")
        A(f"s_mov_b32 s{r+3}, 0x20000")

    def lds_signal(self, off, va, vd):
        A = self.A
        A(f"s_mov_b64 exec, 1")
        A(f"v_mov_b32 v{va}, {off}")
        A(f"v_mov_b32 v{vd}, 1")
        A(f"ds_add_u32 v{va}, v{vd}")
        A(f"s_mov_b64 exec, -1")

    def lds_wait(self, off, val, va, vd, sleep=1):
        A = self.A
        lp = A.label(); ex = A.label()
        A(f"v_mov_b32 v{va}, {off}")
        A(f"s_mov_b32 s{S_CNT}, 0")
        A.place(lp)
        A(f"ds_read_b32 v{vd}, v{va}")
        A(f"s_waitcnt lgkmcnt(0)")
        A(f"v_readfirstlane_b32 s{S_T5}, v{vd}")
        A(f"s_cmp_ge_u32 s{S_T5}, {val}")
        A(f"s_cbranch_scc1 {ex}")
        A(f"s_add_u32 s{S_CNT}, s{S_CNT}, 1")
        A(f"s_cmp_gt_u32 s{S_CNT}, {SPIN*4}")
        A(f"s_cbranch_scc1 {ex}")
        if sleep: A(f"s_sleep {sleep}")
        A(f"s_branch {lp}")
        A.place(ex)

    def allreduce2(self, a, b, ta, tb, op="v_add_f32"):
        A = self.A
        for r in (8, 4, 2, 1):
            A(f"{op}_dpp v{a}, v{a}, v{a} row_ror:{r} row_mask:0xf bank_mask:0xf")
            A(f"{op}_dpp v{b}, v{b}, v{b} row_ror:{r} row_mask:0xf bank_mask:0xf")
        for sw in ("v_permlane16_swap_b32", "v_permlane32_swap_b32"):
            A(f"v_mov_b32 v{ta}, v{a}")
            A(f"v_mov_b32 v{tb}, v{b}")
            A(f"{sw} v{a}, v{ta}")
            A(f"{sw} v{b}, v{tb}")
            A(f"{op} v{a}, v{a}, v{ta}")
            A(f"{op} v{b}, v{b}, v{tb}")

    def rnd_bf16(self, d, s):
        A = self.A
        A(f"v_cvt_pk_bf16_f32 v{d}, v{s}, v{s}")
        A(f"v_lshlrev_b32 v{d}, 16, v{d}")

    def ln_stats(self, F, D, s1, s2, t1, t2, vmb, vrs):
        A = self.A
        A(f"v_readfirstlane_b32 s{S_T4}, v{F}")
        for i in range(0, 16, 2):
            A(f"v_pk_add_f32 {vr(D+i,2)}, {vr(F+i,2)}, s[{S_T4}:{S_T4+1}] op_sel_hi:[1,0] neg_lo:[0,1] neg_hi:[0,1]")
        A(f"v_pk_add_f32 {vr(s1,2)}, {vr(D,2)}, {vr(D+2,2)}")
        A(f"v_pk_mul_f32 {vr(s2,2)}, {vr(D,2)}, {vr(D,2)}")
        A(f"v_pk_fma_f32 {vr(s2,2)}, {vr(D+2,2)}, {vr(D+2,2)}, {vr(s2,2)}")
        for i in range(4, 16, 2):
            A(f"v_pk_add_f32 {vr(s1,2)}, {vr(s1,2)}, {vr(D+i,2)}")
            A(f"v_pk_fma_f32 {vr(s2,2)}, {vr(D+i,2)}, {vr(D+i,2)}, {vr(s2,2)}")
        A(f"v_add_f32 v{s1}, v{s1}, v{s1+1}")
        A(f"v_add_f32 v{s2}, v{s2}, v{s2+1}")
        self.allreduce2(s1, s2, t1, t2)
        A(f"v_mul_f32 v{s1}, 0x3a800000, v{s1}")
        A(f"v_mul_f32 v{s2}, 0x3a800000, v{s2}")
        A(f"v_add_f32 v{vmb}, s{S_T4}, v{s1}")
        A(f"v_fma_f32 v{vrs}, -v{s1}, v{s1}, v{s2}")
        A(f"v_max_f32 v{vrs}, 0, v{vrs}")
        A(f"v_cvt_pk_bf16_f32 v{vmb}, v{vmb}, v{vrs}")
        A(f"v_and_b32 v{vrs}, 0xffff0000, v{vmb}")
        A(f"v_lshlrev_b32 v{vmb}, 16, v{vmb}")
        A(f"v_add_f32 v{vrs}, 0x3727c5ac, v{vrs}")
        self.rnd_bf16(vrs, vrs)
        A(f"v_sqrt_f32 v{vrs}, v{vrs}")
        self.rnd_bf16(vrs, vrs)
        A(f"v_rcp_f32 v{vrs}, v{vrs}")

    def ln_apply(self, d, f, vmb, vrs, t):
        A = self.A
        A(f"v_pk_add_f32 {vr(t,2)}, {vr(f,2)}, {vr(vmb,2)} op_sel_hi:[1,0] neg_lo:[0,1] neg_hi:[0,1]")
        A(f"v_cvt_pk_bf16_f32 v{t}, v{t}, v{t+1}")
        A(f"v_and_b32 v{t+1}, 0xffff0000, v{t}")
        A(f"v_lshlrev_b32 v{t}, 16, v{t}")
        A(f"v_pk_mul_f32 {vr(t,2)}, {vr(t,2)}, {vr(vrs,2)} op_sel_hi:[1,0]")
        A(f"v_cvt_pk_bf16_f32 v{d}, v{t}, v{t+1}")

    LIGHT = {0: 0, 6: 1, 7: 2, 16: 3, 8: 4, 9: 5}
    def stamp(self, idx):
        if self.stamps == "tail":
            if idx in self.LIGHT:
                j = 4 + 2 * self.LIGHT[idx]
                self.A(f"s_memrealtime s[{j}:{j+1}]")
            return
        if not self.stamps: return
        A = self.A
        A(f"s_memrealtime s[4:5]")
        A(f"s_waitcnt lgkmcnt(0)")
        A(f"s_lshl_b32 s6, s{S_WG}, 3")
        A(f"s_add_u32 s6, s6, s{S_WAVE}")
        A(f"s_lshl_b32 s6, s6, 7")
        A(f"s_add_u32 s6, s6, {WS_DBG + 0x100000 + idx*4}")
        A(f"s_mov_b64 s[8:9], exec")
        A(f"s_mov_b64 exec, 1")
        A(f"v_mov_b32 v254, s4")
        A(f"v_mov_b32 v255, 0")
        A(f"buffer_store_dword v254, v255, {srd(R_WS)}, s6 offen")
        A(f"s_mov_b64 exec, s[8:9]")

    def stampval(self, idx, sreg):
        if not self.stamps or self.stamps == "tail": return
        A = self.A
        A(f"s_lshl_b32 s6, s{S_WG}, 3")
        A(f"s_add_u32 s6, s6, s{S_WAVE}")
        A(f"s_lshl_b32 s6, s6, 7")
        A(f"s_add_u32 s6, s6, {WS_DBG + 0x100000 + idx*4}")
        A(f"s_mov_b64 s[8:9], exec")
        A(f"s_mov_b64 exec, 1")
        A(f"v_mov_b32 v254, s{sreg}")
        A(f"v_mov_b32 v255, 0")
        A(f"buffer_store_dword v254, v255, {srd(R_WS)}, s6 offen")
        A(f"s_mov_b64 exec, s[8:9]")

    def cstamp(self, idx):
        if not self.stamps or self.stamps == "tail": return
        A = self.A
        A(f"s_memtime s[10:11]")
        A(f"s_waitcnt lgkmcnt(0)")
        self.stampval(idx, 10)

    def quad_gather(self, d, src):
        A = self.A
        A(f"v_mov_b32_dpp v{d+1}, v{src} quad_perm:[1,1,1,1] row_mask:0xf bank_mask:0xf")
        A(f"v_mov_b32_dpp v{d+2}, v{src} quad_perm:[2,2,2,2] row_mask:0xf bank_mask:0xf")
        A(f"v_mov_b32_dpp v{d+3}, v{src} quad_perm:[3,3,3,3] row_mask:0xf bank_mask:0xf")
        if d != src: A(f"v_mov_b32 v{d}, v{src}")
    def even_gather(self, d, src):
        A = self.A
        A(f"v_mov_b32_dpp v{d+1}, v{src} row_shl:2 row_mask:0xf bank_mask:0xf")
        A(f"v_mov_b32_dpp v{d+2}, v{src} row_shl:4 row_mask:0xf bank_mask:0xf")
        A(f"v_mov_b32_dpp v{d+3}, v{src} row_shl:6 row_mask:0xf bank_mask:0xf")
        if d != src: A(f"v_mov_b32 v{d}, v{src}")

    def hint_add(self, off, va, vd):
        A = self.A
        A(f"v_mov_b32 v{va}, {off}")
        A(f"v_mov_b32 v{vd}, 1")
        A(f"s_mov_b64 exec, 1")
        A(f"buffer_atomic_add v{vd}, v{va}, {srd(R_WS)}, 0 offen sc1")
        A(f"s_mov_b64 exec, -1")
    def hint_wait(self, off, target, va, vd, sleep):
        A = self.A
        lp = A.label(); ex = A.label()
        A(f"s_cmp_eq_u32 s{S_WAVE}, 0")
        A(f"s_cbranch_scc0 {ex}")
        A(f"v_mov_b32 v{va}, {off}")
        A(f"s_mov_b32 s{S_CNT}, 0")
        A(f"s_mov_b64 exec, 1")
        A.place(lp)
        A(f"buffer_load_dword v{vd}, v{va}, {srd(R_WS)}, 0 offen {self.LP}")
        A("s_waitcnt vmcnt(0)")
        A(f"v_readfirstlane_b32 s{S_T5}, v{vd}")
        A(f"s_add_u32 s{S_T5}, s{S_T5}, 1")
        A(f"s_cmp_ge_u32 s{S_T5}, {target}")
        A(f"s_cbranch_scc1 {ex}")
        A(f"s_add_u32 s{S_CNT}, s{S_CNT}, 1")
        A(f"s_cmp_gt_u32 s{S_CNT}, {SPIN}")
        A(f"s_cbranch_scc1 {ex}")
        A(f"s_sleep {sleep}")
        A(f"s_branch {lp}")
        A.place(ex)
        A("s_mov_b64 exec, -1")
        A("s_barrier")

    def local_flag(self, sbase):
        A = self.A
        A(f"s_lshl_b32 s{S_T5}, s{sbase}, 2")
        A(f"s_add_u32 s{S_T5}, s{S_T5}, {LDS_XCC}")
        A(f"v_mov_b32 v4, s{S_T5}")
        A(f"ds_read_b32 v5, v4")
        A(f"ds_read_b32 v6, v4 offset:64")
        A(f"ds_read_b32 v7, v4 offset:128")
        A(f"ds_read_b32 v8, v4 offset:192")
        A(f"s_waitcnt lgkmcnt(0)")
        A(f"v_xor_b32 v6, v6, v5")
        A(f"v_xor_b32 v7, v7, v5")
        A(f"v_xor_b32 v8, v8, v5")
        A(f"v_or3_b32 v6, v6, v7, v8")
        A(f"v_readfirstlane_b32 s{S_LOC}, v6")
        A(f"s_cmp_eq_u32 s{S_LOC}, 0")
        A(f"s_cselect_b32 s{S_LOC}, 1, 0")
        if self.nolocal: A(f"s_mov_b32 s{S_LOC}, 0")
    def store_sel(self, ins):
        A = self.A
        l1 = A.label(); l2 = A.label()
        A(f"s_cmp_eq_u32 s{S_LOC}, 1")
        A(f"s_cbranch_scc1 {l1}")
        A(f"{ins} sc0 sc1")
        A(f"s_branch {l2}")
        A.place(l1)
        A(ins)
        A.place(l2)

    def maxred(self, tmp, regs):
        A = self.A
        rs = list(regs)
        if len(rs) == 1:
            return rs[0]
        if len(rs) == 2:
            A(f"v_max_u32 v{tmp}, v{rs[0]}, v{rs[1]}"); return tmp
        A(f"v_max3_u32 v{tmp}, v{rs[0]}, v{rs[1]}, v{rs[2]}")
        rs = rs[3:]
        while len(rs) >= 2:
            A(f"v_max3_u32 v{tmp}, v{tmp}, v{rs[0]}, v{rs[1]}")
            rs = rs[2:]
        if rs:
            A(f"v_max_u32 v{tmp}, v{tmp}, v{rs[0]}")
        return tmp

    def prepoll(self, load, reg, mask=None, sleep=4, need_all=False):
        A = self.A
        lp = A.label(); ex = A.label()
        if mask is not None:
            A(f"s_mov_b64 exec, s[{mask}:{mask+1}]")
        A(f"s_mov_b32 s{S_CNT}, 0")
        A.place(lp)
        A(load)
        A("s_waitcnt vmcnt(0)")
        if need_all:
            A(f"v_cmp_eq_u32 vcc, -1, v{reg}")
            A(f"s_cbranch_vccz {ex}")
        else:
            A(f"v_cmp_ne_u32 vcc, -1, v{reg}")
            A(f"s_cbranch_vccnz {ex}")
        A(f"s_add_u32 s{S_CNT}, s{S_CNT}, 1")
        A(f"s_cmp_gt_u32 s{S_CNT}, {SPIN}")
        A(f"s_cbranch_scc1 {ex}")
        A(f"s_sleep {sleep}")
        A(f"s_branch {lp}")
        A.place(ex)
        A(f"s_mov_b64 exec, -1")
        self.stamp(16)

    def poll_groups(self, groups, tmp, mask=None, sleep=0):
        A = self.A
        G = len(groups)
        lp = A.label(); ex = A.label()
        for g in range(G):
            m = S_PM + 2 * g
            if mask is None: A(f"s_mov_b64 s[{m}:{m+1}], -1")
            else: A(f"s_mov_b64 s[{m}:{m+1}], s[{mask}:{mask+1}]")
        A(f"s_mov_b32 s{S_CNT}, 0")
        A.place(lp)
        for g, (loads, regs) in enumerate(groups):
            m = S_PM + 2 * g
            sk = A.label()
            A(f"s_mov_b64 exec, s[{m}:{m+1}]")
            if G > 1: A(f"s_cbranch_execz {sk}")
            for l in loads: A(l)
            if G > 1: A.place(sk)
        A("s_waitcnt vmcnt(0)")
        for g, (loads, regs) in enumerate(groups):
            m = S_PM + 2 * g
            A(f"s_mov_b64 exec, s[{m}:{m+1}]")
            t = self.maxred(tmp, regs)
            A(f"v_cmp_eq_u32_e64 s[{m}:{m+1}], -1, v{t}")
        if G == 1:
            A(f"s_cmp_eq_u64 s[{S_PM}:{S_PM+1}], 0")
        else:
            A(f"s_or_b64 s[{S_EX}:{S_EX+1}], s[{S_PM}:{S_PM+1}], s[{S_PM+2}:{S_PM+3}]")
            for g in range(2, G):
                m = S_PM + 2 * g
                A(f"s_or_b64 s[{S_EX}:{S_EX+1}], s[{S_EX}:{S_EX+1}], s[{m}:{m+1}]")
            A(f"s_cmp_eq_u64 s[{S_EX}:{S_EX+1}], 0")
        A(f"s_cbranch_scc1 {ex}")
        A(f"s_add_u32 s{S_CNT}, s{S_CNT}, 1")
        if sleep: A(f"s_sleep {sleep}")
        A(f"s_cmp_gt_u32 s{S_CNT}, {SPIN}")
        A(f"s_cbranch_scc0 {lp}")
        A.place(ex)
        A(f"s_mov_b64 exec, -1")

    def poll_pipe(self, loads, regs, tmp, mask=None, depth=4, sleep=2):
        A = self.A
        n = len(loads)
        lp = A.label(); ex = A.label()
        for r in regs:
            A(f"v_mov_b32 v{r}, -1")
        if mask is not None:
            A(f"s_mov_b64 exec, s[{mask}:{mask+1}]")
        A(f"s_mov_b32 s{S_CNT}, 0")
        A.place(lp)
        for l in loads: A(l)
        if sleep: A(f"s_sleep {sleep}")
        A(f"s_waitcnt vmcnt({(depth-1)*n})")
        t = self.maxred(tmp, regs)
        A(f"v_cmp_eq_u32 vcc, -1, v{t}")
        A(f"s_cbranch_vccz {ex}")
        A(f"s_mov_b64 exec, vcc")
        A(f"s_add_u32 s{S_CNT}, s{S_CNT}, 1")
        A(f"s_cmp_gt_u32 s{S_CNT}, {SPIN}")
        A(f"s_cbranch_scc0 {lp}")
        A.place(ex)
        A(f"s_mov_b64 exec, -1")

    def role_params(self):
        A = self.A
        lG, lD, lN, lE = A.label(), A.label(), A.label(), A.label()
        A(f"""
        s_cmp_ge_u32 s2, 64
        s_cbranch_scc1 {lG}
        s_mov_b32 s{S_ROLE}, 0
        s_mov_b32 s{S_PITCH}, 2048
        s_mov_b32 s{S_NJ}, 32
        s_lshr_b32 s{S_T0}, s2, 4
        s_lshl_b32 s{S_T0}, s{S_T0}, 21
        s_and_b32 s{S_T1}, s2, 15
        s_lshl_b32 s{S_T1}, s{S_T1}, 7
        s_add_u32 s{S_T0}, s{S_T0}, s{S_T1}
        s_add_u32 s{R_WT}, s{S_WO}, s{S_T0}
        s_addc_u32 s{R_WT+1}, s{S_WO+1}, 0
        s_sub_u32 s{R_WT+2}, {8<<20}, s{S_T0}
        s_branch {lE}
        """)
        A.place(lG)
        A(f"""
        s_cmp_ge_u32 s2, 176
        s_cbranch_scc1 {lD}
        s_mov_b32 s{S_ROLE}, 1
        s_mov_b32 s{S_PITCH}, 7168
        s_mov_b32 s{S_NJ}, 32
        s_sub_u32 s{S_T0}, s2, 64
        s_lshr_b32 s{S_T1}, s{S_T0}, 1
        s_lshl_b32 s{S_T1}, s{S_T1}, 7
        s_bitcmp1_b32 s{S_T0}, 0
        s_cselect_b32 s{S_T2}, s{S_WU}, s{S_WG_}
        s_cselect_b32 s{S_T3}, s{S_WU+1}, s{S_WG_+1}
        s_add_u32 s{R_WT}, s{S_T2}, s{S_T1}
        s_addc_u32 s{R_WT+1}, s{S_T3}, 0
        s_sub_u32 s{R_WT+2}, {7340032}, s{S_T1}
        s_branch {lE}
        """)
        A.place(lD)
        A(f"""
        s_cmp_ge_u32 s2, 240
        s_cbranch_scc1 {lN}
        s_mov_b32 s{S_ROLE}, 2
        s_mov_b32 s{S_PITCH}, 2048
        s_mov_b32 s{S_NJ}, 28
        s_sub_u32 s{S_T0}, s2, 176
        s_lshr_b32 s{S_T1}, s{S_T0}, 4
        s_mul_i32 s{S_T1}, s{S_T1}, {896*2048}
        s_and_b32 s{S_T0}, s{S_T0}, 15
        s_lshl_b32 s{S_T0}, s{S_T0}, 7
        s_add_u32 s{S_T0}, s{S_T0}, s{S_T1}
        s_add_u32 s{R_WT}, s{S_WD}, s{S_T0}
        s_addc_u32 s{R_WT+1}, s{S_WD+1}, 0
        s_sub_u32 s{R_WT+2}, {7340032}, s{S_T0}
        s_branch {lE}
        """)
        A.place(lN)
        A(f"""
        s_mov_b32 s{S_ROLE}, 3
        s_mov_b32 s{S_PITCH}, 2048
        s_mov_b32 s{S_NJ}, 0
        s_mov_b32 s{R_WT}, s{S_WD}
        s_mov_b32 s{R_WT+1}, s{S_WD+1}
        s_mov_b32 s{R_WT+2}, 0
        """)
        A.place(lE)
        A(f"s_mov_b32 s{R_WT+3}, 0x20000")

    def entry(self):
        A = self.A
        A.header(256, 512, LDS_BYTES, comments=[
            "Fused decode layer: preLN + MHA over KV cache + out-proj + preLN + GEGLU FFN (one persistent launch, 256 WGs x 512).",
        ])
        A(f"""
        s_cmp_ge_u32 s2, 256
        s_cbranch_scc1 L_end
        s_load_dwordx16 s[16:31], s[0:1], 0
        s_load_dwordx8 s[32:39], s[0:1], 64
        v_and_b32 v1, 63, v0
        v_lshrrev_b32 v4, 6, v0
        v_lshlrev_b32 v2, 4, v1
        v_readfirstlane_b32 s{S_WAVE}, v4
        v_lshlrev_b32 v3, 2, v1
        s_lshr_b32 s{S_H}, s2, 3
        s_and_b32 s{S_B}, s2, 7
        s_mov_b32 s{S_M1}, 0x22222222
        s_mov_b32 s{S_M1+1}, 0x22222222
        s_mov_b32 s{S_M2}, 0x44444444
        s_mov_b32 s{S_M2+1}, 0x44444444
        s_mov_b32 s{S_M3}, 0x88888888
        s_mov_b32 s{S_M3+1}, 0x88888888
        s_mov_b32 s{S_MJ8}, 0x00ff00ff
        s_mov_b32 s{S_MJ8+1}, 0x00ff00ff
        s_mov_b32 s{S_MQ}, 0x11111111
        s_mov_b32 s{S_MQ+1}, 0x11111111
        s_mov_b32 s{S_ME}, 0x01010101
        s_mov_b32 s{S_ME+1}, 0x01010101
        v_mov_b32 v4, {LDS_CNT}
        v_mov_b32 v6, 0
        v_mov_b32 v7, 0
        ds_write_b64 v4, v[6:7]
        ds_write_b64 v4, v[6:7] offset:8
        s_and_b32 s{S_SW}, s{S_WAVE}, 3
        s_mov_b64 s[4:5], 0
        s_mov_b64 s[6:7], 0
        s_mov_b64 s[8:9], 0
        s_mov_b64 s[10:11], 0
        s_mov_b64 s[12:13], 0
        s_mov_b64 s[14:15], 0
        s_cmp_ge_u32 s{S_WAVE}, 4
        s_cbranch_scc1 L_stream
        """)

    def service(self):
        A = self.A
        A.c("==== service waves: LN(x), q partial, exchange ====")
        A(f"""
        v_lshrrev_b32 v4, 4, v1
        v_and_b32 v5, 15, v1
        s_lshr_b32 s{S_T0}, s{S_SW}, 1
        s_lshl_b32 s{S_T0}, s{S_T0}, 2
        v_or_b32 v6, s{S_T0}, v4
        v_lshlrev_b32 v6, 1, v6
        v_xor_b32 v6, v6, v5
        v_lshlrev_b32 v6, 4, v6
        v_lshlrev_b32 v7, 13, v4
        v_add_u32 v6, v6, v7
        s_lshl_b32 s{S_T0}, s{S_B}, 20
        s_lshl_b32 s{S_T1}, s{S_SW}, 15
        s_add_u32 s{S_T0}, s{S_T0}, s{S_T1}
        s_lshl_b32 s{S_T1}, s{S_H}, 8
        s_add_u32 s{S_T0}, s{S_T0}, s{S_T1}
        s_lshl_b32 s{S_T1}, s{S_SW}, 10
        s_add_u32 s{S_T1}, s{S_T1}, {LDS_WQ}
        s_lshl_b32 s{S_T2}, s{S_SW}, 12
        v_mov_b32 v126, 0
        s_mov_b32 s{S_T3}, {WS_EPOCH}
        s_waitcnt lgkmcnt(0)
        """)
        self.mk_srd(R_X, S_X, 16384)
        A(f"buffer_load_dwordx4 v[8:11], v2, {srd(R_X)}, s{S_T2} offen")
        A(f"buffer_load_dwordx4 v[12:15], v2, {srd(R_X)}, s{S_T2} offen offset:1024")
        A(f"buffer_load_dwordx4 v[16:19], v2, {srd(R_X)}, s{S_T2} offen offset:2048")
        A(f"buffer_load_dwordx4 v[20:23], v2, {srd(R_X)}, s{S_T2} offen offset:3072")
        self.mk_srd(R_WQ, S_WQ, 8 << 20)
        for j in range(8):
            A(f"s_mov_b32 m0, s{S_T1}")
            A(f"s_add_u32 s{S_T1}, s{S_T1}, 4096")
            A(f"buffer_load_dwordx4 v6, {srd(R_WQ)}, s{S_T0} offen nt lds")
            if j < 7:
                A(f"s_add_u32 s{S_T0}, s{S_T0}, {4*32768}")
        self.mk_srd(R_WS, S_WS, WS_SIZE)
        A(f"buffer_load_dword v126, v126, {srd(R_WS)}, s{S_T3} offen {self.LP}")
        A("s_barrier")
        self.stamp(0)
        if self.stamps and self.stamps != "tail":
            A("s_getreg_b32 s10, hwreg(HW_REG_XCC_ID)")
            self.stampval(31, 10)
        A(f"""
        v_mov_b32 v24, -1
        v_mov_b32 v25, -1
        v_mov_b32 v26, -1
        v_mov_b32 v27, -1
        s_lshl_b32 s{S_T0}, s2, 11
        s_lshl_b32 s{S_T1}, s{S_SW}, 9
        s_add_u32 s{S_T0}, s{S_T0}, s{S_T1}
        s_add_u32 s{S_T0}, s{S_T0}, {WS_SLOT}
        s_mov_b64 exec, 0xffffffff
        buffer_store_dwordx4 v[24:27], v2, {srd(R_WS)}, s{S_T0} offen sc0 sc1
        s_mov_b64 exec, -1
        """)
        nst = 2 if (self.stamps and self.stamps != 'tail') else 0
        self.role_params()
        A(f"s_waitcnt vmcnt({10 + nst})")
        self.stamp(10)
        F, D = 32, 48
        S1, S2, T1, T2, VMB, VRS = 64, 66, 68, 69, 70, 72
        for r in range(2):
            base = 8 + 8 * r
            for i in range(8):
                A(f"v_lshlrev_b32 v{F+2*i}, 16, v{base+i}")
                A(f"v_and_b32 v{F+2*i+1}, 0xffff0000, v{base+i}")
            self.ln_stats(F, D, S1, S2, T1, T2, VMB, VRS)
            lab = A.label()
            A(f"s_cmp_lt_u32 s{S_B}, 4")
            A(f"s_cbranch_scc1 {lab}")
            for i in range(0, 8, 2):
                A(f"v_pk_mov_b32 {vr(F+i,2)}, {vr(F+8+i,2)}, {vr(F+8+i,2)} op_sel:[0,1]")
            A.place(lab)
            for i in range(4):
                self.ln_apply(76 + i, F + 2*i, VMB, VRS, 74)
            A(f"""
            s_and_b32 s{S_T0}, s{S_B}, 3
            s_lshl_b32 s{S_T0}, s{S_T0}, 4
            s_mov_b64 s[{S_EX}:{S_EX+1}], 0xffff
            s_lshl_b64 s[{S_EX}:{S_EX+1}], s[{S_EX}:{S_EX+1}], s{S_T0}
            s_lshl_b32 s{S_T1}, s{S_SW}, 1
            s_add_u32 s{S_T1}, s{S_T1}, {r}
            s_mul_i32 s{S_T1}, s{S_T1}, 272
            s_add_u32 s{S_T1}, s{S_T1}, {LDS_XN}
            v_and_b32 v80, 15, v1
            v_lshlrev_b32 v80, 4, v80
            v_add_u32 v80, s{S_T1}, v80
            s_mov_b64 exec, s[{S_EX}:{S_EX+1}]
            ds_write_b128 v80, v[76:79]
            s_mov_b64 exec, -1
            """)
        self.stamp(12)
        A(f"""
        v_and_b32 v58, 7, v1
        v_mul_u32_u24 v58, 272, v58
        v_lshrrev_b32 v59, 4, v1
        v_lshlrev_b32 v60, 4, v59
        v_add_u32 v58, v58, v60
        v_add_u32 v58, {LDS_XN}, v58
        v_and_b32 v60, 15, v1
        v_lshrrev_b32 v61, 2, v60
        v_and_b32 v62, 3, v60
        v_and_b32 v63, 1, v59
        v_lshlrev_b32 v63, 2, v63
        v_or_b32 v63, v63, v61
        v_lshlrev_b32 v80, 3, v59
        v_add_u32 v80, v80, v61
        v_lshlrev_b32 v80, 8, v80
        v_lshlrev_b32 v62, 3, v62
        v_add_u32 v80, v80, v62
        v_add_u32 v80, {LDS_WQ}, v80
        s_lshl_b32 s{S_T0}, s{S_SW}, 1
        v_xor_b32 v81, s{S_T0}, v63
        v_lshlrev_b32 v81, 5, v81
        v_add_u32 v81, v81, v80
        s_add_u32 s{S_T0}, s{S_T0}, 1
        v_xor_b32 v82, s{S_T0}, v63
        v_lshlrev_b32 v82, 5, v82
        v_add_u32 v82, v82, v80
        v_and_b32 v56, 15, v1
        v_lshlrev_b32 v56, 12, v56
        v_lshlrev_b32 v60, 4, v59
        v_add_u32 v56, v56, v60
        """)
        A(f"s_waitcnt vmcnt({2 + 2*nst}) lgkmcnt(0)")
        self.stamp(13)
        self.lds_signal(LDS_CNT + 0, 124, 125)
        self.lds_wait(LDS_CNT + 0, 4, 124, 125, sleep=0)
        for s in range(4):
            A(f"ds_read_b128 {vr(64+4*s,4)}, v58 offset:{s*64}")
        for c in range(2):
            for s in range(4):
                r = 84 + (c * 4 + s) * 4
                A(f"ds_read_b64_tr_b16 {vr(r,2)}, v{81+c} offset:{s*8192}")
                A(f"ds_read_b64_tr_b16 {vr(r+2,2)}, v{81+c} offset:{s*8192+1024}")
        A(f"""
        s_lshl_b32 s{S_T0}, s{S_H}, 15
        s_lshl_b32 s{S_T1}, s{S_B}, 9
        s_add_u32 s{S_T0}, s{S_T0}, s{S_T1}
        s_lshl_b32 s{S_T1}, s{S_SW}, 7
        s_add_u32 s{S_T0}, s{S_T0}, s{S_T1}
        s_waitcnt lgkmcnt(0)
        """)
        for s in range(4):
            for c in range(2):
                r = 84 + (c * 4 + s) * 4
                acc = 116 + 4 * c
                src = "0" if s == 0 else vr(acc, 4)
                A(f"v_mfma_f32_16x16x32_bf16 {vr(acc,4)}, {vr(r,4)}, {vr(64+4*s,4)}, {src}")
        self.lds_signal(LDS_CNT + 4, 124, 125)
        A(f"""
        s_mov_b64 exec, s[{S_MJ8}:{S_MJ8+1}]
        buffer_store_dwordx4 v[116:119], v56, {srd(R_WS)}, s{S_T0} offen sc0 sc1
        buffer_store_dwordx4 v[120:123], v56, {srd(R_WS)}, s{S_T0} offen offset:64 sc0 sc1
        s_mov_b64 exec, -1
        v_readfirstlane_b32 s{S_TAG}, v126
        s_lshl_b32 s{S_T0}, s{S_H}, 7
        s_add_u32 s{S_T0}, s{S_T0}, {WS_FLAG}
        s_lshl_b32 s{S_T1}, s{S_B}, 4
        s_lshl_b32 s{S_T2}, s{S_SW}, 2
        s_add_u32 s{S_T1}, s{S_T1}, s{S_T2}
        s_add_u32 s{S_TAG}, s{S_TAG}, 1
        s_getreg_b32 s{S_XCC}, hwreg(HW_REG_XCC_ID)
        s_and_b32 s{S_XCC}, s{S_XCC}, 7
        s_lshl_b32 s{S_XCC}, s{S_XCC}, 24
        s_add_u32 s{S_XCC}, s{S_XCC}, s{S_TAG}
        v_mov_b32 v58, s{S_T1}
        v_mov_b32 v59, s{S_XCC}
        s_waitcnt vmcnt(0)
        s_mov_b64 exec, 1
        buffer_store_dword v59, v58, {srd(R_WS)}, s{S_T0} offen sc0 sc1
        s_mov_b64 exec, -1
        """)
        self.stamp(1)
        A(f"s_cmp_eq_u32 s{S_SW}, 0")
        A(f"s_cbranch_scc0 L_svc_done")
        lp = A.label(); ex = A.label()
        A(f"s_mov_b64 exec, 0xffffffff")
        A(f"s_mov_b32 s{S_CNT}, 0")
        A.place(lp)
        A(f"""
        buffer_load_dword v60, v3, {srd(R_WS)}, s{S_T0} offen {self.LP}
        s_waitcnt vmcnt(0)
        v_subrev_u32 v60, s{S_TAG}, v60
        v_and_b32 v60, 0xf8ffffff, v60
        v_cmp_ne_u32 vcc, 0, v60
        s_cbranch_vccz {ex}
        s_add_u32 s{S_CNT}, s{S_CNT}, 1
        s_cmp_gt_u32 s{S_CNT}, {SPIN}
        s_cbranch_scc0 {lp}
        """)
        A.place(ex)
        A("s_mov_b64 exec, -1")
        self.stamp(11)
        A(f"s_lshl_b32 s{S_T0}, s2, 12")
        for j in range(4):
            A(f"buffer_load_dwordx4 {vr(64+4*j,4)}, v2, {srd(R_WS)}, s{S_T0} offen offset:{j*1024} {self.LP}")
        A(f"""
        v_and_b32 v58, 31, v1
        v_lshlrev_b32 v58, 3, v58
        v_add_u32 v58, {LDS_Q}, v58
        s_waitcnt vmcnt(0)
        """)
        for e in range(0, 4, 2):
            A(f"v_pk_add_f32 {vr(64+e,2)}, {vr(64+e,2)}, {vr(68+e,2)}")
            A(f"v_pk_add_f32 {vr(72+e,2)}, {vr(72+e,2)}, {vr(76+e,2)}")
        for e in range(0, 4, 2):
            A(f"v_pk_add_f32 {vr(64+e,2)}, {vr(64+e,2)}, {vr(72+e,2)}")
        for e in range(4):
            A(f"v_mov_b32 v{68+e}, v{64+e}")
        for e in range(4):
            A(f"v_permlane32_swap_b32 v{64+e}, v{68+e}")
        for e in range(0, 4, 2):
            A(f"v_pk_add_f32 {vr(64+e,2)}, {vr(64+e,2)}, {vr(68+e,2)}")
        A(f"""
        v_cvt_pk_bf16_f32 v64, v64, v65
        v_cvt_pk_bf16_f32 v65, v66, v67
        ds_write_b64 v58, v[64:65]
        s_waitcnt lgkmcnt(0)
        """)
        self.lds_signal(LDS_CNT + 12, 124, 125)
        self.stamp(2)
        if self.debug:
            A(f"""
            v_and_b32 v58, 31, v1
            v_lshlrev_b32 v58, 3, v58
            s_lshl_b32 s{S_T0}, s2, 8
            s_add_u32 s{S_T0}, s{S_T0}, {WS_DBG}
            buffer_store_dwordx2 v[64:65], v58, {srd(R_WS)}, s{S_T0} offen
            """)
        lp = A.label(); ex = A.label()
        A(f"s_mov_b32 s{S_T0}, {WS_FLAG}")
        A(f"s_mov_b32 s{S_CNT}, 0")
        A.place(lp)
        for j in range(4):
            A(f"buffer_load_dwordx4 {vr(64+4*j,4)}, v2, {srd(R_WS)}, s{S_T0} offen offset:{j*1024} {self.LP}")
        A("s_waitcnt vmcnt(0)")
        for i in range(16):
            A(f"v_subrev_u32 v{64+i}, s{S_TAG}, v{64+i}")
        for i in range(16):
            A(f"v_and_b32 v{80+i}, 0xf8ffffff, v{64+i}")
        t = self.maxred(60, range(80, 96))
        A(f"""
        v_cmp_ne_u32 vcc, 0, v{t}
        s_cbranch_vccz {ex}
        s_add_u32 s{S_CNT}, s{S_CNT}, 1
        s_cmp_gt_u32 s{S_CNT}, {SPIN}
        s_cbranch_scc1 {ex}
        s_sleep 16
        s_branch {lp}
        """)
        A.place(ex)
        A(f"v_add_u32 v60, {LDS_XCC}, v3")
        for t in range(4):
            A(f"ds_write_b32 v60, v{64+4*t} offset:{t*256}")
        A("s_waitcnt lgkmcnt(0)")
        A.place("L_svc_done")
        A("s_barrier")
        A("s_barrier")
        A("s_branch L_join3")

    RING = 64
    R = 32
    QF = 8
    def slot(self, t): return self.RING + 4 * (t % self.R)
    def issue(self, t, which):
        A = self.A
        r = self.slot(t)
        A(f"buffer_load_dwordx4 {vr(r,4)}, v2, {srd(R_K if which == 'K' else R_V)}, s{S_OFF} offen nt")
        A(f"s_add_u32 s{S_OFF}, s{S_OFF}, 4096")

    def k_block(self, t0, plan):
        A = self.A
        q = self.QF
        ACC = [12, 13, 14, 15]; B0, B1 = 16, 17; E = [18, 19, 20, 21]; M = 22
        MX = 24; SA = 25
        def reduce_group(c):
            a0, a1, a2, a3 = ACC
            e = E[c]
            A(f"v_add_f32_dpp v{B0}, v{a0}, v{a0} row_ror:8 row_mask:0xf bank_mask:0x3")
            A(f"v_add_f32_dpp v{B1}, v{a2}, v{a2} row_ror:8 row_mask:0xf bank_mask:0x3")
            A(f"v_add_f32_dpp v{B0}, v{a1}, v{a1} row_ror:8 row_mask:0xf bank_mask:0xc")
            A(f"v_add_f32_dpp v{B1}, v{a3}, v{a3} row_ror:8 row_mask:0xf bank_mask:0xc")
            A(f"v_add_f32_dpp v{e}, v{B0}, v{B0} row_half_mirror row_mask:0xf bank_mask:0x5")
            A(f"v_add_f32_dpp v{e}, v{B1}, v{B1} row_half_mirror row_mask:0xf bank_mask:0xa")
            A(f"v_add_f32_dpp v{e}, v{e}, v{e} quad_perm:[1,0,3,2] row_mask:0xf bank_mask:0xf")
            A(f"v_add_f32_dpp v{e}, v{e}, v{e} quad_perm:[2,3,0,1] row_mask:0xf bank_mask:0xf")
        for t in range(16):
            cnt, iss = plan(t0 + t)
            A(f"s_waitcnt vmcnt({cnt})")
            if iss is not None:
                if iss[1] == 'V' and iss[0] == 0:
                    A(f"s_lshl_b32 s{S_OFF}, s{S_SW}, 10")
                self.issue(iss[0], iss[1])
            r = self.slot(t0 + t)
            a = ACC[t % 4]
            A(f"v_dot2_f32_bf16 v{a}, v{r}, v{q}, 0")
            A(f"v_dot2_f32_bf16 v{a}, v{r+1}, v{q+1}, v{a}")
            A(f"v_dot2_f32_bf16 v{a}, v{r+2}, v{q+2}, v{a}")
            A(f"v_dot2_f32_bf16 v{a}, v{r+3}, v{q+3}, v{a}")
            if t % 4 == 3:
                reduce_group(t // 4)
        A(f"v_cndmask_b32 v{M}, v{E[0]}, v{E[1]}, s[{S_M1}:{S_M1+1}]")
        A(f"v_cndmask_b32 v{M}, v{M}, v{E[2]}, s[{S_M2}:{S_M2+1}]")
        A(f"v_cndmask_b32 v{M}, v{M}, v{E[3]}, s[{S_M3}:{S_M3+1}]")
        self.rnd_bf16(M, M)
        A(f"v_mul_f32 v{M}, 0x3db504f3, v{M}")
        self.rnd_bf16(M, M)
        A(f"ds_write_b32 v{SA}, v{M}")
        A(f"v_max_f32 v{MX}, v{MX}, v{M}")
        A(f"v_add_u32 v{SA}, 256, v{SA}")

    def v_block(self, t0, plan, last=False):
        A = self.A
        P, PN, PA = 12, 13, 14
        MK = [16, 17, 18, 19]
        BS = [[20, 21, 22, 23], [24, 25, 26, 27]]
        ACC = 28
        A(f"s_waitcnt lgkmcnt(0)")
        A(f"v_mov_b32 v{P}, v{PN}")
        if not last:
            A(f"ds_read_b32 v{PN}, v{PA}")
            A(f"v_add_u32 v{PA}, 256, v{PA}")
        for t in range(16):
            cnt, iss = plan(t0 + t)
            A(f"s_waitcnt vmcnt({cnt})")
            if iss is not None:
                self.issue(iss[0], iss[1])
            B = BS[t % 2]
            for j in range(4):
                A(f"v_and_b32_dpp v{B[j]}, v{P}, v{MK[j]} row_newbcast:{t} row_mask:0xf bank_mask:0xf")
            r = self.slot(t0 + t)
            A(f"v_mfma_f32_16x16x32_bf16 {vr(ACC,4)}, {vr(r,4)}, {vr(B[0],4)}, {vr(ACC,4)}")

    def stream(self):
        A = self.A
        N, NP, PV, R = self.N, self.NP, self.PV, self.R
        A.place("L_stream")
        A.c("==== stream waves ====")
        A(f"""
        v_lshrrev_b32 v4, 3, v1
        v_and_b32 v5, 7, v1
        v_lshrrev_b32 v6, 4, v1
        v_and_b32 v6, 1, v6
        v_lshlrev_b32 v6, 1, v6
        v_xor_b32 v5, v5, v6
        s_and_b32 s{S_T0}, s{S_SW}, 1
        s_lshl_b32 s{S_T0}, s{S_T0}, 2
        v_xor_b32 v5, s{S_T0}, v5
        v_lshlrev_b32 v5, 4, v5
        s_waitcnt lgkmcnt(0)
        """)
        self.mk_srd(R_WS, S_WS, WS_SIZE)
        self.role_params()
        A(f"""
        s_lshl_b32 s{S_T0}, s{S_B}, 5
        s_add_u32 s{S_T0}, s{S_T0}, s{S_H}
        s_lshl_b32 s{S_T0}, s{S_T0}, 20
        """)
        self.mk_srd(R_K, S_K, 1 << 20, f"s{S_T0}")
        self.mk_srd(R_V, S_V, 1 << 20, f"s{S_T0}")
        A(f"""
        v_mul_lo_u32 v4, v4, s{S_PITCH}
        v_add_u32 v4, v4, v5
        s_lshl_b32 s{S_T0}, s{S_PITCH}, 3
        s_mul_i32 s{S_T1}, s{S_T0}, s{S_SW}
        s_lshl_b32 s{S_T0}, s{S_T0}, 2
        s_lshl_b32 s{S_T2}, s{S_SW}, 10
        s_mov_b32 s{S_T3}, 0
        s_barrier
        """)
        self.stamp(0)
        if self.stamps and self.stamps != "tail":
            A("s_getreg_b32 s4, hwreg(HW_REG_XCC_ID)")
            A(f"s_lshl_b32 s6, s{S_WG}, 3")
            A(f"s_add_u32 s6, s6, s{S_WAVE}")
            A(f"s_lshl_b32 s6, s6, 7")
            A(f"s_add_u32 s6, s6, {WS_DBG + 0x100000 + 31*4}")
            A(f"s_mov_b64 exec, 1")
            A(f"v_mov_b32 v254, s4")
            A(f"v_mov_b32 v255, 0")
            A(f"buffer_store_dword v254, v255, {srd(R_WS)}, s6 offen")
            A(f"s_mov_b64 exec, -1")
        lp1, lp2, ld = A.label(), A.label(), A.label()
        A(f"s_cmp_eq_u32 s{S_NJ}, 0")
        A(f"s_cbranch_scc1 {ld}")
        A.place(lp1)
        A(f"""
        s_mov_b32 m0, s{S_T2}
        s_waitcnt vmcnt({NP-1})
        buffer_load_dwordx4 v4, {srd(R_WT)}, s{S_T1} offen nt lds
        s_add_u32 s{S_T1}, s{S_T1}, s{S_T0}
        s_add_u32 s{S_T2}, s{S_T2}, 4096
        s_add_u32 s{S_T3}, s{S_T3}, 1
        s_cmp_lt_u32 s{S_T3}, 24
        s_cbranch_scc1 {lp1}
        """)
        A.place(ld)
        A(f"s_lshl_b32 s{S_OFF}, s{S_SW}, 10")
        for t in range(R):
            A(f"s_waitcnt vmcnt({NP-1})")
            self.issue(t, 'K')
        self.stamp(15)
        ld2 = A.label()
        A(f"s_cmp_eq_u32 s{S_NJ}, 0")
        A(f"s_cbranch_scc1 {ld2}")
        self.lds_wait(LDS_CNT + 4, 4, 6, 7)
        A.place(lp2)
        A(f"""
        s_mov_b32 m0, s{S_T2}
        s_waitcnt vmcnt({NP-1})
        buffer_load_dwordx4 v4, {srd(R_WT)}, s{S_T1} offen nt lds
        s_add_u32 s{S_T1}, s{S_T1}, s{S_T0}
        s_add_u32 s{S_T2}, s{S_T2}, 4096
        s_add_u32 s{S_T3}, s{S_T3}, 1
        s_cmp_lt_u32 s{S_T3}, s{S_NJ}
        s_cbranch_scc1 {lp2}
        """)
        A.place(ld2)
        self.stamp(14)
        self.lds_wait(LDS_CNT + 12, 1, 6, 7)
        self.stamp(3)
        self.cstamp(20)
        A(f"""
        v_and_b32 v6, 15, v1
        v_lshlrev_b32 v6, 4, v6
        v_add_u32 v6, {LDS_Q}, v6
        ds_read_b128 v[8:11], v6
        v_mov_b32 v24, 0xff800000
        v_and_b32 v6, 3, v1
        v_lshlrev_b32 v6, 2, v6
        v_bfe_u32 v7, v1, 2, 1
        v_lshlrev_b32 v7, 1, v7
        v_bfe_u32 v5, v1, 3, 1
        v_or_b32 v7, v7, v5
        v_add_u32 v6, v6, v7
        v_and_b32 v7, 48, v1
        v_add_u32 v6, v6, v7
        v_lshlrev_b32 v6, 2, v6
        s_lshl_b32 s{S_T0}, s{S_SW}, 12
        s_add_u32 s{S_T0}, s{S_T0}, {LDS_SC}
        v_add_u32 v25, s{S_T0}, v6
        s_waitcnt lgkmcnt(0)
        """)
        def plan_first(t):
            if t < R - N: return (R - 1 - t, None)
            return (N - 1, (t + N, 'K'))
        def plan_mid(t): return (N - 1, (t + N, 'K'))
        def plan_klast(t):
            if t + N < 256: return (N - 1, (t + N, 'K'))
            return (N - 1, (t + N - 256, 'V'))
        self.k_block(0, plan_first)
        self.k_block(16, plan_first)
        lp = A.label()
        A(f"s_mov_b32 s{S_T3}, 0")
        A.place(lp)
        self.k_block(32, plan_mid)
        self.k_block(48, plan_mid)
        A(f"s_add_u32 s{S_T3}, s{S_T3}, 1")
        A(f"s_cmp_lt_u32 s{S_T3}, 6")
        A(f"s_cbranch_scc1 {lp}")
        self.k_block(224, plan_mid)
        self.k_block(240, plan_klast)
        for t in range(N, PV):
            self.issue(t, 'V')
        self.stamp(4)
        MX, T = 24, 23
        for r in (8, 4, 2, 1):
            A(f"v_max_f32_dpp v{MX}, v{MX}, v{MX} row_ror:{r} row_mask:0xf bank_mask:0xf")
        A(f"""
        v_lshrrev_b32 v6, 4, v1
        v_lshlrev_b32 v6, 2, v6
        s_lshl_b32 s{S_T0}, s{S_SW}, 4
        v_add_u32 v6, s{S_T0}, v6
        v_add_u32 v7, {LDS_WM}, v6
        ds_write_b32 v7, v{MX}
        s_lshl_b32 s{S_T0}, s{S_SW}, 12
        s_add_u32 s{S_T0}, s{S_T0}, {LDS_SC}
        v_add_u32 v14, s{S_T0}, v3
        s_waitcnt lgkmcnt(0)
        """)
        for i in range(16):
            A(f"ds_read_b32 v{48+i}, v14 offset:{i*256}")
        A(f"""
        s_barrier
        v_mov_b32 v7, {LDS_WM}
        ds_read_b128 v[32:35], v7
        ds_read_b128 v[36:39], v7 offset:16
        ds_read_b128 v[40:43], v7 offset:32
        ds_read_b128 v[44:47], v7 offset:48
        s_mov_b32 s{S_T1}, 0x3fb8aa3b
        s_waitcnt lgkmcnt(0)
        """)
        A(f"v_max3_f32 v{MX}, v32, v33, v34")
        for i in range(35, 47, 2):
            A(f"v_max3_f32 v{MX}, v{MX}, v{i}, v{i+1}")
        A(f"v_max_f32 v{MX}, v{MX}, v47")
        for i in range(16):
            A(f"v_sub_f32 v{48+i}, v{48+i}, v{MX}")
        for i in range(16):
            A(f"v_mul_f32 v{48+i}, s{S_T1}, v{48+i}")
        for i in range(16):
            A(f"v_exp_f32 v{48+i}, v{48+i}")
        A(f"v_add_f32 v{T}, v48, v49")
        for i in range(2, 16):
            A(f"v_add_f32 v{T}, v{T}, v{48+i}")
        for r in (8, 4, 2, 1):
            A(f"v_add_f32_dpp v{T}, v{T}, v{T} row_ror:{r} row_mask:0xf bank_mask:0xf")
        A(f"""
        v_add_u32 v7, {LDS_WS}, v6
        ds_write_b32 v7, v{T}
        s_waitcnt lgkmcnt(0)
        s_barrier
        v_mov_b32 v7, {LDS_WS}
        ds_read_b128 v[32:35], v7
        ds_read_b128 v[36:39], v7 offset:16
        ds_read_b128 v[40:43], v7 offset:32
        ds_read_b128 v[44:47], v7 offset:48
        v_and_b32 v6, 15, v1
        v_lshrrev_b32 v7, 1, v6
        v_and_b32 v5, 1, v6
        v_lshlrev_b32 v5, 4, v5
        v_mov_b32 v4, 0xffff
        v_lshlrev_b32 v4, v5, v4
        """)
        for j in range(4):
            A(f"v_cmp_eq_u32 vcc, {j}, v7")
            A(f"v_cndmask_b32 v{16+j}, 0, v4, vcc")
        A("s_waitcnt lgkmcnt(0)")
        for i in range(0, 16, 2):
            A(f"v_add_f32 v{32+i}, v{32+i}, v{33+i}")
        for i in range(0, 16, 4):
            A(f"v_add_f32 v{32+i}, v{32+i}, v{34+i}")
        A(f"v_add_f32 v32, v32, v36")
        A(f"v_add_f32 v40, v40, v44")
        A(f"v_add_f32 v32, v32, v40")
        A(f"v_rcp_f32 v32, v32")
        for i in range(16):
            A(f"v_mul_f32 v{48+i}, v{48+i}, v32")
        for i in range(16):
            A(f"v_cvt_pk_bf16_f32 v{48+i}, v{48+i}, v{48+i}")
        for i in range(1, 16):
            A(f"ds_write_b32 v14, v{48+i} offset:{i*256}")
        A(f"""
        v_mov_b32 v13, v48
        v_add_u32 v14, 256, v14
        v_mov_b32 v28, 0
        v_mov_b32 v29, 0
        v_mov_b32 v30, 0
        v_mov_b32 v31, 0
        """)
        self.stamp(5)
        def plan_vfirst(t):
            if t < PV - N: return (PV - 1 - t, None)
            return (N - 1, (t + N, 'V'))
        def plan_vmid(t): return (N - 1, (t + N, 'V'))
        def plan_vlast(t):
            if t + N < 256: return (N - 1, (t + N, 'V'))
            return (255 - t, None)
        assert PV == 16
        self.v_block(0, plan_vfirst)
        lp = A.label()
        A(f"s_mov_b32 s{S_T3}, 0")
        A.place(lp)
        self.v_block(16, plan_vmid)
        self.v_block(32, plan_vmid)
        A(f"s_add_u32 s{S_T3}, s{S_T3}, 1")
        A(f"s_cmp_lt_u32 s{S_T3}, 7")
        A(f"s_cbranch_scc1 {lp}")
        self.v_block(240, plan_vlast, last=True)
        A(f"""
        v_lshrrev_b32 v6, 4, v1
        v_lshlrev_b32 v6, 7, v6
        v_and_b32 v7, 15, v1
        v_lshlrev_b32 v7, 2, v7
        v_add_u32 v6, v6, v7
        s_lshl_b32 s{S_T0}, s{S_SW}, 9
        s_add_u32 s{S_T0}, s{S_T0}, {LDS_ORED}
        v_add_u32 v6, s{S_T0}, v6
        s_mov_b64 exec, s[{S_MJ8}:{S_MJ8+1}]
        ds_write_b32 v6, v28
        ds_write_b32 v6, v29 offset:32
        ds_write_b32 v6, v30 offset:64
        ds_write_b32 v6, v31 offset:96
        s_mov_b64 exec, -1
        s_waitcnt lgkmcnt(0)
        """)
        self.stamp(6)
        self.cstamp(21)
        A.place("L_join3")

    def tile_afrags(self, base):
        A = self.A
        A(f"""
        v_lshrrev_b32 v4, 4, v1
        v_and_b32 v5, 15, v1
        v_lshrrev_b32 v6, 2, v5
        v_and_b32 v5, 3, v5
        v_lshrrev_b32 v7, 1, v6
        v_and_b32 v8, 1, v4
        v_lshlrev_b32 v8, 1, v8
        v_or_b32 v7, v7, v8
        v_lshlrev_b32 v8, 3, v4
        v_add_u32 v8, v8, v6
        v_lshlrev_b32 v8, 7, v8
        v_lshlrev_b32 v5, 3, v5
        v_add_u32 v8, v8, v5
        s_lshl_b32 s{S_T0}, s{S_WAVE}, 14
        v_add_u32 v8, s{S_T0}, v8
        """)
        for cb in range(4):
            A(f"v_xor_b32 v{9+cb}, {cb}, v7")
            A(f"v_lshlrev_b32 v{9+cb}, 5, v{9+cb}")
            A(f"v_add_u32 v{9+cb}, v{9+cb}, v8")
        for s in range(4):
            for cb in range(4):
                r = base + (s * 4 + cb) * 4
                A(f"ds_read_b64_tr_b16 {vr(r,2)}, v{9+cb} offset:{s*4096}")
                A(f"ds_read_b64_tr_b16 {vr(r+2,2)}, v{9+cb} offset:{s*4096+512}")

    RW = 240
    def red_addrs(self):
        A = self.A
        RW = self.RW
        A(f"""
        v_and_b32 v4, 15, v1
        v_lshrrev_b32 v5, 4, v1
        s_lshl_b32 s{S_T0}, s{S_WAVE}, 11
        s_add_u32 s{S_T0}, s{S_T0}, {LDS_RED}
        v_lshlrev_b32 v6, 8, v4
        v_add_u32 v6, s{S_T0}, v6
        """)
        for cb in range(4):
            A(f"v_add_u32 v7, {4*cb}, v5")
            A(f"v_xor_b32 v7, v7, v4")
            A(f"v_lshlrev_b32 v7, 4, v7")
            A(f"v_add_u32 v{RW+cb}, v7, v6")
        A(f"""
        v_lshrrev_b32 v4, 2, v1
        v_xor_b32 v4, s{S_WAVE}, v4
        v_lshlrev_b32 v4, 4, v4
        v_and_b32 v5, 3, v1
        v_lshlrev_b32 v5, 2, v5
        v_add_u32 v4, v4, v5
        s_lshl_b32 s{S_T0}, s{S_WAVE}, 8
        s_add_u32 s{S_T0}, s{S_T0}, {LDS_RED}
        v_add_u32 v{RW+4}, s{S_T0}, v4
        """)

    def mfma16(self, abase, bregs, acc):
        A = self.A
        for s in range(4):
            for cb in range(4):
                r = abase + (s * 4 + cb) * 4
                a = acc + 4 * cb
                src = "0" if s == 0 else vr(a, 4)
                A(f"v_mfma_f32_16x16x32_bf16 {vr(a,4)}, {vr(r,4)}, {vr(bregs[s],4)}, {src}")

    def red_write(self, acc):
        A = self.A
        A(f"s_mov_b64 exec, s[{S_MJ8}:{S_MJ8+1}]")
        for cb in range(4):
            A(f"ds_write_b128 v{self.RW+cb}, {vr(acc+4*cb,4)}")
        A("s_mov_b64 exec, -1")
        A("s_waitcnt lgkmcnt(0)")

    def red_sum(self, nw, dst):
        A = self.A
        for v in range(nw):
            A(f"ds_read_b32 v{dst+v}, v{self.RW+4} offset:{v*2048}")
        A("s_waitcnt lgkmcnt(0)")
        regs = [dst + v for v in range(nw)]
        while len(regs) > 1:
            nxt = []
            for i in range(0, len(regs) - 1, 2):
                A(f"v_add_f32 v{regs[i]}, v{regs[i]}, v{regs[i+1]}")
                nxt.append(regs[i])
            if len(regs) % 2: nxt.append(regs[-1])
            regs = nxt

    def tail(self):
        A = self.A
        A("s_barrier")
        lskip = A.label()
        A(f"s_cmp_eq_u32 s{S_WAVE}, 0")
        A(f"s_cbranch_scc0 {lskip}")
        A(f"""
        v_lshlrev_b32 v4, 3, v1
        v_add_u32 v4, {LDS_ORED}, v4
        ds_read_b64 v[8:9], v4
        ds_read_b64 v[10:11], v4 offset:512
        ds_read_b64 v[12:13], v4 offset:1024
        ds_read_b64 v[14:15], v4 offset:1536
        s_lshl_b32 s{S_T0}, s{S_B}, 13
        s_lshl_b32 s{S_T1}, s{S_H}, 8
        s_add_u32 s{S_T0}, s{S_T0}, s{S_T1}
        s_add_u32 s{S_T0}, s{S_T0}, {WS_OB}
        s_waitcnt lgkmcnt(0)
        v_pk_add_f32 v[8:9], v[8:9], v[10:11]
        v_pk_add_f32 v[12:13], v[12:13], v[14:15]
        v_pk_add_f32 v[8:9], v[8:9], v[12:13]
        v_cvt_pk_bf16_f32 v8, v8, v9
        v_min_u32 v8, -2, v8
        """)
        self.quad_gather(8, 8)
        A(f"""
        s_mov_b64 exec, s[{S_MQ}:{S_MQ+1}]
        buffer_store_dwordx4 v[8:11], v3, {srd(R_WS)}, s{S_T0} offen sc0 sc1
        s_mov_b64 exec, -1
        """)
        A.place(lskip)
        self.stamp(7)
        if self.stop_after == "attn":
            A("s_branch L_end")
        A(f"""
        s_cmp_eq_u32 s{S_ROLE}, 0
        s_cbranch_scc1 L_roleO
        s_cmp_eq_u32 s{S_ROLE}, 1
        s_cbranch_scc1 L_roleG
        s_cmp_eq_u32 s{S_ROLE}, 2
        s_cbranch_scc1 L_roleD
        s_branch L_end
        """)
        self.role_O()
        self.role_G()
        self.role_D()

    def role_O(self):
        A = self.A
        A.place("L_roleO")
        AB = 64
        A(f"s_lshr_b32 s{S_NJ}, s2, 4")
        A(f"s_and_b32 s{S_PITCH}, s2, 15")
        self.local_flag(S_PITCH)
        self.mk_srd(R_X, S_X, 16384)
        A(f"""
        v_bfe_u32 v14, v1, 2, 3
        v_lshlrev_b32 v14, 11, v14
        v_and_b32 v15, 3, v1
        v_lshlrev_b32 v13, 3, v15
        v_add_u32 v13, v13, v14
        s_lshl_b32 s{S_T0}, s{S_PITCH}, 7
        s_lshl_b32 s{S_T1}, s{S_NJ}, 5
        s_add_u32 s{S_T0}, s{S_T0}, s{S_T1}
        buffer_load_dwordx2 v[28:29], v13, {srd(R_X)}, s{S_T0} offen
        s_add_u32 s{S_OFF}, s{S_T0}, {WS_H}
        v_lshrrev_b32 v15, 1, v15
        v_lshlrev_b32 v15, 4, v15
        v_add_u32 v14, v14, v15
        """)
        self.tile_afrags(AB)
        self.red_addrs()
        A(f"""
        v_bfe_u32 v4, v1, 2, 3
        v_and_b32 v5, 3, v1
        s_lshl_b32 s{S_T0}, s{S_WAVE}, 2
        v_add_u32 v5, s{S_T0}, v5
        v_xor_b32 v5, v5, v4
        v_lshlrev_b32 v5, 4, v5
        v_lshlrev_b32 v4, 8, v4
        v_add_u32 v4, v4, v5
        v_lshrrev_b32 v5, 5, v1
        v_lshlrev_b32 v5, 13, v5
        v_add_u32 v4, v4, v5
        v_add_u32 v19, {LDS_RED}, v4
        v_and_b32 v4, 31, v1
        v_lshlrev_b32 v13, 4, v4
        v_and_b32 v4, 15, v1
        v_lshlrev_b32 v4, 13, v4
        v_lshrrev_b32 v5, 4, v1
        v_lshlrev_b32 v5, 4, v5
        v_add_u32 v16, v4, v5
        s_lshl_b32 s{S_T0}, s{S_NJ}, 11
        s_lshl_b32 s{S_T1}, s{S_WAVE}, 8
        s_add_u32 s{S_T0}, s{S_T0}, s{S_T1}
        s_add_u32 s{S_T0}, s{S_T0}, {WS_OB}
        s_lshl_b32 s{S_T2}, s{S_PITCH}, 13
        s_add_u32 s{S_T2}, s{S_T2}, {WS_OP}
        s_lshl_b32 s{S_T1}, s{S_WAVE}, 11
        s_add_u32 s{S_T3}, s{S_T2}, s{S_T1}
        s_lshl_b32 s{S_T1}, s{S_NJ}, 9
        s_add_u32 s{S_T3}, s{S_T3}, s{S_T1}
        s_lshl_b32 s{S_T1}, s{S_NJ}, 11
        s_add_u32 s{S_T2}, s{S_T2}, s{S_T1}
        """)
        self.prepoll(f"buffer_load_dword v18, v16, {srd(R_WS)}, s{S_T0} offen {self.LP}", 18, mask=S_MJ8, sleep=2)
        loads = [f"buffer_load_dwordx4 {vr(32+4*s,4)}, v16, {srd(R_WS)}, s{S_T0} offen offset:{s*64} {self.LP}" for s in range(4)]
        self.poll_pipe(loads, range(32, 48), 17, mask=S_MJ8, depth=1, sleep=self.PS)
        self.stamp(8)
        A("s_waitcnt lgkmcnt(0)")
        self.mfma16(AB, [32, 36, 40, 44], 48)
        self.red_write(48)
        A("s_barrier")
        lr1 = A.label()
        A(f"s_cmp_ge_u32 s{S_WAVE}, 4")
        A(f"s_cbranch_scc1 {lr1}")
        for v in range(4):
            A(f"ds_read_b128 {vr(32+4*v,4)}, v19 offset:{v*2048}")
        A("s_waitcnt lgkmcnt(0)")
        for e in (0, 2):
            A(f"v_pk_add_f32 {vr(32+e,2)}, {vr(32+e,2)}, {vr(36+e,2)}")
            A(f"v_pk_add_f32 {vr(40+e,2)}, {vr(40+e,2)}, {vr(44+e,2)}")
        for e in (0, 2):
            A(f"v_pk_add_f32 {vr(32+e,2)}, {vr(32+e,2)}, {vr(40+e,2)}")
        for e in range(4):
            A(f"v_mov_b32 v{36+e}, v{32+e}")
        for e in range(4):
            A(f"v_permlane32_swap_b32 v{32+e}, v{36+e}")
        for e in (0, 2):
            A(f"v_pk_add_f32 {vr(32+e,2)}, {vr(32+e,2)}, {vr(36+e,2)}")
        for e in range(4):
            A(f"v_min_u32 v{32+e}, -2, v{32+e}")
        A("s_mov_b64 exec, 0xffffffff")
        self.store_sel(f"buffer_store_dwordx4 v[32:35], v13, {srd(R_WS)}, s{S_T3} offen")
        A("s_mov_b64 exec, -1")
        self.stamp(9)
        A("s_branch L_end")
        A.place(lr1)
        A(f"s_cmp_eq_u32 s{S_WAVE}, 4")
        A(f"s_cbranch_scc0 L_end")
        A(f"v_lshlrev_b32 v20, 16, v28")
        A(f"v_and_b32 v21, 0xffff0000, v28")
        A(f"v_lshlrev_b32 v22, 16, v29")
        A(f"v_and_b32 v23, 0xffff0000, v29")
        loads = [f"buffer_load_dwordx4 v[32:35], v2, {srd(R_WS)}, s{S_T2} offen {self.LP}",
                 f"buffer_load_dwordx4 v[36:39], v2, {srd(R_WS)}, s{S_T2} offen offset:1024 {self.LP}"]
        self.poll_pipe(loads, range(32, 40), 17, depth=1, sleep=0)
        self.stamp(9)
        for e in (0, 2):
            A(f"v_pk_add_f32 {vr(40+e,2)}, {vr(32+e,2)}, {vr(36+e,2)}")
        for e in range(4):
            A(f"v_mov_b32 v{44+e}, v{40+e}")
        for e in range(4):
            A(f"v_permlane32_swap_b32 v{40+e}, v{44+e}")
        for e in (0, 2):
            A(f"v_pk_add_f32 {vr(40+e,2)}, {vr(40+e,2)}, {vr(44+e,2)}")
        A(f"""
        v_cvt_pk_bf16_f32 v44, v40, v41
        v_cvt_pk_bf16_f32 v45, v42, v43
        v_lshlrev_b32 v40, 16, v44
        v_and_b32 v41, 0xffff0000, v44
        v_lshlrev_b32 v42, 16, v45
        v_and_b32 v43, 0xffff0000, v45
        v_pk_add_f32 v[40:41], v[40:41], v[20:21]
        v_pk_add_f32 v[42:43], v[42:43], v[22:23]
        v_cvt_pk_bf16_f32 v48, v40, v41
        v_cvt_pk_bf16_f32 v49, v42, v43
        v_min_u32 v48, -2, v48
        v_min_u32 v49, -2, v49
        v_mov_b32_dpp v50, v48 quad_perm:[1,1,3,3] row_mask:0xf bank_mask:0xf
        v_mov_b32_dpp v51, v49 quad_perm:[1,1,3,3] row_mask:0xf bank_mask:0xf
        s_mov_b64 exec, 0x55555555
        buffer_store_dwordx4 v[48:51], v14, {srd(R_WS)}, s{S_OFF} offen sc0 sc1
        s_mov_b64 exec, -1
        """)
        self.stamp(16)
        A("s_branch L_end")

    def role_G(self):
        A = self.A
        A.place("L_roleG")
        AB = 160
        self.tile_afrags(AB)
        self.red_addrs()
        F, D = 96, 128
        A(f"""
        s_lshl_b32 s{S_T0}, s{S_WAVE}, 1
        v_xor_b32 v14, s{S_T0}, v1
        v_lshlrev_b32 v14, 4, v14
        s_lshl_b32 s{S_T0}, s{S_WAVE}, 11
        s_add_u32 s{S_T0}, s{S_T0}, {LDS_XN2}
        v_add_u32 v14, s{S_T0}, v14
        v_and_b32 v17, 7, v1
        v_lshrrev_b32 v18, 4, v1
        v_lshlrev_b32 v19, 11, v17
        s_lshl_b32 s{S_T0}, s{S_WAVE}, 8
        s_add_u32 s{S_T0}, s{S_T0}, {LDS_XN2}
        v_add_u32 v19, s{S_T0}, v19
        v_lshlrev_b32 v17, 1, v17
        """)
        for s_ in range(4):
            A(f"v_add_u32 v28, {4*s_}, v18")
            A(f"v_xor_b32 v28, v28, v17")
            A(f"v_lshlrev_b32 v28, 4, v28")
            A(f"v_add_u32 v{232+s_}, v28, v19")
        A(f"""
        s_sub_u32 s{S_T0}, s2, 64
        s_and_b32 s{S_T1}, s{S_T0}, 1
        s_mul_i32 s{S_T1}, s{S_T1}, 57344
        s_lshr_b32 s{S_T0}, s{S_T0}, 1
        s_lshl_b32 s{S_T0}, s{S_T0}, 7
        s_add_u32 s{S_T0}, s{S_T0}, s{S_T1}
        s_mul_i32 s{S_T1}, s{S_WAVE}, 7168
        s_add_u32 s{S_T0}, s{S_T0}, s{S_T1}
        s_add_u32 s{S_OFF}, s{S_T0}, {WS_GU}
        v_lshlrev_b32 v15, 1, v1
        s_lshl_b32 s{S_T0}, s{S_WAVE}, 13
        s_add_u32 s{S_T0}, s{S_T0}, {WS_OB}
        v_lshlrev_b32 v17, 8, v1
        s_mov_b64 s[{S_EX}:{S_EX+1}], 0xffffffff
        """)
        A(f"s_lshl_b32 s{S_T0}, s{S_WAVE}, 11")
        A(f"s_add_u32 s{S_T0}, s{S_T0}, {WS_H}")
        A(f"v_lshlrev_b32 v17, 5, v1")
        self.prepoll(f"buffer_load_dword v18, v17, {srd(R_WS)}, s{S_T0} offen {self.LP}", 18, sleep=self.HS)
        A(f"s_lshl_b32 s{S_T0}, s{S_WAVE}, 11")
        A(f"s_add_u32 s{S_T0}, s{S_T0}, {WS_H}")
        loads = [f"buffer_load_dwordx4 v[20:23], v2, {srd(R_WS)}, s{S_T0} offen {self.LP}",
                 f"buffer_load_dwordx4 v[24:27], v2, {srd(R_WS)}, s{S_T0} offen offset:1024 {self.LP}"]
        self.poll_pipe(loads, range(20, 28), 17, depth=self.PD, sleep=self.PS)
        self.stamp(8)
        for i in range(8):
            A(f"v_lshlrev_b32 v{F+2*i}, 16, v{20+i}")
            A(f"v_and_b32 v{F+2*i+1}, 0xffff0000, v{20+i}")
        S1, S2, T1, T2, VMB, VRS = 144, 146, 148, 149, 150, 152
        self.ln_stats(F, D, S1, S2, T1, T2, VMB, VRS)
        for i in range(8):
            self.ln_apply(48 + i, F + 2*i, VMB, VRS, 154 + 2 * (i % 2))
        A(f"ds_write_b128 v14, v[48:51]")
        A(f"ds_write_b128 v14, v[52:55] offset:1024")
        A("s_waitcnt lgkmcnt(0)")
        A("s_barrier")
        for s_ in range(4):
            A(f"ds_read_b128 {vr(32+4*s_,4)}, v{232+s_}")
        A("s_waitcnt lgkmcnt(0)")
        self.mfma16(AB, [32, 36, 40, 44], 48)
        self.red_write(48)
        A("s_waitcnt vmcnt(0)")
        A("s_barrier")
        self.red_sum(8, 20)
        self.rnd_bf16(20, 20)
        lup = A.label()
        A(f"s_bitcmp1_b32 s2, 0")
        A(f"s_cbranch_scc1 {lup}")
        A(f"""
        v_mul_f32 v17, v20, v20
        v_mul_f32 v18, v17, v20
        v_mul_f32 v18, 0x3d372713, v18
        v_add_f32 v18, v20, v18
        v_mul_f32 v18, 0x3f4c422a, v18
        v_mul_f32 v18, 0x4038aa3b, v18
        v_min_f32 v18, 0x42700000, v18
        v_exp_f32 v18, v18
        v_add_f32 v19, 1.0, v18
        v_rcp_f32 v19, v19
        v_mul_f32 v18, v18, v19
        v_mul_f32 v20, v20, v18
        """)
        A.place(lup)
        A(f"""
        v_mov_b32_dpp v17, v20 quad_perm:[1,1,3,3] row_mask:0xf bank_mask:0xf
        v_cvt_pk_bf16_f32 v20, v20, v17
        v_min_u32 v20, -2, v20
        """)
        self.even_gather(20, 20)
        A(f"""
        s_mov_b64 exec, s[{S_ME}:{S_ME+1}]
        buffer_store_dwordx4 v[20:23], v15, {srd(R_WS)}, s{S_OFF} offen sc0 sc1
        s_mov_b64 exec, -1
        """)
        self.stamp(9)
        A("s_branch L_end")

    def role_D(self):
        A = self.A
        A.place("L_roleD")
        AB = 160
        self.red_addrs()
        A(f"""
        s_sub_u32 s{S_T2}, s2, 176
        s_lshr_b32 s{S_NJ}, s{S_T2}, 4
        s_and_b32 s{S_T2}, s{S_T2}, 15
        s_lshl_b32 s{S_T0}, s{S_WAVE}, 12
        s_lshl_b32 s{S_T1}, s{S_T2}, 8
        s_add_u32 s{S_T0}, s{S_T0}, s{S_T1}
        s_add_u32 s{S_OFF}, s{S_T0}, {WS_DP}
        s_lshl_b32 s{S_T0}, s{S_WAVE}, 11
        s_lshl_b32 s{S_T1}, s{S_T2}, 7
        s_add_u32 s{S_PITCH}, s{S_T0}, s{S_T1}
        """)
        self.mk_srd(R_OUT, S_OUT, 16384)
        A(f"s_add_u32 s{S_T3}, s{S_T2}, 176")
        self.local_flag(S_T3)
        lno = A.label()
        A(f"s_cmp_eq_u32 s{S_WAVE}, 7")
        A(f"s_cbranch_scc1 {lno}")
        self.tile_afrags(AB)
        A(f"""
        v_and_b32 v4, 15, v1
        v_mul_u32_u24 v4, 7168, v4
        v_lshrrev_b32 v5, 4, v1
        v_lshlrev_b32 v5, 4, v5
        v_add_u32 v16, v4, v5
        s_mul_i32 s{S_T0}, s{S_NJ}, 1792
        s_lshl_b32 s{S_T1}, s{S_WAVE}, 8
        s_add_u32 s{S_T0}, s{S_T0}, s{S_T1}
        s_add_u32 s{S_T0}, s{S_T0}, {WS_GU}
        s_add_u32 s{S_T1}, s{S_T0}, 57344
        """)
        A(f"s_lshl_b32 s{S_T2}, s{S_WAVE}, 11")
        A(f"s_add_u32 s{S_T2}, s{S_T2}, {WS_H}")
        A(f"v_lshlrev_b32 v17, 5, v1")
        self.prepoll(f"buffer_load_dword v18, v17, {srd(R_WS)}, s{S_T2} offen {self.LP}", 18, need_all=True, sleep=self.HS)
        loads = []
        for mat in range(2):
            so = S_T0 if mat == 0 else S_T1
            loads += [f"buffer_load_dwordx4 {vr(32+16*mat+4*s_,4)}, v16, {srd(R_WS)}, s{so} offen offset:{s_*64} {self.LP}" for s_ in range(4)]
        self.poll_pipe(loads, range(32, 64), 17, mask=S_MJ8, depth=self.PD, sleep=self.PS)
        self.stamp(8)
        for i in range(0, 16, 2):
            g, u = 32 + i, 48 + i
            A(f"v_lshlrev_b32 v64, 16, v{g}")
            A(f"v_and_b32 v65, 0xffff0000, v{g}")
            A(f"v_lshlrev_b32 v66, 16, v{u}")
            A(f"v_and_b32 v67, 0xffff0000, v{u}")
            A(f"v_lshlrev_b32 v68, 16, v{g+1}")
            A(f"v_and_b32 v69, 0xffff0000, v{g+1}")
            A(f"v_lshlrev_b32 v70, 16, v{u+1}")
            A(f"v_and_b32 v71, 0xffff0000, v{u+1}")
            A(f"v_pk_mul_f32 v[64:65], v[64:65], v[66:67]")
            A(f"v_pk_mul_f32 v[68:69], v[68:69], v[70:71]")
            A(f"v_cvt_pk_bf16_f32 v{72+i}, v64, v65")
            A(f"v_cvt_pk_bf16_f32 v{73+i}, v68, v69")
        A("s_waitcnt lgkmcnt(0)")
        self.mfma16(AB, [72, 76, 80, 84], 88)
        self.red_write(88)
        A.place(lno)
        A("s_barrier")
        self.red_sum(7, 20)
        lfin = A.label()
        A(f"""
        s_cmp_eq_u32 s{S_NJ}, 0
        s_cbranch_scc1 {lfin}
        v_min_u32 v20, -2, v20
        s_lshl_b32 s{S_T3}, s{S_NJ}, 15
        s_add_u32 s{S_T0}, s{S_OFF}, s{S_T3}
        """)
        self.quad_gather(20, 20)
        A(f"""
        s_mov_b64 exec, s[{S_MQ}:{S_MQ+1}]
        """)
        self.store_sel(f"buffer_store_dwordx4 v[20:23], v3, {srd(R_WS)}, s{S_T0} offen")
        A("s_mov_b64 exec, -1")
        self.stamp(9)
        A("s_branch L_end")
        A.place(lfin)
        A(f"""
        s_add_u32 s{S_T1}, s{S_OFF}, 32768
        s_add_u32 s{S_T3}, s{S_OFF}, 65536
        s_add_u32 s{S_T4}, s{S_OFF}, 98304
        v_lshrrev_b32 v18, 1, v1
        v_lshlrev_b32 v18, 2, v18
        s_add_u32 s{S_T2}, s{S_PITCH}, {WS_H}
        """)
        loads = [f"buffer_load_dword v28, v3, {srd(R_WS)}, s{S_T1} offen {self.LP}",
                 f"buffer_load_dword v29, v3, {srd(R_WS)}, s{S_T3} offen {self.LP}",
                 f"buffer_load_dword v30, v3, {srd(R_WS)}, s{S_T4} offen {self.LP}",
                 f"buffer_load_dword v31, v18, {srd(R_WS)}, s{S_T2} offen {self.LP}"]
        self.poll_pipe(loads, range(28, 32), 17, depth=self.PD, sleep=self.PS)
        A(f"""
        v_add_f32 v20, v20, v28
        v_add_f32 v21, v29, v30
        v_add_f32 v20, v20, v21
        """)
        self.rnd_bf16(20, 20)
        A(f"""
        v_and_b32 v17, 1, v1
        v_cmp_eq_u32 vcc, 1, v17
        v_lshlrev_b32 v18, 16, v31
        v_and_b32 v19, 0xffff0000, v31
        v_cndmask_b32 v18, v18, v19, vcc
        v_add_f32 v20, v20, v18
        v_cvt_pk_bf16_f32 v20, v20, v20
        v_lshlrev_b32 v18, 1, v1
        buffer_store_short v20, v18, {srd(R_OUT)}, s{S_PITCH} offen
        """)
        lne = A.label()
        A(f"""
        s_cmp_eq_u32 s2, 176
        s_cbranch_scc0 {lne}
        s_cmp_eq_u32 s{S_WAVE}, 0
        s_cbranch_scc0 {lne}
        v_mov_b32 v20, 0
        v_mov_b32 v21, s{S_TAG}
        s_mov_b32 s{S_T1}, {WS_EPOCH}
        s_mov_b64 exec, 1
        buffer_store_dword v21, v20, {srd(R_WS)}, s{S_T1} offen sc0 sc1
        s_mov_b64 exec, -1
        """)
        A.place(lne)
        self.stamp(9)

    def build(self):
        A = self.A
        self.entry()
        self.service()
        self.stream()
        self.tail()
        A.place("L_end")
        if self.stamps == "tail":
            A("s_cmp_ge_u32 s2, 256")
            A("s_cbranch_scc1 L_end2")
            A("s_waitcnt lgkmcnt(0)")
            A(f"s_lshl_b32 s3, s{S_WG}, 3")
            A(f"s_add_u32 s3, s3, s{S_WAVE}")
            A(f"s_lshl_b32 s3, s3, 7")
            A(f"s_add_u32 s3, s3, {WS_DBG + 0x100000}")
            A(f"s_mov_b64 exec, 1")
            A(f"v_mov_b32 v255, 0")
            for idx, j in self.LIGHT.items():
                A(f"v_mov_b32 v254, s{4+2*j}")
                A(f"buffer_store_dword v254, v255, {srd(R_WS)}, s3 offen offset:{idx*4}")
            A.place("L_end2")
        A("s_endpgm")
        A.footer(256, 102, 256)
        A.fix_hazards()
        return A.text()

if __name__ == "__main__":
    import argparse
    ap = argparse.ArgumentParser()
    ap.add_argument("-o", default="main.s")
    ap.add_argument("--N", type=int, default=5)
    ap.add_argument("--NP", type=int, default=8)
    ap.add_argument("--LP", default="sc1")
    ap.add_argument("--PD", type=int, default=1)
    ap.add_argument("--HG", type=int, default=64)
    ap.add_argument("--HD", type=int, default=64)
    ap.add_argument("--HS", type=int, default=4)
    ap.add_argument("--nolocal", action="store_true")
    ap.add_argument("--PS", type=int, default=1)
    ap.add_argument("--debug", action="store_true")
    ap.add_argument("--stamps", default=None)
    ap.add_argument("--stop", default=None)
    a = ap.parse_args()
    g = Gen(N=a.N, NP=a.NP, LP=a.LP, PD=a.PD, PS=a.PS, HG=a.HG, HD=a.HD, HS=a.HS, nolocal=a.nolocal, debug=a.debug, stamps=a.stamps, stop_after=a.stop)
    open(a.o, "w").write(g.build())
```

```python
import sys
from asmlib import *

LDS_WQ = 98304
LDS_SC = 131072
LDS_MISC = 147456
LDS_XN = LDS_MISC
LDS_Q = LDS_MISC + 2304
LDS_CNT = LDS_MISC + 2560
LDS_WM = LDS_MISC + 2624
LDS_WS = LDS_MISC + 2688
LDS_ORED = LDS_MISC + 4096
LDS_XCC = LDS_MISC + 8192
LDS_RED = LDS_SC
LDS_XN2 = LDS_MISC
LDS_BYTES = 163840

WS_QP = 0x000000
WS_SLOT = 0x100000
WS_OB = WS_SLOT + 0x00000
WS_OP = WS_SLOT + 0x10000
WS_H = WS_SLOT + 0x30000
WS_GU = WS_SLOT + 0x34000
WS_DP = WS_SLOT + 0x50000
WS_C2 = WS_SLOT + 0x70000
WS_C3 = WS_SLOT + 0x70100
WS_FLAG = 0x180000
WS_EPOCH = 0x1F0000
WS_DBG = 0x200000
WS_SIZE = 0x400000
SPIN = 1 << 20

S_WG = 2
S_X, S_K, S_V, S_WQ, S_WO, S_BX, S_WG_, S_WU, S_WD, S_OUT, S_DBG, S_WS = 16, 18, 20, 22, 24, 26, 28, 30, 32, 34, 36, 38
R_K, R_V, R_X, R_WQ, R_WT, R_WS, R_OUT = 40, 44, 48, 52, 56, 60, 68
S_WAVE, S_H, S_B, S_SW = 72, 73, 74, 75
S_T0, S_T1, S_T2, S_T3, S_T4, S_T5 = 76, 77, 78, 79, 80, 81
S_OFF, S_CNT, S_PITCH, S_NJ, S_ROLE = 82, 83, 84, 85, 86
S_M1, S_M2, S_M3 = 88, 90, 92
S_MJ8 = 94
S_EX = 96
S_TAG = 98
S_MQ = 64
S_LOC = 87
S_XCC = 99
S_ME = 66
S_PM = 40
def srd(r): return f"s[{r}:{r+3}]"
def vr(a, n): return f"v[{a}:{a+n-1}]"

class Gen:
    def __init__(self, N=5, NP=8, PV=16, LP='sc1', PD=1, PS=1, HG=64, HD=64, HS=4, nolocal=False, KP='nt', VP='nt', WP='nt', debug=False, stamps=False, stop_after=None):
        self.A = Asm()
        self.N, self.NP, self.PV, self.LP = N, NP, PV, LP
        self.debug, self.stamps, self.stop_after = debug, stamps, stop_after
        self.OSLEEP, self.GSLEEP, self.DSLEEP = 1, 0, 0
        self.PD, self.PS = PD, PS
        self.nolocal = nolocal
        self.KP, self.VP, self.WP = KP, VP, WP
        self.HG, self.HD, self.HS = HG, HD, HS

    def mk_srd(self, r, ptr, size, add_lo=None):
        A = self.A
        if add_lo is None:
            A(f"s_mov_b32 s{r}, s{ptr}")
            A(f"s_mov_b32 s{r+1}, s{ptr+1}")
        else:
            A(f"s_add_u32 s{r}, s{ptr}, {add_lo}")
            A(f"s_addc_u32 s{r+1}, s{ptr+1}, 0")
        A(f"s_mov_b32 s{r+2}, {size}")
        A(f"s_mov_b32 s{r+3}, 0x20000")

    def lds_signal(self, off, va, vd):
        A = self.A
        A(f"s_mov_b64 exec, 1")
        A(f"v_mov_b32 v{va}, {off}")
        A(f"v_mov_b32 v{vd}, 1")
        A(f"ds_add_u32 v{va}, v{vd}")
        A(f"s_mov_b64 exec, -1")

    def lds_wait(self, off, val, va, vd, sleep=1):
        A = self.A
        lp = A.label(); ex = A.label()
        A(f"v_mov_b32 v{va}, {off}")
        A(f"s_mov_b32 s{S_CNT}, 0")
        A.place(lp)
        A(f"ds_read_b32 v{vd}, v{va}")
        A(f"s_waitcnt lgkmcnt(0)")
        A(f"v_readfirstlane_b32 s{S_T5}, v{vd}")
        A(f"s_cmp_ge_u32 s{S_T5}, {val}")
        A(f"s_cbranch_scc1 {ex}")
        A(f"s_add_u32 s{S_CNT}, s{S_CNT}, 1")
        A(f"s_cmp_gt_u32 s{S_CNT}, {SPIN*4}")
        A(f"s_cbranch_scc1 {ex}")
        if sleep: A(f"s_sleep {sleep}")
        A(f"s_branch {lp}")
        A.place(ex)

    def allreduce2(self, a, b, ta, tb, op="v_add_f32"):
        A = self.A
        for r in (8, 4, 2, 1):
            A(f"{op}_dpp v{a}, v{a}, v{a} row_ror:{r} row_mask:0xf bank_mask:0xf")
            A(f"{op}_dpp v{b}, v{b}, v{b} row_ror:{r} row_mask:0xf bank_mask:0xf")
        for sw in ("v_permlane16_swap_b32", "v_permlane32_swap_b32"):
            A(f"v_mov_b32 v{ta}, v{a}")
            A(f"v_mov_b32 v{tb}, v{b}")
            A(f"{sw} v{a}, v{ta}")
            A(f"{sw} v{b}, v{tb}")
            A(f"{op} v{a}, v{a}, v{ta}")
            A(f"{op} v{b}, v{b}, v{tb}")

    def rnd_bf16(self, d, s):
        A = self.A
        A(f"v_cvt_pk_bf16_f32 v{d}, v{s}, v{s}")
        A(f"v_lshlrev_b32 v{d}, 16, v{d}")

    def ln_stats(self, F, D, s1, s2, t1, t2, vmb, vrs):
        A = self.A
        A(f"v_readfirstlane_b32 s{S_T4}, v{F}")
        for i in range(0, 16, 2):
            A(f"v_pk_add_f32 {vr(D+i,2)}, {vr(F+i,2)}, s[{S_T4}:{S_T4+1}] op_sel_hi:[1,0] neg_lo:[0,1] neg_hi:[0,1]")
        A(f"v_pk_add_f32 {vr(s1,2)}, {vr(D,2)}, {vr(D+2,2)}")
        A(f"v_pk_mul_f32 {vr(s2,2)}, {vr(D,2)}, {vr(D,2)}")
        A(f"v_pk_fma_f32 {vr(s2,2)}, {vr(D+2,2)}, {vr(D+2,2)}, {vr(s2,2)}")
        for i in range(4, 16, 2):
            A(f"v_pk_add_f32 {vr(s1,2)}, {vr(s1,2)}, {vr(D+i,2)}")
            A(f"v_pk_fma_f32 {vr(s2,2)}, {vr(D+i,2)}, {vr(D+i,2)}, {vr(s2,2)}")
        A(f"v_add_f32 v{s1}, v{s1}, v{s1+1}")
        A(f"v_add_f32 v{s2}, v{s2}, v{s2+1}")
        self.allreduce2(s1, s2, t1, t2)
        A(f"v_mul_f32 v{s1}, 0x3a800000, v{s1}")
        A(f"v_mul_f32 v{s2}, 0x3a800000, v{s2}")
        A(f"v_add_f32 v{vmb}, s{S_T4}, v{s1}")
        A(f"v_fma_f32 v{vrs}, -v{s1}, v{s1}, v{s2}")
        A(f"v_max_f32 v{vrs}, 0, v{vrs}")
        A(f"v_cvt_pk_bf16_f32 v{vmb}, v{vmb}, v{vrs}")
        A(f"v_and_b32 v{vrs}, 0xffff0000, v{vmb}")
        A(f"v_lshlrev_b32 v{vmb}, 16, v{vmb}")
        A(f"v_add_f32 v{vrs}, 0x3727c5ac, v{vrs}")
        self.rnd_bf16(vrs, vrs)
        A(f"v_sqrt_f32 v{vrs}, v{vrs}")
        self.rnd_bf16(vrs, vrs)
        A(f"v_rcp_f32 v{vrs}, v{vrs}")

    def ln_apply(self, d, f, vmb, vrs, t):
        A = self.A
        A(f"v_pk_add_f32 {vr(t,2)}, {vr(f,2)}, {vr(vmb,2)} op_sel_hi:[1,0] neg_lo:[0,1] neg_hi:[0,1]")
        A(f"v_cvt_pk_bf16_f32 v{t}, v{t}, v{t+1}")
        A(f"v_and_b32 v{t+1}, 0xffff0000, v{t}")
        A(f"v_lshlrev_b32 v{t}, 16, v{t}")
        A(f"v_pk_mul_f32 {vr(t,2)}, {vr(t,2)}, {vr(vrs,2)} op_sel_hi:[1,0]")
        A(f"v_cvt_pk_bf16_f32 v{d}, v{t}, v{t+1}")

    LIGHT = {0: 0, 6: 1, 7: 2, 16: 3, 8: 4, 9: 5}
    def stamp(self, idx):
        if self.stamps == "tail":
            if idx in self.LIGHT:
                j = 4 + 2 * self.LIGHT[idx]
                self.A(f"s_memrealtime s[{j}:{j+1}]")
            return
        if not self.stamps: return
        A = self.A
        A(f"s_memrealtime s[4:5]")
        A(f"s_waitcnt lgkmcnt(0)")
        A(f"s_lshl_b32 s6, s{S_WG}, 3")
        A(f"s_add_u32 s6, s6, s{S_WAVE}")
        A(f"s_lshl_b32 s6, s6, 7")
        A(f"s_add_u32 s6, s6, {WS_DBG + 0x100000 + idx*4}")
        A(f"s_mov_b64 s[8:9], exec")
        A(f"s_mov_b64 exec, 1")
        A(f"v_mov_b32 v254, s4")
        A(f"v_mov_b32 v255, 0")
        A(f"buffer_store_dword v254, v255, {srd(R_WS)}, s6 offen")
        A(f"s_mov_b64 exec, s[8:9]")

    def stampval(self, idx, sreg):
        if not self.stamps or self.stamps == "tail": return
        A = self.A
        A(f"s_lshl_b32 s6, s{S_WG}, 3")
        A(f"s_add_u32 s6, s6, s{S_WAVE}")
        A(f"s_lshl_b32 s6, s6, 7")
        A(f"s_add_u32 s6, s6, {WS_DBG + 0x100000 + idx*4}")
        A(f"s_mov_b64 s[8:9], exec")
        A(f"s_mov_b64 exec, 1")
        A(f"v_mov_b32 v254, s{sreg}")
        A(f"v_mov_b32 v255, 0")
        A(f"buffer_store_dword v254, v255, {srd(R_WS)}, s6 offen")
        A(f"s_mov_b64 exec, s[8:9]")

    def cstamp(self, idx):
        if not self.stamps or self.stamps == "tail": return
        A = self.A
        A(f"s_memtime s[10:11]")
        A(f"s_waitcnt lgkmcnt(0)")
        self.stampval(idx, 10)

    def quad_gather(self, d, src):
        A = self.A
        A(f"v_mov_b32_dpp v{d+1}, v{src} quad_perm:[1,1,1,1] row_mask:0xf bank_mask:0xf")
        A(f"v_mov_b32_dpp v{d+2}, v{src} quad_perm:[2,2,2,2] row_mask:0xf bank_mask:0xf")
        A(f"v_mov_b32_dpp v{d+3}, v{src} quad_perm:[3,3,3,3] row_mask:0xf bank_mask:0xf")
        if d != src: A(f"v_mov_b32 v{d}, v{src}")
    def even_gather(self, d, src):
        A = self.A
        A(f"v_mov_b32_dpp v{d+1}, v{src} row_shl:2 row_mask:0xf bank_mask:0xf")
        A(f"v_mov_b32_dpp v{d+2}, v{src} row_shl:4 row_mask:0xf bank_mask:0xf")
        A(f"v_mov_b32_dpp v{d+3}, v{src} row_shl:6 row_mask:0xf bank_mask:0xf")
        if d != src: A(f"v_mov_b32 v{d}, v{src}")

    def hint_add(self, off, va, vd):
        A = self.A
        A(f"v_mov_b32 v{va}, {off}")
        A(f"v_mov_b32 v{vd}, 1")
        A(f"s_mov_b64 exec, 1")
        A(f"buffer_atomic_add v{vd}, v{va}, {srd(R_WS)}, 0 offen sc1")
        A(f"s_mov_b64 exec, -1")
    def hint_wait(self, off, target, va, vd, sleep):
        A = self.A
        lp = A.label(); ex = A.label()
        A(f"s_cmp_eq_u32 s{S_WAVE}, 0")
        A(f"s_cbranch_scc0 {ex}")
        A(f"v_mov_b32 v{va}, {off}")
        A(f"s_mov_b32 s{S_CNT}, 0")
        A(f"s_mov_b64 exec, 1")
        A.place(lp)
        A(f"buffer_load_dword v{vd}, v{va}, {srd(R_WS)}, 0 offen {self.LP}")
        A("s_waitcnt vmcnt(0)")
        A(f"v_readfirstlane_b32 s{S_T5}, v{vd}")
        A(f"s_add_u32 s{S_T5}, s{S_T5}, 1")
        A(f"s_cmp_ge_u32 s{S_T5}, {target}")
        A(f"s_cbranch_scc1 {ex}")
        A(f"s_add_u32 s{S_CNT}, s{S_CNT}, 1")
        A(f"s_cmp_gt_u32 s{S_CNT}, {SPIN}")
        A(f"s_cbranch_scc1 {ex}")
        A(f"s_sleep {sleep}")
        A(f"s_branch {lp}")
        A.place(ex)
        A("s_mov_b64 exec, -1")
        A("s_barrier")

    def local_flag(self, sbase):
        A = self.A
        A(f"s_lshl_b32 s{S_T5}, s{sbase}, 2")
        A(f"s_add_u32 s{S_T5}, s{S_T5}, {LDS_XCC}")
        A(f"v_mov_b32 v4, s{S_T5}")
        A(f"ds_read_b32 v5, v4")
        A(f"ds_read_b32 v6, v4 offset:64")
        A(f"ds_read_b32 v7, v4 offset:128")
        A(f"ds_read_b32 v8, v4 offset:192")
        A(f"s_waitcnt lgkmcnt(0)")
        A(f"v_xor_b32 v6, v6, v5")
        A(f"v_xor_b32 v7, v7, v5")
        A(f"v_xor_b32 v8, v8, v5")
        A(f"v_or3_b32 v6, v6, v7, v8")
        A(f"v_readfirstlane_b32 s{S_LOC}, v6")
        A(f"s_cmp_eq_u32 s{S_LOC}, 0")
        A(f"s_cselect_b32 s{S_LOC}, 1, 0")
        if self.nolocal: A(f"s_mov_b32 s{S_LOC}, 0")
    def store_sel(self, ins):
        A = self.A
        l1 = A.label(); l2 = A.label()
        A(f"s_cmp_eq_u32 s{S_LOC}, 1")
        A(f"s_cbranch_scc1 {l1}")
        A(f"{ins} sc0 sc1")
        A(f"s_branch {l2}")
        A.place(l1)
        A(ins)
        A.place(l2)

    def maxred(self, tmp, regs):
        A = self.A
        rs = list(regs)
        if len(rs) == 1:
            return rs[0]
        if len(rs) == 2:
            A(f"v_max_u32 v{tmp}, v{rs[0]}, v{rs[1]}"); return tmp
        A(f"v_max3_u32 v{tmp}, v{rs[0]}, v{rs[1]}, v{rs[2]}")
        rs = rs[3:]
        while len(rs) >= 2:
            A(f"v_max3_u32 v{tmp}, v{tmp}, v{rs[0]}, v{rs[1]}")
            rs = rs[2:]
        if rs:
            A(f"v_max_u32 v{tmp}, v{tmp}, v{rs[0]}")
        return tmp

    def prepoll(self, load, reg, mask=None, sleep=4, need_all=False):
        A = self.A
        lp = A.label(); ex = A.label()
        if mask is not None:
            A(f"s_mov_b64 exec, s[{mask}:{mask+1}]")
        A(f"s_mov_b32 s{S_CNT}, 0")
        A.place(lp)
        A(load)
        A("s_waitcnt vmcnt(0)")
        if need_all:
            A(f"v_cmp_eq_u32 vcc, -1, v{reg}")
            A(f"s_cbranch_vccz {ex}")
        else:
            A(f"v_cmp_ne_u32 vcc, -1, v{reg}")
            A(f"s_cbranch_vccnz {ex}")
        A(f"s_add_u32 s{S_CNT}, s{S_CNT}, 1")
        A(f"s_cmp_gt_u32 s{S_CNT}, {SPIN}")
        A(f"s_cbranch_scc1 {ex}")
        A(f"s_sleep {sleep}")
        A(f"s_branch {lp}")
        A.place(ex)
        A(f"s_mov_b64 exec, -1")
        self.stamp(16)

    def poll_groups(self, groups, tmp, mask=None, sleep=0):
        A = self.A
        G = len(groups)
        lp = A.label(); ex = A.label()
        for g in range(G):
            m = S_PM + 2 * g
            if mask is None: A(f"s_mov_b64 s[{m}:{m+1}], -1")
            else: A(f"s_mov_b64 s[{m}:{m+1}], s[{mask}:{mask+1}]")
        A(f"s_mov_b32 s{S_CNT}, 0")
        A.place(lp)
        for g, (loads, regs) in enumerate(groups):
            m = S_PM + 2 * g
            sk = A.label()
            A(f"s_mov_b64 exec, s[{m}:{m+1}]")
            if G > 1: A(f"s_cbranch_execz {sk}")
            for l in loads: A(l)
            if G > 1: A.place(sk)
        A("s_waitcnt vmcnt(0)")
        for g, (loads, regs) in enumerate(groups):
            m = S_PM + 2 * g
            A(f"s_mov_b64 exec, s[{m}:{m+1}]")
            t = self.maxred(tmp, regs)
            A(f"v_cmp_eq_u32_e64 s[{m}:{m+1}], -1, v{t}")
        if G == 1:
            A(f"s_cmp_eq_u64 s[{S_PM}:{S_PM+1}], 0")
        else:
            A(f"s_or_b64 s[{S_EX}:{S_EX+1}], s[{S_PM}:{S_PM+1}], s[{S_PM+2}:{S_PM+3}]")
            for g in range(2, G):
                m = S_PM + 2 * g
                A(f"s_or_b64 s[{S_EX}:{S_EX+1}], s[{S_EX}:{S_EX+1}], s[{m}:{m+1}]")
            A(f"s_cmp_eq_u64 s[{S_EX}:{S_EX+1}], 0")
        A(f"s_cbranch_scc1 {ex}")
        A(f"s_add_u32 s{S_CNT}, s{S_CNT}, 1")
        if sleep: A(f"s_sleep {sleep}")
        A(f"s_cmp_gt_u32 s{S_CNT}, {SPIN}")
        A(f"s_cbranch_scc0 {lp}")
        A.place(ex)
        A(f"s_mov_b64 exec, -1")

    def poll_pipe(self, loads, regs, tmp, mask=None, depth=4, sleep=2):
        A = self.A
        n = len(loads)
        lp = A.label(); ex = A.label()
        for r in regs:
            A(f"v_mov_b32 v{r}, -1")
        if mask is not None:
            A(f"s_mov_b64 exec, s[{mask}:{mask+1}]")
        A(f"s_mov_b32 s{S_CNT}, 0")
        A.place(lp)
        for l in loads: A(l)
        if sleep: A(f"s_sleep {sleep}")
        A(f"s_waitcnt vmcnt({(depth-1)*n})")
        t = self.maxred(tmp, regs)
        A(f"v_cmp_eq_u32 vcc, -1, v{t}")
        A(f"s_cbranch_vccz {ex}")
        A(f"s_mov_b64 exec, vcc")
        A(f"s_add_u32 s{S_CNT}, s{S_CNT}, 1")
        A(f"s_cmp_gt_u32 s{S_CNT}, {SPIN}")
        A(f"s_cbranch_scc0 {lp}")
        A.place(ex)
        A(f"s_mov_b64 exec, -1")

    def role_params(self):
        A = self.A
        lG, lD, lN, lE = A.label(), A.label(), A.label(), A.label()
        A(f"""
        s_cmp_ge_u32 s2, 64
        s_cbranch_scc1 {lG}
        s_mov_b32 s{S_ROLE}, 0
        s_mov_b32 s{S_PITCH}, 2048
        s_mov_b32 s{S_NJ}, 32
        s_lshr_b32 s{S_T0}, s2, 4
        s_lshl_b32 s{S_T0}, s{S_T0}, 21
        s_and_b32 s{S_T1}, s2, 15
        s_lshl_b32 s{S_T1}, s{S_T1}, 7
        s_add_u32 s{S_T0}, s{S_T0}, s{S_T1}
        s_add_u32 s{R_WT}, s{S_WO}, s{S_T0}
        s_addc_u32 s{R_WT+1}, s{S_WO+1}, 0
        s_sub_u32 s{R_WT+2}, {8<<20}, s{S_T0}
        s_branch {lE}
        """)
        A.place(lG)
        A(f"""
        s_cmp_ge_u32 s2, 176
        s_cbranch_scc1 {lD}
        s_mov_b32 s{S_ROLE}, 1
        s_mov_b32 s{S_PITCH}, 7168
        s_mov_b32 s{S_NJ}, 32
        s_sub_u32 s{S_T0}, s2, 64
        s_lshr_b32 s{S_T1}, s{S_T0}, 1
        s_lshl_b32 s{S_T1}, s{S_T1}, 7
        s_bitcmp1_b32 s{S_T0}, 0
        s_cselect_b32 s{S_T2}, s{S_WU}, s{S_WG_}
        s_cselect_b32 s{S_T3}, s{S_WU+1}, s{S_WG_+1}
        s_add_u32 s{R_WT}, s{S_T2}, s{S_T1}
        s_addc_u32 s{R_WT+1}, s{S_T3}, 0
        s_sub_u32 s{R_WT+2}, {7340032}, s{S_T1}
        s_branch {lE}
        """)
        A.place(lD)
        A(f"""
        s_cmp_ge_u32 s2, 240
        s_cbranch_scc1 {lN}
        s_mov_b32 s{S_ROLE}, 2
        s_mov_b32 s{S_PITCH}, 2048
        s_mov_b32 s{S_NJ}, 28
        s_sub_u32 s{S_T0}, s2, 176
        s_lshr_b32 s{S_T1}, s{S_T0}, 4
        s_mul_i32 s{S_T1}, s{S_T1}, {896*2048}
        s_and_b32 s{S_T0}, s{S_T0}, 15
        s_lshl_b32 s{S_T0}, s{S_T0}, 7
        s_add_u32 s{S_T0}, s{S_T0}, s{S_T1}
        s_add_u32 s{R_WT}, s{S_WD}, s{S_T0}
        s_addc_u32 s{R_WT+1}, s{S_WD+1}, 0
        s_sub_u32 s{R_WT+2}, {7340032}, s{S_T0}
        s_branch {lE}
        """)
        A.place(lN)
        A(f"""
        s_mov_b32 s{S_ROLE}, 3
        s_mov_b32 s{S_PITCH}, 2048
        s_mov_b32 s{S_NJ}, 0
        s_mov_b32 s{R_WT}, s{S_WD}
        s_mov_b32 s{R_WT+1}, s{S_WD+1}
        s_mov_b32 s{R_WT+2}, 0
        """)
        A.place(lE)
        A(f"s_mov_b32 s{R_WT+3}, 0x20000")

    def entry(self):
        A = self.A
        A.header(256, 512, LDS_BYTES, comments=[
            "Fused decode layer: preLN + MHA over KV cache + out-proj + preLN + GEGLU FFN (one persistent launch, 256 WGs x 512).",
        ])
        A(f"""
        s_cmp_ge_u32 s2, 256
        s_cbranch_scc1 L_end
        s_load_dwordx16 s[16:31], s[0:1], 0
        s_load_dwordx8 s[32:39], s[0:1], 64
        v_and_b32 v1, 63, v0
        v_lshrrev_b32 v4, 6, v0
        v_lshlrev_b32 v2, 4, v1
        v_readfirstlane_b32 s{S_WAVE}, v4
        v_lshlrev_b32 v3, 2, v1
        s_lshr_b32 s{S_H}, s2, 3
        s_and_b32 s{S_B}, s2, 7
        s_mov_b32 s{S_M1}, 0x22222222
        s_mov_b32 s{S_M1+1}, 0x22222222
        s_mov_b32 s{S_M2}, 0x44444444
        s_mov_b32 s{S_M2+1}, 0x44444444
        s_mov_b32 s{S_M3}, 0x88888888
        s_mov_b32 s{S_M3+1}, 0x88888888
        s_mov_b32 s{S_MJ8}, 0x00ff00ff
        s_mov_b32 s{S_MJ8+1}, 0x00ff00ff
        s_mov_b32 s{S_MQ}, 0x11111111
        s_mov_b32 s{S_MQ+1}, 0x11111111
        s_mov_b32 s{S_ME}, 0x01010101
        s_mov_b32 s{S_ME+1}, 0x01010101
        v_mov_b32 v4, {LDS_CNT}
        v_mov_b32 v6, 0
        v_mov_b32 v7, 0
        ds_write_b64 v4, v[6:7]
        ds_write_b64 v4, v[6:7] offset:8
        s_and_b32 s{S_SW}, s{S_WAVE}, 3
        s_mov_b64 s[4:5], 0
        s_mov_b64 s[6:7], 0
        s_mov_b64 s[8:9], 0
        s_mov_b64 s[10:11], 0
        s_mov_b64 s[12:13], 0
        s_mov_b64 s[14:15], 0
        s_cmp_ge_u32 s{S_WAVE}, 4
        s_cbranch_scc1 L_stream
        """)

    def service(self):
        A = self.A
        A.c("==== service waves: LN(x), q partial, exchange ====")
        A(f"""
        v_lshrrev_b32 v4, 4, v1
        v_and_b32 v5, 15, v1
        s_lshr_b32 s{S_T0}, s{S_SW}, 1
        s_lshl_b32 s{S_T0}, s{S_T0}, 2
        v_or_b32 v6, s{S_T0}, v4
        v_lshlrev_b32 v6, 1, v6
        v_xor_b32 v6, v6, v5
        v_lshlrev_b32 v6, 4, v6
        v_lshlrev_b32 v7, 13, v4
        v_add_u32 v6, v6, v7
        s_lshl_b32 s{S_T0}, s{S_B}, 20
        s_lshl_b32 s{S_T1}, s{S_SW}, 15
        s_add_u32 s{S_T0}, s{S_T0}, s{S_T1}
        s_lshl_b32 s{S_T1}, s{S_H}, 8
        s_add_u32 s{S_T0}, s{S_T0}, s{S_T1}
        s_lshl_b32 s{S_T1}, s{S_SW}, 10
        s_add_u32 s{S_T1}, s{S_T1}, {LDS_WQ}
        s_lshl_b32 s{S_T2}, s{S_SW}, 12
        v_mov_b32 v126, 0
        s_mov_b32 s{S_T3}, {WS_EPOCH}
        s_waitcnt lgkmcnt(0)
        """)
        self.mk_srd(R_X, S_X, 16384)
        A(f"buffer_load_dwordx4 v[8:11], v2, {srd(R_X)}, s{S_T2} offen")
        A(f"buffer_load_dwordx4 v[12:15], v2, {srd(R_X)}, s{S_T2} offen offset:1024")
        A(f"buffer_load_dwordx4 v[16:19], v2, {srd(R_X)}, s{S_T2} offen offset:2048")
        A(f"buffer_load_dwordx4 v[20:23], v2, {srd(R_X)}, s{S_T2} offen offset:3072")
        self.mk_srd(R_WQ, S_WQ, 8 << 20)
        for j in range(8):
            A(f"s_mov_b32 m0, s{S_T1}")
            A(f"s_add_u32 s{S_T1}, s{S_T1}, 4096")
            A(f"buffer_load_dwordx4 v6, {srd(R_WQ)}, s{S_T0} offen {self.WP} lds")
            if j < 7:
                A(f"s_add_u32 s{S_T0}, s{S_T0}, {4*32768}")
        self.mk_srd(R_WS, S_WS, WS_SIZE)
        A(f"buffer_load_dword v126, v126, {srd(R_WS)}, s{S_T3} offen {self.LP}")
        A("s_barrier")
        self.stamp(0)
        if self.stamps and self.stamps != "tail":
            A("s_getreg_b32 s10, hwreg(HW_REG_XCC_ID)")
            self.stampval(31, 10)
        A(f"""
        v_mov_b32 v24, -1
        v_mov_b32 v25, -1
        v_mov_b32 v26, -1
        v_mov_b32 v27, -1
        s_lshl_b32 s{S_T0}, s2, 11
        s_lshl_b32 s{S_T1}, s{S_SW}, 9
        s_add_u32 s{S_T0}, s{S_T0}, s{S_T1}
        s_add_u32 s{S_T0}, s{S_T0}, {WS_SLOT}
        s_mov_b64 exec, 0xffffffff
        buffer_store_dwordx4 v[24:27], v2, {srd(R_WS)}, s{S_T0} offen sc0 sc1
        s_mov_b64 exec, -1
        """)
        nst = 2 if (self.stamps and self.stamps != 'tail') else 0
        self.role_params()
        A(f"s_waitcnt vmcnt({10 + nst})")
        self.stamp(10)
        F, D = 32, 48
        S1, S2, T1, T2, VMB, VRS = 64, 66, 68, 69, 70, 72
        for r in range(2):
            base = 8 + 8 * r
            for i in range(8):
                A(f"v_lshlrev_b32 v{F+2*i}, 16, v{base+i}")
                A(f"v_and_b32 v{F+2*i+1}, 0xffff0000, v{base+i}")
            self.ln_stats(F, D, S1, S2, T1, T2, VMB, VRS)
            lab = A.label()
            A(f"s_cmp_lt_u32 s{S_B}, 4")
            A(f"s_cbranch_scc1 {lab}")
            for i in range(0, 8, 2):
                A(f"v_pk_mov_b32 {vr(F+i,2)}, {vr(F+8+i,2)}, {vr(F+8+i,2)} op_sel:[0,1]")
            A.place(lab)
            for i in range(4):
                self.ln_apply(76 + i, F + 2*i, VMB, VRS, 74)
            A(f"""
            s_and_b32 s{S_T0}, s{S_B}, 3
            s_lshl_b32 s{S_T0}, s{S_T0}, 4
            s_mov_b64 s[{S_EX}:{S_EX+1}], 0xffff
            s_lshl_b64 s[{S_EX}:{S_EX+1}], s[{S_EX}:{S_EX+1}], s{S_T0}
            s_lshl_b32 s{S_T1}, s{S_SW}, 1
            s_add_u32 s{S_T1}, s{S_T1}, {r}
            s_mul_i32 s{S_T1}, s{S_T1}, 272
            s_add_u32 s{S_T1}, s{S_T1}, {LDS_XN}
            v_and_b32 v80, 15, v1
            v_lshlrev_b32 v80, 4, v80
            v_add_u32 v80, s{S_T1}, v80
            s_mov_b64 exec, s[{S_EX}:{S_EX+1}]
            ds_write_b128 v80, v[76:79]
            s_mov_b64 exec, -1
            """)
        self.stamp(12)
        A(f"""
        v_and_b32 v58, 7, v1
        v_mul_u32_u24 v58, 272, v58
        v_lshrrev_b32 v59, 4, v1
        v_lshlrev_b32 v60, 4, v59
        v_add_u32 v58, v58, v60
        v_add_u32 v58, {LDS_XN}, v58
        v_and_b32 v60, 15, v1
        v_lshrrev_b32 v61, 2, v60
        v_and_b32 v62, 3, v60
        v_and_b32 v63, 1, v59
        v_lshlrev_b32 v63, 2, v63
        v_or_b32 v63, v63, v61
        v_lshlrev_b32 v80, 3, v59
        v_add_u32 v80, v80, v61
        v_lshlrev_b32 v80, 8, v80
        v_lshlrev_b32 v62, 3, v62
        v_add_u32 v80, v80, v62
        v_add_u32 v80, {LDS_WQ}, v80
        s_lshl_b32 s{S_T0}, s{S_SW}, 1
        v_xor_b32 v81, s{S_T0}, v63
        v_lshlrev_b32 v81, 5, v81
        v_add_u32 v81, v81, v80
        s_add_u32 s{S_T0}, s{S_T0}, 1
        v_xor_b32 v82, s{S_T0}, v63
        v_lshlrev_b32 v82, 5, v82
        v_add_u32 v82, v82, v80
        v_and_b32 v56, 15, v1
        v_lshlrev_b32 v56, 12, v56
        v_lshlrev_b32 v60, 4, v59
        v_add_u32 v56, v56, v60
        """)
        A(f"s_waitcnt vmcnt({2 + 2*nst}) lgkmcnt(0)")
        self.stamp(13)
        self.lds_signal(LDS_CNT + 0, 124, 125)
        self.lds_wait(LDS_CNT + 0, 4, 124, 125, sleep=0)
        for s in range(4):
            A(f"ds_read_b128 {vr(64+4*s,4)}, v58 offset:{s*64}")
        for c in range(2):
            for s in range(4):
                r = 84 + (c * 4 + s) * 4
                A(f"ds_read_b64_tr_b16 {vr(r,2)}, v{81+c} offset:{s*8192}")
                A(f"ds_read_b64_tr_b16 {vr(r+2,2)}, v{81+c} offset:{s*8192+1024}")
        A(f"""
        s_lshl_b32 s{S_T0}, s{S_H}, 15
        s_lshl_b32 s{S_T1}, s{S_B}, 9
        s_add_u32 s{S_T0}, s{S_T0}, s{S_T1}
        s_lshl_b32 s{S_T1}, s{S_SW}, 7
        s_add_u32 s{S_T0}, s{S_T0}, s{S_T1}
        s_waitcnt lgkmcnt(0)
        """)
        for s in range(4):
            for c in range(2):
                r = 84 + (c * 4 + s) * 4
                acc = 116 + 4 * c
                src = "0" if s == 0 else vr(acc, 4)
                A(f"v_mfma_f32_16x16x32_bf16 {vr(acc,4)}, {vr(r,4)}, {vr(64+4*s,4)}, {src}")
        self.lds_signal(LDS_CNT + 4, 124, 125)
        A(f"""
        s_mov_b64 exec, s[{S_MJ8}:{S_MJ8+1}]
        buffer_store_dwordx4 v[116:119], v56, {srd(R_WS)}, s{S_T0} offen sc0 sc1
        buffer_store_dwordx4 v[120:123], v56, {srd(R_WS)}, s{S_T0} offen offset:64 sc0 sc1
        s_mov_b64 exec, -1
        v_readfirstlane_b32 s{S_TAG}, v126
        s_lshl_b32 s{S_T0}, s{S_H}, 7
        s_add_u32 s{S_T0}, s{S_T0}, {WS_FLAG}
        s_lshl_b32 s{S_T1}, s{S_B}, 4
        s_lshl_b32 s{S_T2}, s{S_SW}, 2
        s_add_u32 s{S_T1}, s{S_T1}, s{S_T2}
        s_add_u32 s{S_TAG}, s{S_TAG}, 1
        s_getreg_b32 s{S_XCC}, hwreg(HW_REG_XCC_ID)
        s_and_b32 s{S_XCC}, s{S_XCC}, 7
        s_lshl_b32 s{S_XCC}, s{S_XCC}, 24
        s_add_u32 s{S_XCC}, s{S_XCC}, s{S_TAG}
        v_mov_b32 v58, s{S_T1}
        v_mov_b32 v59, s{S_XCC}
        s_waitcnt vmcnt(0)
        s_mov_b64 exec, 1
        buffer_store_dword v59, v58, {srd(R_WS)}, s{S_T0} offen sc0 sc1
        s_mov_b64 exec, -1
        """)
        self.stamp(1)
        A(f"s_cmp_eq_u32 s{S_SW}, 0")
        A(f"s_cbranch_scc0 L_svc_done")
        lp = A.label(); ex = A.label()
        A(f"s_mov_b64 exec, 0xffffffff")
        A(f"s_mov_b32 s{S_CNT}, 0")
        A.place(lp)
        A(f"""
        buffer_load_dword v60, v3, {srd(R_WS)}, s{S_T0} offen {self.LP}
        s_waitcnt vmcnt(0)
        v_subrev_u32 v60, s{S_TAG}, v60
        v_and_b32 v60, 0xf8ffffff, v60
        v_cmp_ne_u32 vcc, 0, v60
        s_cbranch_vccz {ex}
        s_add_u32 s{S_CNT}, s{S_CNT}, 1
        s_cmp_gt_u32 s{S_CNT}, {SPIN}
        s_cbranch_scc0 {lp}
        """)
        A.place(ex)
        A("s_mov_b64 exec, -1")
        self.stamp(11)
        A(f"s_lshl_b32 s{S_T0}, s2, 12")
        for j in range(4):
            A(f"buffer_load_dwordx4 {vr(64+4*j,4)}, v2, {srd(R_WS)}, s{S_T0} offen offset:{j*1024} {self.LP}")
        A(f"""
        v_and_b32 v58, 31, v1
        v_lshlrev_b32 v58, 3, v58
        v_add_u32 v58, {LDS_Q}, v58
        s_waitcnt vmcnt(0)
        """)
        for e in range(0, 4, 2):
            A(f"v_pk_add_f32 {vr(64+e,2)}, {vr(64+e,2)}, {vr(68+e,2)}")
            A(f"v_pk_add_f32 {vr(72+e,2)}, {vr(72+e,2)}, {vr(76+e,2)}")
        for e in range(0, 4, 2):
            A(f"v_pk_add_f32 {vr(64+e,2)}, {vr(64+e,2)}, {vr(72+e,2)}")
        for e in range(4):
            A(f"v_mov_b32 v{68+e}, v{64+e}")
        for e in range(4):
            A(f"v_permlane32_swap_b32 v{64+e}, v{68+e}")
        for e in range(0, 4, 2):
            A(f"v_pk_add_f32 {vr(64+e,2)}, {vr(64+e,2)}, {vr(68+e,2)}")
        A(f"""
        v_cvt_pk_bf16_f32 v64, v64, v65
        v_cvt_pk_bf16_f32 v65, v66, v67
        ds_write_b64 v58, v[64:65]
        s_waitcnt lgkmcnt(0)
        """)
        self.lds_signal(LDS_CNT + 12, 124, 125)
        self.stamp(2)
        if self.debug:
            A(f"""
            v_and_b32 v58, 31, v1
            v_lshlrev_b32 v58, 3, v58
            s_lshl_b32 s{S_T0}, s2, 8
            s_add_u32 s{S_T0}, s{S_T0}, {WS_DBG}
            buffer_store_dwordx2 v[64:65], v58, {srd(R_WS)}, s{S_T0} offen
            """)
        lp = A.label(); ex = A.label()
        A(f"s_mov_b32 s{S_T0}, {WS_FLAG}")
        A(f"s_mov_b32 s{S_CNT}, 0")
        A.place(lp)
        for j in range(4):
            A(f"buffer_load_dwordx4 {vr(64+4*j,4)}, v2, {srd(R_WS)}, s{S_T0} offen offset:{j*1024} {self.LP}")
        A("s_waitcnt vmcnt(0)")
        for i in range(16):
            A(f"v_subrev_u32 v{64+i}, s{S_TAG}, v{64+i}")
        for i in range(16):
            A(f"v_and_b32 v{80+i}, 0xf8ffffff, v{64+i}")
        t = self.maxred(60, range(80, 96))
        A(f"""
        v_cmp_ne_u32 vcc, 0, v{t}
        s_cbranch_vccz {ex}
        s_add_u32 s{S_CNT}, s{S_CNT}, 1
        s_cmp_gt_u32 s{S_CNT}, {SPIN}
        s_cbranch_scc1 {ex}
        s_sleep 16
        s_branch {lp}
        """)
        A.place(ex)
        A(f"v_add_u32 v60, {LDS_XCC}, v3")
        for t in range(4):
            A(f"ds_write_b32 v60, v{64+4*t} offset:{t*256}")
        A("s_waitcnt lgkmcnt(0)")
        A.place("L_svc_done")
        A("s_barrier")
        A("s_barrier")
        A("s_branch L_join3")

    RING = 64
    R = 32
    QF = 8
    def slot(self, t): return self.RING + 4 * (t % self.R)
    def issue(self, t, which):
        A = self.A
        r = self.slot(t)
        A(f"buffer_load_dwordx4 {vr(r,4)}, v2, {srd(R_K if which == 'K' else R_V)}, s{S_OFF} offen {self.KP if which == 'K' else self.VP}")
        A(f"s_add_u32 s{S_OFF}, s{S_OFF}, 4096")

    def k_block(self, t0, plan):
        A = self.A
        q = self.QF
        ACC = [12, 13, 14, 15]; B0, B1 = 16, 17; E = [18, 19, 20, 21]; M = 22
        MX = 24; SA = 25
        def reduce_group(c):
            a0, a1, a2, a3 = ACC
            e = E[c]
            A(f"v_add_f32_dpp v{B0}, v{a0}, v{a0} row_ror:8 row_mask:0xf bank_mask:0x3")
            A(f"v_add_f32_dpp v{B1}, v{a2}, v{a2} row_ror:8 row_mask:0xf bank_mask:0x3")
            A(f"v_add_f32_dpp v{B0}, v{a1}, v{a1} row_ror:8 row_mask:0xf bank_mask:0xc")
            A(f"v_add_f32_dpp v{B1}, v{a3}, v{a3} row_ror:8 row_mask:0xf bank_mask:0xc")
            A(f"v_add_f32_dpp v{e}, v{B0}, v{B0} row_half_mirror row_mask:0xf bank_mask:0x5")
            A(f"v_add_f32_dpp v{e}, v{B1}, v{B1} row_half_mirror row_mask:0xf bank_mask:0xa")
            A(f"v_add_f32_dpp v{e}, v{e}, v{e} quad_perm:[1,0,3,2] row_mask:0xf bank_mask:0xf")
            A(f"v_add_f32_dpp v{e}, v{e}, v{e} quad_perm:[2,3,0,1] row_mask:0xf bank_mask:0xf")
        for t in range(16):
            cnt, iss = plan(t0 + t)
            A(f"s_waitcnt vmcnt({cnt})")
            if iss is not None:
                if iss[1] == 'V' and iss[0] == 0:
                    A(f"s_lshl_b32 s{S_OFF}, s{S_SW}, 10")
                self.issue(iss[0], iss[1])
            r = self.slot(t0 + t)
            a = ACC[t % 4]
            A(f"v_dot2_f32_bf16 v{a}, v{r}, v{q}, 0")
            A(f"v_dot2_f32_bf16 v{a}, v{r+1}, v{q+1}, v{a}")
            A(f"v_dot2_f32_bf16 v{a}, v{r+2}, v{q+2}, v{a}")
            A(f"v_dot2_f32_bf16 v{a}, v{r+3}, v{q+3}, v{a}")
            if t % 4 == 3:
                reduce_group(t // 4)
        A(f"v_cndmask_b32 v{M}, v{E[0]}, v{E[1]}, s[{S_M1}:{S_M1+1}]")
        A(f"v_cndmask_b32 v{M}, v{M}, v{E[2]}, s[{S_M2}:{S_M2+1}]")
        A(f"v_cndmask_b32 v{M}, v{M}, v{E[3]}, s[{S_M3}:{S_M3+1}]")
        self.rnd_bf16(M, M)
        A(f"v_mul_f32 v{M}, 0x3db504f3, v{M}")
        self.rnd_bf16(M, M)
        A(f"ds_write_b32 v{SA}, v{M}")
        A(f"v_max_f32 v{MX}, v{MX}, v{M}")
        A(f"v_add_u32 v{SA}, 256, v{SA}")

    def v_block(self, t0, plan, last=False):
        A = self.A
        P, PN, PA = 12, 13, 14
        MK = [16, 17, 18, 19]
        BS = [[20, 21, 22, 23], [24, 25, 26, 27]]
        ACC = 28
        A(f"s_waitcnt lgkmcnt(0)")
        A(f"v_mov_b32 v{P}, v{PN}")
        if not last:
            A(f"ds_read_b32 v{PN}, v{PA}")
            A(f"v_add_u32 v{PA}, 256, v{PA}")
        for t in range(16):
            cnt, iss = plan(t0 + t)
            A(f"s_waitcnt vmcnt({cnt})")
            if iss is not None:
                self.issue(iss[0], iss[1])
            B = BS[t % 2]
            for j in range(4):
                A(f"v_and_b32_dpp v{B[j]}, v{P}, v{MK[j]} row_newbcast:{t} row_mask:0xf bank_mask:0xf")
            r = self.slot(t0 + t)
            A(f"v_mfma_f32_16x16x32_bf16 {vr(ACC,4)}, {vr(r,4)}, {vr(B[0],4)}, {vr(ACC,4)}")

    def stream(self):
        A = self.A
        N, NP, PV, R = self.N, self.NP, self.PV, self.R
        A.place("L_stream")
        A.c("==== stream waves ====")
        A(f"""
        v_lshrrev_b32 v4, 3, v1
        v_and_b32 v5, 7, v1
        v_lshrrev_b32 v6, 4, v1
        v_and_b32 v6, 1, v6
        v_lshlrev_b32 v6, 1, v6
        v_xor_b32 v5, v5, v6
        s_and_b32 s{S_T0}, s{S_SW}, 1
        s_lshl_b32 s{S_T0}, s{S_T0}, 2
        v_xor_b32 v5, s{S_T0}, v5
        v_lshlrev_b32 v5, 4, v5
        s_waitcnt lgkmcnt(0)
        """)
        self.mk_srd(R_WS, S_WS, WS_SIZE)
        self.role_params()
        A(f"""
        s_lshl_b32 s{S_T0}, s{S_B}, 5
        s_add_u32 s{S_T0}, s{S_T0}, s{S_H}
        s_lshl_b32 s{S_T0}, s{S_T0}, 20
        """)
        self.mk_srd(R_K, S_K, 1 << 20, f"s{S_T0}")
        self.mk_srd(R_V, S_V, 1 << 20, f"s{S_T0}")
        A(f"""
        v_mul_lo_u32 v4, v4, s{S_PITCH}
        v_add_u32 v4, v4, v5
        s_lshl_b32 s{S_T0}, s{S_PITCH}, 3
        s_mul_i32 s{S_T1}, s{S_T0}, s{S_SW}
        s_lshl_b32 s{S_T0}, s{S_T0}, 2
        s_lshl_b32 s{S_T2}, s{S_SW}, 10
        s_mov_b32 s{S_T3}, 0
        s_barrier
        """)
        self.stamp(0)
        if self.stamps and self.stamps != "tail":
            A("s_getreg_b32 s4, hwreg(HW_REG_XCC_ID)")
            A(f"s_lshl_b32 s6, s{S_WG}, 3")
            A(f"s_add_u32 s6, s6, s{S_WAVE}")
            A(f"s_lshl_b32 s6, s6, 7")
            A(f"s_add_u32 s6, s6, {WS_DBG + 0x100000 + 31*4}")
            A(f"s_mov_b64 exec, 1")
            A(f"v_mov_b32 v254, s4")
            A(f"v_mov_b32 v255, 0")
            A(f"buffer_store_dword v254, v255, {srd(R_WS)}, s6 offen")
            A(f"s_mov_b64 exec, -1")
        lp1, lp2, ld = A.label(), A.label(), A.label()
        A(f"s_cmp_eq_u32 s{S_NJ}, 0")
        A(f"s_cbranch_scc1 {ld}")
        A.place(lp1)
        A(f"""
        s_mov_b32 m0, s{S_T2}
        s_waitcnt vmcnt({NP-1})
        buffer_load_dwordx4 v4, {srd(R_WT)}, s{S_T1} offen {self.WP} lds
        s_add_u32 s{S_T1}, s{S_T1}, s{S_T0}
        s_add_u32 s{S_T2}, s{S_T2}, 4096
        s_add_u32 s{S_T3}, s{S_T3}, 1
        s_cmp_lt_u32 s{S_T3}, 24
        s_cbranch_scc1 {lp1}
        """)
        A.place(ld)
        A(f"s_lshl_b32 s{S_OFF}, s{S_SW}, 10")
        for t in range(R):
            A(f"s_waitcnt vmcnt({NP-1})")
            self.issue(t, 'K')
        self.stamp(15)
        ld2 = A.label()
        A(f"s_cmp_eq_u32 s{S_NJ}, 0")
        A(f"s_cbranch_scc1 {ld2}")
        self.lds_wait(LDS_CNT + 4, 4, 6, 7)
        A.place(lp2)
        A(f"""
        s_mov_b32 m0, s{S_T2}
        s_waitcnt vmcnt({NP-1})
        buffer_load_dwordx4 v4, {srd(R_WT)}, s{S_T1} offen {self.WP} lds
        s_add_u32 s{S_T1}, s{S_T1}, s{S_T0}
        s_add_u32 s{S_T2}, s{S_T2}, 4096
        s_add_u32 s{S_T3}, s{S_T3}, 1
        s_cmp_lt_u32 s{S_T3}, s{S_NJ}
        s_cbranch_scc1 {lp2}
        """)
        A.place(ld2)
        self.stamp(14)
        self.lds_wait(LDS_CNT + 12, 1, 6, 7)
        self.stamp(3)
        self.cstamp(20)
        A(f"""
        v_and_b32 v6, 15, v1
        v_lshlrev_b32 v6, 4, v6
        v_add_u32 v6, {LDS_Q}, v6
        ds_read_b128 v[8:11], v6
        v_mov_b32 v24, 0xff800000
        v_and_b32 v6, 3, v1
        v_lshlrev_b32 v6, 2, v6
        v_bfe_u32 v7, v1, 2, 1
        v_lshlrev_b32 v7, 1, v7
        v_bfe_u32 v5, v1, 3, 1
        v_or_b32 v7, v7, v5
        v_add_u32 v6, v6, v7
        v_and_b32 v7, 48, v1
        v_add_u32 v6, v6, v7
        v_lshlrev_b32 v6, 2, v6
        s_lshl_b32 s{S_T0}, s{S_SW}, 12
        s_add_u32 s{S_T0}, s{S_T0}, {LDS_SC}
        v_add_u32 v25, s{S_T0}, v6
        s_waitcnt lgkmcnt(0)
        """)
        def plan_first(t):
            if t < R - N: return (R - 1 - t, None)
            return (N - 1, (t + N, 'K'))
        def plan_mid(t): return (N - 1, (t + N, 'K'))
        def plan_klast(t):
            if t + N < 256: return (N - 1, (t + N, 'K'))
            return (N - 1, (t + N - 256, 'V'))
        self.k_block(0, plan_first)
        self.k_block(16, plan_first)
        lp = A.label()
        A(f"s_mov_b32 s{S_T3}, 0")
        A.place(lp)
        self.k_block(32, plan_mid)
        self.k_block(48, plan_mid)
        A(f"s_add_u32 s{S_T3}, s{S_T3}, 1")
        A(f"s_cmp_lt_u32 s{S_T3}, 6")
        A(f"s_cbranch_scc1 {lp}")
        self.k_block(224, plan_mid)
        self.k_block(240, plan_klast)
        for t in range(N, PV):
            self.issue(t, 'V')
        self.stamp(4)
        MX, T = 24, 23
        for r in (8, 4, 2, 1):
            A(f"v_max_f32_dpp v{MX}, v{MX}, v{MX} row_ror:{r} row_mask:0xf bank_mask:0xf")
        A(f"""
        v_lshrrev_b32 v6, 4, v1
        v_lshlrev_b32 v6, 2, v6
        s_lshl_b32 s{S_T0}, s{S_SW}, 4
        v_add_u32 v6, s{S_T0}, v6
        v_add_u32 v7, {LDS_WM}, v6
        ds_write_b32 v7, v{MX}
        s_lshl_b32 s{S_T0}, s{S_SW}, 12
        s_add_u32 s{S_T0}, s{S_T0}, {LDS_SC}
        v_add_u32 v14, s{S_T0}, v3
        s_waitcnt lgkmcnt(0)
        """)
        for i in range(16):
            A(f"ds_read_b32 v{48+i}, v14 offset:{i*256}")
        A(f"""
        s_barrier
        v_mov_b32 v7, {LDS_WM}
        ds_read_b128 v[32:35], v7
        ds_read_b128 v[36:39], v7 offset:16
        ds_read_b128 v[40:43], v7 offset:32
        ds_read_b128 v[44:47], v7 offset:48
        s_mov_b32 s{S_T1}, 0x3fb8aa3b
        s_waitcnt lgkmcnt(0)
        """)
        A(f"v_max3_f32 v{MX}, v32, v33, v34")
        for i in range(35, 47, 2):
            A(f"v_max3_f32 v{MX}, v{MX}, v{i}, v{i+1}")
        A(f"v_max_f32 v{MX}, v{MX}, v47")
        for i in range(16):
            A(f"v_sub_f32 v{48+i}, v{48+i}, v{MX}")
        for i in range(16):
            A(f"v_mul_f32 v{48+i}, s{S_T1}, v{48+i}")
        for i in range(16):
            A(f"v_exp_f32 v{48+i}, v{48+i}")
        A(f"v_add_f32 v{T}, v48, v49")
        for i in range(2, 16):
            A(f"v_add_f32 v{T}, v{T}, v{48+i}")
        for r in (8, 4, 2, 1):
            A(f"v_add_f32_dpp v{T}, v{T}, v{T} row_ror:{r} row_mask:0xf bank_mask:0xf")
        A(f"""
        v_add_u32 v7, {LDS_WS}, v6
        ds_write_b32 v7, v{T}
        s_waitcnt lgkmcnt(0)
        s_barrier
        v_mov_b32 v7, {LDS_WS}
        ds_read_b128 v[32:35], v7
        ds_read_b128 v[36:39], v7 offset:16
        ds_read_b128 v[40:43], v7 offset:32
        ds_read_b128 v[44:47], v7 offset:48
        v_and_b32 v6, 15, v1
        v_lshrrev_b32 v7, 1, v6
        v_and_b32 v5, 1, v6
        v_lshlrev_b32 v5, 4, v5
        v_mov_b32 v4, 0xffff
        v_lshlrev_b32 v4, v5, v4
        """)
        for j in range(4):
            A(f"v_cmp_eq_u32 vcc, {j}, v7")
            A(f"v_cndmask_b32 v{16+j}, 0, v4, vcc")
        A("s_waitcnt lgkmcnt(0)")
        for i in range(0, 16, 2):
            A(f"v_add_f32 v{32+i}, v{32+i}, v{33+i}")
        for i in range(0, 16, 4):
            A(f"v_add_f32 v{32+i}, v{32+i}, v{34+i}")
        A(f"v_add_f32 v32, v32, v36")
        A(f"v_add_f32 v40, v40, v44")
        A(f"v_add_f32 v32, v32, v40")
        A(f"v_rcp_f32 v32, v32")
        for i in range(16):
            A(f"v_mul_f32 v{48+i}, v{48+i}, v32")
        for i in range(16):
            A(f"v_cvt_pk_bf16_f32 v{48+i}, v{48+i}, v{48+i}")
        for i in range(1, 16):
            A(f"ds_write_b32 v14, v{48+i} offset:{i*256}")
        A(f"""
        v_mov_b32 v13, v48
        v_add_u32 v14, 256, v14
        v_mov_b32 v28, 0
        v_mov_b32 v29, 0
        v_mov_b32 v30, 0
        v_mov_b32 v31, 0
        """)
        self.stamp(5)
        def plan_vfirst(t):
            if t < PV - N: return (PV - 1 - t, None)
            return (N - 1, (t + N, 'V'))
        def plan_vmid(t): return (N - 1, (t + N, 'V'))
        def plan_vlast(t):
            if t + N < 256: return (N - 1, (t + N, 'V'))
            return (255 - t, None)
        assert PV == 16
        self.v_block(0, plan_vfirst)
        lp = A.label()
        A(f"s_mov_b32 s{S_T3}, 0")
        A.place(lp)
        self.v_block(16, plan_vmid)
        self.v_block(32, plan_vmid)
        A(f"s_add_u32 s{S_T3}, s{S_T3}, 1")
        A(f"s_cmp_lt_u32 s{S_T3}, 7")
        A(f"s_cbranch_scc1 {lp}")
        self.v_block(240, plan_vlast, last=True)
        A(f"""
        v_lshrrev_b32 v6, 4, v1
        v_lshlrev_b32 v6, 7, v6
        v_and_b32 v7, 15, v1
        v_lshlrev_b32 v7, 2, v7
        v_add_u32 v6, v6, v7
        s_lshl_b32 s{S_T0}, s{S_SW}, 9
        s_add_u32 s{S_T0}, s{S_T0}, {LDS_ORED}
        v_add_u32 v6, s{S_T0}, v6
        s_mov_b64 exec, s[{S_MJ8}:{S_MJ8+1}]
        ds_write_b32 v6, v28
        ds_write_b32 v6, v29 offset:32
        ds_write_b32 v6, v30 offset:64
        ds_write_b32 v6, v31 offset:96
        s_mov_b64 exec, -1
        s_waitcnt lgkmcnt(0)
        """)
        self.stamp(6)
        self.cstamp(21)
        A.place("L_join3")

    def tile_afrags(self, base):
        A = self.A
        A(f"""
        v_lshrrev_b32 v4, 4, v1
        v_and_b32 v5, 15, v1
        v_lshrrev_b32 v6, 2, v5
        v_and_b32 v5, 3, v5
        v_lshrrev_b32 v7, 1, v6
        v_and_b32 v8, 1, v4
        v_lshlrev_b32 v8, 1, v8
        v_or_b32 v7, v7, v8
        v_lshlrev_b32 v8, 3, v4
        v_add_u32 v8, v8, v6
        v_lshlrev_b32 v8, 7, v8
        v_lshlrev_b32 v5, 3, v5
        v_add_u32 v8, v8, v5
        s_lshl_b32 s{S_T0}, s{S_WAVE}, 14
        v_add_u32 v8, s{S_T0}, v8
        """)
        for cb in range(4):
            A(f"v_xor_b32 v{9+cb}, {cb}, v7")
            A(f"v_lshlrev_b32 v{9+cb}, 5, v{9+cb}")
            A(f"v_add_u32 v{9+cb}, v{9+cb}, v8")
        for s in range(4):
            for cb in range(4):
                r = base + (s * 4 + cb) * 4
                A(f"ds_read_b64_tr_b16 {vr(r,2)}, v{9+cb} offset:{s*4096}")
                A(f"ds_read_b64_tr_b16 {vr(r+2,2)}, v{9+cb} offset:{s*4096+512}")

    RW = 240
    def red_addrs(self):
        A = self.A
        RW = self.RW
        A(f"""
        v_and_b32 v4, 15, v1
        v_lshrrev_b32 v5, 4, v1
        s_lshl_b32 s{S_T0}, s{S_WAVE}, 11
        s_add_u32 s{S_T0}, s{S_T0}, {LDS_RED}
        v_lshlrev_b32 v6, 8, v4
        v_add_u32 v6, s{S_T0}, v6
        """)
        for cb in range(4):
            A(f"v_add_u32 v7, {4*cb}, v5")
            A(f"v_xor_b32 v7, v7, v4")
            A(f"v_lshlrev_b32 v7, 4, v7")
            A(f"v_add_u32 v{RW+cb}, v7, v6")
        A(f"""
        v_lshrrev_b32 v4, 2, v1
        v_xor_b32 v4, s{S_WAVE}, v4
        v_lshlrev_b32 v4, 4, v4
        v_and_b32 v5, 3, v1
        v_lshlrev_b32 v5, 2, v5
        v_add_u32 v4, v4, v5
        s_lshl_b32 s{S_T0}, s{S_WAVE}, 8
        s_add_u32 s{S_T0}, s{S_T0}, {LDS_RED}
        v_add_u32 v{RW+4}, s{S_T0}, v4
        """)

    def mfma16(self, abase, bregs, acc):
        A = self.A
        for s in range(4):
            for cb in range(4):
                r = abase + (s * 4 + cb) * 4
                a = acc + 4 * cb
                src = "0" if s == 0 else vr(a, 4)
                A(f"v_mfma_f32_16x16x32_bf16 {vr(a,4)}, {vr(r,4)}, {vr(bregs[s],4)}, {src}")

    def red_write(self, acc):
        A = self.A
        A(f"s_mov_b64 exec, s[{S_MJ8}:{S_MJ8+1}]")
        for cb in range(4):
            A(f"ds_write_b128 v{self.RW+cb}, {vr(acc+4*cb,4)}")
        A("s_mov_b64 exec, -1")
        A("s_waitcnt lgkmcnt(0)")

    def red_sum(self, nw, dst):
        A = self.A
        for v in range(nw):
            A(f"ds_read_b32 v{dst+v}, v{self.RW+4} offset:{v*2048}")
        A("s_waitcnt lgkmcnt(0)")
        regs = [dst + v for v in range(nw)]
        while len(regs) > 1:
            nxt = []
            for i in range(0, len(regs) - 1, 2):
                A(f"v_add_f32 v{regs[i]}, v{regs[i]}, v{regs[i+1]}")
                nxt.append(regs[i])
            if len(regs) % 2: nxt.append(regs[-1])
            regs = nxt

    def tail(self):
        A = self.A
        A("s_barrier")
        lskip = A.label()
        A(f"s_cmp_eq_u32 s{S_WAVE}, 0")
        A(f"s_cbranch_scc0 {lskip}")
        A(f"""
        v_lshlrev_b32 v4, 3, v1
        v_add_u32 v4, {LDS_ORED}, v4
        ds_read_b64 v[8:9], v4
        ds_read_b64 v[10:11], v4 offset:512
        ds_read_b64 v[12:13], v4 offset:1024
        ds_read_b64 v[14:15], v4 offset:1536
        s_lshl_b32 s{S_T0}, s{S_B}, 13
        s_lshl_b32 s{S_T1}, s{S_H}, 8
        s_add_u32 s{S_T0}, s{S_T0}, s{S_T1}
        s_add_u32 s{S_T0}, s{S_T0}, {WS_OB}
        s_waitcnt lgkmcnt(0)
        v_pk_add_f32 v[8:9], v[8:9], v[10:11]
        v_pk_add_f32 v[12:13], v[12:13], v[14:15]
        v_pk_add_f32 v[8:9], v[8:9], v[12:13]
        v_cvt_pk_bf16_f32 v8, v8, v9
        v_min_u32 v8, -2, v8
        """)
        self.quad_gather(8, 8)
        A(f"""
        s_mov_b64 exec, s[{S_MQ}:{S_MQ+1}]
        buffer_store_dwordx4 v[8:11], v3, {srd(R_WS)}, s{S_T0} offen sc0 sc1
        s_mov_b64 exec, -1
        """)
        A.place(lskip)
        self.stamp(7)
        if self.stop_after == "attn":
            A("s_branch L_end")
        A(f"""
        s_cmp_eq_u32 s{S_ROLE}, 0
        s_cbranch_scc1 L_roleO
        s_cmp_eq_u32 s{S_ROLE}, 1
        s_cbranch_scc1 L_roleG
        s_cmp_eq_u32 s{S_ROLE}, 2
        s_cbranch_scc1 L_roleD
        s_branch L_end
        """)
        self.role_O()
        self.role_G()
        self.role_D()

    def role_O(self):
        A = self.A
        A.place("L_roleO")
        AB = 64
        A(f"s_lshr_b32 s{S_NJ}, s2, 4")
        A(f"s_and_b32 s{S_PITCH}, s2, 15")
        self.local_flag(S_PITCH)
        self.mk_srd(R_X, S_X, 16384)
        A(f"""
        v_bfe_u32 v14, v1, 2, 3
        v_lshlrev_b32 v14, 11, v14
        v_and_b32 v15, 3, v1
        v_lshlrev_b32 v13, 3, v15
        v_add_u32 v13, v13, v14
        s_lshl_b32 s{S_T0}, s{S_PITCH}, 7
        s_lshl_b32 s{S_T1}, s{S_NJ}, 5
        s_add_u32 s{S_T0}, s{S_T0}, s{S_T1}
        buffer_load_dwordx2 v[28:29], v13, {srd(R_X)}, s{S_T0} offen
        s_add_u32 s{S_OFF}, s{S_T0}, {WS_H}
        v_lshrrev_b32 v15, 1, v15
        v_lshlrev_b32 v15, 4, v15
        v_add_u32 v14, v14, v15
        """)
        self.tile_afrags(AB)
        self.red_addrs()
        A(f"""
        v_bfe_u32 v4, v1, 2, 3
        v_and_b32 v5, 3, v1
        s_lshl_b32 s{S_T0}, s{S_WAVE}, 2
        v_add_u32 v5, s{S_T0}, v5
        v_xor_b32 v5, v5, v4
        v_lshlrev_b32 v5, 4, v5
        v_lshlrev_b32 v4, 8, v4
        v_add_u32 v4, v4, v5
        v_lshrrev_b32 v5, 5, v1
        v_lshlrev_b32 v5, 13, v5
        v_add_u32 v4, v4, v5
        v_add_u32 v19, {LDS_RED}, v4
        v_and_b32 v4, 31, v1
        v_lshlrev_b32 v13, 4, v4
        v_and_b32 v4, 15, v1
        v_lshlrev_b32 v4, 13, v4
        v_lshrrev_b32 v5, 4, v1
        v_lshlrev_b32 v5, 4, v5
        v_add_u32 v16, v4, v5
        s_lshl_b32 s{S_T0}, s{S_NJ}, 11
        s_lshl_b32 s{S_T1}, s{S_WAVE}, 8
        s_add_u32 s{S_T0}, s{S_T0}, s{S_T1}
        s_add_u32 s{S_T0}, s{S_T0}, {WS_OB}
        s_lshl_b32 s{S_T2}, s{S_PITCH}, 13
        s_add_u32 s{S_T2}, s{S_T2}, {WS_OP}
        s_lshl_b32 s{S_T1}, s{S_WAVE}, 11
        s_add_u32 s{S_T3}, s{S_T2}, s{S_T1}
        s_lshl_b32 s{S_T1}, s{S_NJ}, 9
        s_add_u32 s{S_T3}, s{S_T3}, s{S_T1}
        s_lshl_b32 s{S_T1}, s{S_NJ}, 11
        s_add_u32 s{S_T2}, s{S_T2}, s{S_T1}
        """)
        self.prepoll(f"buffer_load_dword v18, v16, {srd(R_WS)}, s{S_T0} offen {self.LP}", 18, mask=S_MJ8, sleep=2)
        loads = [f"buffer_load_dwordx4 {vr(32+4*s,4)}, v16, {srd(R_WS)}, s{S_T0} offen offset:{s*64} {self.LP}" for s in range(4)]
        self.poll_pipe(loads, range(32, 48), 17, mask=S_MJ8, depth=1, sleep=self.PS)
        self.stamp(8)
        A("s_waitcnt lgkmcnt(0)")
        self.mfma16(AB, [32, 36, 40, 44], 48)
        self.red_write(48)
        A("s_barrier")
        lr1 = A.label()
        A(f"s_cmp_ge_u32 s{S_WAVE}, 4")
        A(f"s_cbranch_scc1 {lr1}")
        for v in range(4):
            A(f"ds_read_b128 {vr(32+4*v,4)}, v19 offset:{v*2048}")
        A("s_waitcnt lgkmcnt(0)")
        for e in (0, 2):
            A(f"v_pk_add_f32 {vr(32+e,2)}, {vr(32+e,2)}, {vr(36+e,2)}")
            A(f"v_pk_add_f32 {vr(40+e,2)}, {vr(40+e,2)}, {vr(44+e,2)}")
        for e in (0, 2):
            A(f"v_pk_add_f32 {vr(32+e,2)}, {vr(32+e,2)}, {vr(40+e,2)}")
        for e in range(4):
            A(f"v_mov_b32 v{36+e}, v{32+e}")
        for e in range(4):
            A(f"v_permlane32_swap_b32 v{32+e}, v{36+e}")
        for e in (0, 2):
            A(f"v_pk_add_f32 {vr(32+e,2)}, {vr(32+e,2)}, {vr(36+e,2)}")
        for e in range(4):
            A(f"v_min_u32 v{32+e}, -2, v{32+e}")
        A("s_mov_b64 exec, 0xffffffff")
        self.store_sel(f"buffer_store_dwordx4 v[32:35], v13, {srd(R_WS)}, s{S_T3} offen")
        A("s_mov_b64 exec, -1")
        self.stamp(9)
        A("s_branch L_end")
        A.place(lr1)
        A(f"s_cmp_eq_u32 s{S_WAVE}, 4")
        A(f"s_cbranch_scc0 L_end")
        A(f"v_lshlrev_b32 v20, 16, v28")
        A(f"v_and_b32 v21, 0xffff0000, v28")
        A(f"v_lshlrev_b32 v22, 16, v29")
        A(f"v_and_b32 v23, 0xffff0000, v29")
        loads = [f"buffer_load_dwordx4 v[32:35], v2, {srd(R_WS)}, s{S_T2} offen {self.LP}",
                 f"buffer_load_dwordx4 v[36:39], v2, {srd(R_WS)}, s{S_T2} offen offset:1024 {self.LP}"]
        self.poll_pipe(loads, range(32, 40), 17, depth=1, sleep=0)
        self.stamp(9)
        for e in (0, 2):
            A(f"v_pk_add_f32 {vr(40+e,2)}, {vr(32+e,2)}, {vr(36+e,2)}")
        for e in range(4):
            A(f"v_mov_b32 v{44+e}, v{40+e}")
        for e in range(4):
            A(f"v_permlane32_swap_b32 v{40+e}, v{44+e}")
        for e in (0, 2):
            A(f"v_pk_add_f32 {vr(40+e,2)}, {vr(40+e,2)}, {vr(44+e,2)}")
        A(f"""
        v_cvt_pk_bf16_f32 v44, v40, v41
        v_cvt_pk_bf16_f32 v45, v42, v43
        v_lshlrev_b32 v40, 16, v44
        v_and_b32 v41, 0xffff0000, v44
        v_lshlrev_b32 v42, 16, v45
        v_and_b32 v43, 0xffff0000, v45
        v_pk_add_f32 v[40:41], v[40:41], v[20:21]
        v_pk_add_f32 v[42:43], v[42:43], v[22:23]
        v_cvt_pk_bf16_f32 v48, v40, v41
        v_cvt_pk_bf16_f32 v49, v42, v43
        v_min_u32 v48, -2, v48
        v_min_u32 v49, -2, v49
        v_mov_b32_dpp v50, v48 quad_perm:[1,1,3,3] row_mask:0xf bank_mask:0xf
        v_mov_b32_dpp v51, v49 quad_perm:[1,1,3,3] row_mask:0xf bank_mask:0xf
        s_mov_b64 exec, 0x55555555
        buffer_store_dwordx4 v[48:51], v14, {srd(R_WS)}, s{S_OFF} offen sc0 sc1
        s_mov_b64 exec, -1
        """)
        self.stamp(16)
        A("s_branch L_end")

    def role_G(self):
        A = self.A
        A.place("L_roleG")
        AB = 160
        self.tile_afrags(AB)
        self.red_addrs()
        F, D = 96, 128
        A(f"""
        s_lshl_b32 s{S_T0}, s{S_WAVE}, 1
        v_xor_b32 v14, s{S_T0}, v1
        v_lshlrev_b32 v14, 4, v14
        s_lshl_b32 s{S_T0}, s{S_WAVE}, 11
        s_add_u32 s{S_T0}, s{S_T0}, {LDS_XN2}
        v_add_u32 v14, s{S_T0}, v14
        v_and_b32 v17, 7, v1
        v_lshrrev_b32 v18, 4, v1
        v_lshlrev_b32 v19, 11, v17
        s_lshl_b32 s{S_T0}, s{S_WAVE}, 8
        s_add_u32 s{S_T0}, s{S_T0}, {LDS_XN2}
        v_add_u32 v19, s{S_T0}, v19
        v_lshlrev_b32 v17, 1, v17
        """)
        for s_ in range(4):
            A(f"v_add_u32 v28, {4*s_}, v18")
            A(f"v_xor_b32 v28, v28, v17")
            A(f"v_lshlrev_b32 v28, 4, v28")
            A(f"v_add_u32 v{232+s_}, v28, v19")
        A(f"""
        s_sub_u32 s{S_T0}, s2, 64
        s_and_b32 s{S_T1}, s{S_T0}, 1
        s_mul_i32 s{S_T1}, s{S_T1}, 57344
        s_lshr_b32 s{S_T0}, s{S_T0}, 1
        s_lshl_b32 s{S_T0}, s{S_T0}, 7
        s_add_u32 s{S_T0}, s{S_T0}, s{S_T1}
        s_mul_i32 s{S_T1}, s{S_WAVE}, 7168
        s_add_u32 s{S_T0}, s{S_T0}, s{S_T1}
        s_add_u32 s{S_OFF}, s{S_T0}, {WS_GU}
        v_lshlrev_b32 v15, 1, v1
        s_lshl_b32 s{S_T0}, s{S_WAVE}, 13
        s_add_u32 s{S_T0}, s{S_T0}, {WS_OB}
        v_lshlrev_b32 v17, 8, v1
        s_mov_b64 s[{S_EX}:{S_EX+1}], 0xffffffff
        """)
        A(f"s_lshl_b32 s{S_T0}, s{S_WAVE}, 11")
        A(f"s_add_u32 s{S_T0}, s{S_T0}, {WS_H}")
        A(f"v_lshlrev_b32 v17, 5, v1")
        self.prepoll(f"buffer_load_dword v18, v17, {srd(R_WS)}, s{S_T0} offen {self.LP}", 18, sleep=self.HS)
        A(f"s_lshl_b32 s{S_T0}, s{S_WAVE}, 11")
        A(f"s_add_u32 s{S_T0}, s{S_T0}, {WS_H}")
        loads = [f"buffer_load_dwordx4 v[20:23], v2, {srd(R_WS)}, s{S_T0} offen {self.LP}",
                 f"buffer_load_dwordx4 v[24:27], v2, {srd(R_WS)}, s{S_T0} offen offset:1024 {self.LP}"]
        self.poll_pipe(loads, range(20, 28), 17, depth=self.PD, sleep=self.PS)
        self.stamp(8)
        for i in range(8):
            A(f"v_lshlrev_b32 v{F+2*i}, 16, v{20+i}")
            A(f"v_and_b32 v{F+2*i+1}, 0xffff0000, v{20+i}")
        S1, S2, T1, T2, VMB, VRS = 144, 146, 148, 149, 150, 152
        self.ln_stats(F, D, S1, S2, T1, T2, VMB, VRS)
        for i in range(8):
            self.ln_apply(48 + i, F + 2*i, VMB, VRS, 154 + 2 * (i % 2))
        A(f"ds_write_b128 v14, v[48:51]")
        A(f"ds_write_b128 v14, v[52:55] offset:1024")
        A("s_waitcnt lgkmcnt(0)")
        A("s_barrier")
        for s_ in range(4):
            A(f"ds_read_b128 {vr(32+4*s_,4)}, v{232+s_}")
        A("s_waitcnt lgkmcnt(0)")
        self.mfma16(AB, [32, 36, 40, 44], 48)
        self.red_write(48)
        A("s_waitcnt vmcnt(0)")
        A("s_barrier")
        self.red_sum(8, 20)
        self.rnd_bf16(20, 20)
        lup = A.label()
        A(f"s_bitcmp1_b32 s2, 0")
        A(f"s_cbranch_scc1 {lup}")
        A(f"""
        v_mul_f32 v17, v20, v20
        v_mul_f32 v18, v17, v20
        v_mul_f32 v18, 0x3d372713, v18
        v_add_f32 v18, v20, v18
        v_mul_f32 v18, 0x3f4c422a, v18
        v_mul_f32 v18, 0x4038aa3b, v18
        v_min_f32 v18, 0x42700000, v18
        v_exp_f32 v18, v18
        v_add_f32 v19, 1.0, v18
        v_rcp_f32 v19, v19
        v_mul_f32 v18, v18, v19
        v_mul_f32 v20, v20, v18
        """)
        A.place(lup)
        A(f"""
        v_mov_b32_dpp v17, v20 quad_perm:[1,1,3,3] row_mask:0xf bank_mask:0xf
        v_cvt_pk_bf16_f32 v20, v20, v17
        v_min_u32 v20, -2, v20
        """)
        self.even_gather(20, 20)
        A(f"""
        s_mov_b64 exec, s[{S_ME}:{S_ME+1}]
        buffer_store_dwordx4 v[20:23], v15, {srd(R_WS)}, s{S_OFF} offen sc0 sc1
        s_mov_b64 exec, -1
        """)
        self.stamp(9)
        A("s_branch L_end")

    def role_D(self):
        A = self.A
        A.place("L_roleD")
        AB = 160
        self.red_addrs()
        A(f"""
        s_sub_u32 s{S_T2}, s2, 176
        s_lshr_b32 s{S_NJ}, s{S_T2}, 4
        s_and_b32 s{S_T2}, s{S_T2}, 15
        s_lshl_b32 s{S_T0}, s{S_WAVE}, 12
        s_lshl_b32 s{S_T1}, s{S_T2}, 8
        s_add_u32 s{S_T0}, s{S_T0}, s{S_T1}
        s_add_u32 s{S_OFF}, s{S_T0}, {WS_DP}
        s_lshl_b32 s{S_T0}, s{S_WAVE}, 11
        s_lshl_b32 s{S_T1}, s{S_T2}, 7
        s_add_u32 s{S_PITCH}, s{S_T0}, s{S_T1}
        """)
        self.mk_srd(R_OUT, S_OUT, 16384)
        A(f"s_add_u32 s{S_T3}, s{S_T2}, 176")
        self.local_flag(S_T3)
        lno = A.label()
        A(f"s_cmp_eq_u32 s{S_WAVE}, 7")
        A(f"s_cbranch_scc1 {lno}")
        self.tile_afrags(AB)
        A(f"""
        v_and_b32 v4, 15, v1
        v_mul_u32_u24 v4, 7168, v4
        v_lshrrev_b32 v5, 4, v1
        v_lshlrev_b32 v5, 4, v5
        v_add_u32 v16, v4, v5
        s_mul_i32 s{S_T0}, s{S_NJ}, 1792
        s_lshl_b32 s{S_T1}, s{S_WAVE}, 8
        s_add_u32 s{S_T0}, s{S_T0}, s{S_T1}
        s_add_u32 s{S_T0}, s{S_T0}, {WS_GU}
        s_add_u32 s{S_T1}, s{S_T0}, 57344
        """)
        A(f"s_lshl_b32 s{S_T2}, s{S_WAVE}, 11")
        A(f"s_add_u32 s{S_T2}, s{S_T2}, {WS_H}")
        A(f"v_lshlrev_b32 v17, 5, v1")
        self.prepoll(f"buffer_load_dword v18, v17, {srd(R_WS)}, s{S_T2} offen {self.LP}", 18, need_all=True, sleep=self.HS)
        loads = []
        for mat in range(2):
            so = S_T0 if mat == 0 else S_T1
            loads += [f"buffer_load_dwordx4 {vr(32+16*mat+4*s_,4)}, v16, {srd(R_WS)}, s{so} offen offset:{s_*64} {self.LP}" for s_ in range(4)]
        self.poll_pipe(loads, range(32, 64), 17, mask=S_MJ8, depth=self.PD, sleep=self.PS)
        self.stamp(8)
        for i in range(0, 16, 2):
            g, u = 32 + i, 48 + i
            A(f"v_lshlrev_b32 v64, 16, v{g}")
            A(f"v_and_b32 v65, 0xffff0000, v{g}")
            A(f"v_lshlrev_b32 v66, 16, v{u}")
            A(f"v_and_b32 v67, 0xffff0000, v{u}")
            A(f"v_lshlrev_b32 v68, 16, v{g+1}")
            A(f"v_and_b32 v69, 0xffff0000, v{g+1}")
            A(f"v_lshlrev_b32 v70, 16, v{u+1}")
            A(f"v_and_b32 v71, 0xffff0000, v{u+1}")
            A(f"v_pk_mul_f32 v[64:65], v[64:65], v[66:67]")
            A(f"v_pk_mul_f32 v[68:69], v[68:69], v[70:71]")
            A(f"v_cvt_pk_bf16_f32 v{72+i}, v64, v65")
            A(f"v_cvt_pk_bf16_f32 v{73+i}, v68, v69")
        A("s_waitcnt lgkmcnt(0)")
        self.mfma16(AB, [72, 76, 80, 84], 88)
        self.red_write(88)
        A.place(lno)
        A("s_barrier")
        self.red_sum(7, 20)
        lfin = A.label()
        A(f"""
        s_cmp_eq_u32 s{S_NJ}, 0
        s_cbranch_scc1 {lfin}
        v_min_u32 v20, -2, v20
        s_lshl_b32 s{S_T3}, s{S_NJ}, 15
        s_add_u32 s{S_T0}, s{S_OFF}, s{S_T3}
        """)
        self.quad_gather(20, 20)
        A(f"""
        s_mov_b64 exec, s[{S_MQ}:{S_MQ+1}]
        """)
        self.store_sel(f"buffer_store_dwordx4 v[20:23], v3, {srd(R_WS)}, s{S_T0} offen")
        A("s_mov_b64 exec, -1")
        self.stamp(9)
        A("s_branch L_end")
        A.place(lfin)
        A(f"""
        s_add_u32 s{S_T1}, s{S_OFF}, 32768
        s_add_u32 s{S_T3}, s{S_OFF}, 65536
        s_add_u32 s{S_T4}, s{S_OFF}, 98304
        v_lshrrev_b32 v18, 1, v1
        v_lshlrev_b32 v18, 2, v18
        s_add_u32 s{S_T2}, s{S_PITCH}, {WS_H}
        """)
        loads = [f"buffer_load_dword v28, v3, {srd(R_WS)}, s{S_T1} offen {self.LP}",
                 f"buffer_load_dword v29, v3, {srd(R_WS)}, s{S_T3} offen {self.LP}",
                 f"buffer_load_dword v30, v3, {srd(R_WS)}, s{S_T4} offen {self.LP}",
                 f"buffer_load_dword v31, v18, {srd(R_WS)}, s{S_T2} offen {self.LP}"]
        self.poll_pipe(loads, range(28, 32), 17, depth=self.PD, sleep=self.PS)
        A(f"""
        v_add_f32 v20, v20, v28
        v_add_f32 v21, v29, v30
        v_add_f32 v20, v20, v21
        """)
        self.rnd_bf16(20, 20)
        A(f"""
        v_and_b32 v17, 1, v1
        v_cmp_eq_u32 vcc, 1, v17
        v_lshlrev_b32 v18, 16, v31
        v_and_b32 v19, 0xffff0000, v31
        v_cndmask_b32 v18, v18, v19, vcc
        v_add_f32 v20, v20, v18
        v_cvt_pk_bf16_f32 v20, v20, v20
        v_lshlrev_b32 v18, 1, v1
        buffer_store_short v20, v18, {srd(R_OUT)}, s{S_PITCH} offen
        """)
        lne = A.label()
        A(f"""
        s_cmp_eq_u32 s2, 176
        s_cbranch_scc0 {lne}
        s_cmp_eq_u32 s{S_WAVE}, 0
        s_cbranch_scc0 {lne}
        v_mov_b32 v20, 0
        v_mov_b32 v21, s{S_TAG}
        s_mov_b32 s{S_T1}, {WS_EPOCH}
        s_mov_b64 exec, 1
        buffer_store_dword v21, v20, {srd(R_WS)}, s{S_T1} offen sc0 sc1
        s_mov_b64 exec, -1
        """)
        A.place(lne)
        self.stamp(9)

    def build(self):
        A = self.A
        self.entry()
        self.service()
        self.stream()
        self.tail()
        A.place("L_end")
        if self.stamps == "tail":
            A("s_cmp_ge_u32 s2, 256")
            A("s_cbranch_scc1 L_end2")
            A("s_waitcnt lgkmcnt(0)")
            A(f"s_lshl_b32 s3, s{S_WG}, 3")
            A(f"s_add_u32 s3, s3, s{S_WAVE}")
            A(f"s_lshl_b32 s3, s3, 7")
            A(f"s_add_u32 s3, s3, {WS_DBG + 0x100000}")
            A(f"s_mov_b64 exec, 1")
            A(f"v_mov_b32 v255, 0")
            for idx, j in self.LIGHT.items():
                A(f"v_mov_b32 v254, s{4+2*j}")
                A(f"buffer_store_dword v254, v255, {srd(R_WS)}, s3 offen offset:{idx*4}")
            A.place("L_end2")
        A("s_endpgm")
        A.footer(256, 102, 256)
        A.fix_hazards()
        return A.text()

if __name__ == "__main__":
    import argparse
    ap = argparse.ArgumentParser()
    ap.add_argument("-o", default="main.s")
    ap.add_argument("--N", type=int, default=5)
    ap.add_argument("--NP", type=int, default=8)
    ap.add_argument("--LP", default="sc1")
    ap.add_argument("--PD", type=int, default=1)
    ap.add_argument("--HG", type=int, default=64)
    ap.add_argument("--HD", type=int, default=64)
    ap.add_argument("--HS", type=int, default=4)
    ap.add_argument("--nolocal", action="store_true")
    ap.add_argument("--KP", default="nt")
    ap.add_argument("--VP", default="nt")
    ap.add_argument("--WP", default="nt")
    ap.add_argument("--PS", type=int, default=1)
    ap.add_argument("--debug", action="store_true")
    ap.add_argument("--stamps", default=None)
    ap.add_argument("--stop", default=None)
    a = ap.parse_args()
    g = Gen(N=a.N, NP=a.NP, LP=a.LP, PD=a.PD, PS=a.PS, HG=a.HG, HD=a.HD, HS=a.HS, nolocal=a.nolocal, KP=a.KP, VP=a.VP, WP=a.WP, debug=a.debug, stamps=a.stamps, stop_after=a.stop)
    open(a.o, "w").write(g.build())
```

```python
import sys
from asmlib import *

LDS_WQ = 98304
LDS_SC = 131072
LDS_MISC = 147456
LDS_XN = LDS_MISC
LDS_Q = LDS_MISC + 2304
LDS_CNT = LDS_MISC + 2560
LDS_WM = LDS_MISC + 2624
LDS_WS = LDS_MISC + 2688
LDS_ORED = LDS_MISC + 4096
LDS_XCC = LDS_MISC + 8192
LDS_RED = LDS_SC
LDS_XN2 = LDS_MISC
LDS_BYTES = 163840

WS_QP = 0x000000
WS_SLOT = 0x100000
WS_OB = WS_SLOT + 0x00000
WS_OP = WS_SLOT + 0x10000
WS_H = WS_SLOT + 0x30000
WS_GU = WS_SLOT + 0x34000
WS_DP = WS_SLOT + 0x50000
WS_C2 = WS_SLOT + 0x90000
WS_C3 = WS_SLOT + 0x90100
WS_FLAG = 0x200000
WS_EPOCH = 0x210000
WS_DBG = 0x300000
WS_SIZE = 0x600000
SPIN = 1 << 20

S_WG = 2
S_X, S_K, S_V, S_WQ, S_WO, S_BX, S_WG_, S_WU, S_WD, S_OUT, S_DBG, S_WS = 16, 18, 20, 22, 24, 26, 28, 30, 32, 34, 36, 38
R_K, R_V, R_X, R_WQ, R_WT, R_WS, R_OUT = 40, 44, 48, 52, 56, 60, 68
S_WAVE, S_H, S_B, S_SW = 72, 73, 74, 75
S_T0, S_T1, S_T2, S_T3, S_T4, S_T5 = 76, 77, 78, 79, 80, 81
S_OFF, S_CNT, S_PITCH, S_NJ, S_ROLE = 82, 83, 84, 85, 86
S_M1, S_M2, S_M3 = 88, 90, 92
S_MJ8 = 94
S_EX = 96
S_TAG = 98
S_MQ = 64
S_JJ = 100
S_JA = 101
S_LOC = 87
S_XCC = 99
S_ME = 66
S_PM = 40
def srd(r): return f"s[{r}:{r+3}]"
def vr(a, n): return f"v[{a}:{a+n-1}]"

class Gen:
    def __init__(self, N=5, NP=8, PV=16, LP='sc1', PD=1, PS=1, HG=64, HD=64, HS=4, nolocal=False, GSL=1, FSL=1, KP='nt', VP='nt', WP='nt', debug=False, stamps=False, stop_after=None):
        self.A = Asm()
        self.N, self.NP, self.PV, self.LP = N, NP, PV, LP
        self.debug, self.stamps, self.stop_after = debug, stamps, stop_after
        self.OSLEEP, self.GSLEEP, self.DSLEEP = 1, 0, 0
        self.PD, self.PS = PD, PS
        self.nolocal = nolocal
        self.GSL, self.FSL = GSL, FSL
        self.KP, self.VP, self.WP = KP, VP, WP
        self.HG, self.HD, self.HS = HG, HD, HS

    def mk_srd(self, r, ptr, size, add_lo=None):
        A = self.A
        if add_lo is None:
            A(f"s_mov_b32 s{r}, s{ptr}")
            A(f"s_mov_b32 s{r+1}, s{ptr+1}")
        else:
            A(f"s_add_u32 s{r}, s{ptr}, {add_lo}")
            A(f"s_addc_u32 s{r+1}, s{ptr+1}, 0")
        A(f"s_mov_b32 s{r+2}, {size}")
        A(f"s_mov_b32 s{r+3}, 0x20000")

    def lds_signal(self, off, va, vd):
        A = self.A
        A(f"s_mov_b64 exec, 1")
        A(f"v_mov_b32 v{va}, {off}")
        A(f"v_mov_b32 v{vd}, 1")
        A(f"ds_add_u32 v{va}, v{vd}")
        A(f"s_mov_b64 exec, -1")

    def lds_wait(self, off, val, va, vd, sleep=1):
        A = self.A
        lp = A.label(); ex = A.label()
        A(f"v_mov_b32 v{va}, {off}")
        A(f"s_mov_b32 s{S_CNT}, 0")
        A.place(lp)
        A(f"ds_read_b32 v{vd}, v{va}")
        A(f"s_waitcnt lgkmcnt(0)")
        A(f"v_readfirstlane_b32 s{S_T5}, v{vd}")
        A(f"s_cmp_ge_u32 s{S_T5}, {val}")
        A(f"s_cbranch_scc1 {ex}")
        A(f"s_add_u32 s{S_CNT}, s{S_CNT}, 1")
        A(f"s_cmp_gt_u32 s{S_CNT}, {SPIN*4}")
        A(f"s_cbranch_scc1 {ex}")
        if sleep: A(f"s_sleep {sleep}")
        A(f"s_branch {lp}")
        A.place(ex)

    def allreduce2(self, a, b, ta, tb, op="v_add_f32"):
        A = self.A
        for r in (8, 4, 2, 1):
            A(f"{op}_dpp v{a}, v{a}, v{a} row_ror:{r} row_mask:0xf bank_mask:0xf")
            A(f"{op}_dpp v{b}, v{b}, v{b} row_ror:{r} row_mask:0xf bank_mask:0xf")
        for sw in ("v_permlane16_swap_b32", "v_permlane32_swap_b32"):
            A(f"v_mov_b32 v{ta}, v{a}")
            A(f"v_mov_b32 v{tb}, v{b}")
            A(f"{sw} v{a}, v{ta}")
            A(f"{sw} v{b}, v{tb}")
            A(f"{op} v{a}, v{a}, v{ta}")
            A(f"{op} v{b}, v{b}, v{tb}")

    def rnd_bf16(self, d, s):
        A = self.A
        A(f"v_cvt_pk_bf16_f32 v{d}, v{s}, v{s}")
        A(f"v_lshlrev_b32 v{d}, 16, v{d}")

    def ln_stats(self, F, D, s1, s2, t1, t2, vmb, vrs):
        A = self.A
        A(f"v_readfirstlane_b32 s{S_T4}, v{F}")
        for i in range(0, 16, 2):
            A(f"v_pk_add_f32 {vr(D+i,2)}, {vr(F+i,2)}, s[{S_T4}:{S_T4+1}] op_sel_hi:[1,0] neg_lo:[0,1] neg_hi:[0,1]")
        A(f"v_pk_add_f32 {vr(s1,2)}, {vr(D,2)}, {vr(D+2,2)}")
        A(f"v_pk_mul_f32 {vr(s2,2)}, {vr(D,2)}, {vr(D,2)}")
        A(f"v_pk_fma_f32 {vr(s2,2)}, {vr(D+2,2)}, {vr(D+2,2)}, {vr(s2,2)}")
        for i in range(4, 16, 2):
            A(f"v_pk_add_f32 {vr(s1,2)}, {vr(s1,2)}, {vr(D+i,2)}")
            A(f"v_pk_fma_f32 {vr(s2,2)}, {vr(D+i,2)}, {vr(D+i,2)}, {vr(s2,2)}")
        A(f"v_add_f32 v{s1}, v{s1}, v{s1+1}")
        A(f"v_add_f32 v{s2}, v{s2}, v{s2+1}")
        self.allreduce2(s1, s2, t1, t2)
        A(f"v_mul_f32 v{s1}, 0x3a800000, v{s1}")
        A(f"v_mul_f32 v{s2}, 0x3a800000, v{s2}")
        A(f"v_add_f32 v{vmb}, s{S_T4}, v{s1}")
        A(f"v_fma_f32 v{vrs}, -v{s1}, v{s1}, v{s2}")
        A(f"v_max_f32 v{vrs}, 0, v{vrs}")
        A(f"v_cvt_pk_bf16_f32 v{vmb}, v{vmb}, v{vrs}")
        A(f"v_and_b32 v{vrs}, 0xffff0000, v{vmb}")
        A(f"v_lshlrev_b32 v{vmb}, 16, v{vmb}")
        A(f"v_add_f32 v{vrs}, 0x3727c5ac, v{vrs}")
        self.rnd_bf16(vrs, vrs)
        A(f"v_sqrt_f32 v{vrs}, v{vrs}")
        self.rnd_bf16(vrs, vrs)
        A(f"v_rcp_f32 v{vrs}, v{vrs}")

    def ln_apply(self, d, f, vmb, vrs, t):
        A = self.A
        A(f"v_pk_add_f32 {vr(t,2)}, {vr(f,2)}, {vr(vmb,2)} op_sel_hi:[1,0] neg_lo:[0,1] neg_hi:[0,1]")
        A(f"v_cvt_pk_bf16_f32 v{t}, v{t}, v{t+1}")
        A(f"v_and_b32 v{t+1}, 0xffff0000, v{t}")
        A(f"v_lshlrev_b32 v{t}, 16, v{t}")
        A(f"v_pk_mul_f32 {vr(t,2)}, {vr(t,2)}, {vr(vrs,2)} op_sel_hi:[1,0]")
        A(f"v_cvt_pk_bf16_f32 v{d}, v{t}, v{t+1}")

    LIGHT = {0: 0, 6: 1, 7: 2, 16: 3, 8: 4, 9: 5}
    def stamp(self, idx):
        if self.stamps == "tail":
            if idx in self.LIGHT:
                j = 4 + 2 * self.LIGHT[idx]
                self.A(f"s_memrealtime s[{j}:{j+1}]")
            return
        if not self.stamps: return
        A = self.A
        A(f"s_memrealtime s[4:5]")
        A(f"s_waitcnt lgkmcnt(0)")
        A(f"s_lshl_b32 s6, s{S_WG}, 3")
        A(f"s_add_u32 s6, s6, s{S_WAVE}")
        A(f"s_lshl_b32 s6, s6, 7")
        A(f"s_add_u32 s6, s6, {WS_DBG + 0x100000 + idx*4}")
        A(f"s_mov_b64 s[8:9], exec")
        A(f"s_mov_b64 exec, 1")
        A(f"v_mov_b32 v254, s4")
        A(f"v_mov_b32 v255, 0")
        A(f"buffer_store_dword v254, v255, {srd(R_WS)}, s6 offen")
        A(f"s_mov_b64 exec, s[8:9]")

    def stampval(self, idx, sreg):
        if not self.stamps or self.stamps == "tail": return
        A = self.A
        A(f"s_lshl_b32 s6, s{S_WG}, 3")
        A(f"s_add_u32 s6, s6, s{S_WAVE}")
        A(f"s_lshl_b32 s6, s6, 7")
        A(f"s_add_u32 s6, s6, {WS_DBG + 0x100000 + idx*4}")
        A(f"s_mov_b64 s[8:9], exec")
        A(f"s_mov_b64 exec, 1")
        A(f"v_mov_b32 v254, s{sreg}")
        A(f"v_mov_b32 v255, 0")
        A(f"buffer_store_dword v254, v255, {srd(R_WS)}, s6 offen")
        A(f"s_mov_b64 exec, s[8:9]")

    def cstamp(self, idx):
        if not self.stamps or self.stamps == "tail": return
        A = self.A
        A(f"s_memtime s[10:11]")
        A(f"s_waitcnt lgkmcnt(0)")
        self.stampval(idx, 10)

    def quad_gather(self, d, src):
        A = self.A
        A(f"v_mov_b32_dpp v{d+1}, v{src} quad_perm:[1,1,1,1] row_mask:0xf bank_mask:0xf")
        A(f"v_mov_b32_dpp v{d+2}, v{src} quad_perm:[2,2,2,2] row_mask:0xf bank_mask:0xf")
        A(f"v_mov_b32_dpp v{d+3}, v{src} quad_perm:[3,3,3,3] row_mask:0xf bank_mask:0xf")
        if d != src: A(f"v_mov_b32 v{d}, v{src}")
    def even_gather(self, d, src):
        A = self.A
        A(f"v_mov_b32_dpp v{d+1}, v{src} row_shl:2 row_mask:0xf bank_mask:0xf")
        A(f"v_mov_b32_dpp v{d+2}, v{src} row_shl:4 row_mask:0xf bank_mask:0xf")
        A(f"v_mov_b32_dpp v{d+3}, v{src} row_shl:6 row_mask:0xf bank_mask:0xf")
        if d != src: A(f"v_mov_b32 v{d}, v{src}")

    def hint_add(self, off, va, vd):
        A = self.A
        A(f"v_mov_b32 v{va}, {off}")
        A(f"v_mov_b32 v{vd}, 1")
        A(f"s_mov_b64 exec, 1")
        A(f"buffer_atomic_add v{vd}, v{va}, {srd(R_WS)}, 0 offen sc1")
        A(f"s_mov_b64 exec, -1")
    def hint_wait(self, off, target, va, vd, sleep):
        A = self.A
        lp = A.label(); ex = A.label()
        A(f"s_cmp_eq_u32 s{S_WAVE}, 0")
        A(f"s_cbranch_scc0 {ex}")
        A(f"v_mov_b32 v{va}, {off}")
        A(f"s_mov_b32 s{S_CNT}, 0")
        A(f"s_mov_b64 exec, 1")
        A.place(lp)
        A(f"buffer_load_dword v{vd}, v{va}, {srd(R_WS)}, 0 offen {self.LP}")
        A("s_waitcnt vmcnt(0)")
        A(f"v_readfirstlane_b32 s{S_T5}, v{vd}")
        A(f"s_add_u32 s{S_T5}, s{S_T5}, 1")
        A(f"s_cmp_ge_u32 s{S_T5}, {target}")
        A(f"s_cbranch_scc1 {ex}")
        A(f"s_add_u32 s{S_CNT}, s{S_CNT}, 1")
        A(f"s_cmp_gt_u32 s{S_CNT}, {SPIN}")
        A(f"s_cbranch_scc1 {ex}")
        A(f"s_sleep {sleep}")
        A(f"s_branch {lp}")
        A.place(ex)
        A("s_mov_b64 exec, -1")
        A("s_barrier")

    def local_flag(self):
        A = self.A
        A(f"v_and_b32 v4, 31, v1")
        A(f"v_lshlrev_b32 v4, 5, v4")
        A(f"s_lshl_b32 s{S_T5}, s{S_B}, 2")
        A(f"s_add_u32 s{S_T5}, s{S_T5}, {LDS_XCC}")
        A(f"v_add_u32 v4, s{S_T5}, v4")
        A(f"ds_read_b32 v5, v4")
        A(f"s_waitcnt lgkmcnt(0)")
        A(f"v_readfirstlane_b32 s{S_LOC}, v5")
        A(f"v_cmp_ne_u32 vcc, s{S_LOC}, v5")
        A(f"s_cmp_eq_u64 vcc, 0")
        A(f"s_cselect_b32 s{S_LOC}, 1, 0")
        if self.nolocal: A(f"s_mov_b32 s{S_LOC}, 0")
    def store_sel(self, ins):
        A = self.A
        l1 = A.label(); l2 = A.label()
        A(f"s_cmp_eq_u32 s{S_LOC}, 1")
        A(f"s_cbranch_scc1 {l1}")
        A(f"{ins} sc0 sc1")
        A(f"s_branch {l2}")
        A.place(l1)
        A(ins)
        A.place(l2)

    def sample_wait(self, need_all, va, vd, sleep):
        A = self.A
        lp = A.label(); ex = A.label()
        A(f"s_cmp_eq_u32 s{S_WAVE}, 0")
        A(f"s_cbranch_scc0 {ex}")
        A(f"v_lshlrev_b32 v{va}, 8, v1")
        A(f"v_add_u32 v{va}, {WS_H + 7*32}, v{va}")
        A(f"s_mov_b32 s{S_CNT}, 0")
        A(f"s_mov_b64 exec, 0xff")
        A.place(lp)
        A(f"buffer_load_dword v{vd}, v{va}, {srd(R_WS)}, 0 offen {self.LP}")
        A("s_waitcnt vmcnt(0)")
        if need_all:
            A(f"v_cmp_eq_u32 vcc, -1, v{vd}")
            A(f"s_cbranch_vccz {ex}")
        else:
            A(f"v_cmp_ne_u32 vcc, -1, v{vd}")
            A(f"s_cbranch_vccnz {ex}")
        A(f"s_add_u32 s{S_CNT}, s{S_CNT}, 1")
        A(f"s_cmp_gt_u32 s{S_CNT}, 4000")
        A(f"s_cbranch_scc1 {ex}")
        A(f"s_sleep {sleep}")
        A(f"s_branch {lp}")
        A.place(ex)
        A("s_mov_b64 exec, -1")
        A("s_barrier")

    def maxred(self, tmp, regs):
        A = self.A
        rs = list(regs)
        if len(rs) == 1:
            return rs[0]
        if len(rs) == 2:
            A(f"v_max_u32 v{tmp}, v{rs[0]}, v{rs[1]}"); return tmp
        A(f"v_max3_u32 v{tmp}, v{rs[0]}, v{rs[1]}, v{rs[2]}")
        rs = rs[3:]
        while len(rs) >= 2:
            A(f"v_max3_u32 v{tmp}, v{tmp}, v{rs[0]}, v{rs[1]}")
            rs = rs[2:]
        if rs:
            A(f"v_max_u32 v{tmp}, v{tmp}, v{rs[0]}")
        return tmp

    def prepoll(self, load, reg, mask=None, sleep=4, need_all=False):
        A = self.A
        lp = A.label(); ex = A.label()
        if mask is not None:
            A(f"s_mov_b64 exec, s[{mask}:{mask+1}]")
        A(f"s_mov_b32 s{S_CNT}, 0")
        A.place(lp)
        A(load)
        A("s_waitcnt vmcnt(0)")
        if need_all:
            A(f"v_cmp_eq_u32 vcc, -1, v{reg}")
            A(f"s_cbranch_vccz {ex}")
        else:
            A(f"v_cmp_ne_u32 vcc, -1, v{reg}")
            A(f"s_cbranch_vccnz {ex}")
        A(f"s_add_u32 s{S_CNT}, s{S_CNT}, 1")
        A(f"s_cmp_gt_u32 s{S_CNT}, {SPIN}")
        A(f"s_cbranch_scc1 {ex}")
        A(f"s_sleep {sleep}")
        A(f"s_branch {lp}")
        A.place(ex)
        A(f"s_mov_b64 exec, -1")
        self.stamp(16)

    def poll_groups(self, groups, tmp, mask=None, sleep=0):
        A = self.A
        G = len(groups)
        lp = A.label(); ex = A.label()
        for g in range(G):
            m = S_PM + 2 * g
            if mask is None: A(f"s_mov_b64 s[{m}:{m+1}], -1")
            else: A(f"s_mov_b64 s[{m}:{m+1}], s[{mask}:{mask+1}]")
        A(f"s_mov_b32 s{S_CNT}, 0")
        A.place(lp)
        for g, (loads, regs) in enumerate(groups):
            m = S_PM + 2 * g
            sk = A.label()
            A(f"s_mov_b64 exec, s[{m}:{m+1}]")
            if G > 1: A(f"s_cbranch_execz {sk}")
            for l in loads: A(l)
            if G > 1: A.place(sk)
        A("s_waitcnt vmcnt(0)")
        for g, (loads, regs) in enumerate(groups):
            m = S_PM + 2 * g
            A(f"s_mov_b64 exec, s[{m}:{m+1}]")
            t = self.maxred(tmp, regs)
            A(f"v_cmp_eq_u32_e64 s[{m}:{m+1}], -1, v{t}")
        if G == 1:
            A(f"s_cmp_eq_u64 s[{S_PM}:{S_PM+1}], 0")
        else:
            A(f"s_or_b64 s[{S_EX}:{S_EX+1}], s[{S_PM}:{S_PM+1}], s[{S_PM+2}:{S_PM+3}]")
            for g in range(2, G):
                m = S_PM + 2 * g
                A(f"s_or_b64 s[{S_EX}:{S_EX+1}], s[{S_EX}:{S_EX+1}], s[{m}:{m+1}]")
            A(f"s_cmp_eq_u64 s[{S_EX}:{S_EX+1}], 0")
        A(f"s_cbranch_scc1 {ex}")
        A(f"s_add_u32 s{S_CNT}, s{S_CNT}, 1")
        if sleep: A(f"s_sleep {sleep}")
        A(f"s_cmp_gt_u32 s{S_CNT}, {SPIN}")
        A(f"s_cbranch_scc0 {lp}")
        A.place(ex)
        A(f"s_mov_b64 exec, -1")

    def poll_pipe(self, loads, regs, tmp, mask=None, depth=4, sleep=2):
        A = self.A
        n = len(loads)
        lp = A.label(); ex = A.label()
        for r in regs:
            A(f"v_mov_b32 v{r}, -1")
        if mask is not None:
            A(f"s_mov_b64 exec, s[{mask}:{mask+1}]")
        A(f"s_mov_b32 s{S_CNT}, 0")
        A.place(lp)
        for l in loads: A(l)
        if sleep: A(f"s_sleep {sleep}")
        A(f"s_waitcnt vmcnt({(depth-1)*n})")
        t = self.maxred(tmp, regs)
        A(f"v_cmp_eq_u32 vcc, -1, v{t}")
        A(f"s_cbranch_vccz {ex}")
        A(f"s_mov_b64 exec, vcc")
        A(f"s_add_u32 s{S_CNT}, s{S_CNT}, 1")
        A(f"s_cmp_gt_u32 s{S_CNT}, {SPIN}")
        A(f"s_cbranch_scc0 {lp}")
        A.place(ex)
        A(f"s_mov_b64 exec, -1")

    def role_params(self):
        A = self.A
        lG, lD, lN, lE = A.label(), A.label(), A.label(), A.label()
        A(f"""
        s_mov_b32 s{S_JJ}, 999
        s_mov_b32 s{S_JA}, 0
        s_cmp_ge_u32 s{S_H}, 8
        s_cbranch_scc1 {lG}
        s_mov_b32 s{S_ROLE}, 0
        s_mov_b32 s{S_PITCH}, 2048
        s_mov_b32 s{S_NJ}, 32
        s_lshr_b32 s{S_T0}, s{S_H}, 1
        s_lshl_b32 s{S_T0}, s{S_T0}, 21
        s_and_b32 s{S_T1}, s{S_H}, 1
        s_lshl_b32 s{S_T2}, s{S_B}, 1
        s_add_u32 s{S_T1}, s{S_T1}, s{S_T2}
        s_lshl_b32 s{S_T1}, s{S_T1}, 7
        s_add_u32 s{S_T0}, s{S_T0}, s{S_T1}
        s_add_u32 s{R_WT}, s{S_WO}, s{S_T0}
        s_addc_u32 s{R_WT+1}, s{S_WO+1}, 0
        s_sub_u32 s{R_WT+2}, {8<<20}, s{S_T0}
        s_branch {lE}
        """)
        A.place(lG)
        A(f"""
        s_cmp_ge_u32 s{S_H}, 22
        s_cbranch_scc1 {lD}
        s_mov_b32 s{S_ROLE}, 1
        s_mov_b32 s{S_PITCH}, 7168
        s_mov_b32 s{S_NJ}, 32
        s_sub_u32 s{S_T0}, s{S_H}, 8
        s_lshr_b32 s{S_T1}, s{S_T0}, 1
        s_mul_i32 s{S_T2}, s{S_B}, 7
        s_add_u32 s{S_T1}, s{S_T1}, s{S_T2}
        s_lshl_b32 s{S_T1}, s{S_T1}, 7
        s_bitcmp1_b32 s{S_T0}, 0
        s_cselect_b32 s{S_T2}, s{S_WU}, s{S_WG_}
        s_cselect_b32 s{S_T3}, s{S_WU+1}, s{S_WG_+1}
        s_add_u32 s{R_WT}, s{S_T2}, s{S_T1}
        s_addc_u32 s{R_WT+1}, s{S_T3}, 0
        s_sub_u32 s{R_WT+2}, {7340032}, s{S_T1}
        s_branch {lE}
        """)
        A.place(lD)
        A(f"""
        s_cmp_ge_u32 s{S_H}, 30
        s_cbranch_scc1 {lN}
        s_mov_b32 s{S_ROLE}, 2
        s_mov_b32 s{S_PITCH}, 2048
        s_mov_b32 s{S_NJ}, 28
        s_mov_b32 s{S_JJ}, 14
        s_mov_b32 s{S_JA}, {(128 - 448*2048) & 0xffffffff}
        s_mul_i32 s{S_T1}, s{S_B}, {448*2048}
        s_sub_u32 s{S_T0}, s{S_H}, 22
        s_lshl_b32 s{S_T0}, s{S_T0}, 8
        s_add_u32 s{S_T0}, s{S_T0}, s{S_T1}
        s_add_u32 s{R_WT}, s{S_WD}, s{S_T0}
        s_addc_u32 s{R_WT+1}, s{S_WD+1}, 0
        s_sub_u32 s{R_WT+2}, {7340032}, s{S_T0}
        s_branch {lE}
        """)
        A.place(lN)
        A(f"""
        s_mov_b32 s{S_ROLE}, 3
        s_mov_b32 s{S_PITCH}, 2048
        s_mov_b32 s{S_NJ}, 0
        s_mov_b32 s{R_WT}, s{S_WD}
        s_mov_b32 s{R_WT+1}, s{S_WD+1}
        s_mov_b32 s{R_WT+2}, 0
        """)
        A.place(lE)
        A(f"s_mov_b32 s{R_WT+3}, 0x20000")

    def entry(self):
        A = self.A
        A.header(256, 512, LDS_BYTES, comments=[
            "Fused decode layer: preLN + MHA over KV cache + out-proj + preLN + GEGLU FFN (one persistent launch, 256 WGs x 512).",
        ])
        A(f"""
        s_cmp_ge_u32 s2, 256
        s_cbranch_scc1 L_end
        s_load_dwordx16 s[16:31], s[0:1], 0
        s_load_dwordx8 s[32:39], s[0:1], 64
        v_and_b32 v1, 63, v0
        v_lshrrev_b32 v4, 6, v0
        v_lshlrev_b32 v2, 4, v1
        v_readfirstlane_b32 s{S_WAVE}, v4
        v_lshlrev_b32 v3, 2, v1
        s_lshr_b32 s{S_H}, s2, 3
        s_and_b32 s{S_B}, s2, 7
        s_mov_b32 s{S_M1}, 0x22222222
        s_mov_b32 s{S_M1+1}, 0x22222222
        s_mov_b32 s{S_M2}, 0x44444444
        s_mov_b32 s{S_M2+1}, 0x44444444
        s_mov_b32 s{S_M3}, 0x88888888
        s_mov_b32 s{S_M3+1}, 0x88888888
        s_mov_b32 s{S_MJ8}, 0x00ff00ff
        s_mov_b32 s{S_MJ8+1}, 0x00ff00ff
        s_mov_b32 s{S_MQ}, 0x11111111
        s_mov_b32 s{S_MQ+1}, 0x11111111
        s_mov_b32 s{S_ME}, 0x01010101
        s_mov_b32 s{S_ME+1}, 0x01010101
        v_mov_b32 v4, {LDS_CNT}
        v_mov_b32 v6, 0
        v_mov_b32 v7, 0
        ds_write_b64 v4, v[6:7]
        ds_write_b64 v4, v[6:7] offset:8
        s_and_b32 s{S_SW}, s{S_WAVE}, 3
        s_mov_b64 s[4:5], 0
        s_mov_b64 s[6:7], 0
        s_mov_b64 s[8:9], 0
        s_mov_b64 s[10:11], 0
        s_mov_b64 s[12:13], 0
        s_mov_b64 s[14:15], 0
        s_cmp_ge_u32 s{S_WAVE}, 4
        s_cbranch_scc1 L_stream
        """)

    def service(self):
        A = self.A
        A.c("==== service waves: LN(x), q partial, exchange ====")
        A(f"""
        v_lshrrev_b32 v4, 4, v1
        v_and_b32 v5, 15, v1
        s_lshr_b32 s{S_T0}, s{S_SW}, 1
        s_lshl_b32 s{S_T0}, s{S_T0}, 2
        v_or_b32 v6, s{S_T0}, v4
        v_lshlrev_b32 v6, 1, v6
        v_xor_b32 v6, v6, v5
        v_lshlrev_b32 v6, 4, v6
        v_lshlrev_b32 v7, 13, v4
        v_add_u32 v6, v6, v7
        s_lshl_b32 s{S_T0}, s{S_B}, 20
        s_lshl_b32 s{S_T1}, s{S_SW}, 15
        s_add_u32 s{S_T0}, s{S_T0}, s{S_T1}
        s_lshl_b32 s{S_T1}, s{S_H}, 8
        s_add_u32 s{S_T0}, s{S_T0}, s{S_T1}
        s_lshl_b32 s{S_T1}, s{S_SW}, 10
        s_add_u32 s{S_T1}, s{S_T1}, {LDS_WQ}
        s_lshl_b32 s{S_T2}, s{S_SW}, 12
        v_mov_b32 v126, 0
        s_mov_b32 s{S_T3}, {WS_EPOCH}
        s_waitcnt lgkmcnt(0)
        """)
        self.mk_srd(R_X, S_X, 16384)
        A(f"buffer_load_dwordx4 v[8:11], v2, {srd(R_X)}, s{S_T2} offen")
        A(f"buffer_load_dwordx4 v[12:15], v2, {srd(R_X)}, s{S_T2} offen offset:1024")
        A(f"buffer_load_dwordx4 v[16:19], v2, {srd(R_X)}, s{S_T2} offen offset:2048")
        A(f"buffer_load_dwordx4 v[20:23], v2, {srd(R_X)}, s{S_T2} offen offset:3072")
        self.mk_srd(R_WQ, S_WQ, 8 << 20)
        for j in range(8):
            A(f"s_mov_b32 m0, s{S_T1}")
            A(f"s_add_u32 s{S_T1}, s{S_T1}, 4096")
            A(f"buffer_load_dwordx4 v6, {srd(R_WQ)}, s{S_T0} offen {self.WP} lds")
            if j < 7:
                A(f"s_add_u32 s{S_T0}, s{S_T0}, {4*32768}")
        self.mk_srd(R_WS, S_WS, WS_SIZE)
        A(f"buffer_load_dword v126, v126, {srd(R_WS)}, s{S_T3} offen {self.LP}")
        A("s_barrier")
        self.stamp(0)
        if self.stamps and self.stamps != "tail":
            A("s_getreg_b32 s10, hwreg(HW_REG_XCC_ID)")
            self.stampval(31, 10)
        A(f"""
        v_mov_b32 v24, -1
        v_mov_b32 v25, -1
        v_mov_b32 v26, -1
        v_mov_b32 v27, -1
        s_lshl_b32 s{S_T0}, s2, 12
        s_lshl_b32 s{S_T1}, s{S_SW}, 10
        s_add_u32 s{S_T0}, s{S_T0}, s{S_T1}
        s_add_u32 s{S_T0}, s{S_T0}, {WS_SLOT}
        buffer_store_dwordx4 v[24:27], v2, {srd(R_WS)}, s{S_T0} offen sc0 sc1
        """)
        nst = 2 if (self.stamps and self.stamps != 'tail') else 0
        self.role_params()
        A(f"s_waitcnt vmcnt({10 + nst})")
        self.stamp(10)
        F, D = 32, 48
        S1, S2, T1, T2, VMB, VRS = 64, 66, 68, 69, 70, 72
        for r in range(2):
            base = 8 + 8 * r
            for i in range(8):
                A(f"v_lshlrev_b32 v{F+2*i}, 16, v{base+i}")
                A(f"v_and_b32 v{F+2*i+1}, 0xffff0000, v{base+i}")
            self.ln_stats(F, D, S1, S2, T1, T2, VMB, VRS)
            lab = A.label()
            A(f"s_cmp_lt_u32 s{S_B}, 4")
            A(f"s_cbranch_scc1 {lab}")
            for i in range(0, 8, 2):
                A(f"v_pk_mov_b32 {vr(F+i,2)}, {vr(F+8+i,2)}, {vr(F+8+i,2)} op_sel:[0,1]")
            A.place(lab)
            for i in range(4):
                self.ln_apply(76 + i, F + 2*i, VMB, VRS, 74)
            A(f"""
            s_and_b32 s{S_T0}, s{S_B}, 3
            s_lshl_b32 s{S_T0}, s{S_T0}, 4
            s_mov_b64 s[{S_EX}:{S_EX+1}], 0xffff
            s_lshl_b64 s[{S_EX}:{S_EX+1}], s[{S_EX}:{S_EX+1}], s{S_T0}
            s_lshl_b32 s{S_T1}, s{S_SW}, 1
            s_add_u32 s{S_T1}, s{S_T1}, {r}
            s_mul_i32 s{S_T1}, s{S_T1}, 272
            s_add_u32 s{S_T1}, s{S_T1}, {LDS_XN}
            v_and_b32 v80, 15, v1
            v_lshlrev_b32 v80, 4, v80
            v_add_u32 v80, s{S_T1}, v80
            s_mov_b64 exec, s[{S_EX}:{S_EX+1}]
            ds_write_b128 v80, v[76:79]
            s_mov_b64 exec, -1
            """)
        self.stamp(12)
        A(f"""
        v_and_b32 v58, 7, v1
        v_mul_u32_u24 v58, 272, v58
        v_lshrrev_b32 v59, 4, v1
        v_lshlrev_b32 v60, 4, v59
        v_add_u32 v58, v58, v60
        v_add_u32 v58, {LDS_XN}, v58
        v_and_b32 v60, 15, v1
        v_lshrrev_b32 v61, 2, v60
        v_and_b32 v62, 3, v60
        v_and_b32 v63, 1, v59
        v_lshlrev_b32 v63, 2, v63
        v_or_b32 v63, v63, v61
        v_lshlrev_b32 v80, 3, v59
        v_add_u32 v80, v80, v61
        v_lshlrev_b32 v80, 8, v80
        v_lshlrev_b32 v62, 3, v62
        v_add_u32 v80, v80, v62
        v_add_u32 v80, {LDS_WQ}, v80
        s_lshl_b32 s{S_T0}, s{S_SW}, 1
        v_xor_b32 v81, s{S_T0}, v63
        v_lshlrev_b32 v81, 5, v81
        v_add_u32 v81, v81, v80
        s_add_u32 s{S_T0}, s{S_T0}, 1
        v_xor_b32 v82, s{S_T0}, v63
        v_lshlrev_b32 v82, 5, v82
        v_add_u32 v82, v82, v80
        v_and_b32 v56, 15, v1
        v_lshlrev_b32 v56, 12, v56
        v_lshlrev_b32 v60, 4, v59
        v_add_u32 v56, v56, v60
        """)
        A(f"s_waitcnt vmcnt({2 + 2*nst}) lgkmcnt(0)")
        self.stamp(13)
        self.lds_signal(LDS_CNT + 0, 124, 125)
        self.lds_wait(LDS_CNT + 0, 4, 124, 125, sleep=0)
        for s in range(4):
            A(f"ds_read_b128 {vr(64+4*s,4)}, v58 offset:{s*64}")
        for c in range(2):
            for s in range(4):
                r = 84 + (c * 4 + s) * 4
                A(f"ds_read_b64_tr_b16 {vr(r,2)}, v{81+c} offset:{s*8192}")
                A(f"ds_read_b64_tr_b16 {vr(r+2,2)}, v{81+c} offset:{s*8192+1024}")
        A(f"""
        s_lshl_b32 s{S_T0}, s{S_H}, 15
        s_lshl_b32 s{S_T1}, s{S_B}, 9
        s_add_u32 s{S_T0}, s{S_T0}, s{S_T1}
        s_lshl_b32 s{S_T1}, s{S_SW}, 7
        s_add_u32 s{S_T0}, s{S_T0}, s{S_T1}
        s_waitcnt lgkmcnt(0)
        """)
        for s in range(4):
            for c in range(2):
                r = 84 + (c * 4 + s) * 4
                acc = 116 + 4 * c
                src = "0" if s == 0 else vr(acc, 4)
                A(f"v_mfma_f32_16x16x32_bf16 {vr(acc,4)}, {vr(r,4)}, {vr(64+4*s,4)}, {src}")
        self.lds_signal(LDS_CNT + 4, 124, 125)
        A(f"""
        s_mov_b64 exec, s[{S_MJ8}:{S_MJ8+1}]
        buffer_store_dwordx4 v[116:119], v56, {srd(R_WS)}, s{S_T0} offen sc0 sc1
        buffer_store_dwordx4 v[120:123], v56, {srd(R_WS)}, s{S_T0} offen offset:64 sc0 sc1
        s_mov_b64 exec, -1
        s_lshl_b32 s{S_T0}, s{S_H}, 7
        s_add_u32 s{S_T0}, s{S_T0}, {WS_FLAG}
        s_lshl_b32 s{S_T1}, s{S_B}, 4
        s_lshl_b32 s{S_T2}, s{S_SW}, 2
        s_add_u32 s{S_T1}, s{S_T1}, s{S_T2}
        s_getreg_b32 s{S_XCC}, hwreg(HW_REG_XCC_ID)
        s_and_b32 s{S_XCC}, s{S_XCC}, 7
        s_lshl_b32 s{S_XCC}, s{S_XCC}, 24
        v_mov_b32 v58, s{S_T1}
        s_waitcnt vmcnt(0)
        v_readfirstlane_b32 s{S_TAG}, v126
        s_add_u32 s{S_TAG}, s{S_TAG}, 1
        s_add_u32 s{S_XCC}, s{S_XCC}, s{S_TAG}
        v_mov_b32 v59, s{S_XCC}
        s_mov_b64 exec, 1
        buffer_store_dword v59, v58, {srd(R_WS)}, s{S_T0} offen sc0 sc1
        s_mov_b64 exec, -1
        """)
        self.stamp(1)
        A(f"s_cmp_eq_u32 s{S_SW}, 0")
        A(f"s_cbranch_scc0 L_svc_done")
        lp = A.label(); ex = A.label()
        A(f"s_mov_b64 exec, 0xffffffff")
        A(f"s_mov_b32 s{S_CNT}, 0")
        A.place(lp)
        A(f"""
        buffer_load_dword v60, v3, {srd(R_WS)}, s{S_T0} offen {self.LP}
        s_waitcnt vmcnt(0)
        v_subrev_u32 v60, s{S_TAG}, v60
        v_and_b32 v60, 0xf8ffffff, v60
        v_cmp_ne_u32 vcc, 0, v60
        s_cbranch_vccz {ex}
        s_add_u32 s{S_CNT}, s{S_CNT}, 1
        s_cmp_gt_u32 s{S_CNT}, {SPIN}
        s_cbranch_scc0 {lp}
        """)
        A.place(ex)
        A("s_mov_b64 exec, -1")
        self.stamp(11)
        A(f"s_lshl_b32 s{S_T0}, s2, 12")
        for j in range(4):
            A(f"buffer_load_dwordx4 {vr(64+4*j,4)}, v2, {srd(R_WS)}, s{S_T0} offen offset:{j*1024} {self.LP}")
        A(f"""
        v_and_b32 v58, 31, v1
        v_lshlrev_b32 v58, 3, v58
        v_add_u32 v58, {LDS_Q}, v58
        s_waitcnt vmcnt(0)
        """)
        for e in range(0, 4, 2):
            A(f"v_pk_add_f32 {vr(64+e,2)}, {vr(64+e,2)}, {vr(68+e,2)}")
            A(f"v_pk_add_f32 {vr(72+e,2)}, {vr(72+e,2)}, {vr(76+e,2)}")
        for e in range(0, 4, 2):
            A(f"v_pk_add_f32 {vr(64+e,2)}, {vr(64+e,2)}, {vr(72+e,2)}")
        for e in range(4):
            A(f"v_mov_b32 v{68+e}, v{64+e}")
        for e in range(4):
            A(f"v_permlane32_swap_b32 v{64+e}, v{68+e}")
        for e in range(0, 4, 2):
            A(f"v_pk_add_f32 {vr(64+e,2)}, {vr(64+e,2)}, {vr(68+e,2)}")
        A(f"""
        v_cvt_pk_bf16_f32 v64, v64, v65
        v_cvt_pk_bf16_f32 v65, v66, v67
        ds_write_b64 v58, v[64:65]
        s_waitcnt lgkmcnt(0)
        """)
        self.lds_signal(LDS_CNT + 12, 124, 125)
        self.stamp(2)
        if self.debug:
            A(f"""
            v_and_b32 v58, 31, v1
            v_lshlrev_b32 v58, 3, v58
            s_lshl_b32 s{S_T0}, s2, 8
            s_add_u32 s{S_T0}, s{S_T0}, {WS_DBG}
            buffer_store_dwordx2 v[64:65], v58, {srd(R_WS)}, s{S_T0} offen
            """)
        lp = A.label(); ex = A.label()
        A(f"s_mov_b32 s{S_T0}, {WS_FLAG}")
        A(f"s_mov_b32 s{S_CNT}, 0")
        A.place(lp)
        for j in range(4):
            A(f"buffer_load_dwordx4 {vr(64+4*j,4)}, v2, {srd(R_WS)}, s{S_T0} offen offset:{j*1024} {self.LP}")
        A("s_waitcnt vmcnt(0)")
        for i in range(16):
            A(f"v_subrev_u32 v{64+i}, s{S_TAG}, v{64+i}")
        for i in range(16):
            A(f"v_and_b32 v{80+i}, 0xf8ffffff, v{64+i}")
        t = self.maxred(60, range(80, 96))
        A(f"""
        v_cmp_ne_u32 vcc, 0, v{t}
        s_cbranch_vccz {ex}
        s_add_u32 s{S_CNT}, s{S_CNT}, 1
        s_cmp_gt_u32 s{S_CNT}, {SPIN}
        s_cbranch_scc1 {ex}
        s_sleep 16
        s_branch {lp}
        """)
        A.place(ex)
        A(f"v_add_u32 v60, {LDS_XCC}, v3")
        for t in range(4):
            A(f"ds_write_b32 v60, v{64+4*t} offset:{t*256}")
        A("s_waitcnt lgkmcnt(0)")
        A.place("L_svc_done")
        A("s_barrier")
        A("s_barrier")
        A("s_branch L_join3")

    RING = 64
    R = 32
    QF = 8
    def slot(self, t): return self.RING + 4 * (t % self.R)
    def issue(self, t, which):
        A = self.A
        r = self.slot(t)
        A(f"buffer_load_dwordx4 {vr(r,4)}, v2, {srd(R_K if which == 'K' else R_V)}, s{S_OFF} offen {self.KP if which == 'K' else self.VP}")
        A(f"s_add_u32 s{S_OFF}, s{S_OFF}, 4096")

    def k_block(self, t0, plan):
        A = self.A
        q = self.QF
        ACC = [12, 13, 14, 15]; B0, B1 = 16, 17; E = [18, 19, 20, 21]; M = 22
        MX = 24; SA = 25
        def reduce_group(c):
            a0, a1, a2, a3 = ACC
            e = E[c]
            A(f"v_add_f32_dpp v{B0}, v{a0}, v{a0} row_ror:8 row_mask:0xf bank_mask:0x3")
            A(f"v_add_f32_dpp v{B1}, v{a2}, v{a2} row_ror:8 row_mask:0xf bank_mask:0x3")
            A(f"v_add_f32_dpp v{B0}, v{a1}, v{a1} row_ror:8 row_mask:0xf bank_mask:0xc")
            A(f"v_add_f32_dpp v{B1}, v{a3}, v{a3} row_ror:8 row_mask:0xf bank_mask:0xc")
            A(f"v_add_f32_dpp v{e}, v{B0}, v{B0} row_half_mirror row_mask:0xf bank_mask:0x5")
            A(f"v_add_f32_dpp v{e}, v{B1}, v{B1} row_half_mirror row_mask:0xf bank_mask:0xa")
            A(f"v_add_f32_dpp v{e}, v{e}, v{e} quad_perm:[1,0,3,2] row_mask:0xf bank_mask:0xf")
            A(f"v_add_f32_dpp v{e}, v{e}, v{e} quad_perm:[2,3,0,1] row_mask:0xf bank_mask:0xf")
        for t in range(16):
            cnt, iss = plan(t0 + t)
            A(f"s_waitcnt vmcnt({cnt})")
            if iss is not None:
                if iss[1] == 'V' and iss[0] == 0:
                    A(f"s_lshl_b32 s{S_OFF}, s{S_SW}, 10")
                self.issue(iss[0], iss[1])
            r = self.slot(t0 + t)
            a = ACC[t % 4]
            A(f"v_dot2_f32_bf16 v{a}, v{r}, v{q}, 0")
            A(f"v_dot2_f32_bf16 v{a}, v{r+1}, v{q+1}, v{a}")
            A(f"v_dot2_f32_bf16 v{a}, v{r+2}, v{q+2}, v{a}")
            A(f"v_dot2_f32_bf16 v{a}, v{r+3}, v{q+3}, v{a}")
            if t % 4 == 3:
                reduce_group(t // 4)
        A(f"v_cndmask_b32 v{M}, v{E[0]}, v{E[1]}, s[{S_M1}:{S_M1+1}]")
        A(f"v_cndmask_b32 v{M}, v{M}, v{E[2]}, s[{S_M2}:{S_M2+1}]")
        A(f"v_cndmask_b32 v{M}, v{M}, v{E[3]}, s[{S_M3}:{S_M3+1}]")
        self.rnd_bf16(M, M)
        A(f"v_mul_f32 v{M}, 0x3db504f3, v{M}")
        self.rnd_bf16(M, M)
        A(f"ds_write_b32 v{SA}, v{M}")
        A(f"v_max_f32 v{MX}, v{MX}, v{M}")
        A(f"v_add_u32 v{SA}, 256, v{SA}")

    def v_block(self, t0, plan, last=False):
        A = self.A
        P, PN, PA = 12, 13, 14
        MK = [16, 17, 18, 19]
        BS = [[20, 21, 22, 23], [24, 25, 26, 27]]
        ACC = 28
        A(f"s_waitcnt lgkmcnt(0)")
        A(f"v_mov_b32 v{P}, v{PN}")
        if not last:
            A(f"ds_read_b32 v{PN}, v{PA}")
            A(f"v_add_u32 v{PA}, 256, v{PA}")
        for t in range(16):
            cnt, iss = plan(t0 + t)
            A(f"s_waitcnt vmcnt({cnt})")
            if iss is not None:
                self.issue(iss[0], iss[1])
            B = BS[t % 2]
            for j in range(4):
                A(f"v_and_b32_dpp v{B[j]}, v{P}, v{MK[j]} row_newbcast:{t} row_mask:0xf bank_mask:0xf")
            r = self.slot(t0 + t)
            A(f"v_mfma_f32_16x16x32_bf16 {vr(ACC,4)}, {vr(r,4)}, {vr(B[0],4)}, {vr(ACC,4)}")

    def stream(self):
        A = self.A
        N, NP, PV, R = self.N, self.NP, self.PV, self.R
        A.place("L_stream")
        A.c("==== stream waves ====")
        A(f"""
        v_lshrrev_b32 v4, 3, v1
        v_and_b32 v5, 7, v1
        v_lshrrev_b32 v6, 4, v1
        v_and_b32 v6, 1, v6
        v_lshlrev_b32 v6, 1, v6
        v_xor_b32 v5, v5, v6
        s_and_b32 s{S_T0}, s{S_SW}, 1
        s_lshl_b32 s{S_T0}, s{S_T0}, 2
        v_xor_b32 v5, s{S_T0}, v5
        v_lshlrev_b32 v5, 4, v5
        s_waitcnt lgkmcnt(0)
        """)
        self.mk_srd(R_WS, S_WS, WS_SIZE)
        self.role_params()
        A(f"""
        s_lshl_b32 s{S_T0}, s{S_B}, 5
        s_add_u32 s{S_T0}, s{S_T0}, s{S_H}
        s_lshl_b32 s{S_T0}, s{S_T0}, 20
        """)
        self.mk_srd(R_K, S_K, 1 << 20, f"s{S_T0}")
        self.mk_srd(R_V, S_V, 1 << 20, f"s{S_T0}")
        A(f"""
        v_mul_lo_u32 v4, v4, s{S_PITCH}
        v_add_u32 v4, v4, v5
        s_lshl_b32 s{S_T0}, s{S_PITCH}, 3
        s_mul_i32 s{S_T1}, s{S_T0}, s{S_SW}
        s_lshl_b32 s{S_T0}, s{S_T0}, 2
        s_lshl_b32 s{S_T2}, s{S_SW}, 10
        s_mov_b32 s{S_T3}, 0
        s_barrier
        """)
        self.stamp(0)
        if self.stamps and self.stamps != "tail":
            A("s_getreg_b32 s4, hwreg(HW_REG_XCC_ID)")
            A(f"s_lshl_b32 s6, s{S_WG}, 3")
            A(f"s_add_u32 s6, s6, s{S_WAVE}")
            A(f"s_lshl_b32 s6, s6, 7")
            A(f"s_add_u32 s6, s6, {WS_DBG + 0x100000 + 31*4}")
            A(f"s_mov_b64 exec, 1")
            A(f"v_mov_b32 v254, s4")
            A(f"v_mov_b32 v255, 0")
            A(f"buffer_store_dword v254, v255, {srd(R_WS)}, s6 offen")
            A(f"s_mov_b64 exec, -1")
        lp1, lp2, ld = A.label(), A.label(), A.label()
        A(f"s_cmp_eq_u32 s{S_NJ}, 0")
        A(f"s_cbranch_scc1 {ld}")
        A.place(lp1)
        A(f"""
        s_mov_b32 m0, s{S_T2}
        s_waitcnt vmcnt({NP-1})
        buffer_load_dwordx4 v4, {srd(R_WT)}, s{S_T1} offen {self.WP} lds
        s_add_u32 s{S_T1}, s{S_T1}, s{S_T0}
        s_add_u32 s{S_T2}, s{S_T2}, 4096
        s_add_u32 s{S_T3}, s{S_T3}, 1
        s_cmp_eq_u32 s{S_T3}, s{S_JJ}
        s_cselect_b32 s{S_T4}, s{S_JA}, 0
        s_add_u32 s{S_T1}, s{S_T1}, s{S_T4}
        s_cmp_lt_u32 s{S_T3}, 24
        s_cbranch_scc1 {lp1}
        """)
        A.place(ld)
        A(f"s_lshl_b32 s{S_OFF}, s{S_SW}, 10")
        for t in range(R):
            A(f"s_waitcnt vmcnt({NP-1})")
            self.issue(t, 'K')
        self.stamp(15)
        ld2 = A.label()
        A(f"s_cmp_eq_u32 s{S_NJ}, 0")
        A(f"s_cbranch_scc1 {ld2}")
        self.lds_wait(LDS_CNT + 4, 4, 6, 7)
        A.place(lp2)
        A(f"""
        s_mov_b32 m0, s{S_T2}
        s_waitcnt vmcnt({NP-1})
        buffer_load_dwordx4 v4, {srd(R_WT)}, s{S_T1} offen {self.WP} lds
        s_add_u32 s{S_T1}, s{S_T1}, s{S_T0}
        s_add_u32 s{S_T2}, s{S_T2}, 4096
        s_add_u32 s{S_T3}, s{S_T3}, 1
        s_cmp_eq_u32 s{S_T3}, s{S_JJ}
        s_cselect_b32 s{S_T4}, s{S_JA}, 0
        s_add_u32 s{S_T1}, s{S_T1}, s{S_T4}
        s_cmp_lt_u32 s{S_T3}, s{S_NJ}
        s_cbranch_scc1 {lp2}
        """)
        A.place(ld2)
        self.stamp(14)
        self.lds_wait(LDS_CNT + 12, 1, 6, 7)
        self.stamp(3)
        self.cstamp(20)
        A(f"""
        v_and_b32 v6, 15, v1
        v_lshlrev_b32 v6, 4, v6
        v_add_u32 v6, {LDS_Q}, v6
        ds_read_b128 v[8:11], v6
        v_mov_b32 v24, 0xff800000
        v_and_b32 v6, 3, v1
        v_lshlrev_b32 v6, 2, v6
        v_bfe_u32 v7, v1, 2, 1
        v_lshlrev_b32 v7, 1, v7
        v_bfe_u32 v5, v1, 3, 1
        v_or_b32 v7, v7, v5
        v_add_u32 v6, v6, v7
        v_and_b32 v7, 48, v1
        v_add_u32 v6, v6, v7
        v_lshlrev_b32 v6, 2, v6
        s_lshl_b32 s{S_T0}, s{S_SW}, 12
        s_add_u32 s{S_T0}, s{S_T0}, {LDS_SC}
        v_add_u32 v25, s{S_T0}, v6
        s_waitcnt lgkmcnt(0)
        """)
        def plan_first(t):
            if t < R - N: return (R - 1 - t, None)
            return (N - 1, (t + N, 'K'))
        def plan_mid(t): return (N - 1, (t + N, 'K'))
        def plan_klast(t):
            if t + N < 256: return (N - 1, (t + N, 'K'))
            return (N - 1, (t + N - 256, 'V'))
        self.k_block(0, plan_first)
        self.k_block(16, plan_first)
        lp = A.label()
        A(f"s_mov_b32 s{S_T3}, 0")
        A.place(lp)
        self.k_block(32, plan_mid)
        self.k_block(48, plan_mid)
        A(f"s_add_u32 s{S_T3}, s{S_T3}, 1")
        A(f"s_cmp_lt_u32 s{S_T3}, 6")
        A(f"s_cbranch_scc1 {lp}")
        self.k_block(224, plan_mid)
        self.k_block(240, plan_klast)
        for t in range(N, PV):
            self.issue(t, 'V')
        self.stamp(4)
        MX, T = 24, 23
        for r in (8, 4, 2, 1):
            A(f"v_max_f32_dpp v{MX}, v{MX}, v{MX} row_ror:{r} row_mask:0xf bank_mask:0xf")
        A(f"""
        v_lshrrev_b32 v6, 4, v1
        v_lshlrev_b32 v6, 2, v6
        s_lshl_b32 s{S_T0}, s{S_SW}, 4
        v_add_u32 v6, s{S_T0}, v6
        v_add_u32 v7, {LDS_WM}, v6
        ds_write_b32 v7, v{MX}
        s_lshl_b32 s{S_T0}, s{S_SW}, 12
        s_add_u32 s{S_T0}, s{S_T0}, {LDS_SC}
        v_add_u32 v14, s{S_T0}, v3
        s_waitcnt lgkmcnt(0)
        """)
        for i in range(16):
            A(f"ds_read_b32 v{48+i}, v14 offset:{i*256}")
        A(f"""
        s_barrier
        v_mov_b32 v7, {LDS_WM}
        ds_read_b128 v[32:35], v7
        ds_read_b128 v[36:39], v7 offset:16
        ds_read_b128 v[40:43], v7 offset:32
        ds_read_b128 v[44:47], v7 offset:48
        s_mov_b32 s{S_T1}, 0x3fb8aa3b
        s_waitcnt lgkmcnt(0)
        """)
        A(f"v_max3_f32 v{MX}, v32, v33, v34")
        for i in range(35, 47, 2):
            A(f"v_max3_f32 v{MX}, v{MX}, v{i}, v{i+1}")
        A(f"v_max_f32 v{MX}, v{MX}, v47")
        for i in range(16):
            A(f"v_sub_f32 v{48+i}, v{48+i}, v{MX}")
        for i in range(16):
            A(f"v_mul_f32 v{48+i}, s{S_T1}, v{48+i}")
        for i in range(16):
            A(f"v_exp_f32 v{48+i}, v{48+i}")
        A(f"v_add_f32 v{T}, v48, v49")
        for i in range(2, 16):
            A(f"v_add_f32 v{T}, v{T}, v{48+i}")
        for r in (8, 4, 2, 1):
            A(f"v_add_f32_dpp v{T}, v{T}, v{T} row_ror:{r} row_mask:0xf bank_mask:0xf")
        A(f"""
        v_add_u32 v7, {LDS_WS}, v6
        ds_write_b32 v7, v{T}
        s_waitcnt lgkmcnt(0)
        s_barrier
        v_mov_b32 v7, {LDS_WS}
        ds_read_b128 v[32:35], v7
        ds_read_b128 v[36:39], v7 offset:16
        ds_read_b128 v[40:43], v7 offset:32
        ds_read_b128 v[44:47], v7 offset:48
        v_and_b32 v6, 15, v1
        v_lshrrev_b32 v7, 1, v6
        v_and_b32 v5, 1, v6
        v_lshlrev_b32 v5, 4, v5
        v_mov_b32 v4, 0xffff
        v_lshlrev_b32 v4, v5, v4
        """)
        for j in range(4):
            A(f"v_cmp_eq_u32 vcc, {j}, v7")
            A(f"v_cndmask_b32 v{16+j}, 0, v4, vcc")
        A("s_waitcnt lgkmcnt(0)")
        for i in range(0, 16, 2):
            A(f"v_add_f32 v{32+i}, v{32+i}, v{33+i}")
        for i in range(0, 16, 4):
            A(f"v_add_f32 v{32+i}, v{32+i}, v{34+i}")
        A(f"v_add_f32 v32, v32, v36")
        A(f"v_add_f32 v40, v40, v44")
        A(f"v_add_f32 v32, v32, v40")
        A(f"v_rcp_f32 v32, v32")
        for i in range(16):
            A(f"v_mul_f32 v{48+i}, v{48+i}, v32")
        for i in range(16):
            A(f"v_cvt_pk_bf16_f32 v{48+i}, v{48+i}, v{48+i}")
        for i in range(1, 16):
            A(f"ds_write_b32 v14, v{48+i} offset:{i*256}")
        A(f"""
        v_mov_b32 v13, v48
        v_add_u32 v14, 256, v14
        v_mov_b32 v28, 0
        v_mov_b32 v29, 0
        v_mov_b32 v30, 0
        v_mov_b32 v31, 0
        """)
        self.stamp(5)
        def plan_vfirst(t):
            if t < PV - N: return (PV - 1 - t, None)
            return (N - 1, (t + N, 'V'))
        def plan_vmid(t): return (N - 1, (t + N, 'V'))
        def plan_vlast(t):
            if t + N < 256: return (N - 1, (t + N, 'V'))
            return (255 - t, None)
        assert PV == 16
        self.v_block(0, plan_vfirst)
        lp = A.label()
        A(f"s_mov_b32 s{S_T3}, 0")
        A.place(lp)
        self.v_block(16, plan_vmid)
        self.v_block(32, plan_vmid)
        A(f"s_add_u32 s{S_T3}, s{S_T3}, 1")
        A(f"s_cmp_lt_u32 s{S_T3}, 7")
        A(f"s_cbranch_scc1 {lp}")
        self.v_block(240, plan_vlast, last=True)
        A(f"""
        v_lshrrev_b32 v6, 4, v1
        v_lshlrev_b32 v6, 7, v6
        v_and_b32 v7, 15, v1
        v_lshlrev_b32 v7, 2, v7
        v_add_u32 v6, v6, v7
        s_lshl_b32 s{S_T0}, s{S_SW}, 9
        s_add_u32 s{S_T0}, s{S_T0}, {LDS_ORED}
        v_add_u32 v6, s{S_T0}, v6
        s_mov_b64 exec, s[{S_MJ8}:{S_MJ8+1}]
        ds_write_b32 v6, v28
        ds_write_b32 v6, v29 offset:32
        ds_write_b32 v6, v30 offset:64
        ds_write_b32 v6, v31 offset:96
        s_mov_b64 exec, -1
        s_waitcnt lgkmcnt(0)
        """)
        self.stamp(6)
        self.cstamp(21)
        A.place("L_join3")

    def tile_afrags(self, base):
        A = self.A
        A(f"""
        v_lshrrev_b32 v4, 4, v1
        v_and_b32 v5, 15, v1
        v_lshrrev_b32 v6, 2, v5
        v_and_b32 v5, 3, v5
        v_lshrrev_b32 v7, 1, v6
        v_and_b32 v8, 1, v4
        v_lshlrev_b32 v8, 1, v8
        v_or_b32 v7, v7, v8
        v_lshlrev_b32 v8, 3, v4
        v_add_u32 v8, v8, v6
        v_lshlrev_b32 v8, 7, v8
        v_lshlrev_b32 v5, 3, v5
        v_add_u32 v8, v8, v5
        s_lshl_b32 s{S_T0}, s{S_WAVE}, 14
        v_add_u32 v8, s{S_T0}, v8
        """)
        for cb in range(4):
            A(f"v_xor_b32 v{9+cb}, {cb}, v7")
            A(f"v_lshlrev_b32 v{9+cb}, 5, v{9+cb}")
            A(f"v_add_u32 v{9+cb}, v{9+cb}, v8")
        for s in range(4):
            for cb in range(4):
                r = base + (s * 4 + cb) * 4
                A(f"ds_read_b64_tr_b16 {vr(r,2)}, v{9+cb} offset:{s*4096}")
                A(f"ds_read_b64_tr_b16 {vr(r+2,2)}, v{9+cb} offset:{s*4096+512}")

    RW = 240
    def red_addrs(self):
        A = self.A
        RW = self.RW
        A(f"""
        v_and_b32 v4, 15, v1
        v_lshrrev_b32 v5, 4, v1
        s_lshl_b32 s{S_T0}, s{S_WAVE}, 11
        s_add_u32 s{S_T0}, s{S_T0}, {LDS_RED}
        v_lshlrev_b32 v6, 8, v4
        v_add_u32 v6, s{S_T0}, v6
        """)
        for cb in range(4):
            A(f"v_add_u32 v7, {4*cb}, v5")
            A(f"v_xor_b32 v7, v7, v4")
            A(f"v_lshlrev_b32 v7, 4, v7")
            A(f"v_add_u32 v{RW+cb}, v7, v6")
        A(f"""
        v_lshrrev_b32 v4, 2, v1
        v_xor_b32 v4, s{S_WAVE}, v4
        v_lshlrev_b32 v4, 4, v4
        v_and_b32 v5, 3, v1
        v_lshlrev_b32 v5, 2, v5
        v_add_u32 v4, v4, v5
        s_lshl_b32 s{S_T0}, s{S_WAVE}, 8
        s_add_u32 s{S_T0}, s{S_T0}, {LDS_RED}
        v_add_u32 v{RW+4}, s{S_T0}, v4
        """)

    def mfma16(self, abase, bregs, acc):
        A = self.A
        for s in range(4):
            for cb in range(4):
                r = abase + (s * 4 + cb) * 4
                a = acc + 4 * cb
                src = "0" if s == 0 else vr(a, 4)
                A(f"v_mfma_f32_16x16x32_bf16 {vr(a,4)}, {vr(r,4)}, {vr(bregs[s],4)}, {src}")

    def red_write(self, acc):
        A = self.A
        A(f"s_mov_b64 exec, s[{S_MJ8}:{S_MJ8+1}]")
        for cb in range(4):
            A(f"ds_write_b128 v{self.RW+cb}, {vr(acc+4*cb,4)}")
        A("s_mov_b64 exec, -1")
        A("s_waitcnt lgkmcnt(0)")

    def red_sum(self, nw, dst):
        A = self.A
        for v in range(nw):
            A(f"ds_read_b32 v{dst+v}, v{self.RW+4} offset:{v*2048}")
        A("s_waitcnt lgkmcnt(0)")
        regs = [dst + v for v in range(nw)]
        while len(regs) > 1:
            nxt = []
            for i in range(0, len(regs) - 1, 2):
                A(f"v_add_f32 v{regs[i]}, v{regs[i]}, v{regs[i+1]}")
                nxt.append(regs[i])
            if len(regs) % 2: nxt.append(regs[-1])
            regs = nxt

    def tail(self):
        A = self.A
        A("s_barrier")
        lskip = A.label()
        A(f"s_cmp_eq_u32 s{S_WAVE}, 0")
        A(f"s_cbranch_scc0 {lskip}")
        A(f"""
        v_lshlrev_b32 v4, 3, v1
        v_add_u32 v4, {LDS_ORED}, v4
        ds_read_b64 v[8:9], v4
        ds_read_b64 v[10:11], v4 offset:512
        ds_read_b64 v[12:13], v4 offset:1024
        ds_read_b64 v[14:15], v4 offset:1536
        s_lshl_b32 s{S_T0}, s{S_B}, 13
        s_lshl_b32 s{S_T1}, s{S_H}, 8
        s_add_u32 s{S_T0}, s{S_T0}, s{S_T1}
        s_add_u32 s{S_T0}, s{S_T0}, {WS_OB}
        s_waitcnt lgkmcnt(0)
        v_pk_add_f32 v[8:9], v[8:9], v[10:11]
        v_pk_add_f32 v[12:13], v[12:13], v[14:15]
        v_pk_add_f32 v[8:9], v[8:9], v[12:13]
        v_cvt_pk_bf16_f32 v8, v8, v9
        v_min_u32 v8, -2, v8
        """)
        self.quad_gather(8, 8)
        A(f"""
        s_mov_b64 exec, s[{S_MQ}:{S_MQ+1}]
        buffer_store_dwordx4 v[8:11], v3, {srd(R_WS)}, s{S_T0} offen sc0 sc1
        s_mov_b64 exec, -1
        """)
        A.place(lskip)
        self.stamp(7)
        if self.stop_after == "attn":
            A("s_branch L_end")
        A(f"""
        s_cmp_eq_u32 s{S_ROLE}, 0
        s_cbranch_scc1 L_roleO
        s_cmp_eq_u32 s{S_ROLE}, 1
        s_cbranch_scc1 L_roleG
        s_cmp_eq_u32 s{S_ROLE}, 2
        s_cbranch_scc1 L_roleD
        s_branch L_roleF
        """)
        self.role_O()
        self.role_G()
        self.role_D()
        self.role_F()

    def role_O(self):
        A = self.A
        A.place("L_roleO")
        AB = 64
        A(f"s_lshr_b32 s{S_NJ}, s{S_H}, 1")
        A(f"s_and_b32 s{S_PITCH}, s{S_H}, 1")
        A(f"s_lshl_b32 s{S_T0}, s{S_B}, 1")
        A(f"s_add_u32 s{S_PITCH}, s{S_PITCH}, s{S_T0}")
        self.local_flag()
        self.mk_srd(R_X, S_X, 16384)
        A(f"""
        v_bfe_u32 v14, v1, 2, 3
        v_lshlrev_b32 v14, 11, v14
        v_and_b32 v15, 3, v1
        v_lshlrev_b32 v13, 3, v15
        v_add_u32 v13, v13, v14
        s_lshl_b32 s{S_T0}, s{S_PITCH}, 7
        s_lshl_b32 s{S_T1}, s{S_NJ}, 5
        s_add_u32 s{S_T0}, s{S_T0}, s{S_T1}
        buffer_load_dwordx2 v[28:29], v13, {srd(R_X)}, s{S_T0} offen
        s_add_u32 s{S_OFF}, s{S_T0}, {WS_H}
        v_lshrrev_b32 v15, 1, v15
        v_lshlrev_b32 v15, 4, v15
        v_add_u32 v14, v14, v15
        """)
        self.tile_afrags(AB)
        self.red_addrs()
        A(f"""
        v_bfe_u32 v4, v1, 2, 3
        v_and_b32 v5, 3, v1
        s_lshl_b32 s{S_T0}, s{S_WAVE}, 2
        v_add_u32 v5, s{S_T0}, v5
        v_xor_b32 v5, v5, v4
        v_lshlrev_b32 v5, 4, v5
        v_lshlrev_b32 v4, 8, v4
        v_add_u32 v4, v4, v5
        v_lshrrev_b32 v5, 5, v1
        v_lshlrev_b32 v5, 13, v5
        v_add_u32 v4, v4, v5
        v_add_u32 v19, {LDS_RED}, v4
        v_and_b32 v4, 31, v1
        v_lshlrev_b32 v13, 4, v4
        v_and_b32 v4, 15, v1
        v_lshlrev_b32 v4, 13, v4
        v_lshrrev_b32 v5, 4, v1
        v_lshlrev_b32 v5, 4, v5
        v_add_u32 v16, v4, v5
        s_lshl_b32 s{S_T0}, s{S_NJ}, 11
        s_lshl_b32 s{S_T1}, s{S_WAVE}, 8
        s_add_u32 s{S_T0}, s{S_T0}, s{S_T1}
        s_add_u32 s{S_T0}, s{S_T0}, {WS_OB}
        s_lshl_b32 s{S_T2}, s{S_PITCH}, 13
        s_add_u32 s{S_T2}, s{S_T2}, {WS_OP}
        s_lshl_b32 s{S_T1}, s{S_WAVE}, 11
        s_add_u32 s{S_T3}, s{S_T2}, s{S_T1}
        s_lshl_b32 s{S_T1}, s{S_NJ}, 9
        s_add_u32 s{S_T3}, s{S_T3}, s{S_T1}
        s_lshl_b32 s{S_T1}, s{S_NJ}, 11
        s_add_u32 s{S_T2}, s{S_T2}, s{S_T1}
        """)
        self.prepoll(f"buffer_load_dword v18, v16, {srd(R_WS)}, s{S_T0} offen {self.LP}", 18, mask=S_MJ8, sleep=2)
        loads = [f"buffer_load_dwordx4 {vr(32+4*s,4)}, v16, {srd(R_WS)}, s{S_T0} offen offset:{s*64} {self.LP}" for s in range(4)]
        self.poll_pipe(loads, range(32, 48), 17, mask=S_MJ8, depth=1, sleep=self.PS)
        self.stamp(8)
        A("s_waitcnt lgkmcnt(0)")
        self.mfma16(AB, [32, 36, 40, 44], 48)
        self.red_write(48)
        A("s_barrier")
        lr1 = A.label()
        A(f"s_cmp_ge_u32 s{S_WAVE}, 4")
        A(f"s_cbranch_scc1 {lr1}")
        for v in range(4):
            A(f"ds_read_b128 {vr(32+4*v,4)}, v19 offset:{v*2048}")
        A("s_waitcnt lgkmcnt(0)")
        for e in (0, 2):
            A(f"v_pk_add_f32 {vr(32+e,2)}, {vr(32+e,2)}, {vr(36+e,2)}")
            A(f"v_pk_add_f32 {vr(40+e,2)}, {vr(40+e,2)}, {vr(44+e,2)}")
        for e in (0, 2):
            A(f"v_pk_add_f32 {vr(32+e,2)}, {vr(32+e,2)}, {vr(40+e,2)}")
        for e in range(4):
            A(f"v_mov_b32 v{36+e}, v{32+e}")
        for e in range(4):
            A(f"v_permlane32_swap_b32 v{32+e}, v{36+e}")
        for e in (0, 2):
            A(f"v_pk_add_f32 {vr(32+e,2)}, {vr(32+e,2)}, {vr(36+e,2)}")
        for e in range(4):
            A(f"v_min_u32 v{32+e}, -2, v{32+e}")
        A("s_mov_b64 exec, 0xffffffff")
        self.store_sel(f"buffer_store_dwordx4 v[32:35], v13, {srd(R_WS)}, s{S_T3} offen")
        A("s_mov_b64 exec, -1")
        self.stamp(9)
        A("s_branch L_end")
        A.place(lr1)
        A(f"s_cmp_eq_u32 s{S_WAVE}, 4")
        A(f"s_cbranch_scc0 L_end")
        A(f"v_lshlrev_b32 v20, 16, v28")
        A(f"v_and_b32 v21, 0xffff0000, v28")
        A(f"v_lshlrev_b32 v22, 16, v29")
        A(f"v_and_b32 v23, 0xffff0000, v29")
        loads = [f"buffer_load_dwordx4 v[32:35], v2, {srd(R_WS)}, s{S_T2} offen {self.LP}",
                 f"buffer_load_dwordx4 v[36:39], v2, {srd(R_WS)}, s{S_T2} offen offset:1024 {self.LP}"]
        self.poll_pipe(loads, range(32, 40), 17, depth=1, sleep=0)
        self.stamp(9)
        for e in (0, 2):
            A(f"v_pk_add_f32 {vr(40+e,2)}, {vr(32+e,2)}, {vr(36+e,2)}")
        for e in range(4):
            A(f"v_mov_b32 v{44+e}, v{40+e}")
        for e in range(4):
            A(f"v_permlane32_swap_b32 v{40+e}, v{44+e}")
        for e in (0, 2):
            A(f"v_pk_add_f32 {vr(40+e,2)}, {vr(40+e,2)}, {vr(44+e,2)}")
        A(f"""
        v_cvt_pk_bf16_f32 v44, v40, v41
        v_cvt_pk_bf16_f32 v45, v42, v43
        v_lshlrev_b32 v40, 16, v44
        v_and_b32 v41, 0xffff0000, v44
        v_lshlrev_b32 v42, 16, v45
        v_and_b32 v43, 0xffff0000, v45
        v_pk_add_f32 v[40:41], v[40:41], v[20:21]
        v_pk_add_f32 v[42:43], v[42:43], v[22:23]
        v_cvt_pk_bf16_f32 v48, v40, v41
        v_cvt_pk_bf16_f32 v49, v42, v43
        v_min_u32 v48, -2, v48
        v_min_u32 v49, -2, v49
        v_mov_b32_dpp v50, v48 quad_perm:[1,1,3,3] row_mask:0xf bank_mask:0xf
        v_mov_b32_dpp v51, v49 quad_perm:[1,1,3,3] row_mask:0xf bank_mask:0xf
        s_mov_b64 exec, 0x55555555
        buffer_store_dwordx4 v[48:51], v14, {srd(R_WS)}, s{S_OFF} offen sc0 sc1
        s_mov_b64 exec, -1
        """)
        self.stamp(16)
        A("s_branch L_end")

    def role_G(self):
        A = self.A
        A.place("L_roleG")
        AB = 160
        self.local_flag()
        self.tile_afrags(AB)
        self.red_addrs()
        F, D = 96, 128
        A(f"""
        s_lshl_b32 s{S_T0}, s{S_WAVE}, 1
        v_xor_b32 v14, s{S_T0}, v1
        v_lshlrev_b32 v14, 4, v14
        s_lshl_b32 s{S_T0}, s{S_WAVE}, 11
        s_add_u32 s{S_T0}, s{S_T0}, {LDS_XN2}
        v_add_u32 v14, s{S_T0}, v14
        v_and_b32 v17, 7, v1
        v_lshrrev_b32 v18, 4, v1
        v_lshlrev_b32 v19, 11, v17
        s_lshl_b32 s{S_T0}, s{S_WAVE}, 8
        s_add_u32 s{S_T0}, s{S_T0}, {LDS_XN2}
        v_add_u32 v19, s{S_T0}, v19
        v_lshlrev_b32 v17, 1, v17
        """)
        for s_ in range(4):
            A(f"v_add_u32 v28, {4*s_}, v18")
            A(f"v_xor_b32 v28, v28, v17")
            A(f"v_lshlrev_b32 v28, 4, v28")
            A(f"v_add_u32 v{232+s_}, v28, v19")
        A(f"""
        s_sub_u32 s{S_T0}, s{S_H}, 8
        s_and_b32 s{S_T1}, s{S_T0}, 1
        s_mul_i32 s{S_T1}, s{S_T1}, 57344
        s_lshr_b32 s{S_T0}, s{S_T0}, 1
        s_mul_i32 s{S_T2}, s{S_B}, 7
        s_add_u32 s{S_T0}, s{S_T0}, s{S_T2}
        s_lshl_b32 s{S_T0}, s{S_T0}, 7
        s_add_u32 s{S_T0}, s{S_T0}, s{S_T1}
        s_mul_i32 s{S_T1}, s{S_WAVE}, 7168
        s_add_u32 s{S_T0}, s{S_T0}, s{S_T1}
        s_add_u32 s{S_OFF}, s{S_T0}, {WS_GU}
        v_lshlrev_b32 v15, 1, v1
        s_lshl_b32 s{S_T0}, s{S_WAVE}, 13
        s_add_u32 s{S_T0}, s{S_T0}, {WS_OB}
        v_lshlrev_b32 v17, 8, v1
        s_mov_b64 s[{S_EX}:{S_EX+1}], 0xffffffff
        """)
        self.sample_wait(False, 17, 18, self.HS)
        self.stamp(16)
        A(f"s_lshl_b32 s{S_T0}, s{S_WAVE}, 11")
        A(f"s_add_u32 s{S_T0}, s{S_T0}, {WS_H}")
        loads = [f"buffer_load_dwordx4 v[20:23], v2, {srd(R_WS)}, s{S_T0} offen {self.LP}",
                 f"buffer_load_dwordx4 v[24:27], v2, {srd(R_WS)}, s{S_T0} offen offset:1024 {self.LP}"]
        self.poll_pipe(loads, range(20, 28), 17, depth=1, sleep=self.GSL)
        self.stamp(8)
        for i in range(8):
            A(f"v_lshlrev_b32 v{F+2*i}, 16, v{20+i}")
            A(f"v_and_b32 v{F+2*i+1}, 0xffff0000, v{20+i}")
        S1, S2, T1, T2, VMB, VRS = 144, 146, 148, 149, 150, 152
        self.ln_stats(F, D, S1, S2, T1, T2, VMB, VRS)
        for i in range(8):
            self.ln_apply(48 + i, F + 2*i, VMB, VRS, 154 + 2 * (i % 2))
        A(f"ds_write_b128 v14, v[48:51]")
        A(f"ds_write_b128 v14, v[52:55] offset:1024")
        A("s_waitcnt lgkmcnt(0)")
        A("s_barrier")
        for s_ in range(4):
            A(f"ds_read_b128 {vr(32+4*s_,4)}, v{232+s_}")
        A("s_waitcnt lgkmcnt(0)")
        self.mfma16(AB, [32, 36, 40, 44], 48)
        self.red_write(48)
        A("s_waitcnt vmcnt(0)")
        A("s_barrier")
        self.red_sum(8, 20)
        self.rnd_bf16(20, 20)
        lup = A.label()
        A(f"s_bitcmp1_b32 s{S_H}, 0")
        A(f"s_cbranch_scc1 {lup}")
        A(f"""
        v_mul_f32 v17, v20, v20
        v_mul_f32 v18, v17, v20
        v_mul_f32 v18, 0x3d372713, v18
        v_add_f32 v18, v20, v18
        v_mul_f32 v18, 0x3f4c422a, v18
        v_mul_f32 v18, 0x4038aa3b, v18
        v_min_f32 v18, 0x42700000, v18
        v_exp_f32 v18, v18
        v_add_f32 v19, 1.0, v18
        v_rcp_f32 v19, v19
        v_mul_f32 v18, v18, v19
        v_mul_f32 v20, v20, v18
        """)
        A.place(lup)
        A(f"""
        v_mov_b32_dpp v17, v20 quad_perm:[1,1,3,3] row_mask:0xf bank_mask:0xf
        v_cvt_pk_bf16_f32 v20, v20, v17
        v_min_u32 v20, -2, v20
        """)
        self.even_gather(20, 20)
        A(f"s_mov_b64 exec, s[{S_ME}:{S_ME+1}]")
        self.store_sel(f"buffer_store_dwordx4 v[20:23], v15, {srd(R_WS)}, s{S_OFF} offen")
        A(f"s_mov_b64 exec, -1")
        self.stamp(9)
        A("s_branch L_end")

    def role_D(self):
        A = self.A
        A.place("L_roleD")
        AB = 160
        RW = 224
        A(f"""
        v_lshrrev_b32 v4, 1, v1
        v_xor_b32 v4, s{S_WAVE}, v4
        v_lshlrev_b32 v4, 4, v4
        v_and_b32 v5, 1, v1
        v_lshlrev_b32 v5, 3, v5
        v_add_u32 v4, v4, v5
        s_lshl_b32 s{S_T0}, s{S_WAVE}, 9
        s_add_u32 s{S_T0}, s{S_T0}, {LDS_RED}
        v_add_u32 v{RW+8}, s{S_T0}, v4
        s_lshl_b32 s{S_T0}, s{S_B}, 15
        s_lshl_b32 s{S_T1}, s{S_WAVE}, 12
        s_add_u32 s{S_T0}, s{S_T0}, s{S_T1}
        s_sub_u32 s{S_T1}, s{S_H}, 22
        s_lshl_b32 s{S_T1}, s{S_T1}, 9
        s_add_u32 s{S_T0}, s{S_T0}, s{S_T1}
        s_add_u32 s{S_OFF}, s{S_T0}, {WS_DP}
        v_lshlrev_b32 v15, 3, v1
        """)
        lno = A.label(); lgo = A.label()
        A(f"s_cmp_eq_u32 s{S_WAVE}, 7")
        A(f"s_cbranch_scc0 {lgo}")
        A("s_barrier")
        A(f"s_branch {lno}")
        A.place(lgo)
        A(f"""
        v_lshrrev_b32 v4, 4, v1
        v_and_b32 v5, 15, v1
        v_lshrrev_b32 v6, 2, v5
        v_and_b32 v5, 3, v5
        v_lshrrev_b32 v7, 1, v6
        v_and_b32 v8, 1, v4
        v_lshlrev_b32 v8, 1, v8
        v_or_b32 v7, v7, v8
        v_lshlrev_b32 v8, 3, v4
        v_add_u32 v8, v8, v6
        v_lshlrev_b32 v8, 7, v8
        v_lshlrev_b32 v5, 3, v5
        v_add_u32 v8, v8, v5
        s_lshl_b32 s{S_T0}, s{S_WAVE}, 13
        v_add_u32 v8, s{S_T0}, v8
        """)
        for cb in range(4):
            A(f"v_xor_b32 v{9+cb}, {cb}, v7")
            A(f"v_lshlrev_b32 v{9+cb}, 5, v{9+cb}")
            A(f"v_add_u32 v{9+cb}, v{9+cb}, v8")
        for s_ in range(2):
            for cb in range(8):
                r = AB + (s_ * 8 + cb) * 4
                off = s_ * 4096 + (cb // 4) * 57344
                A(f"ds_read_b64_tr_b16 {vr(r,2)}, v{9+cb%4} offset:{off}")
                A(f"ds_read_b64_tr_b16 {vr(r+2,2)}, v{9+cb%4} offset:{off+512}")
        A(f"""
        v_and_b32 v4, 15, v1
        v_lshrrev_b32 v5, 4, v1
        s_lshl_b32 s{S_T0}, s{S_WAVE}, 12
        s_add_u32 s{S_T0}, s{S_T0}, {LDS_RED}
        v_lshlrev_b32 v6, 9, v4
        v_add_u32 v6, s{S_T0}, v6
        """)
        for cb in range(8):
            A(f"v_add_u32 v7, {4*cb}, v5")
            A(f"v_xor_b32 v7, v7, v4")
            A(f"v_lshlrev_b32 v7, 4, v7")
            A(f"v_add_u32 v{RW+cb}, v7, v6")
        A(f"""
        v_and_b32 v4, 7, v1
        v_mul_u32_u24 v4, 7168, v4
        v_bfe_u32 v5, v1, 3, 1
        v_lshlrev_b32 v5, 6, v5
        v_add_u32 v4, v4, v5
        v_lshrrev_b32 v5, 4, v1
        v_lshlrev_b32 v5, 4, v5
        v_add_u32 v16, v4, v5
        s_mul_i32 s{S_T0}, s{S_B}, 7
        s_add_u32 s{S_T0}, s{S_T0}, s{S_WAVE}
        s_lshl_b32 s{S_T0}, s{S_T0}, 7
        s_add_u32 s{S_T0}, s{S_T0}, {WS_GU}
        s_add_u32 s{S_T1}, s{S_T0}, 57344
        s_lshl_b32 s{S_T2}, s{S_WAVE}, 11
        s_add_u32 s{S_T2}, s{S_T2}, {WS_H}
        v_lshlrev_b32 v17, 5, v1
        """)
        A(f"s_mov_b32 s{S_T2}, s{S_T0}")
        A(f"s_mov_b32 s{S_T3}, s{S_T1}")
        self.sample_wait(True, 17, 18, self.HS)
        self.stamp(16)
        loads = [f"buffer_load_dwordx4 v[32:35], v16, {srd(R_WS)}, s{S_T2} offen {self.LP}",
                 f"buffer_load_dwordx4 v[36:39], v16, {srd(R_WS)}, s{S_T3} offen {self.LP}"]
        self.poll_pipe(loads, range(32, 40), 17, depth=1, sleep=0)
        self.stamp(8)
        for i in range(0, 4, 2):
            g, u = 32 + i, 36 + i
            A(f"v_lshlrev_b32 v64, 16, v{g}")
            A(f"v_and_b32 v65, 0xffff0000, v{g}")
            A(f"v_lshlrev_b32 v66, 16, v{u}")
            A(f"v_and_b32 v67, 0xffff0000, v{u}")
            A(f"v_lshlrev_b32 v68, 16, v{g+1}")
            A(f"v_and_b32 v69, 0xffff0000, v{g+1}")
            A(f"v_lshlrev_b32 v70, 16, v{u+1}")
            A(f"v_and_b32 v71, 0xffff0000, v{u+1}")
            A(f"v_pk_mul_f32 v[64:65], v[64:65], v[66:67]")
            A(f"v_pk_mul_f32 v[68:69], v[68:69], v[70:71]")
            A(f"v_cvt_pk_bf16_f32 v{72+i}, v64, v65")
            A(f"v_cvt_pk_bf16_f32 v{73+i}, v68, v69")
        for e in range(4):
            A(f"v_mov_b32_dpp v{76+e}, v{72+e} row_shl:8 row_mask:0xf bank_mask:0xf")
        A("s_waitcnt lgkmcnt(0)")
        ACC = 88
        for cb in range(8):
            A(f"v_mfma_f32_16x16x32_bf16 {vr(ACC+4*cb,4)}, {vr(AB+cb*4,4)}, v[72:75], 0")
        for cb in range(8):
            A(f"v_mfma_f32_16x16x32_bf16 {vr(ACC+4*cb,4)}, {vr(AB+(8+cb)*4,4)}, v[76:79], {vr(ACC+4*cb,4)}")
        A(f"s_mov_b64 exec, s[{S_MJ8}:{S_MJ8+1}]")
        for cb in range(8):
            A(f"ds_write_b128 v{RW+cb}, {vr(ACC+4*cb,4)}")
        A("s_mov_b64 exec, -1")
        A("s_waitcnt lgkmcnt(0)")
        A.place(lno)
        A("s_barrier")
        for v in range(7):
            A(f"ds_read_b64 {vr(20+2*v,2)}, v{RW+8} offset:{v*4096}")
        A("s_waitcnt lgkmcnt(0)")
        A(f"""
        v_pk_add_f32 v[20:21], v[20:21], v[22:23]
        v_pk_add_f32 v[24:25], v[24:25], v[26:27]
        v_pk_add_f32 v[28:29], v[28:29], v[30:31]
        v_pk_add_f32 v[20:21], v[20:21], v[24:25]
        v_pk_add_f32 v[28:29], v[28:29], v[32:33]
        v_pk_add_f32 v[20:21], v[20:21], v[28:29]
        v_min_u32 v20, -2, v20
        v_min_u32 v21, -2, v21
        v_mov_b32_dpp v22, v20 quad_perm:[1,1,3,3] row_mask:0xf bank_mask:0xf
        v_mov_b32_dpp v23, v21 quad_perm:[1,1,3,3] row_mask:0xf bank_mask:0xf
        s_mov_b32 s{S_T2}, 0x55555555
        s_mov_b32 s{S_T3}, 0x55555555
        s_mov_b64 exec, s[{S_T2}:{S_T3}]
        buffer_store_dwordx4 v[20:23], v15, {srd(R_WS)}, s{S_OFF} offen sc0 sc1
        s_mov_b64 exec, -1
        """)
        self.stamp(9)
        A("s_branch L_end")

    def role_F(self):
        A = self.A
        A.place("L_roleF")
        self.mk_srd(R_OUT, S_OUT, 16384)
        A(f"""
        s_sub_u32 s{S_T2}, s{S_H}, 30
        s_lshl_b32 s{S_T0}, s{S_B}, 1
        s_add_u32 s{S_T2}, s{S_T2}, s{S_T0}
        v_lshrrev_b32 v4, 4, v1
        v_lshlrev_b32 v4, 15, v4
        v_and_b32 v5, 15, v1
        v_lshlrev_b32 v6, 4, v5
        v_add_u32 v16, v4, v6
        v_lshlrev_b32 v15, 3, v5
        s_lshl_b32 s{S_T0}, s{S_WAVE}, 12
        s_lshl_b32 s{S_T1}, s{S_T2}, 8
        s_add_u32 s{S_T0}, s{S_T0}, s{S_T1}
        s_add_u32 s{S_T0}, s{S_T0}, {WS_DP}
        s_add_u32 s{S_T1}, s{S_T0}, 131072
        s_lshl_b32 s{S_PITCH}, s{S_WAVE}, 11
        s_lshl_b32 s{S_T3}, s{S_T2}, 7
        s_add_u32 s{S_PITCH}, s{S_PITCH}, s{S_T3}
        s_add_u32 s{S_T2}, s{S_PITCH}, {WS_H}
        s_mul_i32 s{S_T3}, s{S_WAVE}, 7168
        s_add_u32 s{S_T3}, s{S_T3}, {WS_GU}
        v_lshlrev_b32 v17, 7, v1
        s_mov_b32 s{S_EX}, -1
        s_mov_b32 s{S_EX+1}, 0x00ffffff
        """)
        self.sample_wait(True, 17, 18, self.HS)
        self.stamp(16)
        loads = [f"buffer_load_dwordx4 v[32:35], v16, {srd(R_WS)}, s{S_T0} offen {self.LP}",
                 f"buffer_load_dwordx4 v[36:39], v16, {srd(R_WS)}, s{S_T1} offen {self.LP}",
                 f"buffer_load_dwordx2 v[40:41], v15, {srd(R_WS)}, s{S_T2} offen {self.LP}"]
        self.poll_pipe(loads, range(32, 42), 17, depth=1, sleep=self.FSL)
        self.stamp(8)
        A(f"""
        v_pk_add_f32 v[20:21], v[32:33], v[36:37]
        v_pk_add_f32 v[22:23], v[34:35], v[38:39]
        """)
        for sw in ("v_permlane16_swap_b32", "v_permlane32_swap_b32"):
            for e in range(4):
                A(f"v_mov_b32 v{24+e}, v{20+e}")
            for e in range(4):
                A(f"{sw} v{20+e}, v{24+e}")
            A(f"v_pk_add_f32 v[20:21], v[20:21], v[24:25]")
            A(f"v_pk_add_f32 v[22:23], v[22:23], v[26:27]")
        A(f"""
        v_cvt_pk_bf16_f32 v24, v20, v21
        v_cvt_pk_bf16_f32 v25, v22, v23
        v_lshlrev_b32 v20, 16, v24
        v_and_b32 v21, 0xffff0000, v24
        v_lshlrev_b32 v22, 16, v25
        v_and_b32 v23, 0xffff0000, v25
        v_lshlrev_b32 v24, 16, v40
        v_and_b32 v25, 0xffff0000, v40
        v_lshlrev_b32 v26, 16, v41
        v_and_b32 v27, 0xffff0000, v41
        v_pk_add_f32 v[20:21], v[20:21], v[24:25]
        v_pk_add_f32 v[22:23], v[22:23], v[26:27]
        v_cvt_pk_bf16_f32 v20, v20, v21
        v_cvt_pk_bf16_f32 v21, v22, v23
        s_mov_b64 exec, 0xffff
        buffer_store_dwordx2 v[20:21], v15, {srd(R_OUT)}, s{S_PITCH} offen
        s_mov_b64 exec, -1
        """)
        lne = A.label()
        A(f"""
        s_cmp_eq_u32 s2, 240
        s_cbranch_scc0 {lne}
        s_cmp_eq_u32 s{S_WAVE}, 0
        s_cbranch_scc0 {lne}
        v_mov_b32 v20, 0
        v_mov_b32 v21, s{S_TAG}
        s_mov_b32 s{S_T1}, {WS_EPOCH}
        s_mov_b64 exec, 1
        buffer_store_dword v21, v20, {srd(R_WS)}, s{S_T1} offen sc0 sc1
        s_mov_b64 exec, -1
        """)
        A.place(lne)
        self.stamp(9)

    def build(self):
        A = self.A
        self.entry()
        self.service()
        self.stream()
        self.tail()
        A.place("L_end")
        if self.stamps == "tail":
            A("s_cmp_ge_u32 s2, 256")
            A("s_cbranch_scc1 L_end2")
            A("s_waitcnt lgkmcnt(0)")
            A(f"s_lshl_b32 s3, s{S_WG}, 3")
            A(f"s_add_u32 s3, s3, s{S_WAVE}")
            A(f"s_lshl_b32 s3, s3, 7")
            A(f"s_add_u32 s3, s3, {WS_DBG + 0x100000}")
            A(f"s_mov_b64 exec, 1")
            A(f"v_mov_b32 v255, 0")
            for idx, j in self.LIGHT.items():
                A(f"v_mov_b32 v254, s{4+2*j}")
                A(f"buffer_store_dword v254, v255, {srd(R_WS)}, s3 offen offset:{idx*4}")
            A.place("L_end2")
        A("s_endpgm")
        A.footer(256, 102, 256)
        A.fix_hazards()
        return A.text()

if __name__ == "__main__":
    import argparse
    ap = argparse.ArgumentParser()
    ap.add_argument("-o", default="main.s")
    ap.add_argument("--N", type=int, default=5)
    ap.add_argument("--NP", type=int, default=8)
    ap.add_argument("--LP", default="sc1")
    ap.add_argument("--PD", type=int, default=1)
    ap.add_argument("--HG", type=int, default=48)
    ap.add_argument("--HD", type=int, default=64)
    ap.add_argument("--HS", type=int, default=2)
    ap.add_argument("--nolocal", action="store_true")
    ap.add_argument("--GSL", type=int, default=1)
    ap.add_argument("--FSL", type=int, default=1)
    ap.add_argument("--KP", default="nt")
    ap.add_argument("--VP", default="nt")
    ap.add_argument("--WP", default="nt")
    ap.add_argument("--PS", type=int, default=1)
    ap.add_argument("--debug", action="store_true")
    ap.add_argument("--stamps", default=None)
    ap.add_argument("--stop", default=None)
    a = ap.parse_args()
    g = Gen(N=a.N, NP=a.NP, LP=a.LP, PD=a.PD, PS=a.PS, HG=a.HG, HD=a.HD, HS=a.HS, nolocal=a.nolocal, GSL=a.GSL, FSL=a.FSL, KP=a.KP, VP=a.VP, WP=a.WP, debug=a.debug, stamps=a.stamps, stop_after=a.stop)
    open(a.o, "w").write(g.build())
```

```python
import sys
from asmlib import *

LDS_WQ = 98304
LDS_SC = 131072
LDS_MISC = 147456
LDS_XN = LDS_MISC
LDS_Q = LDS_MISC + 2304
LDS_CNT = LDS_MISC + 2560
LDS_WM = LDS_MISC + 2624
LDS_WS = LDS_MISC + 2688
LDS_ORED = LDS_MISC + 4096
LDS_XCC = LDS_MISC + 8192
LDS_BLK = LDS_MISC + 2576
LDS_N = LDS_MISC + 2580
LDS_RED = LDS_SC
LDS_XN2 = LDS_MISC
LDS_BYTES = 163840

WS_QP = 0x000000
WS_SLOT = 0x100000
WS_OB = WS_SLOT + 0x00000
WS_OP = WS_SLOT + 0x10000
WS_H = WS_SLOT + 0x30000
WS_GU = WS_SLOT + 0x34000
WS_DP = WS_SLOT + 0x50000
WS_C2 = WS_SLOT + 0x90000
WS_C3 = WS_SLOT + 0x90100
WS_PROG = WS_SLOT + 0xA0000
WS_FLAG = 0x200000
WS_EPOCH = 0x210000
WS_DBG = 0x300000
WS_SIZE = 0x600000
SPIN = 1 << 20

S_WG = 2
S_X, S_K, S_V, S_WQ, S_WO, S_BX, S_WG_, S_WU, S_WD, S_OUT, S_DBG, S_WS = 16, 18, 20, 22, 24, 26, 28, 30, 32, 34, 36, 38
R_K, R_V, R_X, R_WQ, R_WT, R_WS, R_OUT = 40, 44, 48, 52, 56, 60, 68
S_WAVE, S_H, S_B, S_SW = 72, 73, 74, 75
S_T0, S_T1, S_T2, S_T3, S_T4, S_T5 = 76, 77, 78, 79, 80, 81
S_OFF, S_CNT, S_PITCH, S_NJ, S_ROLE = 82, 83, 84, 85, 86
S_M1, S_M2, S_M3 = 88, 90, 92
S_MJ8 = 94
S_EX = 96
S_TAG = 98
S_MQ = 64
S_JJ = 100
S_ROT = 50
S_J1 = 51
S_DS, S_DM, S_DJ, S_DST = 52, 53, 54, 55
S_NCUR = 3
S_JA = 101
S_LOC = 87
S_XCC = 99
S_ME = 66
S_PM = 40
def srd(r): return f"s[{r}:{r+3}]"
def vr(a, n): return f"v[{a}:{a+n-1}]"

class Gen:
    def __init__(self, N=5, NP=8, PV=16, LP='sc1', PD=1, PS=1, HG=64, HD=64, HS=4, nolocal=False, rot=0, defer=False, JU=8, NOK=6, NOV=5, NT=16, pace=False, NW=None, NMIN=4, TH=(64, 192, 240), GSL=1, FSL=1, KP='nt', VP='nt', WP='nt', debug=False, stamps=False, stop_after=None):
        self.A = Asm()
        self.N, self.NP, self.PV, self.LP = N, NP, PV, LP
        self.debug, self.stamps, self.stop_after = debug, stamps, stop_after
        self.OSLEEP, self.GSLEEP, self.DSLEEP = 1, 0, 0
        self.PD, self.PS = PD, PS
        self.nolocal = nolocal
        self.rot = rot
        self.defer, self.JU, self.NOK, self.NOV, self.NT = defer, (JU if defer else 24), NOK, NOV, NT
        self.pace = pace
        self.D = (NMIN + len(TH)) if pace else N
        self.NW = NW
        if defer: self.D = max(N, NOK, NOV); NMIN = min(N, NOK, NOV)
        if NW:
            self.D = max(NW); NMIN = min(NW)
        self.NMIN, self.TH, self.PK0 = NMIN, TH, 2
        self.GSL, self.FSL = GSL, FSL
        self.KP, self.VP, self.WP = KP, VP, WP
        self.HG, self.HD, self.HS = HG, HD, HS

    def mk_srd(self, r, ptr, size, add_lo=None):
        A = self.A
        if add_lo is None:
            A(f"s_mov_b32 s{r}, s{ptr}")
            A(f"s_mov_b32 s{r+1}, s{ptr+1}")
        else:
            A(f"s_add_u32 s{r}, s{ptr}, {add_lo}")
            A(f"s_addc_u32 s{r+1}, s{ptr+1}, 0")
        A(f"s_mov_b32 s{r+2}, {size}")
        A(f"s_mov_b32 s{r+3}, 0x20000")

    def lds_signal(self, off, va, vd):
        A = self.A
        A(f"s_mov_b64 exec, 1")
        A(f"v_mov_b32 v{va}, {off}")
        A(f"v_mov_b32 v{vd}, 1")
        A(f"ds_add_u32 v{va}, v{vd}")
        A(f"s_mov_b64 exec, -1")

    def lds_wait(self, off, val, va, vd, sleep=1):
        A = self.A
        lp = A.label(); ex = A.label()
        A(f"v_mov_b32 v{va}, {off}")
        A(f"s_mov_b32 s{S_CNT}, 0")
        A.place(lp)
        A(f"ds_read_b32 v{vd}, v{va}")
        A(f"s_waitcnt lgkmcnt(0)")
        A(f"v_readfirstlane_b32 s{S_T5}, v{vd}")
        A(f"s_cmp_ge_u32 s{S_T5}, {val}")
        A(f"s_cbranch_scc1 {ex}")
        A(f"s_add_u32 s{S_CNT}, s{S_CNT}, 1")
        A(f"s_cmp_gt_u32 s{S_CNT}, {SPIN*4}")
        A(f"s_cbranch_scc1 {ex}")
        if sleep: A(f"s_sleep {sleep}")
        A(f"s_branch {lp}")
        A.place(ex)

    def allreduce2(self, a, b, ta, tb, op="v_add_f32"):
        A = self.A
        for r in (8, 4, 2, 1):
            A(f"{op}_dpp v{a}, v{a}, v{a} row_ror:{r} row_mask:0xf bank_mask:0xf")
            A(f"{op}_dpp v{b}, v{b}, v{b} row_ror:{r} row_mask:0xf bank_mask:0xf")
        for sw in ("v_permlane16_swap_b32", "v_permlane32_swap_b32"):
            A(f"v_mov_b32 v{ta}, v{a}")
            A(f"v_mov_b32 v{tb}, v{b}")
            A(f"{sw} v{a}, v{ta}")
            A(f"{sw} v{b}, v{tb}")
            A(f"{op} v{a}, v{a}, v{ta}")
            A(f"{op} v{b}, v{b}, v{tb}")

    def rnd_bf16(self, d, s):
        A = self.A
        A(f"v_cvt_pk_bf16_f32 v{d}, v{s}, v{s}")
        A(f"v_lshlrev_b32 v{d}, 16, v{d}")

    def ln_stats(self, F, D, s1, s2, t1, t2, vmb, vrs):
        A = self.A
        A(f"v_readfirstlane_b32 s{S_T4}, v{F}")
        for i in range(0, 16, 2):
            A(f"v_pk_add_f32 {vr(D+i,2)}, {vr(F+i,2)}, s[{S_T4}:{S_T4+1}] op_sel_hi:[1,0] neg_lo:[0,1] neg_hi:[0,1]")
        A(f"v_pk_add_f32 {vr(s1,2)}, {vr(D,2)}, {vr(D+2,2)}")
        A(f"v_pk_mul_f32 {vr(s2,2)}, {vr(D,2)}, {vr(D,2)}")
        A(f"v_pk_fma_f32 {vr(s2,2)}, {vr(D+2,2)}, {vr(D+2,2)}, {vr(s2,2)}")
        for i in range(4, 16, 2):
            A(f"v_pk_add_f32 {vr(s1,2)}, {vr(s1,2)}, {vr(D+i,2)}")
            A(f"v_pk_fma_f32 {vr(s2,2)}, {vr(D+i,2)}, {vr(D+i,2)}, {vr(s2,2)}")
        A(f"v_add_f32 v{s1}, v{s1}, v{s1+1}")
        A(f"v_add_f32 v{s2}, v{s2}, v{s2+1}")
        self.allreduce2(s1, s2, t1, t2)
        A(f"v_mul_f32 v{s1}, 0x3a800000, v{s1}")
        A(f"v_mul_f32 v{s2}, 0x3a800000, v{s2}")
        A(f"v_add_f32 v{vmb}, s{S_T4}, v{s1}")
        A(f"v_fma_f32 v{vrs}, -v{s1}, v{s1}, v{s2}")
        A(f"v_max_f32 v{vrs}, 0, v{vrs}")
        A(f"v_cvt_pk_bf16_f32 v{vmb}, v{vmb}, v{vrs}")
        A(f"v_and_b32 v{vrs}, 0xffff0000, v{vmb}")
        A(f"v_lshlrev_b32 v{vmb}, 16, v{vmb}")
        A(f"v_add_f32 v{vrs}, 0x3727c5ac, v{vrs}")
        self.rnd_bf16(vrs, vrs)
        A(f"v_sqrt_f32 v{vrs}, v{vrs}")
        self.rnd_bf16(vrs, vrs)
        A(f"v_rcp_f32 v{vrs}, v{vrs}")

    def ln_apply(self, d, f, vmb, vrs, t):
        A = self.A
        A(f"v_pk_add_f32 {vr(t,2)}, {vr(f,2)}, {vr(vmb,2)} op_sel_hi:[1,0] neg_lo:[0,1] neg_hi:[0,1]")
        A(f"v_cvt_pk_bf16_f32 v{t}, v{t}, v{t+1}")
        A(f"v_and_b32 v{t+1}, 0xffff0000, v{t}")
        A(f"v_lshlrev_b32 v{t}, 16, v{t}")
        A(f"v_pk_mul_f32 {vr(t,2)}, {vr(t,2)}, {vr(vrs,2)} op_sel_hi:[1,0]")
        A(f"v_cvt_pk_bf16_f32 v{d}, v{t}, v{t+1}")

    LIGHT_TAIL = {0: 0, 6: 1, 7: 2, 16: 3, 8: 4, 9: 5}
    LIGHT_EARLY = {0: 0, 15: 1, 3: 2, 4: 3, 14: 4, 6: 5}
    LIGHT_SVC = {0: 0, 13: 1, 1: 2, 11: 3, 2: 4, 12: 5}
    @property
    def LIGHT(self): return {"tail": self.LIGHT_TAIL, "early": self.LIGHT_EARLY, "svc": self.LIGHT_SVC}[self.stamps]
    def stamp(self, idx):
        if self.stamps in ("tail", "early", "svc"):
            if idx in self.LIGHT:
                j = 4 + 2 * self.LIGHT[idx]
                self.A(f"s_memrealtime s[{j}:{j+1}]")
            return
        if not self.stamps: return
        A = self.A
        A(f"s_memrealtime s[4:5]")
        A(f"s_waitcnt lgkmcnt(0)")
        A(f"s_lshl_b32 s6, s{S_WG}, 3")
        A(f"s_add_u32 s6, s6, s{S_WAVE}")
        A(f"s_lshl_b32 s6, s6, 7")
        A(f"s_add_u32 s6, s6, {WS_DBG + 0x100000 + idx*4}")
        A(f"s_mov_b64 s[8:9], exec")
        A(f"s_mov_b64 exec, 1")
        A(f"v_mov_b32 v254, s4")
        A(f"v_mov_b32 v255, 0")
        A(f"buffer_store_dword v254, v255, {srd(R_WS)}, s6 offen")
        A(f"s_mov_b64 exec, s[8:9]")

    def stampval(self, idx, sreg):
        if not self.stamps or self.stamps in ("tail", "early", "svc"): return
        A = self.A
        A(f"s_lshl_b32 s6, s{S_WG}, 3")
        A(f"s_add_u32 s6, s6, s{S_WAVE}")
        A(f"s_lshl_b32 s6, s6, 7")
        A(f"s_add_u32 s6, s6, {WS_DBG + 0x100000 + idx*4}")
        A(f"s_mov_b64 s[8:9], exec")
        A(f"s_mov_b64 exec, 1")
        A(f"v_mov_b32 v254, s{sreg}")
        A(f"v_mov_b32 v255, 0")
        A(f"buffer_store_dword v254, v255, {srd(R_WS)}, s6 offen")
        A(f"s_mov_b64 exec, s[8:9]")

    def cstamp(self, idx):
        if not self.stamps or self.stamps in ("tail", "early", "svc"): return
        A = self.A
        A(f"s_memtime s[10:11]")
        A(f"s_waitcnt lgkmcnt(0)")
        self.stampval(idx, 10)

    def quad_gather(self, d, src):
        A = self.A
        A(f"v_mov_b32_dpp v{d+1}, v{src} quad_perm:[1,1,1,1] row_mask:0xf bank_mask:0xf")
        A(f"v_mov_b32_dpp v{d+2}, v{src} quad_perm:[2,2,2,2] row_mask:0xf bank_mask:0xf")
        A(f"v_mov_b32_dpp v{d+3}, v{src} quad_perm:[3,3,3,3] row_mask:0xf bank_mask:0xf")
        if d != src: A(f"v_mov_b32 v{d}, v{src}")
    def even_gather(self, d, src):
        A = self.A
        A(f"v_mov_b32_dpp v{d+1}, v{src} row_shl:2 row_mask:0xf bank_mask:0xf")
        A(f"v_mov_b32_dpp v{d+2}, v{src} row_shl:4 row_mask:0xf bank_mask:0xf")
        A(f"v_mov_b32_dpp v{d+3}, v{src} row_shl:6 row_mask:0xf bank_mask:0xf")
        if d != src: A(f"v_mov_b32 v{d}, v{src}")

    def hint_add(self, off, va, vd):
        A = self.A
        A(f"v_mov_b32 v{va}, {off}")
        A(f"v_mov_b32 v{vd}, 1")
        A(f"s_mov_b64 exec, 1")
        A(f"buffer_atomic_add v{vd}, v{va}, {srd(R_WS)}, 0 offen sc1")
        A(f"s_mov_b64 exec, -1")
    def hint_wait(self, off, target, va, vd, sleep):
        A = self.A
        lp = A.label(); ex = A.label()
        A(f"s_cmp_eq_u32 s{S_WAVE}, 0")
        A(f"s_cbranch_scc0 {ex}")
        A(f"v_mov_b32 v{va}, {off}")
        A(f"s_mov_b32 s{S_CNT}, 0")
        A(f"s_mov_b64 exec, 1")
        A.place(lp)
        A(f"buffer_load_dword v{vd}, v{va}, {srd(R_WS)}, 0 offen {self.LP}")
        A("s_waitcnt vmcnt(0)")
        A(f"v_readfirstlane_b32 s{S_T5}, v{vd}")
        A(f"s_add_u32 s{S_T5}, s{S_T5}, 1")
        A(f"s_cmp_ge_u32 s{S_T5}, {target}")
        A(f"s_cbranch_scc1 {ex}")
        A(f"s_add_u32 s{S_CNT}, s{S_CNT}, 1")
        A(f"s_cmp_gt_u32 s{S_CNT}, {SPIN}")
        A(f"s_cbranch_scc1 {ex}")
        A(f"s_sleep {sleep}")
        A(f"s_branch {lp}")
        A.place(ex)
        A("s_mov_b64 exec, -1")
        A("s_barrier")

    def local_flag(self):
        A = self.A
        A(f"v_and_b32 v4, 31, v1")
        A(f"v_lshlrev_b32 v4, 5, v4")
        A(f"s_lshl_b32 s{S_T5}, s{S_B}, 2")
        A(f"s_add_u32 s{S_T5}, s{S_T5}, {LDS_XCC}")
        A(f"v_add_u32 v4, s{S_T5}, v4")
        A(f"ds_read_b32 v5, v4")
        A(f"s_waitcnt lgkmcnt(0)")
        A(f"v_readfirstlane_b32 s{S_LOC}, v5")
        A(f"v_cmp_ne_u32 vcc, s{S_LOC}, v5")
        A(f"s_cmp_eq_u64 vcc, 0")
        A(f"s_cselect_b32 s{S_LOC}, 1, 0")
        if self.nolocal: A(f"s_mov_b32 s{S_LOC}, 0")
    def store_sel(self, ins):
        A = self.A
        l1 = A.label(); l2 = A.label()
        A(f"s_cmp_eq_u32 s{S_LOC}, 1")
        A(f"s_cbranch_scc1 {l1}")
        A(f"{ins} sc0 sc1")
        A(f"s_branch {l2}")
        A.place(l1)
        A(ins)
        A.place(l2)

    def sample_wait(self, need_all, va, vd, sleep):
        A = self.A
        lp = A.label(); ex = A.label()
        A(f"s_cmp_eq_u32 s{S_WAVE}, 0")
        A(f"s_cbranch_scc0 {ex}")
        A(f"v_lshlrev_b32 v{va}, 8, v1")
        A(f"v_add_u32 v{va}, {WS_H + 7*32}, v{va}")
        A(f"s_mov_b32 s{S_CNT}, 0")
        A(f"s_mov_b64 exec, 0xff")
        A.place(lp)
        A(f"buffer_load_dword v{vd}, v{va}, {srd(R_WS)}, 0 offen {self.LP}")
        A("s_waitcnt vmcnt(0)")
        if need_all:
            A(f"v_cmp_eq_u32 vcc, -1, v{vd}")
            A(f"s_cbranch_vccz {ex}")
        else:
            A(f"v_cmp_ne_u32 vcc, -1, v{vd}")
            A(f"s_cbranch_vccnz {ex}")
        A(f"s_add_u32 s{S_CNT}, s{S_CNT}, 1")
        A(f"s_cmp_gt_u32 s{S_CNT}, 4000")
        A(f"s_cbranch_scc1 {ex}")
        A(f"s_sleep {sleep}")
        A(f"s_branch {lp}")
        A.place(ex)
        A("s_mov_b64 exec, -1")
        A("s_waitcnt vmcnt(0)")
        A("s_barrier")

    def maxred(self, tmp, regs):
        A = self.A
        rs = list(regs)
        if len(rs) == 1:
            return rs[0]
        if len(rs) == 2:
            A(f"v_max_u32 v{tmp}, v{rs[0]}, v{rs[1]}"); return tmp
        A(f"v_max3_u32 v{tmp}, v{rs[0]}, v{rs[1]}, v{rs[2]}")
        rs = rs[3:]
        while len(rs) >= 2:
            A(f"v_max3_u32 v{tmp}, v{tmp}, v{rs[0]}, v{rs[1]}")
            rs = rs[2:]
        if rs:
            A(f"v_max_u32 v{tmp}, v{tmp}, v{rs[0]}")
        return tmp

    def prepoll(self, load, reg, mask=None, sleep=4, need_all=False):
        A = self.A
        lp = A.label(); ex = A.label()
        if mask is not None:
            A(f"s_mov_b64 exec, s[{mask}:{mask+1}]")
        A(f"s_mov_b32 s{S_CNT}, 0")
        A.place(lp)
        A(load)
        A("s_waitcnt vmcnt(0)")
        if need_all:
            A(f"v_cmp_eq_u32 vcc, -1, v{reg}")
            A(f"s_cbranch_vccz {ex}")
        else:
            A(f"v_cmp_ne_u32 vcc, -1, v{reg}")
            A(f"s_cbranch_vccnz {ex}")
        A(f"s_add_u32 s{S_CNT}, s{S_CNT}, 1")
        A(f"s_cmp_gt_u32 s{S_CNT}, {SPIN}")
        A(f"s_cbranch_scc1 {ex}")
        A(f"s_sleep {sleep}")
        A(f"s_branch {lp}")
        A.place(ex)
        A(f"s_mov_b64 exec, -1")
        self.stamp(16)

    def poll_groups(self, groups, tmp, mask=None, sleep=0):
        A = self.A
        G = len(groups)
        lp = A.label(); ex = A.label()
        for g in range(G):
            m = S_PM + 2 * g
            if mask is None: A(f"s_mov_b64 s[{m}:{m+1}], -1")
            else: A(f"s_mov_b64 s[{m}:{m+1}], s[{mask}:{mask+1}]")
        A(f"s_mov_b32 s{S_CNT}, 0")
        A.place(lp)
        for g, (loads, regs) in enumerate(groups):
            m = S_PM + 2 * g
            sk = A.label()
            A(f"s_mov_b64 exec, s[{m}:{m+1}]")
            if G > 1: A(f"s_cbranch_execz {sk}")
            for l in loads: A(l)
            if G > 1: A.place(sk)
        A("s_waitcnt vmcnt(0)")
        for g, (loads, regs) in enumerate(groups):
            m = S_PM + 2 * g
            A(f"s_mov_b64 exec, s[{m}:{m+1}]")
            t = self.maxred(tmp, regs)
            A(f"v_cmp_eq_u32_e64 s[{m}:{m+1}], -1, v{t}")
        if G == 1:
            A(f"s_cmp_eq_u64 s[{S_PM}:{S_PM+1}], 0")
        else:
            A(f"s_or_b64 s[{S_EX}:{S_EX+1}], s[{S_PM}:{S_PM+1}], s[{S_PM+2}:{S_PM+3}]")
            for g in range(2, G):
                m = S_PM + 2 * g
                A(f"s_or_b64 s[{S_EX}:{S_EX+1}], s[{S_EX}:{S_EX+1}], s[{m}:{m+1}]")
            A(f"s_cmp_eq_u64 s[{S_EX}:{S_EX+1}], 0")
        A(f"s_cbranch_scc1 {ex}")
        A(f"s_add_u32 s{S_CNT}, s{S_CNT}, 1")
        if sleep: A(f"s_sleep {sleep}")
        A(f"s_cmp_gt_u32 s{S_CNT}, {SPIN}")
        A(f"s_cbranch_scc0 {lp}")
        A.place(ex)
        A(f"s_mov_b64 exec, -1")

    def poll_pipe(self, loads, regs, tmp, mask=None, depth=4, sleep=2):
        A = self.A
        n = len(loads)
        lp = A.label(); ex = A.label()
        for r in regs:
            A(f"v_mov_b32 v{r}, -1")
        if mask is not None:
            A(f"s_mov_b64 exec, s[{mask}:{mask+1}]")
        A(f"s_mov_b32 s{S_CNT}, 0")
        A.place(lp)
        for l in loads: A(l)
        if sleep: A(f"s_sleep {sleep}")
        A(f"s_waitcnt vmcnt({(depth-1)*n})")
        t = self.maxred(tmp, regs)
        A(f"v_cmp_eq_u32 vcc, -1, v{t}")
        A(f"s_cbranch_vccz {ex}")
        A(f"s_mov_b64 exec, vcc")
        A(f"s_add_u32 s{S_CNT}, s{S_CNT}, 1")
        A(f"s_cmp_gt_u32 s{S_CNT}, {SPIN}")
        A(f"s_cbranch_scc0 {lp}")
        A.place(ex)
        A(f"s_mov_b64 exec, -1")

    def role_params(self):
        A = self.A
        lG, lD, lN, lE = A.label(), A.label(), A.label(), A.label()
        A(f"""
        s_mov_b32 s{S_JJ}, 999
        s_mov_b32 s{S_JA}, 0
        s_cmp_ge_u32 s{S_H}, 8
        s_cbranch_scc1 {lG}
        s_mov_b32 s{S_ROLE}, 0
        s_mov_b32 s{S_J1}, 24
        s_mov_b32 s{S_PITCH}, 2048
        s_mov_b32 s{S_NJ}, 32
        s_lshr_b32 s{S_T0}, s{S_H}, 1
        s_lshl_b32 s{S_T0}, s{S_T0}, 21
        s_and_b32 s{S_T1}, s{S_H}, 1
        s_lshl_b32 s{S_T2}, s{S_B}, 1
        s_add_u32 s{S_T1}, s{S_T1}, s{S_T2}
        s_lshl_b32 s{S_T1}, s{S_T1}, 7
        s_add_u32 s{S_T0}, s{S_T0}, s{S_T1}
        s_add_u32 s{R_WT}, s{S_WO}, s{S_T0}
        s_addc_u32 s{R_WT+1}, s{S_WO+1}, 0
        s_sub_u32 s{R_WT+2}, {8<<20}, s{S_T0}
        s_branch {lE}
        """)
        A.place(lG)
        A(f"""
        s_cmp_ge_u32 s{S_H}, 22
        s_cbranch_scc1 {lD}
        s_mov_b32 s{S_ROLE}, 1
        s_mov_b32 s{S_J1}, {self.JU}
        s_mov_b32 s{S_PITCH}, 7168
        s_mov_b32 s{S_NJ}, 32
        s_sub_u32 s{S_T0}, s{S_H}, 8
        s_lshr_b32 s{S_T1}, s{S_T0}, 1
        s_mul_i32 s{S_T2}, s{S_B}, 7
        s_add_u32 s{S_T1}, s{S_T1}, s{S_T2}
        s_lshl_b32 s{S_T1}, s{S_T1}, 7
        s_bitcmp1_b32 s{S_T0}, 0
        s_cselect_b32 s{S_T2}, s{S_WU}, s{S_WG_}
        s_cselect_b32 s{S_T3}, s{S_WU+1}, s{S_WG_+1}
        s_add_u32 s{R_WT}, s{S_T2}, s{S_T1}
        s_addc_u32 s{R_WT+1}, s{S_T3}, 0
        s_sub_u32 s{R_WT+2}, {7340032}, s{S_T1}
        s_branch {lE}
        """)
        A.place(lD)
        A(f"""
        s_cmp_ge_u32 s{S_H}, 30
        s_cbranch_scc1 {lN}
        s_mov_b32 s{S_ROLE}, 2
        s_mov_b32 s{S_J1}, {self.JU}
        s_mov_b32 s{S_PITCH}, 2048
        s_mov_b32 s{S_NJ}, 28
        s_mov_b32 s{S_JJ}, 14
        s_mov_b32 s{S_JA}, {(128 - 448*2048) & 0xffffffff}
        s_mul_i32 s{S_T1}, s{S_B}, {448*2048}
        s_sub_u32 s{S_T0}, s{S_H}, 22
        s_lshl_b32 s{S_T0}, s{S_T0}, 8
        s_add_u32 s{S_T0}, s{S_T0}, s{S_T1}
        s_add_u32 s{R_WT}, s{S_WD}, s{S_T0}
        s_addc_u32 s{R_WT+1}, s{S_WD+1}, 0
        s_sub_u32 s{R_WT+2}, {7340032}, s{S_T0}
        s_branch {lE}
        """)
        A.place(lN)
        A(f"""
        s_mov_b32 s{S_ROLE}, 3
        s_mov_b32 s{S_J1}, 0
        s_mov_b32 s{S_PITCH}, 2048
        s_mov_b32 s{S_NJ}, 0
        s_mov_b32 s{R_WT}, s{S_WD}
        s_mov_b32 s{R_WT+1}, s{S_WD+1}
        s_mov_b32 s{R_WT+2}, 0
        """)
        A.place(lE)
        A(f"s_mov_b32 s{R_WT+3}, 0x20000")

    def entry(self):
        A = self.A
        A.header(256, 512, LDS_BYTES, comments=[
            "Fused decode layer: preLN + MHA over KV cache + out-proj + preLN + GEGLU FFN (one persistent launch, 256 WGs x 512).",
        ])
        A(f"""
        s_cmp_ge_u32 s2, 256
        s_cbranch_scc1 L_end
        s_load_dwordx16 s[16:31], s[0:1], 0
        s_load_dwordx8 s[32:39], s[0:1], 64
        v_and_b32 v1, 63, v0
        v_lshrrev_b32 v4, 6, v0
        v_lshlrev_b32 v2, 4, v1
        v_readfirstlane_b32 s{S_WAVE}, v4
        v_lshlrev_b32 v3, 2, v1
        s_lshr_b32 s{S_H}, s2, 3
        s_and_b32 s{S_B}, s2, 7
        s_mov_b32 s{S_M1}, 0x22222222
        s_mov_b32 s{S_M1+1}, 0x22222222
        s_mov_b32 s{S_M2}, 0x44444444
        s_mov_b32 s{S_M2+1}, 0x44444444
        s_mov_b32 s{S_M3}, 0x88888888
        s_mov_b32 s{S_M3+1}, 0x88888888
        s_mov_b32 s{S_MJ8}, 0x00ff00ff
        s_mov_b32 s{S_MJ8+1}, 0x00ff00ff
        s_mov_b32 s{S_MQ}, 0x11111111
        s_mov_b32 s{S_MQ+1}, 0x11111111
        s_mov_b32 s{S_ME}, 0x01010101
        s_mov_b32 s{S_ME+1}, 0x01010101
        v_mov_b32 v204, 0
        v_mov_b32 v4, {LDS_CNT}
        v_mov_b32 v6, 0
        v_mov_b32 v7, 0
        ds_write_b64 v4, v[6:7]
        ds_write_b64 v4, v[6:7] offset:8
        v_mov_b32 v7, {self.N}
        ds_write_b64 v4, v[6:7] offset:16
        s_and_b32 s{S_SW}, s{S_WAVE}, 3
        s_mov_b64 s[4:5], 0
        s_mov_b64 s[6:7], 0
        s_mov_b64 s[8:9], 0
        s_mov_b64 s[10:11], 0
        s_mov_b64 s[12:13], 0
        s_mov_b64 s[14:15], 0
        s_cmp_ge_u32 s{S_WAVE}, 4
        s_cbranch_scc1 L_stream
        """)

    def service(self):
        A = self.A
        A.c("==== service waves: LN(x), q partial, exchange ====")
        A(f"""
        v_lshrrev_b32 v4, 4, v1
        v_and_b32 v5, 15, v1
        s_lshr_b32 s{S_T0}, s{S_SW}, 1
        s_lshl_b32 s{S_T0}, s{S_T0}, 2
        v_or_b32 v6, s{S_T0}, v4
        v_lshlrev_b32 v6, 1, v6
        v_xor_b32 v6, v6, v5
        v_lshlrev_b32 v6, 4, v6
        v_lshlrev_b32 v7, 13, v4
        v_add_u32 v6, v6, v7
        s_lshl_b32 s{S_T0}, s{S_B}, 20
        s_lshl_b32 s{S_T1}, s{S_SW}, 15
        s_add_u32 s{S_T0}, s{S_T0}, s{S_T1}
        s_lshl_b32 s{S_T1}, s{S_H}, 8
        s_add_u32 s{S_T0}, s{S_T0}, s{S_T1}
        s_lshl_b32 s{S_T1}, s{S_SW}, 10
        s_add_u32 s{S_T1}, s{S_T1}, {LDS_WQ}
        s_lshl_b32 s{S_T2}, s{S_SW}, 12
        v_mov_b32 v126, 0
        s_mov_b32 s{S_T3}, {WS_EPOCH}
        s_waitcnt lgkmcnt(0)
        """)
        self.mk_srd(R_X, S_X, 16384)
        A(f"buffer_load_dwordx4 v[8:11], v2, {srd(R_X)}, s{S_T2} offen")
        A(f"buffer_load_dwordx4 v[12:15], v2, {srd(R_X)}, s{S_T2} offen offset:1024")
        A(f"buffer_load_dwordx4 v[16:19], v2, {srd(R_X)}, s{S_T2} offen offset:2048")
        A(f"buffer_load_dwordx4 v[20:23], v2, {srd(R_X)}, s{S_T2} offen offset:3072")
        self.mk_srd(R_WQ, S_WQ, 8 << 20)
        for j in range(8):
            A(f"s_mov_b32 m0, s{S_T1}")
            A(f"s_add_u32 s{S_T1}, s{S_T1}, 4096")
            A(f"buffer_load_dwordx4 v6, {srd(R_WQ)}, s{S_T0} offen {self.WP} lds")
            if j < 7:
                A(f"s_add_u32 s{S_T0}, s{S_T0}, {4*32768}")
        self.mk_srd(R_WS, S_WS, WS_SIZE)
        A(f"buffer_load_dword v126, v126, {srd(R_WS)}, s{S_T3} offen {self.LP}")
        A("s_barrier")
        self.stamp(0)
        if self.stamps and self.stamps not in ("tail", "early", "svc"):
            A("s_getreg_b32 s10, hwreg(HW_REG_XCC_ID)")
            self.stampval(31, 10)
        A(f"""
        v_mov_b32 v24, -1
        v_mov_b32 v25, -1
        v_mov_b32 v26, -1
        v_mov_b32 v27, -1
        s_lshl_b32 s{S_T0}, s2, 12
        s_lshl_b32 s{S_T1}, s{S_SW}, 10
        s_add_u32 s{S_T0}, s{S_T0}, s{S_T1}
        s_add_u32 s{S_T0}, s{S_T0}, {WS_SLOT}
        buffer_store_dwordx4 v[24:27], v2, {srd(R_WS)}, s{S_T0} offen sc0 sc1
        """)
        nst = 2 if (self.stamps and self.stamps not in ('tail', 'early', 'svc')) else 0
        self.role_params()
        A(f"s_waitcnt vmcnt({10 + nst})")
        self.stamp(10)
        F, D = 32, 48
        S1, S2, T1, T2, VMB, VRS = 64, 66, 68, 69, 70, 72
        for r in range(2):
            base = 8 + 8 * r
            for i in range(8):
                A(f"v_lshlrev_b32 v{F+2*i}, 16, v{base+i}")
                A(f"v_and_b32 v{F+2*i+1}, 0xffff0000, v{base+i}")
            self.ln_stats(F, D, S1, S2, T1, T2, VMB, VRS)
            lab = A.label()
            A(f"s_cmp_lt_u32 s{S_B}, 4")
            A(f"s_cbranch_scc1 {lab}")
            for i in range(0, 8, 2):
                A(f"v_pk_mov_b32 {vr(F+i,2)}, {vr(F+8+i,2)}, {vr(F+8+i,2)} op_sel:[0,1]")
            A.place(lab)
            for i in range(4):
                self.ln_apply(76 + i, F + 2*i, VMB, VRS, 74)
            A(f"""
            s_and_b32 s{S_T0}, s{S_B}, 3
            s_lshl_b32 s{S_T0}, s{S_T0}, 4
            s_mov_b64 s[{S_EX}:{S_EX+1}], 0xffff
            s_lshl_b64 s[{S_EX}:{S_EX+1}], s[{S_EX}:{S_EX+1}], s{S_T0}
            s_lshl_b32 s{S_T1}, s{S_SW}, 1
            s_add_u32 s{S_T1}, s{S_T1}, {r}
            s_mul_i32 s{S_T1}, s{S_T1}, 272
            s_add_u32 s{S_T1}, s{S_T1}, {LDS_XN}
            v_and_b32 v80, 15, v1
            v_lshlrev_b32 v80, 4, v80
            v_add_u32 v80, s{S_T1}, v80
            s_mov_b64 exec, s[{S_EX}:{S_EX+1}]
            ds_write_b128 v80, v[76:79]
            s_mov_b64 exec, -1
            """)
        self.stamp(12)
        A(f"""
        v_and_b32 v58, 7, v1
        v_mul_u32_u24 v58, 272, v58
        v_lshrrev_b32 v59, 4, v1
        v_lshlrev_b32 v60, 4, v59
        v_add_u32 v58, v58, v60
        v_add_u32 v58, {LDS_XN}, v58
        v_and_b32 v60, 15, v1
        v_lshrrev_b32 v61, 2, v60
        v_and_b32 v62, 3, v60
        v_and_b32 v63, 1, v59
        v_lshlrev_b32 v63, 2, v63
        v_or_b32 v63, v63, v61
        v_lshlrev_b32 v80, 3, v59
        v_add_u32 v80, v80, v61
        v_lshlrev_b32 v80, 8, v80
        v_lshlrev_b32 v62, 3, v62
        v_add_u32 v80, v80, v62
        v_add_u32 v80, {LDS_WQ}, v80
        s_lshl_b32 s{S_T0}, s{S_SW}, 1
        v_xor_b32 v81, s{S_T0}, v63
        v_lshlrev_b32 v81, 5, v81
        v_add_u32 v81, v81, v80
        s_add_u32 s{S_T0}, s{S_T0}, 1
        v_xor_b32 v82, s{S_T0}, v63
        v_lshlrev_b32 v82, 5, v82
        v_add_u32 v82, v82, v80
        v_and_b32 v56, 15, v1
        v_lshlrev_b32 v56, 12, v56
        v_lshlrev_b32 v60, 4, v59
        v_add_u32 v56, v56, v60
        """)
        A(f"s_waitcnt vmcnt({2 + 2*nst}) lgkmcnt(0)")
        self.stamp(13)
        self.lds_signal(LDS_CNT + 0, 124, 125)
        self.lds_wait(LDS_CNT + 0, 4, 124, 125, sleep=0)
        for s in range(4):
            A(f"ds_read_b128 {vr(64+4*s,4)}, v58 offset:{s*64}")
        for c in range(2):
            for s in range(4):
                r = 84 + (c * 4 + s) * 4
                A(f"ds_read_b64_tr_b16 {vr(r,2)}, v{81+c} offset:{s*8192}")
                A(f"ds_read_b64_tr_b16 {vr(r+2,2)}, v{81+c} offset:{s*8192+1024}")
        A(f"""
        s_lshl_b32 s{S_T0}, s{S_H}, 15
        s_lshl_b32 s{S_T1}, s{S_B}, 9
        s_add_u32 s{S_T0}, s{S_T0}, s{S_T1}
        s_lshl_b32 s{S_T1}, s{S_SW}, 7
        s_add_u32 s{S_T0}, s{S_T0}, s{S_T1}
        s_waitcnt lgkmcnt(0)
        """)
        for s in range(4):
            for c in range(2):
                r = 84 + (c * 4 + s) * 4
                acc = 116 + 4 * c
                src = "0" if s == 0 else vr(acc, 4)
                A(f"v_mfma_f32_16x16x32_bf16 {vr(acc,4)}, {vr(r,4)}, {vr(64+4*s,4)}, {src}")
        self.lds_signal(LDS_CNT + 4, 124, 125)
        A(f"""
        s_mov_b64 exec, s[{S_MJ8}:{S_MJ8+1}]
        buffer_store_dwordx4 v[116:119], v56, {srd(R_WS)}, s{S_T0} offen sc0 sc1
        buffer_store_dwordx4 v[120:123], v56, {srd(R_WS)}, s{S_T0} offen offset:64 sc0 sc1
        s_mov_b64 exec, -1
        s_lshl_b32 s{S_T0}, s{S_H}, 7
        s_add_u32 s{S_T0}, s{S_T0}, {WS_FLAG}
        s_lshl_b32 s{S_T1}, s{S_B}, 4
        s_lshl_b32 s{S_T2}, s{S_SW}, 2
        s_add_u32 s{S_T1}, s{S_T1}, s{S_T2}
        s_getreg_b32 s{S_XCC}, hwreg(HW_REG_XCC_ID)
        s_and_b32 s{S_XCC}, s{S_XCC}, 7
        s_lshl_b32 s{S_XCC}, s{S_XCC}, 24
        v_mov_b32 v58, s{S_T1}
        s_waitcnt vmcnt(0)
        v_readfirstlane_b32 s{S_TAG}, v126
        s_add_u32 s{S_TAG}, s{S_TAG}, 1
        s_add_u32 s{S_XCC}, s{S_XCC}, s{S_TAG}
        v_mov_b32 v59, s{S_XCC}
        s_mov_b64 exec, 1
        buffer_store_dword v59, v58, {srd(R_WS)}, s{S_T0} offen sc0 sc1
        s_mov_b64 exec, -1
        """)
        self.stamp(1)
        A(f"s_cmp_eq_u32 s{S_SW}, 0")
        A(f"s_cbranch_scc0 L_svc_done")
        lp = A.label(); ex = A.label()
        A(f"s_mov_b64 exec, 0xffffffff")
        A(f"s_mov_b32 s{S_CNT}, 0")
        A.place(lp)
        A(f"""
        buffer_load_dword v60, v3, {srd(R_WS)}, s{S_T0} offen {self.LP}
        s_waitcnt vmcnt(0)
        v_subrev_u32 v60, s{S_TAG}, v60
        v_and_b32 v60, 0xf8ffffff, v60
        v_cmp_ne_u32 vcc, 0, v60
        s_cbranch_vccz {ex}
        s_add_u32 s{S_CNT}, s{S_CNT}, 1
        s_cmp_gt_u32 s{S_CNT}, {SPIN}
        s_cbranch_scc0 {lp}
        """)
        A.place(ex)
        A("s_mov_b64 exec, -1")
        self.stamp(11)
        A(f"s_lshl_b32 s{S_T0}, s2, 12")
        for j in range(4):
            A(f"buffer_load_dwordx4 {vr(64+4*j,4)}, v2, {srd(R_WS)}, s{S_T0} offen offset:{j*1024} {self.LP}")
        A(f"""
        v_and_b32 v58, 31, v1
        v_lshlrev_b32 v58, 3, v58
        v_add_u32 v58, {LDS_Q}, v58
        s_waitcnt vmcnt(0)
        """)
        for e in range(0, 4, 2):
            A(f"v_pk_add_f32 {vr(64+e,2)}, {vr(64+e,2)}, {vr(68+e,2)}")
            A(f"v_pk_add_f32 {vr(72+e,2)}, {vr(72+e,2)}, {vr(76+e,2)}")
        for e in range(0, 4, 2):
            A(f"v_pk_add_f32 {vr(64+e,2)}, {vr(64+e,2)}, {vr(72+e,2)}")
        for e in range(4):
            A(f"v_mov_b32 v{68+e}, v{64+e}")
        for e in range(4):
            A(f"v_permlane32_swap_b32 v{64+e}, v{68+e}")
        for e in range(0, 4, 2):
            A(f"v_pk_add_f32 {vr(64+e,2)}, {vr(64+e,2)}, {vr(68+e,2)}")
        A(f"""
        v_cvt_pk_bf16_f32 v64, v64, v65
        v_cvt_pk_bf16_f32 v65, v66, v67
        ds_write_b64 v58, v[64:65]
        s_waitcnt lgkmcnt(0)
        """)
        self.lds_signal(LDS_CNT + 12, 124, 125)
        self.stamp(2)
        if self.debug:
            A(f"""
            v_and_b32 v58, 31, v1
            v_lshlrev_b32 v58, 3, v58
            s_lshl_b32 s{S_T0}, s2, 8
            s_add_u32 s{S_T0}, s{S_T0}, {WS_DBG}
            buffer_store_dwordx2 v[64:65], v58, {srd(R_WS)}, s{S_T0} offen
            """)
        lp = A.label(); ex = A.label()
        A(f"s_mov_b32 s{S_T0}, {WS_FLAG}")
        A(f"s_mov_b32 s{S_CNT}, 0")
        A.place(lp)
        for j in range(4):
            A(f"buffer_load_dwordx4 {vr(64+4*j,4)}, v2, {srd(R_WS)}, s{S_T0} offen offset:{j*1024} {self.LP}")
        A("s_waitcnt vmcnt(0)")
        for i in range(16):
            A(f"v_subrev_u32 v{64+i}, s{S_TAG}, v{64+i}")
        for i in range(16):
            A(f"v_and_b32 v{80+i}, 0xf8ffffff, v{64+i}")
        t = self.maxred(60, range(80, 96))
        A(f"""
        v_cmp_ne_u32 vcc, 0, v{t}
        s_cbranch_vccz {ex}
        s_add_u32 s{S_CNT}, s{S_CNT}, 1
        s_cmp_gt_u32 s{S_CNT}, {SPIN}
        s_cbranch_scc1 {ex}
        s_sleep 16
        s_branch {lp}
        """)
        A.place(ex)
        A(f"v_add_u32 v60, {LDS_XCC}, v3")
        for t in range(4):
            A(f"ds_write_b32 v60, v{64+4*t} offset:{t*256}")
        A("s_waitcnt lgkmcnt(0)")
        if self.pace:
            self.local_flag()
            self.controller(self.PK0, 13)
            A("s_barrier")
            A("s_barrier")
            self.controller(16, 29)
            A("s_branch L_join3")
        A.place("L_svc_done")
        A("s_barrier")
        A("s_barrier")
        A("s_branch L_join3")

    def controller(self, k0, k1):
        A = self.A
        lp = A.label(); lw = A.label(); lx = A.label(); lend = A.label()
        A(f"s_cmp_eq_u32 s{S_LOC}, 1")
        A(f"s_cbranch_scc0 {lend}")
        A(f"s_mov_b32 s{S_T0}, {k0}")
        A(f"v_mov_b32 v60, {LDS_BLK}")
        A(f"v_mov_b32 v61, {LDS_N}")
        A(f"v_mov_b32 v62, 1")
        A(f"s_lshl_b32 s{S_T3}, s{S_H}, 2")
        A(f"v_mov_b32 v63, s{S_T3}")
        A.place(lp)
        A(f"s_mov_b32 s{S_CNT}, 0")
        A.place(lw)
        A(f"ds_read_b32 v64, v60")
        A(f"s_waitcnt lgkmcnt(0)")
        A(f"v_readfirstlane_b32 s{S_T1}, v64")
        A(f"s_cmp_gt_u32 s{S_T1}, s{S_T0}")
        A(f"s_cbranch_scc1 {lx}")
        A(f"s_add_u32 s{S_CNT}, s{S_CNT}, 1")
        A(f"s_cmp_gt_u32 s{S_CNT}, {SPIN}")
        A(f"s_cbranch_scc1 {lx}")
        A(f"s_sleep 8")
        A(f"s_branch {lw}")
        A.place(lx)
        A(f"s_sub_u32 s{S_T1}, s{S_T1}, 1")
        A(f"s_min_u32 s{S_T0}, s{S_T1}, {k1}")
        A(f"s_lshl_b32 s{S_T2}, s{S_T0}, 10")
        A(f"s_lshl_b32 s{S_T4}, s{S_B}, 7")
        A(f"s_add_u32 s{S_T2}, s{S_T2}, s{S_T4}")
        A(f"s_add_u32 s{S_T2}, s{S_T2}, {WS_PROG}")
        A(f"s_mov_b64 exec, 1")
        A(f"buffer_store_dword v62, v63, {srd(R_WS)}, s{S_T2} offen")
        A(f"s_mov_b64 exec, 0xffffffff")
        A(f"buffer_load_dword v64, v3, {srd(R_WS)}, s{S_T2} offen {self.LP}")
        A(f"s_waitcnt vmcnt(0)")
        A(f"v_cmp_ne_u32 vcc, -1, v64")
        A(f"s_mov_b64 exec, -1")
        A(f"s_bcnt1_i32_b64 s{S_T4}, vcc")
        A(f"s_mov_b32 s{S_T5}, {self.NMIN}")
        for th in self.TH:
            A(f"s_cmp_gt_u32 s{S_T4}, {th}")
            A(f"s_addc_u32 s{S_T5}, s{S_T5}, 0")
        A(f"v_mov_b32 v64, s{S_T5}")
        A(f"ds_write_b32 v61, v64")
        A(f"s_add_u32 s{S_T0}, s{S_T0}, 1")
        A(f"s_cmp_le_u32 s{S_T0}, {k1}")
        A(f"s_cbranch_scc1 {lp}")
        A(f"s_waitcnt lgkmcnt(0)")
        A.place(lend)

    RING = 64
    R = 32
    QF = 8
    VN = 200
    def slot(self, t): return self.RING + 4 * (t % self.R)
    def issue(self, t, which):
        A = self.A
        r = self.slot(t)
        A(f"buffer_load_dwordx4 {vr(r,4)}, v2, {srd(R_K if which == 'K' else R_V)}, s{S_OFF} offen {self.KP if which == 'K' else self.VP}")
        A(f"s_add_u32 s{S_OFF}, s{S_OFF}, 4096")
        if self.rot: A(f"s_and_b32 s{S_OFF}, s{S_OFF}, 0xfffff")

    def vwait(self):
        A = self.A
        if not self.pace and not self.NW and not (self.defer and self.D > self.N):
            A(f"s_waitcnt vmcnt({self.N-1})"); return
        L = A.label()
        lv = list(range(self.D, self.NMIN, -1))
        for n in lv:
            A(f"s_waitcnt vmcnt({n-1})")
            A(f"s_cmp_ge_u32 s{S_NCUR}, {n}")
            A(f"s_cbranch_scc1 {L}")
        A(f"s_waitcnt vmcnt({self.NMIN-1})")
        A.place(L)
    def blk_begin(self):
        if not self.pace: return
        A = self.A
        A(f"s_waitcnt lgkmcnt(0)")
        A(f"v_readfirstlane_b32 s{S_NCUR}, v{self.VN}")
        A(f"ds_read_b32 v{self.VN}, v{self.VN+1}")
    def blk_end(self):
        if not self.pace: return
        A = self.A
        L = A.label()
        A(f"v_add_u32 v{self.VN+2}, 1, v{self.VN+2}")
        A(f"s_cmp_eq_u32 s{S_SW}, 0")
        A(f"s_cbranch_scc0 {L}")
        A(f"ds_write_b32 v{self.VN+1}, v{self.VN+2} offset:-4".replace("offset:-4", "offset:0") if False else f"ds_write_b32 v{self.VN+3}, v{self.VN+2}")
        A.place(L)

    def k_block(self, t0, plan):
        A = self.A
        q = self.QF
        ACC = [12, 13, 14, 15]; B0, B1 = 16, 17; E = [18, 19, 20, 21]; M = 22
        MX = 24; SA = 25
        def reduce_group(c):
            a0, a1, a2, a3 = ACC
            e = E[c]
            A(f"v_add_f32_dpp v{B0}, v{a0}, v{a0} row_ror:8 row_mask:0xf bank_mask:0x3")
            A(f"v_add_f32_dpp v{B1}, v{a2}, v{a2} row_ror:8 row_mask:0xf bank_mask:0x3")
            A(f"v_add_f32_dpp v{B0}, v{a1}, v{a1} row_ror:8 row_mask:0xf bank_mask:0xc")
            A(f"v_add_f32_dpp v{B1}, v{a3}, v{a3} row_ror:8 row_mask:0xf bank_mask:0xc")
            A(f"v_add_f32_dpp v{e}, v{B0}, v{B0} row_half_mirror row_mask:0xf bank_mask:0x5")
            A(f"v_add_f32_dpp v{e}, v{B1}, v{B1} row_half_mirror row_mask:0xf bank_mask:0xa")
            A(f"v_add_f32_dpp v{e}, v{e}, v{e} quad_perm:[1,0,3,2] row_mask:0xf bank_mask:0xf")
            A(f"v_add_f32_dpp v{e}, v{e}, v{e} quad_perm:[2,3,0,1] row_mask:0xf bank_mask:0xf")
        self.blk_begin()
        for t in range(16):
            cnt, iss = plan(t0 + t)
            if cnt is None: self.vwait()
            else: A(f"s_waitcnt vmcnt({cnt})")
            if iss is not None:
                if iss[1] == 'V' and iss[0] == 0:
                    A(f"s_mov_b32 s{S_OFF}, s{S_ROT}")
                self.issue(iss[0], iss[1])
            r = self.slot(t0 + t)
            a = ACC[t % 4]
            A(f"v_dot2_f32_bf16 v{a}, v{r}, v{q}, 0")
            A(f"v_dot2_f32_bf16 v{a}, v{r+1}, v{q+1}, v{a}")
            A(f"v_dot2_f32_bf16 v{a}, v{r+2}, v{q+2}, v{a}")
            A(f"v_dot2_f32_bf16 v{a}, v{r+3}, v{q+3}, v{a}")
            if t % 4 == 3:
                reduce_group(t // 4)
        A(f"v_cndmask_b32 v{M}, v{E[0]}, v{E[1]}, s[{S_M1}:{S_M1+1}]")
        A(f"v_cndmask_b32 v{M}, v{M}, v{E[2]}, s[{S_M2}:{S_M2+1}]")
        A(f"v_cndmask_b32 v{M}, v{M}, v{E[3]}, s[{S_M3}:{S_M3+1}]")
        self.rnd_bf16(M, M)
        A(f"v_mul_f32 v{M}, 0x3db504f3, v{M}")
        self.rnd_bf16(M, M)
        A(f"ds_write_b32 v{SA}, v{M}")
        A(f"v_max_f32 v{MX}, v{MX}, v{M}")
        A(f"v_add_u32 v{SA}, 256, v{SA}")
        self.blk_end()

    def v_block(self, t0, plan, last=False):
        A = self.A
        P, PN, PA = 12, 13, 14
        MK = [16, 17, 18, 19]
        BS = [[20, 21, 22, 23], [24, 25, 26, 27]]
        ACC = 28
        A(f"s_waitcnt lgkmcnt(0)")
        A(f"v_mov_b32 v{P}, v{PN}")
        self.blk_begin()
        if not last:
            A(f"ds_read_b32 v{PN}, v{PA}")
            A(f"v_add_u32 v{PA}, 256, v{PA}")
        for t in range(16):
            cnt, iss = plan(t0 + t)
            if cnt is None: self.vwait()
            else: A(f"s_waitcnt vmcnt({cnt})")
            if iss is not None:
                self.issue(iss[0], iss[1])
            B = BS[t % 2]
            for j in range(4):
                A(f"v_and_b32_dpp v{B[j]}, v{P}, v{MK[j]} row_newbcast:{t} row_mask:0xf bank_mask:0xf")
            r = self.slot(t0 + t)
            A(f"v_mfma_f32_16x16x32_bf16 {vr(ACC,4)}, {vr(r,4)}, {vr(B[0],4)}, {vr(ACC,4)}")
        self.blk_end()

    def stream(self):
        A = self.A
        N, NP, PV, R = self.N, self.NP, self.PV, self.R
        A.place("L_stream")
        A.c("==== stream waves ====")
        A(f"""
        v_lshrrev_b32 v4, 3, v1
        v_and_b32 v5, 7, v1
        v_lshrrev_b32 v6, 4, v1
        v_and_b32 v6, 1, v6
        v_lshlrev_b32 v6, 1, v6
        v_xor_b32 v5, v5, v6
        s_and_b32 s{S_T0}, s{S_SW}, 1
        s_lshl_b32 s{S_T0}, s{S_T0}, 2
        v_xor_b32 v5, s{S_T0}, v5
        v_lshlrev_b32 v5, 4, v5
        s_waitcnt lgkmcnt(0)
        """)
        self.mk_srd(R_WS, S_WS, WS_SIZE)
        self.role_params()
        A(f"""
        s_lshl_b32 s{S_T0}, s{S_B}, 5
        s_add_u32 s{S_T0}, s{S_T0}, s{S_H}
        s_lshl_b32 s{S_T0}, s{S_T0}, 20
        """)
        self.mk_srd(R_K, S_K, 1 << 20, f"s{S_T0}")
        self.mk_srd(R_V, S_V, 1 << 20, f"s{S_T0}")
        A(f"""
        v_mul_lo_u32 v4, v4, s{S_PITCH}
        v_add_u32 v4, v4, v5
        s_lshl_b32 s{S_T0}, s{S_PITCH}, 3
        s_mul_i32 s{S_T1}, s{S_T0}, s{S_SW}
        s_lshl_b32 s{S_T0}, s{S_T0}, 2
        s_lshl_b32 s{S_T2}, s{S_SW}, 10
        s_mov_b32 s{S_T3}, 0
        s_barrier
        """)
        self.stamp(0)
        if self.stamps and self.stamps not in ("tail", "early", "svc"):
            A("s_getreg_b32 s4, hwreg(HW_REG_XCC_ID)")
            A(f"s_lshl_b32 s6, s{S_WG}, 3")
            A(f"s_add_u32 s6, s6, s{S_WAVE}")
            A(f"s_lshl_b32 s6, s6, 7")
            A(f"s_add_u32 s6, s6, {WS_DBG + 0x100000 + 31*4}")
            A(f"s_mov_b64 exec, 1")
            A(f"v_mov_b32 v254, s4")
            A(f"v_mov_b32 v255, 0")
            A(f"buffer_store_dword v254, v255, {srd(R_WS)}, s6 offen")
            A(f"s_mov_b64 exec, -1")
        lp1, lp2, ld = A.label(), A.label(), A.label()
        def dma_iter(wait):
            A(f"""
            s_mov_b32 m0, s{S_T2}
            s_waitcnt vmcnt({wait})
            buffer_load_dwordx4 v4, {srd(R_WT)}, s{S_T1} offen {self.WP} lds
            s_add_u32 s{S_T1}, s{S_T1}, s{S_T0}
            s_add_u32 s{S_T2}, s{S_T2}, 4096
            s_add_u32 s{S_T3}, s{S_T3}, 1
            s_cmp_eq_u32 s{S_T3}, s{S_JJ}
            s_cselect_b32 s{S_T4}, s{S_JA}, 0
            s_add_u32 s{S_T1}, s{S_T1}, s{S_T4}
            """)
        self.dma_iter = dma_iter
        A(f"s_cmp_eq_u32 s{S_J1}, 0")
        A(f"s_cbranch_scc1 {ld}")
        A.place(lp1)
        dma_iter(NP - 1)
        A(f"s_cmp_lt_u32 s{S_T3}, s{S_J1}")
        A(f"s_cbranch_scc1 {lp1}")
        A.place(ld)
        if self.rot:
            A(f"s_mul_i32 s{S_ROT}, s2, {self.rot}")
            A(f"s_and_b32 s{S_ROT}, s{S_ROT}, 255")
            A(f"s_lshl_b32 s{S_ROT}, s{S_ROT}, 12")
        else:
            A(f"s_mov_b32 s{S_ROT}, 0")
        A(f"s_lshl_b32 s{S_T5}, s{S_SW}, 10")
        A(f"s_add_u32 s{S_ROT}, s{S_ROT}, s{S_T5}")
        A(f"s_mov_b32 s{S_OFF}, s{S_ROT}")
        for t in range(R):
            A(f"s_waitcnt vmcnt({NP-1})")
            self.issue(t, 'K')
        self.stamp(15)
        ld2 = A.label()
        if self.defer:
            A(f"s_cmp_eq_u32 s{S_ROLE}, 0")
            A(f"s_cbranch_scc0 {ld2}")
        else:
            A(f"s_cmp_eq_u32 s{S_NJ}, 0")
            A(f"s_cbranch_scc1 {ld2}")
        self.lds_wait(LDS_CNT + 4, 4, 6, 7)
        A.place(lp2)
        dma_iter(NP - 1)
        A(f"s_cmp_lt_u32 s{S_T3}, s{S_NJ}")
        A(f"s_cbranch_scc1 {lp2}")
        A.place(ld2)
        A(f"s_mov_b32 s{S_DS}, s{S_T1}")
        A(f"s_mov_b32 s{S_DM}, s{S_T2}")
        A(f"s_mov_b32 s{S_DJ}, s{S_T3}")
        A(f"s_mov_b32 s{S_DST}, s{S_T0}")
        A(f"v_mov_b32 v204, v4")
        self.stamp(14)
        self.lds_wait(LDS_CNT + 12, 1, 6, 7)
        self.stamp(3)
        self.cstamp(20)
        A(f"""
        v_and_b32 v6, 15, v1
        v_lshlrev_b32 v6, 4, v6
        v_add_u32 v6, {LDS_Q}, v6
        ds_read_b128 v[8:11], v6
        v_mov_b32 v24, 0xff800000
        v_and_b32 v6, 3, v1
        v_lshlrev_b32 v6, 2, v6
        v_bfe_u32 v7, v1, 2, 1
        v_lshlrev_b32 v7, 1, v7
        v_bfe_u32 v5, v1, 3, 1
        v_or_b32 v7, v7, v5
        v_add_u32 v6, v6, v7
        v_and_b32 v7, 48, v1
        v_add_u32 v6, v6, v7
        v_lshlrev_b32 v6, 2, v6
        s_lshl_b32 s{S_T0}, s{S_SW}, 12
        s_add_u32 s{S_T0}, s{S_T0}, {LDS_SC}
        v_add_u32 v25, s{S_T0}, v6
        v_mov_b32 v201, {LDS_N}
        v_mov_b32 v202, 0
        v_mov_b32 v203, {LDS_BLK}
        ds_read_b32 v200, v201
        """)
        if self.defer:
            A(f"s_cmp_eq_u32 s{S_ROLE}, 0")
            A(f"s_cselect_b32 s{S_NCUR}, {self.NOK}, {self.N}")
        if self.NW:
            A(f"s_mov_b32 s{S_NCUR}, {self.NW[0]}")
            for w in range(1, 4):
                A(f"s_cmp_eq_u32 s{S_SW}, {w}")
                A(f"s_cselect_b32 s{S_NCUR}, {self.NW[w]}, s{S_NCUR}")
        A(f"""
        s_waitcnt lgkmcnt(0)
        """)
        D = self.D
        def plan_first(t):
            if t < R - D: return (R - 1 - t, None)
            return (None, (t + D, 'K'))
        def plan_mid(t): return (None, (t + D, 'K'))
        def plan_klast(t):
            if t + D < 256: return (None, (t + D, 'K'))
            return (None, (t + D - 256, 'V'))
        self.k_block(0, plan_first)
        self.k_block(16, plan_first)
        lp = A.label()
        A(f"s_mov_b32 s{S_T3}, 0")
        A.place(lp)
        self.k_block(32, plan_mid)
        self.k_block(48, plan_mid)
        A(f"s_add_u32 s{S_T3}, s{S_T3}, 1")
        A(f"s_cmp_lt_u32 s{S_T3}, 6")
        A(f"s_cbranch_scc1 {lp}")
        self.k_block(224, plan_mid)
        self.k_block(240, plan_klast)
        for t in range(D, PV):
            self.issue(t, 'V')
        self.stamp(4)
        MX, T = 24, 23
        for r in (8, 4, 2, 1):
            A(f"v_max_f32_dpp v{MX}, v{MX}, v{MX} row_ror:{r} row_mask:0xf bank_mask:0xf")
        A(f"""
        v_lshrrev_b32 v6, 4, v1
        v_lshlrev_b32 v6, 2, v6
        s_lshl_b32 s{S_T0}, s{S_SW}, 4
        v_add_u32 v6, s{S_T0}, v6
        v_add_u32 v7, {LDS_WM}, v6
        ds_write_b32 v7, v{MX}
        s_lshl_b32 s{S_T0}, s{S_SW}, 12
        s_add_u32 s{S_T0}, s{S_T0}, {LDS_SC}
        v_add_u32 v14, s{S_T0}, v3
        s_waitcnt lgkmcnt(0)
        """)
        for i in range(16):
            A(f"ds_read_b32 v{48+i}, v14 offset:{i*256}")
        A(f"""
        s_barrier
        v_mov_b32 v7, {LDS_WM}
        ds_read_b128 v[32:35], v7
        ds_read_b128 v[36:39], v7 offset:16
        ds_read_b128 v[40:43], v7 offset:32
        ds_read_b128 v[44:47], v7 offset:48
        s_mov_b32 s{S_T1}, 0x3fb8aa3b
        s_waitcnt lgkmcnt(0)
        """)
        A(f"v_max3_f32 v{MX}, v32, v33, v34")
        for i in range(35, 47, 2):
            A(f"v_max3_f32 v{MX}, v{MX}, v{i}, v{i+1}")
        A(f"v_max_f32 v{MX}, v{MX}, v47")
        for i in range(16):
            A(f"v_sub_f32 v{48+i}, v{48+i}, v{MX}")
        for i in range(16):
            A(f"v_mul_f32 v{48+i}, s{S_T1}, v{48+i}")
        for i in range(16):
            A(f"v_exp_f32 v{48+i}, v{48+i}")
        A(f"v_add_f32 v{T}, v48, v49")
        for i in range(2, 16):
            A(f"v_add_f32 v{T}, v{T}, v{48+i}")
        for r in (8, 4, 2, 1):
            A(f"v_add_f32_dpp v{T}, v{T}, v{T} row_ror:{r} row_mask:0xf bank_mask:0xf")
        A(f"""
        v_add_u32 v7, {LDS_WS}, v6
        ds_write_b32 v7, v{T}
        s_waitcnt lgkmcnt(0)
        s_barrier
        v_mov_b32 v7, {LDS_WS}
        ds_read_b128 v[32:35], v7
        ds_read_b128 v[36:39], v7 offset:16
        ds_read_b128 v[40:43], v7 offset:32
        ds_read_b128 v[44:47], v7 offset:48
        v_and_b32 v6, 15, v1
        v_lshrrev_b32 v7, 1, v6
        v_and_b32 v5, 1, v6
        v_lshlrev_b32 v5, 4, v5
        v_mov_b32 v4, 0xffff
        v_lshlrev_b32 v4, v5, v4
        """)
        for j in range(4):
            A(f"v_cmp_eq_u32 vcc, {j}, v7")
            A(f"v_cndmask_b32 v{16+j}, 0, v4, vcc")
        A("s_waitcnt lgkmcnt(0)")
        for i in range(0, 16, 2):
            A(f"v_add_f32 v{32+i}, v{32+i}, v{33+i}")
        for i in range(0, 16, 4):
            A(f"v_add_f32 v{32+i}, v{32+i}, v{34+i}")
        A(f"v_add_f32 v32, v32, v36")
        A(f"v_add_f32 v40, v40, v44")
        A(f"v_add_f32 v32, v32, v40")
        A(f"v_rcp_f32 v32, v32")
        for i in range(16):
            A(f"v_mul_f32 v{48+i}, v{48+i}, v32")
        for i in range(16):
            A(f"v_cvt_pk_bf16_f32 v{48+i}, v{48+i}, v{48+i}")
        for i in range(1, 16):
            A(f"ds_write_b32 v14, v{48+i} offset:{i*256}")
        A(f"""
        v_mov_b32 v13, v48
        v_add_u32 v14, 256, v14
        v_mov_b32 v28, 0
        v_mov_b32 v29, 0
        v_mov_b32 v30, 0
        v_mov_b32 v31, 0
        """)
        if self.defer:
            A(f"s_cmp_eq_u32 s{S_ROLE}, 0")
            A(f"s_cselect_b32 s{S_NCUR}, {self.NOV}, {self.N}")
        self.stamp(5)
        def plan_vfirst(t):
            if t < PV - D: return (PV - 1 - t, None)
            return (None, (t + D, 'V'))
        def plan_vmid(t): return (None, (t + D, 'V'))
        def plan_vlast(t):
            if t + D < 256: return (None, (t + D, 'V'))
            return (255 - t, None)
        assert PV == 16
        self.v_block(0, plan_vfirst)
        lp = A.label()
        A(f"s_mov_b32 s{S_T3}, 0")
        A.place(lp)
        self.v_block(16, plan_vmid)
        self.v_block(32, plan_vmid)
        A(f"s_add_u32 s{S_T3}, s{S_T3}, 1")
        A(f"s_cmp_lt_u32 s{S_T3}, 7")
        A(f"s_cbranch_scc1 {lp}")
        self.v_block(240, plan_vlast, last=True)
        A(f"""
        v_lshrrev_b32 v6, 4, v1
        v_lshlrev_b32 v6, 7, v6
        v_and_b32 v7, 15, v1
        v_lshlrev_b32 v7, 2, v7
        v_add_u32 v6, v6, v7
        s_lshl_b32 s{S_T0}, s{S_SW}, 9
        s_add_u32 s{S_T0}, s{S_T0}, {LDS_ORED}
        v_add_u32 v6, s{S_T0}, v6
        s_mov_b64 exec, s[{S_MJ8}:{S_MJ8+1}]
        ds_write_b32 v6, v28
        ds_write_b32 v6, v29 offset:32
        ds_write_b32 v6, v30 offset:64
        ds_write_b32 v6, v31 offset:96
        s_mov_b64 exec, -1
        s_waitcnt lgkmcnt(0)
        """)
        self.stamp(6)
        self.cstamp(21)
        A.place("L_join3")

    def tile_afrags(self, base):
        A = self.A
        A(f"""
        v_lshrrev_b32 v4, 4, v1
        v_and_b32 v5, 15, v1
        v_lshrrev_b32 v6, 2, v5
        v_and_b32 v5, 3, v5
        v_lshrrev_b32 v7, 1, v6
        v_and_b32 v8, 1, v4
        v_lshlrev_b32 v8, 1, v8
        v_or_b32 v7, v7, v8
        v_lshlrev_b32 v8, 3, v4
        v_add_u32 v8, v8, v6
        v_lshlrev_b32 v8, 7, v8
        v_lshlrev_b32 v5, 3, v5
        v_add_u32 v8, v8, v5
        s_lshl_b32 s{S_T0}, s{S_WAVE}, 14
        v_add_u32 v8, s{S_T0}, v8
        """)
        for cb in range(4):
            A(f"v_xor_b32 v{9+cb}, {cb}, v7")
            A(f"v_lshlrev_b32 v{9+cb}, 5, v{9+cb}")
            A(f"v_add_u32 v{9+cb}, v{9+cb}, v8")
        for s in range(4):
            for cb in range(4):
                r = base + (s * 4 + cb) * 4
                A(f"ds_read_b64_tr_b16 {vr(r,2)}, v{9+cb} offset:{s*4096}")
                A(f"ds_read_b64_tr_b16 {vr(r+2,2)}, v{9+cb} offset:{s*4096+512}")

    RW = 240
    def red_addrs(self):
        A = self.A
        RW = self.RW
        A(f"""
        v_and_b32 v4, 15, v1
        v_lshrrev_b32 v5, 4, v1
        s_lshl_b32 s{S_T0}, s{S_WAVE}, 11
        s_add_u32 s{S_T0}, s{S_T0}, {LDS_RED}
        v_lshlrev_b32 v6, 8, v4
        v_add_u32 v6, s{S_T0}, v6
        """)
        for cb in range(4):
            A(f"v_add_u32 v7, {4*cb}, v5")
            A(f"v_xor_b32 v7, v7, v4")
            A(f"v_lshlrev_b32 v7, 4, v7")
            A(f"v_add_u32 v{RW+cb}, v7, v6")
        A(f"""
        v_lshrrev_b32 v4, 2, v1
        v_xor_b32 v4, s{S_WAVE}, v4
        v_lshlrev_b32 v4, 4, v4
        v_and_b32 v5, 3, v1
        v_lshlrev_b32 v5, 2, v5
        v_add_u32 v4, v4, v5
        s_lshl_b32 s{S_T0}, s{S_WAVE}, 8
        s_add_u32 s{S_T0}, s{S_T0}, {LDS_RED}
        v_add_u32 v{RW+4}, s{S_T0}, v4
        """)

    def mfma16(self, abase, bregs, acc):
        A = self.A
        for s in range(4):
            for cb in range(4):
                r = abase + (s * 4 + cb) * 4
                a = acc + 4 * cb
                src = "0" if s == 0 else vr(a, 4)
                A(f"v_mfma_f32_16x16x32_bf16 {vr(a,4)}, {vr(r,4)}, {vr(bregs[s],4)}, {src}")

    def red_write(self, acc):
        A = self.A
        A(f"s_mov_b64 exec, s[{S_MJ8}:{S_MJ8+1}]")
        for cb in range(4):
            A(f"ds_write_b128 v{self.RW+cb}, {vr(acc+4*cb,4)}")
        A("s_mov_b64 exec, -1")
        A("s_waitcnt lgkmcnt(0)")

    def red_sum(self, nw, dst):
        A = self.A
        for v in range(nw):
            A(f"ds_read_b32 v{dst+v}, v{self.RW+4} offset:{v*2048}")
        A("s_waitcnt lgkmcnt(0)")
        regs = [dst + v for v in range(nw)]
        while len(regs) > 1:
            nxt = []
            for i in range(0, len(regs) - 1, 2):
                A(f"v_add_f32 v{regs[i]}, v{regs[i]}, v{regs[i+1]}")
                nxt.append(regs[i])
            if len(regs) % 2: nxt.append(regs[-1])
            regs = nxt

    def tail(self):
        A = self.A
        A("s_barrier")
        lskip = A.label()
        A(f"s_cmp_eq_u32 s{S_WAVE}, 0")
        A(f"s_cbranch_scc0 {lskip}")
        A(f"""
        v_lshlrev_b32 v4, 3, v1
        v_add_u32 v4, {LDS_ORED}, v4
        ds_read_b64 v[8:9], v4
        ds_read_b64 v[10:11], v4 offset:512
        ds_read_b64 v[12:13], v4 offset:1024
        ds_read_b64 v[14:15], v4 offset:1536
        s_lshl_b32 s{S_T0}, s{S_B}, 13
        s_lshl_b32 s{S_T1}, s{S_H}, 8
        s_add_u32 s{S_T0}, s{S_T0}, s{S_T1}
        s_add_u32 s{S_T0}, s{S_T0}, {WS_OB}
        s_waitcnt lgkmcnt(0)
        v_pk_add_f32 v[8:9], v[8:9], v[10:11]
        v_pk_add_f32 v[12:13], v[12:13], v[14:15]
        v_pk_add_f32 v[8:9], v[8:9], v[12:13]
        v_cvt_pk_bf16_f32 v8, v8, v9
        v_min_u32 v8, -2, v8
        """)
        self.quad_gather(8, 8)
        A(f"""
        s_mov_b64 exec, s[{S_MQ}:{S_MQ+1}]
        buffer_store_dwordx4 v[8:11], v3, {srd(R_WS)}, s{S_T0} offen sc0 sc1
        s_mov_b64 exec, -1
        """)
        A.place(lskip)
        self.stamp(7)
        if self.defer:
            lnd = A.label(); lp = A.label()
            A("s_barrier")
            A(f"s_cmp_lt_u32 s{S_WAVE}, 4")
            A(f"s_cbranch_scc1 {lnd}")
            A(f"s_cmp_ge_u32 s{S_DJ}, s{S_NJ}")
            A(f"s_cbranch_scc1 {lnd}")
            A(f"s_mov_b32 s{S_T1}, s{S_DS}")
            A(f"s_mov_b32 s{S_T2}, s{S_DM}")
            A(f"s_mov_b32 s{S_T3}, s{S_DJ}")
            A(f"s_mov_b32 s{S_T0}, s{S_DST}")
            A(f"v_mov_b32 v4, v204")
            A.place(lp)
            self.dma_iter(self.NT - 1)
            A(f"s_cmp_lt_u32 s{S_T3}, s{S_NJ}")
            A(f"s_cbranch_scc1 {lp}")
            A.place(lnd)
        if self.stop_after == "attn":
            A("s_branch L_end")
        A(f"""
        s_cmp_eq_u32 s{S_ROLE}, 0
        s_cbranch_scc1 L_roleO
        s_cmp_eq_u32 s{S_ROLE}, 1
        s_cbranch_scc1 L_roleG
        s_cmp_eq_u32 s{S_ROLE}, 2
        s_cbranch_scc1 L_roleD
        s_branch L_roleF
        """)
        self.role_O()
        self.role_G()
        self.role_D()
        self.role_F()

    def role_O(self):
        A = self.A
        A.place("L_roleO")
        AB = 64
        A(f"s_lshr_b32 s{S_NJ}, s{S_H}, 1")
        A(f"s_and_b32 s{S_PITCH}, s{S_H}, 1")
        A(f"s_lshl_b32 s{S_T0}, s{S_B}, 1")
        A(f"s_add_u32 s{S_PITCH}, s{S_PITCH}, s{S_T0}")
        self.local_flag()
        self.mk_srd(R_X, S_X, 16384)
        A(f"""
        v_bfe_u32 v14, v1, 2, 3
        v_lshlrev_b32 v14, 11, v14
        v_and_b32 v15, 3, v1
        v_lshlrev_b32 v13, 3, v15
        v_add_u32 v13, v13, v14
        s_lshl_b32 s{S_T0}, s{S_PITCH}, 7
        s_lshl_b32 s{S_T1}, s{S_NJ}, 5
        s_add_u32 s{S_T0}, s{S_T0}, s{S_T1}
        buffer_load_dwordx2 v[28:29], v13, {srd(R_X)}, s{S_T0} offen
        s_add_u32 s{S_OFF}, s{S_T0}, {WS_H}
        v_lshrrev_b32 v15, 1, v15
        v_lshlrev_b32 v15, 4, v15
        v_add_u32 v14, v14, v15
        """)
        self.tile_afrags(AB)
        self.red_addrs()
        A(f"""
        v_bfe_u32 v4, v1, 2, 3
        v_and_b32 v5, 3, v1
        s_lshl_b32 s{S_T0}, s{S_WAVE}, 2
        v_add_u32 v5, s{S_T0}, v5
        v_xor_b32 v5, v5, v4
        v_lshlrev_b32 v5, 4, v5
        v_lshlrev_b32 v4, 8, v4
        v_add_u32 v4, v4, v5
        v_lshrrev_b32 v5, 5, v1
        v_lshlrev_b32 v5, 13, v5
        v_add_u32 v4, v4, v5
        v_add_u32 v19, {LDS_RED}, v4
        v_and_b32 v4, 31, v1
        v_lshlrev_b32 v13, 4, v4
        v_and_b32 v4, 15, v1
        v_lshlrev_b32 v4, 13, v4
        v_lshrrev_b32 v5, 4, v1
        v_lshlrev_b32 v5, 4, v5
        v_add_u32 v16, v4, v5
        s_lshl_b32 s{S_T0}, s{S_NJ}, 11
        s_lshl_b32 s{S_T1}, s{S_WAVE}, 8
        s_add_u32 s{S_T0}, s{S_T0}, s{S_T1}
        s_add_u32 s{S_T0}, s{S_T0}, {WS_OB}
        s_lshl_b32 s{S_T2}, s{S_PITCH}, 13
        s_add_u32 s{S_T2}, s{S_T2}, {WS_OP}
        s_lshl_b32 s{S_T1}, s{S_WAVE}, 11
        s_add_u32 s{S_T3}, s{S_T2}, s{S_T1}
        s_lshl_b32 s{S_T1}, s{S_NJ}, 9
        s_add_u32 s{S_T3}, s{S_T3}, s{S_T1}
        s_lshl_b32 s{S_T1}, s{S_NJ}, 11
        s_add_u32 s{S_T2}, s{S_T2}, s{S_T1}
        """)
        self.prepoll(f"buffer_load_dword v18, v16, {srd(R_WS)}, s{S_T0} offen {self.LP}", 18, mask=S_MJ8, sleep=2)
        loads = [f"buffer_load_dwordx4 {vr(32+4*s,4)}, v16, {srd(R_WS)}, s{S_T0} offen offset:{s*64} {self.LP}" for s in range(4)]
        self.poll_pipe(loads, range(32, 48), 17, mask=S_MJ8, depth=1, sleep=self.PS)
        self.stamp(8)
        A("s_waitcnt lgkmcnt(0)")
        self.mfma16(AB, [32, 36, 40, 44], 48)
        self.red_write(48)
        A("s_barrier")
        lr1 = A.label()
        A(f"s_cmp_ge_u32 s{S_WAVE}, 4")
        A(f"s_cbranch_scc1 {lr1}")
        for v in range(4):
            A(f"ds_read_b128 {vr(32+4*v,4)}, v19 offset:{v*2048}")
        A("s_waitcnt lgkmcnt(0)")
        for e in (0, 2):
            A(f"v_pk_add_f32 {vr(32+e,2)}, {vr(32+e,2)}, {vr(36+e,2)}")
            A(f"v_pk_add_f32 {vr(40+e,2)}, {vr(40+e,2)}, {vr(44+e,2)}")
        for e in (0, 2):
            A(f"v_pk_add_f32 {vr(32+e,2)}, {vr(32+e,2)}, {vr(40+e,2)}")
        for e in range(4):
            A(f"v_mov_b32 v{36+e}, v{32+e}")
        for e in range(4):
            A(f"v_permlane32_swap_b32 v{32+e}, v{36+e}")
        for e in (0, 2):
            A(f"v_pk_add_f32 {vr(32+e,2)}, {vr(32+e,2)}, {vr(36+e,2)}")
        for e in range(4):
            A(f"v_min_u32 v{32+e}, -2, v{32+e}")
        A("s_mov_b64 exec, 0xffffffff")
        self.store_sel(f"buffer_store_dwordx4 v[32:35], v13, {srd(R_WS)}, s{S_T3} offen")
        A("s_mov_b64 exec, -1")
        self.stamp(9)
        A("s_branch L_end")
        A.place(lr1)
        A(f"s_cmp_eq_u32 s{S_WAVE}, 4")
        A(f"s_cbranch_scc0 L_end")
        A(f"v_lshlrev_b32 v20, 16, v28")
        A(f"v_and_b32 v21, 0xffff0000, v28")
        A(f"v_lshlrev_b32 v22, 16, v29")
        A(f"v_and_b32 v23, 0xffff0000, v29")
        loads = [f"buffer_load_dwordx4 v[32:35], v2, {srd(R_WS)}, s{S_T2} offen {self.LP}",
                 f"buffer_load_dwordx4 v[36:39], v2, {srd(R_WS)}, s{S_T2} offen offset:1024 {self.LP}"]
        self.poll_pipe(loads, range(32, 40), 17, depth=1, sleep=0)
        self.stamp(9)
        for e in (0, 2):
            A(f"v_pk_add_f32 {vr(40+e,2)}, {vr(32+e,2)}, {vr(36+e,2)}")
        for e in range(4):
            A(f"v_mov_b32 v{44+e}, v{40+e}")
        for e in range(4):
            A(f"v_permlane32_swap_b32 v{40+e}, v{44+e}")
        for e in (0, 2):
            A(f"v_pk_add_f32 {vr(40+e,2)}, {vr(40+e,2)}, {vr(44+e,2)}")
        A(f"""
        v_cvt_pk_bf16_f32 v44, v40, v41
        v_cvt_pk_bf16_f32 v45, v42, v43
        v_lshlrev_b32 v40, 16, v44
        v_and_b32 v41, 0xffff0000, v44
        v_lshlrev_b32 v42, 16, v45
        v_and_b32 v43, 0xffff0000, v45
        v_pk_add_f32 v[40:41], v[40:41], v[20:21]
        v_pk_add_f32 v[42:43], v[42:43], v[22:23]
        v_cvt_pk_bf16_f32 v48, v40, v41
        v_cvt_pk_bf16_f32 v49, v42, v43
        v_min_u32 v48, -2, v48
        v_min_u32 v49, -2, v49
        v_mov_b32_dpp v50, v48 quad_perm:[1,1,3,3] row_mask:0xf bank_mask:0xf
        v_mov_b32_dpp v51, v49 quad_perm:[1,1,3,3] row_mask:0xf bank_mask:0xf
        s_mov_b64 exec, 0x55555555
        buffer_store_dwordx4 v[48:51], v14, {srd(R_WS)}, s{S_OFF} offen sc0 sc1
        s_mov_b64 exec, -1
        """)
        self.stamp(16)
        A("s_branch L_end")

    def role_G(self):
        A = self.A
        A.place("L_roleG")
        AB = 160
        self.local_flag()
        self.red_addrs()
        F, D = 96, 128
        A(f"""
        s_lshl_b32 s{S_T0}, s{S_WAVE}, 1
        v_xor_b32 v14, s{S_T0}, v1
        v_lshlrev_b32 v14, 4, v14
        s_lshl_b32 s{S_T0}, s{S_WAVE}, 11
        s_add_u32 s{S_T0}, s{S_T0}, {LDS_XN2}
        v_add_u32 v14, s{S_T0}, v14
        v_and_b32 v17, 7, v1
        v_lshrrev_b32 v18, 4, v1
        v_lshlrev_b32 v19, 11, v17
        s_lshl_b32 s{S_T0}, s{S_WAVE}, 8
        s_add_u32 s{S_T0}, s{S_T0}, {LDS_XN2}
        v_add_u32 v19, s{S_T0}, v19
        v_lshlrev_b32 v17, 1, v17
        """)
        for s_ in range(4):
            A(f"v_add_u32 v28, {4*s_}, v18")
            A(f"v_xor_b32 v28, v28, v17")
            A(f"v_lshlrev_b32 v28, 4, v28")
            A(f"v_add_u32 v{232+s_}, v28, v19")
        A(f"""
        s_sub_u32 s{S_T0}, s{S_H}, 8
        s_and_b32 s{S_T1}, s{S_T0}, 1
        s_mul_i32 s{S_T1}, s{S_T1}, 57344
        s_lshr_b32 s{S_T0}, s{S_T0}, 1
        s_mul_i32 s{S_T2}, s{S_B}, 7
        s_add_u32 s{S_T0}, s{S_T0}, s{S_T2}
        s_lshl_b32 s{S_T0}, s{S_T0}, 7
        s_add_u32 s{S_T0}, s{S_T0}, s{S_T1}
        s_mul_i32 s{S_T1}, s{S_WAVE}, 7168
        s_add_u32 s{S_T0}, s{S_T0}, s{S_T1}
        s_add_u32 s{S_OFF}, s{S_T0}, {WS_GU}
        v_lshlrev_b32 v15, 1, v1
        s_lshl_b32 s{S_T0}, s{S_WAVE}, 13
        s_add_u32 s{S_T0}, s{S_T0}, {WS_OB}
        v_lshlrev_b32 v17, 8, v1
        s_mov_b64 s[{S_EX}:{S_EX+1}], 0xffffffff
        """)
        self.sample_wait(False, 17, 18, self.HS)
        self.tile_afrags(AB)
        self.stamp(16)
        A(f"s_lshl_b32 s{S_T0}, s{S_WAVE}, 11")
        A(f"s_add_u32 s{S_T0}, s{S_T0}, {WS_H}")
        loads = [f"buffer_load_dwordx4 v[20:23], v2, {srd(R_WS)}, s{S_T0} offen {self.LP}",
                 f"buffer_load_dwordx4 v[24:27], v2, {srd(R_WS)}, s{S_T0} offen offset:1024 {self.LP}"]
        self.poll_pipe(loads, range(20, 28), 17, depth=1, sleep=self.GSL)
        self.stamp(8)
        for i in range(8):
            A(f"v_lshlrev_b32 v{F+2*i}, 16, v{20+i}")
            A(f"v_and_b32 v{F+2*i+1}, 0xffff0000, v{20+i}")
        S1, S2, T1, T2, VMB, VRS = 144, 146, 148, 149, 150, 152
        self.ln_stats(F, D, S1, S2, T1, T2, VMB, VRS)
        for i in range(8):
            self.ln_apply(48 + i, F + 2*i, VMB, VRS, 154 + 2 * (i % 2))
        A(f"ds_write_b128 v14, v[48:51]")
        A(f"ds_write_b128 v14, v[52:55] offset:1024")
        A("s_waitcnt lgkmcnt(0)")
        A("s_barrier")
        for s_ in range(4):
            A(f"ds_read_b128 {vr(32+4*s_,4)}, v{232+s_}")
        A("s_waitcnt lgkmcnt(0)")
        self.mfma16(AB, [32, 36, 40, 44], 48)
        self.red_write(48)
        A("s_waitcnt vmcnt(0)")
        A("s_barrier")
        self.red_sum(8, 20)
        self.rnd_bf16(20, 20)
        lup = A.label()
        A(f"s_bitcmp1_b32 s{S_H}, 0")
        A(f"s_cbranch_scc1 {lup}")
        A(f"""
        v_mul_f32 v17, v20, v20
        v_mul_f32 v18, v17, v20
        v_mul_f32 v18, 0x3d372713, v18
        v_add_f32 v18, v20, v18
        v_mul_f32 v18, 0x3f4c422a, v18
        v_mul_f32 v18, 0x4038aa3b, v18
        v_min_f32 v18, 0x42700000, v18
        v_exp_f32 v18, v18
        v_add_f32 v19, 1.0, v18
        v_rcp_f32 v19, v19
        v_mul_f32 v18, v18, v19
        v_mul_f32 v20, v20, v18
        """)
        A.place(lup)
        A(f"""
        v_mov_b32_dpp v17, v20 quad_perm:[1,1,3,3] row_mask:0xf bank_mask:0xf
        v_cvt_pk_bf16_f32 v20, v20, v17
        v_min_u32 v20, -2, v20
        """)
        self.even_gather(20, 20)
        A(f"s_mov_b64 exec, s[{S_ME}:{S_ME+1}]")
        self.store_sel(f"buffer_store_dwordx4 v[20:23], v15, {srd(R_WS)}, s{S_OFF} offen")
        A(f"s_mov_b64 exec, -1")
        self.stamp(9)
        A("s_branch L_end")

    def role_D(self):
        A = self.A
        A.place("L_roleD")
        AB = 160
        RW = 224
        A(f"""
        v_lshrrev_b32 v4, 1, v1
        v_xor_b32 v4, s{S_WAVE}, v4
        v_lshlrev_b32 v4, 4, v4
        v_and_b32 v5, 1, v1
        v_lshlrev_b32 v5, 3, v5
        v_add_u32 v4, v4, v5
        s_lshl_b32 s{S_T0}, s{S_WAVE}, 9
        s_add_u32 s{S_T0}, s{S_T0}, {LDS_RED}
        v_add_u32 v{RW+8}, s{S_T0}, v4
        s_lshl_b32 s{S_T0}, s{S_B}, 15
        s_lshl_b32 s{S_T1}, s{S_WAVE}, 12
        s_add_u32 s{S_T0}, s{S_T0}, s{S_T1}
        s_sub_u32 s{S_T1}, s{S_H}, 22
        s_lshl_b32 s{S_T1}, s{S_T1}, 9
        s_add_u32 s{S_T0}, s{S_T0}, s{S_T1}
        s_add_u32 s{S_OFF}, s{S_T0}, {WS_DP}
        v_lshlrev_b32 v15, 3, v1
        """)
        lno = A.label(); lgo = A.label()
        A(f"s_cmp_eq_u32 s{S_WAVE}, 7")
        A(f"s_cbranch_scc0 {lgo}")
        A("s_waitcnt vmcnt(0)")
        A("s_barrier")
        A(f"s_branch {lno}")
        A.place(lgo)
        A(f"""
        v_lshrrev_b32 v4, 4, v1
        v_and_b32 v5, 15, v1
        v_lshrrev_b32 v6, 2, v5
        v_and_b32 v5, 3, v5
        v_lshrrev_b32 v7, 1, v6
        v_and_b32 v8, 1, v4
        v_lshlrev_b32 v8, 1, v8
        v_or_b32 v7, v7, v8
        v_lshlrev_b32 v8, 3, v4
        v_add_u32 v8, v8, v6
        v_lshlrev_b32 v8, 7, v8
        v_lshlrev_b32 v5, 3, v5
        v_add_u32 v8, v8, v5
        s_lshl_b32 s{S_T0}, s{S_WAVE}, 13
        v_add_u32 v8, s{S_T0}, v8
        """)
        for cb in range(4):
            A(f"v_xor_b32 v{9+cb}, {cb}, v7")
            A(f"v_lshlrev_b32 v{9+cb}, 5, v{9+cb}")
            A(f"v_add_u32 v{9+cb}, v{9+cb}, v8")
        A(f"""
        v_and_b32 v4, 15, v1
        v_lshrrev_b32 v5, 4, v1
        s_lshl_b32 s{S_T0}, s{S_WAVE}, 12
        s_add_u32 s{S_T0}, s{S_T0}, {LDS_RED}
        v_lshlrev_b32 v6, 9, v4
        v_add_u32 v6, s{S_T0}, v6
        """)
        for cb in range(8):
            A(f"v_add_u32 v7, {4*cb}, v5")
            A(f"v_xor_b32 v7, v7, v4")
            A(f"v_lshlrev_b32 v7, 4, v7")
            A(f"v_add_u32 v{RW+cb}, v7, v6")
        A(f"""
        v_and_b32 v4, 7, v1
        v_mul_u32_u24 v4, 7168, v4
        v_bfe_u32 v5, v1, 3, 1
        v_lshlrev_b32 v5, 6, v5
        v_add_u32 v4, v4, v5
        v_lshrrev_b32 v5, 4, v1
        v_lshlrev_b32 v5, 4, v5
        v_add_u32 v16, v4, v5
        s_mul_i32 s{S_T0}, s{S_B}, 7
        s_add_u32 s{S_T0}, s{S_T0}, s{S_WAVE}
        s_lshl_b32 s{S_T0}, s{S_T0}, 7
        s_add_u32 s{S_T0}, s{S_T0}, {WS_GU}
        s_add_u32 s{S_T1}, s{S_T0}, 57344
        s_lshl_b32 s{S_T2}, s{S_WAVE}, 11
        s_add_u32 s{S_T2}, s{S_T2}, {WS_H}
        v_lshlrev_b32 v17, 5, v1
        """)
        A(f"s_mov_b32 s{S_T2}, s{S_T0}")
        A(f"s_mov_b32 s{S_T3}, s{S_T1}")
        self.sample_wait(True, 17, 18, self.HS)
        for s_ in range(2):
            for cb in range(8):
                r = AB + (s_ * 8 + cb) * 4
                off = s_ * 4096 + (cb // 4) * 57344
                A(f"ds_read_b64_tr_b16 {vr(r,2)}, v{9+cb%4} offset:{off}")
                A(f"ds_read_b64_tr_b16 {vr(r+2,2)}, v{9+cb%4} offset:{off+512}")
        self.stamp(16)
        loads = [f"buffer_load_dwordx4 v[32:35], v16, {srd(R_WS)}, s{S_T2} offen {self.LP}",
                 f"buffer_load_dwordx4 v[36:39], v16, {srd(R_WS)}, s{S_T3} offen {self.LP}"]
        self.poll_pipe(loads, range(32, 40), 17, depth=1, sleep=0)
        self.stamp(8)
        for i in range(0, 4, 2):
            g, u = 32 + i, 36 + i
            A(f"v_lshlrev_b32 v64, 16, v{g}")
            A(f"v_and_b32 v65, 0xffff0000, v{g}")
            A(f"v_lshlrev_b32 v66, 16, v{u}")
            A(f"v_and_b32 v67, 0xffff0000, v{u}")
            A(f"v_lshlrev_b32 v68, 16, v{g+1}")
            A(f"v_and_b32 v69, 0xffff0000, v{g+1}")
            A(f"v_lshlrev_b32 v70, 16, v{u+1}")
            A(f"v_and_b32 v71, 0xffff0000, v{u+1}")
            A(f"v_pk_mul_f32 v[64:65], v[64:65], v[66:67]")
            A(f"v_pk_mul_f32 v[68:69], v[68:69], v[70:71]")
            A(f"v_cvt_pk_bf16_f32 v{72+i}, v64, v65")
            A(f"v_cvt_pk_bf16_f32 v{73+i}, v68, v69")
        for e in range(4):
            A(f"v_mov_b32_dpp v{76+e}, v{72+e} row_shl:8 row_mask:0xf bank_mask:0xf")
        A("s_waitcnt lgkmcnt(0)")
        ACC = 88
        for cb in range(8):
            A(f"v_mfma_f32_16x16x32_bf16 {vr(ACC+4*cb,4)}, {vr(AB+cb*4,4)}, v[72:75], 0")
        for cb in range(8):
            A(f"v_mfma_f32_16x16x32_bf16 {vr(ACC+4*cb,4)}, {vr(AB+(8+cb)*4,4)}, v[76:79], {vr(ACC+4*cb,4)}")
        A(f"s_mov_b64 exec, s[{S_MJ8}:{S_MJ8+1}]")
        for cb in range(8):
            A(f"ds_write_b128 v{RW+cb}, {vr(ACC+4*cb,4)}")
        A("s_mov_b64 exec, -1")
        A("s_waitcnt lgkmcnt(0)")
        A.place(lno)
        A("s_barrier")
        for v in range(7):
            A(f"ds_read_b64 {vr(20+2*v,2)}, v{RW+8} offset:{v*4096}")
        A("s_waitcnt lgkmcnt(0)")
        A(f"""
        v_pk_add_f32 v[20:21], v[20:21], v[22:23]
        v_pk_add_f32 v[24:25], v[24:25], v[26:27]
        v_pk_add_f32 v[28:29], v[28:29], v[30:31]
        v_pk_add_f32 v[20:21], v[20:21], v[24:25]
        v_pk_add_f32 v[28:29], v[28:29], v[32:33]
        v_pk_add_f32 v[20:21], v[20:21], v[28:29]
        v_min_u32 v20, -2, v20
        v_min_u32 v21, -2, v21
        v_mov_b32_dpp v22, v20 quad_perm:[1,1,3,3] row_mask:0xf bank_mask:0xf
        v_mov_b32_dpp v23, v21 quad_perm:[1,1,3,3] row_mask:0xf bank_mask:0xf
        s_mov_b32 s{S_T2}, 0x55555555
        s_mov_b32 s{S_T3}, 0x55555555
        s_mov_b64 exec, s[{S_T2}:{S_T3}]
        buffer_store_dwordx4 v[20:23], v15, {srd(R_WS)}, s{S_OFF} offen sc0 sc1
        s_mov_b64 exec, -1
        """)
        self.stamp(9)
        A("s_branch L_end")

    def role_F(self):
        A = self.A
        A.place("L_roleF")
        self.mk_srd(R_OUT, S_OUT, 16384)
        A(f"""
        s_sub_u32 s{S_T2}, s{S_H}, 30
        s_lshl_b32 s{S_T0}, s{S_B}, 1
        s_add_u32 s{S_T2}, s{S_T2}, s{S_T0}
        v_lshrrev_b32 v4, 4, v1
        v_lshlrev_b32 v4, 15, v4
        v_and_b32 v5, 15, v1
        v_lshlrev_b32 v6, 4, v5
        v_add_u32 v16, v4, v6
        v_lshlrev_b32 v15, 3, v5
        s_lshl_b32 s{S_T0}, s{S_WAVE}, 12
        s_lshl_b32 s{S_T1}, s{S_T2}, 8
        s_add_u32 s{S_T0}, s{S_T0}, s{S_T1}
        s_add_u32 s{S_T0}, s{S_T0}, {WS_DP}
        s_add_u32 s{S_T1}, s{S_T0}, 131072
        s_lshl_b32 s{S_PITCH}, s{S_WAVE}, 11
        s_lshl_b32 s{S_T3}, s{S_T2}, 7
        s_add_u32 s{S_PITCH}, s{S_PITCH}, s{S_T3}
        s_add_u32 s{S_T2}, s{S_PITCH}, {WS_H}
        s_mul_i32 s{S_T3}, s{S_WAVE}, 7168
        s_add_u32 s{S_T3}, s{S_T3}, {WS_GU}
        v_lshlrev_b32 v17, 7, v1
        s_mov_b32 s{S_EX}, -1
        s_mov_b32 s{S_EX+1}, 0x00ffffff
        """)
        self.sample_wait(True, 17, 18, self.HS)
        self.stamp(16)
        loads = [f"buffer_load_dwordx4 v[32:35], v16, {srd(R_WS)}, s{S_T0} offen {self.LP}",
                 f"buffer_load_dwordx4 v[36:39], v16, {srd(R_WS)}, s{S_T1} offen {self.LP}",
                 f"buffer_load_dwordx2 v[40:41], v15, {srd(R_WS)}, s{S_T2} offen {self.LP}"]
        self.poll_pipe(loads, range(32, 42), 17, depth=1, sleep=self.FSL)
        self.stamp(8)
        A(f"""
        v_pk_add_f32 v[20:21], v[32:33], v[36:37]
        v_pk_add_f32 v[22:23], v[34:35], v[38:39]
        """)
        for sw in ("v_permlane16_swap_b32", "v_permlane32_swap_b32"):
            for e in range(4):
                A(f"v_mov_b32 v{24+e}, v{20+e}")
            for e in range(4):
                A(f"{sw} v{20+e}, v{24+e}")
            A(f"v_pk_add_f32 v[20:21], v[20:21], v[24:25]")
            A(f"v_pk_add_f32 v[22:23], v[22:23], v[26:27]")
        A(f"""
        v_cvt_pk_bf16_f32 v24, v20, v21
        v_cvt_pk_bf16_f32 v25, v22, v23
        v_lshlrev_b32 v20, 16, v24
        v_and_b32 v21, 0xffff0000, v24
        v_lshlrev_b32 v22, 16, v25
        v_and_b32 v23, 0xffff0000, v25
        v_lshlrev_b32 v24, 16, v40
        v_and_b32 v25, 0xffff0000, v40
        v_lshlrev_b32 v26, 16, v41
        v_and_b32 v27, 0xffff0000, v41
        v_pk_add_f32 v[20:21], v[20:21], v[24:25]
        v_pk_add_f32 v[22:23], v[22:23], v[26:27]
        v_cvt_pk_bf16_f32 v20, v20, v21
        v_cvt_pk_bf16_f32 v21, v22, v23
        s_mov_b64 exec, 0xffff
        buffer_store_dwordx2 v[20:21], v15, {srd(R_OUT)}, s{S_PITCH} offen
        s_mov_b64 exec, -1
        """)
        lne = A.label()
        A(f"""
        s_cmp_eq_u32 s2, 240
        s_cbranch_scc0 {lne}
        s_cmp_eq_u32 s{S_WAVE}, 0
        s_cbranch_scc0 {lne}
        v_mov_b32 v20, 0
        v_mov_b32 v21, s{S_TAG}
        s_mov_b32 s{S_T1}, {WS_EPOCH}
        s_mov_b64 exec, 1
        buffer_store_dword v21, v20, {srd(R_WS)}, s{S_T1} offen sc0 sc1
        s_mov_b64 exec, -1
        """)
        A.place(lne)
        self.stamp(9)

    def build(self):
        A = self.A
        self.entry()
        self.service()
        self.stream()
        self.tail()
        A.place("L_end")
        if self.stamps in ("tail", "early", "svc"):
            A("s_cmp_ge_u32 s2, 256")
            A("s_cbranch_scc1 L_end2")
            A("s_waitcnt lgkmcnt(0)")
            A(f"s_lshl_b32 s3, s{S_WG}, 3")
            A(f"s_add_u32 s3, s3, s{S_WAVE}")
            A(f"s_lshl_b32 s3, s3, 7")
            A(f"s_add_u32 s3, s3, {WS_DBG + 0x100000}")
            A(f"s_mov_b64 exec, 1")
            A(f"v_mov_b32 v255, 0")
            A("s_getreg_b32 s16, hwreg(HW_REG_XCC_ID)")
            A(f"v_mov_b32 v254, s16")
            A(f"buffer_store_dword v254, v255, {srd(R_WS)}, s3 offen offset:124")
            for idx, j in self.LIGHT.items():
                A(f"v_mov_b32 v254, s{4+2*j}")
                A(f"buffer_store_dword v254, v255, {srd(R_WS)}, s3 offen offset:{idx*4}")
            A.place("L_end2")
        A("s_endpgm")
        A.footer(256, 102, 256)
        A.fix_hazards()
        return A.text()

if __name__ == "__main__":
    import argparse
    ap = argparse.ArgumentParser()
    ap.add_argument("-o", default="main.s")
    ap.add_argument("--N", type=int, default=5)
    ap.add_argument("--NP", type=int, default=8)
    ap.add_argument("--LP", default="sc1")
    ap.add_argument("--PD", type=int, default=1)
    ap.add_argument("--HG", type=int, default=48)
    ap.add_argument("--HD", type=int, default=64)
    ap.add_argument("--HS", type=int, default=2)
    ap.add_argument("--nolocal", action="store_true")
    ap.add_argument("--pace", action="store_true")
    ap.add_argument("--rot", type=int, default=0)
    ap.add_argument("--defer", action="store_true")
    ap.add_argument("--JU", type=int, default=8)
    ap.add_argument("--NOK", type=int, default=6)
    ap.add_argument("--NOV", type=int, default=5)
    ap.add_argument("--NT", type=int, default=16)
    ap.add_argument("--NW", default=None)
    ap.add_argument("--NMIN", type=int, default=4)
    ap.add_argument("--TH", default="64,192,240")
    ap.add_argument("--GSL", type=int, default=1)
    ap.add_argument("--FSL", type=int, default=1)
    ap.add_argument("--KP", default="nt")
    ap.add_argument("--VP", default="nt")
    ap.add_argument("--WP", default="nt")
    ap.add_argument("--PS", type=int, default=1)
    ap.add_argument("--debug", action="store_true")
    ap.add_argument("--stamps", default=None)
    ap.add_argument("--stop", default=None)
    a = ap.parse_args()
    g = Gen(N=a.N, NP=a.NP, LP=a.LP, PD=a.PD, PS=a.PS, HG=a.HG, HD=a.HD, HS=a.HS, nolocal=a.nolocal, pace=a.pace, rot=a.rot, defer=a.defer, JU=a.JU, NOK=a.NOK, NOV=a.NOV, NT=a.NT, NW=(tuple(int(x) for x in a.NW.split(',')) if a.NW else None), NMIN=a.NMIN, TH=tuple(int(x) for x in a.TH.split(',')), GSL=a.GSL, FSL=a.FSL, KP=a.KP, VP=a.VP, WP=a.WP, debug=a.debug, stamps=a.stamps, stop_after=a.stop)
    open(a.o, "w").write(g.build())
```

```python
import sys
from asmlib import *

LDS_WQ = 98304
LDS_SC = 131072
LDS_MISC = 147456
LDS_XN = LDS_MISC
LDS_Q = LDS_MISC + 2304
LDS_CNT = LDS_MISC + 2560
LDS_WM = LDS_MISC + 2624
LDS_WS = LDS_MISC + 2688
LDS_ORED = LDS_MISC + 4096
LDS_XCC = LDS_MISC + 8192
LDS_BLK = LDS_MISC + 2576
LDS_N = LDS_MISC + 2580
LDS_RED = LDS_SC
LDS_XN2 = LDS_MISC
LDS_BYTES = 163840

WS_QP = 0x000000
WS_SLOT = 0x100000
WS_OB = WS_SLOT + 0x00000
WS_OP = WS_SLOT + 0x10000
WS_H = WS_SLOT + 0x30000
WS_GU = WS_SLOT + 0x34000
WS_DP = WS_SLOT + 0x50000
WS_C2 = WS_SLOT + 0x90000
WS_C3 = WS_SLOT + 0x90100
WS_PROG = WS_SLOT + 0xA0000
WS_GP = WS_SLOT + 0xB0000
WS_FLAG = 0x200000
WS_EPOCH = 0x210000
WS_DBG = 0x300000
WS_SIZE = 0x600000
SPIN = 1 << 20

S_WG = 2
S_X, S_K, S_V, S_WQ, S_WO, S_BX, S_WG_, S_WU, S_WD, S_OUT, S_DBG, S_WS = 16, 18, 20, 22, 24, 26, 28, 30, 32, 34, 36, 38
R_K, R_V, R_X, R_WQ, R_WT, R_WS, R_OUT = 40, 44, 48, 52, 56, 60, 68
S_WAVE, S_H, S_B, S_SW = 72, 73, 74, 75
S_T0, S_T1, S_T2, S_T3, S_T4, S_T5 = 76, 77, 78, 79, 80, 81
S_OFF, S_CNT, S_PITCH, S_NJ, S_ROLE = 82, 83, 84, 85, 86
S_M1, S_M2, S_M3 = 88, 90, 92
S_MJ8 = 94
S_EX = 96
S_TAG = 98
S_MQ = 64
S_JJ = 100
S_ROT = 50
S_J1 = 51
S_DS, S_DM, S_DJ, S_DST = 52, 53, 54, 55
S_NCUR = 3
S_JA = 101
S_LOC = 87
S_XCC = 99
S_ME = 66
S_PM = 40
def srd(r): return f"s[{r}:{r+3}]"
def vr(a, n): return f"v[{a}:{a+n-1}]"

class Gen:
    def __init__(self, N=5, NP=8, PV=16, LP='sc1', PD=1, PS=1, HG=64, HD=64, HS=4, nolocal=False, rot=0, defer=False, JU=8, NOK=6, NOV=5, NT=16, pace=False, NW=None, NMIN=4, TH=(64, 192, 240), GTH=(), GM=16, DMAX=7, GSL=1, FSL=1, KP='nt', VP='nt', WP='nt', debug=False, stamps=False, stop_after=None):
        self.A = Asm()
        self.N, self.NP, self.PV, self.LP = N, NP, PV, LP
        self.debug, self.stamps, self.stop_after = debug, stamps, stop_after
        self.OSLEEP, self.GSLEEP, self.DSLEEP = 1, 0, 0
        self.PD, self.PS = PD, PS
        self.nolocal = nolocal
        self.rot = rot
        self.defer, self.JU, self.NOK, self.NOV, self.NT = defer, (JU if defer else 24), NOK, NOV, NT
        self.pace = pace
        self.GTH, self.GM = GTH, GM
        self.D = min(NMIN + len(TH) + len(GTH), DMAX) if pace else N
        self.NW = NW
        if defer: self.D = max(N, NOK, NOV); NMIN = min(N, NOK, NOV)
        if NW:
            self.D = max(NW); NMIN = min(NW)
        self.NMIN, self.TH, self.PK0 = NMIN, TH, 2
        self.GSL, self.FSL = GSL, FSL
        self.KP, self.VP, self.WP = KP, VP, WP
        self.HG, self.HD, self.HS = HG, HD, HS

    def mk_srd(self, r, ptr, size, add_lo=None):
        A = self.A
        if add_lo is None:
            A(f"s_mov_b32 s{r}, s{ptr}")
            A(f"s_mov_b32 s{r+1}, s{ptr+1}")
        else:
            A(f"s_add_u32 s{r}, s{ptr}, {add_lo}")
            A(f"s_addc_u32 s{r+1}, s{ptr+1}, 0")
        A(f"s_mov_b32 s{r+2}, {size}")
        A(f"s_mov_b32 s{r+3}, 0x20000")

    def lds_signal(self, off, va, vd):
        A = self.A
        A(f"s_mov_b64 exec, 1")
        A(f"v_mov_b32 v{va}, {off}")
        A(f"v_mov_b32 v{vd}, 1")
        A(f"ds_add_u32 v{va}, v{vd}")
        A(f"s_mov_b64 exec, -1")

    def lds_wait(self, off, val, va, vd, sleep=1):
        A = self.A
        lp = A.label(); ex = A.label()
        A(f"v_mov_b32 v{va}, {off}")
        A(f"s_mov_b32 s{S_CNT}, 0")
        A.place(lp)
        A(f"ds_read_b32 v{vd}, v{va}")
        A(f"s_waitcnt lgkmcnt(0)")
        A(f"v_readfirstlane_b32 s{S_T5}, v{vd}")
        A(f"s_cmp_ge_u32 s{S_T5}, {val}")
        A(f"s_cbranch_scc1 {ex}")
        A(f"s_add_u32 s{S_CNT}, s{S_CNT}, 1")
        A(f"s_cmp_gt_u32 s{S_CNT}, {SPIN*4}")
        A(f"s_cbranch_scc1 {ex}")
        if sleep: A(f"s_sleep {sleep}")
        A(f"s_branch {lp}")
        A.place(ex)

    def allreduce2(self, a, b, ta, tb, op="v_add_f32"):
        A = self.A
        for r in (8, 4, 2, 1):
            A(f"{op}_dpp v{a}, v{a}, v{a} row_ror:{r} row_mask:0xf bank_mask:0xf")
            A(f"{op}_dpp v{b}, v{b}, v{b} row_ror:{r} row_mask:0xf bank_mask:0xf")
        for sw in ("v_permlane16_swap_b32", "v_permlane32_swap_b32"):
            A(f"v_mov_b32 v{ta}, v{a}")
            A(f"v_mov_b32 v{tb}, v{b}")
            A(f"{sw} v{a}, v{ta}")
            A(f"{sw} v{b}, v{tb}")
            A(f"{op} v{a}, v{a}, v{ta}")
            A(f"{op} v{b}, v{b}, v{tb}")

    def rnd_bf16(self, d, s):
        A = self.A
        A(f"v_cvt_pk_bf16_f32 v{d}, v{s}, v{s}")
        A(f"v_lshlrev_b32 v{d}, 16, v{d}")

    def ln_stats(self, F, D, s1, s2, t1, t2, vmb, vrs):
        A = self.A
        A(f"v_readfirstlane_b32 s{S_T4}, v{F}")
        for i in range(0, 16, 2):
            A(f"v_pk_add_f32 {vr(D+i,2)}, {vr(F+i,2)}, s[{S_T4}:{S_T4+1}] op_sel_hi:[1,0] neg_lo:[0,1] neg_hi:[0,1]")
        A(f"v_pk_add_f32 {vr(s1,2)}, {vr(D,2)}, {vr(D+2,2)}")
        A(f"v_pk_mul_f32 {vr(s2,2)}, {vr(D,2)}, {vr(D,2)}")
        A(f"v_pk_fma_f32 {vr(s2,2)}, {vr(D+2,2)}, {vr(D+2,2)}, {vr(s2,2)}")
        for i in range(4, 16, 2):
            A(f"v_pk_add_f32 {vr(s1,2)}, {vr(s1,2)}, {vr(D+i,2)}")
            A(f"v_pk_fma_f32 {vr(s2,2)}, {vr(D+i,2)}, {vr(D+i,2)}, {vr(s2,2)}")
        A(f"v_add_f32 v{s1}, v{s1}, v{s1+1}")
        A(f"v_add_f32 v{s2}, v{s2}, v{s2+1}")
        self.allreduce2(s1, s2, t1, t2)
        A(f"v_mul_f32 v{s1}, 0x3a800000, v{s1}")
        A(f"v_mul_f32 v{s2}, 0x3a800000, v{s2}")
        A(f"v_add_f32 v{vmb}, s{S_T4}, v{s1}")
        A(f"v_fma_f32 v{vrs}, -v{s1}, v{s1}, v{s2}")
        A(f"v_max_f32 v{vrs}, 0, v{vrs}")
        A(f"v_cvt_pk_bf16_f32 v{vmb}, v{vmb}, v{vrs}")
        A(f"v_and_b32 v{vrs}, 0xffff0000, v{vmb}")
        A(f"v_lshlrev_b32 v{vmb}, 16, v{vmb}")
        A(f"v_add_f32 v{vrs}, 0x3727c5ac, v{vrs}")
        self.rnd_bf16(vrs, vrs)
        A(f"v_sqrt_f32 v{vrs}, v{vrs}")
        self.rnd_bf16(vrs, vrs)
        A(f"v_rcp_f32 v{vrs}, v{vrs}")

    def ln_apply(self, d, f, vmb, vrs, t):
        A = self.A
        A(f"v_pk_add_f32 {vr(t,2)}, {vr(f,2)}, {vr(vmb,2)} op_sel_hi:[1,0] neg_lo:[0,1] neg_hi:[0,1]")
        A(f"v_cvt_pk_bf16_f32 v{t}, v{t}, v{t+1}")
        A(f"v_and_b32 v{t+1}, 0xffff0000, v{t}")
        A(f"v_lshlrev_b32 v{t}, 16, v{t}")
        A(f"v_pk_mul_f32 {vr(t,2)}, {vr(t,2)}, {vr(vrs,2)} op_sel_hi:[1,0]")
        A(f"v_cvt_pk_bf16_f32 v{d}, v{t}, v{t+1}")

    LIGHT_TAIL = {0: 0, 6: 1, 7: 2, 16: 3, 8: 4, 9: 5}
    LIGHT_EARLY = {0: 0, 15: 1, 3: 2, 4: 3, 14: 4, 6: 5}
    LIGHT_SVC = {0: 0, 13: 1, 1: 2, 11: 3, 2: 4, 12: 5}
    @property
    def LIGHT(self): return {"tail": self.LIGHT_TAIL, "early": self.LIGHT_EARLY, "svc": self.LIGHT_SVC}[self.stamps]
    def stamp(self, idx):
        if self.stamps in ("tail", "early", "svc"):
            if idx in self.LIGHT:
                j = 4 + 2 * self.LIGHT[idx]
                self.A(f"s_memrealtime s[{j}:{j+1}]")
            return
        if not self.stamps: return
        A = self.A
        A(f"s_memrealtime s[4:5]")
        A(f"s_waitcnt lgkmcnt(0)")
        A(f"s_lshl_b32 s6, s{S_WG}, 3")
        A(f"s_add_u32 s6, s6, s{S_WAVE}")
        A(f"s_lshl_b32 s6, s6, 7")
        A(f"s_add_u32 s6, s6, {WS_DBG + 0x100000 + idx*4}")
        A(f"s_mov_b64 s[8:9], exec")
        A(f"s_mov_b64 exec, 1")
        A(f"v_mov_b32 v254, s4")
        A(f"v_mov_b32 v255, 0")
        A(f"buffer_store_dword v254, v255, {srd(R_WS)}, s6 offen")
        A(f"s_mov_b64 exec, s[8:9]")

    def stampval(self, idx, sreg):
        if not self.stamps or self.stamps in ("tail", "early", "svc"): return
        A = self.A
        A(f"s_lshl_b32 s6, s{S_WG}, 3")
        A(f"s_add_u32 s6, s6, s{S_WAVE}")
        A(f"s_lshl_b32 s6, s6, 7")
        A(f"s_add_u32 s6, s6, {WS_DBG + 0x100000 + idx*4}")
        A(f"s_mov_b64 s[8:9], exec")
        A(f"s_mov_b64 exec, 1")
        A(f"v_mov_b32 v254, s{sreg}")
        A(f"v_mov_b32 v255, 0")
        A(f"buffer_store_dword v254, v255, {srd(R_WS)}, s6 offen")
        A(f"s_mov_b64 exec, s[8:9]")

    def cstamp(self, idx):
        if not self.stamps or self.stamps in ("tail", "early", "svc"): return
        A = self.A
        A(f"s_memtime s[10:11]")
        A(f"s_waitcnt lgkmcnt(0)")
        self.stampval(idx, 10)

    def quad_gather(self, d, src):
        A = self.A
        A(f"v_mov_b32_dpp v{d+1}, v{src} quad_perm:[1,1,1,1] row_mask:0xf bank_mask:0xf")
        A(f"v_mov_b32_dpp v{d+2}, v{src} quad_perm:[2,2,2,2] row_mask:0xf bank_mask:0xf")
        A(f"v_mov_b32_dpp v{d+3}, v{src} quad_perm:[3,3,3,3] row_mask:0xf bank_mask:0xf")
        if d != src: A(f"v_mov_b32 v{d}, v{src}")
    def even_gather(self, d, src):
        A = self.A
        A(f"v_mov_b32_dpp v{d+1}, v{src} row_shl:2 row_mask:0xf bank_mask:0xf")
        A(f"v_mov_b32_dpp v{d+2}, v{src} row_shl:4 row_mask:0xf bank_mask:0xf")
        A(f"v_mov_b32_dpp v{d+3}, v{src} row_shl:6 row_mask:0xf bank_mask:0xf")
        if d != src: A(f"v_mov_b32 v{d}, v{src}")

    def hint_add(self, off, va, vd):
        A = self.A
        A(f"v_mov_b32 v{va}, {off}")
        A(f"v_mov_b32 v{vd}, 1")
        A(f"s_mov_b64 exec, 1")
        A(f"buffer_atomic_add v{vd}, v{va}, {srd(R_WS)}, 0 offen sc1")
        A(f"s_mov_b64 exec, -1")
    def hint_wait(self, off, target, va, vd, sleep):
        A = self.A
        lp = A.label(); ex = A.label()
        A(f"s_cmp_eq_u32 s{S_WAVE}, 0")
        A(f"s_cbranch_scc0 {ex}")
        A(f"v_mov_b32 v{va}, {off}")
        A(f"s_mov_b32 s{S_CNT}, 0")
        A(f"s_mov_b64 exec, 1")
        A.place(lp)
        A(f"buffer_load_dword v{vd}, v{va}, {srd(R_WS)}, 0 offen {self.LP}")
        A("s_waitcnt vmcnt(0)")
        A(f"v_readfirstlane_b32 s{S_T5}, v{vd}")
        A(f"s_add_u32 s{S_T5}, s{S_T5}, 1")
        A(f"s_cmp_ge_u32 s{S_T5}, {target}")
        A(f"s_cbranch_scc1 {ex}")
        A(f"s_add_u32 s{S_CNT}, s{S_CNT}, 1")
        A(f"s_cmp_gt_u32 s{S_CNT}, {SPIN}")
        A(f"s_cbranch_scc1 {ex}")
        A(f"s_sleep {sleep}")
        A(f"s_branch {lp}")
        A.place(ex)
        A("s_mov_b64 exec, -1")
        A("s_barrier")

    def local_flag(self):
        A = self.A
        A(f"v_and_b32 v4, 31, v1")
        A(f"v_lshlrev_b32 v4, 5, v4")
        A(f"s_lshl_b32 s{S_T5}, s{S_B}, 2")
        A(f"s_add_u32 s{S_T5}, s{S_T5}, {LDS_XCC}")
        A(f"v_add_u32 v4, s{S_T5}, v4")
        A(f"ds_read_b32 v5, v4")
        A(f"s_waitcnt lgkmcnt(0)")
        A(f"v_readfirstlane_b32 s{S_LOC}, v5")
        A(f"v_cmp_ne_u32 vcc, s{S_LOC}, v5")
        A(f"s_cmp_eq_u64 vcc, 0")
        A(f"s_cselect_b32 s{S_LOC}, 1, 0")
        if self.nolocal: A(f"s_mov_b32 s{S_LOC}, 0")
    def store_sel(self, ins):
        A = self.A
        l1 = A.label(); l2 = A.label()
        A(f"s_cmp_eq_u32 s{S_LOC}, 1")
        A(f"s_cbranch_scc1 {l1}")
        A(f"{ins} sc0 sc1")
        A(f"s_branch {l2}")
        A.place(l1)
        A(ins)
        A.place(l2)

    def sample_wait(self, need_all, va, vd, sleep):
        A = self.A
        lp = A.label(); ex = A.label()
        A(f"s_cmp_eq_u32 s{S_WAVE}, 0")
        A(f"s_cbranch_scc0 {ex}")
        A(f"v_lshlrev_b32 v{va}, 8, v1")
        A(f"v_add_u32 v{va}, {WS_H + 7*32}, v{va}")
        A(f"s_mov_b32 s{S_CNT}, 0")
        A(f"s_mov_b64 exec, 0xff")
        A.place(lp)
        A(f"buffer_load_dword v{vd}, v{va}, {srd(R_WS)}, 0 offen {self.LP}")
        A("s_waitcnt vmcnt(0)")
        if need_all:
            A(f"v_cmp_eq_u32 vcc, -1, v{vd}")
            A(f"s_cbranch_vccz {ex}")
        else:
            A(f"v_cmp_ne_u32 vcc, -1, v{vd}")
            A(f"s_cbranch_vccnz {ex}")
        A(f"s_add_u32 s{S_CNT}, s{S_CNT}, 1")
        A(f"s_cmp_gt_u32 s{S_CNT}, 4000")
        A(f"s_cbranch_scc1 {ex}")
        A(f"s_sleep {sleep}")
        A(f"s_branch {lp}")
        A.place(ex)
        A("s_mov_b64 exec, -1")
        A("s_waitcnt vmcnt(0)")
        A("s_barrier")

    def maxred(self, tmp, regs):
        A = self.A
        rs = list(regs)
        if len(rs) == 1:
            return rs[0]
        if len(rs) == 2:
            A(f"v_max_u32 v{tmp}, v{rs[0]}, v{rs[1]}"); return tmp
        A(f"v_max3_u32 v{tmp}, v{rs[0]}, v{rs[1]}, v{rs[2]}")
        rs = rs[3:]
        while len(rs) >= 2:
            A(f"v_max3_u32 v{tmp}, v{tmp}, v{rs[0]}, v{rs[1]}")
            rs = rs[2:]
        if rs:
            A(f"v_max_u32 v{tmp}, v{tmp}, v{rs[0]}")
        return tmp

    def prepoll(self, load, reg, mask=None, sleep=4, need_all=False):
        A = self.A
        lp = A.label(); ex = A.label()
        if mask is not None:
            A(f"s_mov_b64 exec, s[{mask}:{mask+1}]")
        A(f"s_mov_b32 s{S_CNT}, 0")
        A.place(lp)
        A(load)
        A("s_waitcnt vmcnt(0)")
        if need_all:
            A(f"v_cmp_eq_u32 vcc, -1, v{reg}")
            A(f"s_cbranch_vccz {ex}")
        else:
            A(f"v_cmp_ne_u32 vcc, -1, v{reg}")
            A(f"s_cbranch_vccnz {ex}")
        A(f"s_add_u32 s{S_CNT}, s{S_CNT}, 1")
        A(f"s_cmp_gt_u32 s{S_CNT}, {SPIN}")
        A(f"s_cbranch_scc1 {ex}")
        A(f"s_sleep {sleep}")
        A(f"s_branch {lp}")
        A.place(ex)
        A(f"s_mov_b64 exec, -1")
        self.stamp(16)

    def poll_groups(self, groups, tmp, mask=None, sleep=0):
        A = self.A
        G = len(groups)
        lp = A.label(); ex = A.label()
        for g in range(G):
            m = S_PM + 2 * g
            if mask is None: A(f"s_mov_b64 s[{m}:{m+1}], -1")
            else: A(f"s_mov_b64 s[{m}:{m+1}], s[{mask}:{mask+1}]")
        A(f"s_mov_b32 s{S_CNT}, 0")
        A.place(lp)
        for g, (loads, regs) in enumerate(groups):
            m = S_PM + 2 * g
            sk = A.label()
            A(f"s_mov_b64 exec, s[{m}:{m+1}]")
            if G > 1: A(f"s_cbranch_execz {sk}")
            for l in loads: A(l)
            if G > 1: A.place(sk)
        A("s_waitcnt vmcnt(0)")
        for g, (loads, regs) in enumerate(groups):
            m = S_PM + 2 * g
            A(f"s_mov_b64 exec, s[{m}:{m+1}]")
            t = self.maxred(tmp, regs)
            A(f"v_cmp_eq_u32_e64 s[{m}:{m+1}], -1, v{t}")
        if G == 1:
            A(f"s_cmp_eq_u64 s[{S_PM}:{S_PM+1}], 0")
        else:
            A(f"s_or_b64 s[{S_EX}:{S_EX+1}], s[{S_PM}:{S_PM+1}], s[{S_PM+2}:{S_PM+3}]")
            for g in range(2, G):
                m = S_PM + 2 * g
                A(f"s_or_b64 s[{S_EX}:{S_EX+1}], s[{S_EX}:{S_EX+1}], s[{m}:{m+1}]")
            A(f"s_cmp_eq_u64 s[{S_EX}:{S_EX+1}], 0")
        A(f"s_cbranch_scc1 {ex}")
        A(f"s_add_u32 s{S_CNT}, s{S_CNT}, 1")
        if sleep: A(f"s_sleep {sleep}")
        A(f"s_cmp_gt_u32 s{S_CNT}, {SPIN}")
        A(f"s_cbranch_scc0 {lp}")
        A.place(ex)
        A(f"s_mov_b64 exec, -1")

    def poll_pipe(self, loads, regs, tmp, mask=None, depth=4, sleep=2):
        A = self.A
        n = len(loads)
        lp = A.label(); ex = A.label()
        for r in regs:
            A(f"v_mov_b32 v{r}, -1")
        if mask is not None:
            A(f"s_mov_b64 exec, s[{mask}:{mask+1}]")
        A(f"s_mov_b32 s{S_CNT}, 0")
        A.place(lp)
        for l in loads: A(l)
        if sleep: A(f"s_sleep {sleep}")
        A(f"s_waitcnt vmcnt({(depth-1)*n})")
        t = self.maxred(tmp, regs)
        A(f"v_cmp_eq_u32 vcc, -1, v{t}")
        A(f"s_cbranch_vccz {ex}")
        A(f"s_mov_b64 exec, vcc")
        A(f"s_add_u32 s{S_CNT}, s{S_CNT}, 1")
        A(f"s_cmp_gt_u32 s{S_CNT}, {SPIN}")
        A(f"s_cbranch_scc0 {lp}")
        A.place(ex)
        A(f"s_mov_b64 exec, -1")

    def role_params(self):
        A = self.A
        lG, lD, lN, lE = A.label(), A.label(), A.label(), A.label()
        A(f"""
        s_mov_b32 s{S_JJ}, 999
        s_mov_b32 s{S_JA}, 0
        s_cmp_ge_u32 s{S_H}, 8
        s_cbranch_scc1 {lG}
        s_mov_b32 s{S_ROLE}, 0
        s_mov_b32 s{S_J1}, 24
        s_mov_b32 s{S_PITCH}, 2048
        s_mov_b32 s{S_NJ}, 32
        s_lshr_b32 s{S_T0}, s{S_H}, 1
        s_lshl_b32 s{S_T0}, s{S_T0}, 21
        s_and_b32 s{S_T1}, s{S_H}, 1
        s_lshl_b32 s{S_T2}, s{S_B}, 1
        s_add_u32 s{S_T1}, s{S_T1}, s{S_T2}
        s_lshl_b32 s{S_T1}, s{S_T1}, 7
        s_add_u32 s{S_T0}, s{S_T0}, s{S_T1}
        s_add_u32 s{R_WT}, s{S_WO}, s{S_T0}
        s_addc_u32 s{R_WT+1}, s{S_WO+1}, 0
        s_sub_u32 s{R_WT+2}, {8<<20}, s{S_T0}
        s_branch {lE}
        """)
        A.place(lG)
        A(f"""
        s_cmp_ge_u32 s{S_H}, 22
        s_cbranch_scc1 {lD}
        s_mov_b32 s{S_ROLE}, 1
        s_mov_b32 s{S_J1}, {self.JU}
        s_mov_b32 s{S_PITCH}, 7168
        s_mov_b32 s{S_NJ}, 32
        s_sub_u32 s{S_T0}, s{S_H}, 8
        s_lshr_b32 s{S_T1}, s{S_T0}, 1
        s_mul_i32 s{S_T2}, s{S_B}, 7
        s_add_u32 s{S_T1}, s{S_T1}, s{S_T2}
        s_lshl_b32 s{S_T1}, s{S_T1}, 7
        s_bitcmp1_b32 s{S_T0}, 0
        s_cselect_b32 s{S_T2}, s{S_WU}, s{S_WG_}
        s_cselect_b32 s{S_T3}, s{S_WU+1}, s{S_WG_+1}
        s_add_u32 s{R_WT}, s{S_T2}, s{S_T1}
        s_addc_u32 s{R_WT+1}, s{S_T3}, 0
        s_sub_u32 s{R_WT+2}, {7340032}, s{S_T1}
        s_branch {lE}
        """)
        A.place(lD)
        A(f"""
        s_cmp_ge_u32 s{S_H}, 30
        s_cbranch_scc1 {lN}
        s_mov_b32 s{S_ROLE}, 2
        s_mov_b32 s{S_J1}, {self.JU}
        s_mov_b32 s{S_PITCH}, 2048
        s_mov_b32 s{S_NJ}, 28
        s_mov_b32 s{S_JJ}, 14
        s_mov_b32 s{S_JA}, {(128 - 448*2048) & 0xffffffff}
        s_mul_i32 s{S_T1}, s{S_B}, {448*2048}
        s_sub_u32 s{S_T0}, s{S_H}, 22
        s_lshl_b32 s{S_T0}, s{S_T0}, 8
        s_add_u32 s{S_T0}, s{S_T0}, s{S_T1}
        s_add_u32 s{R_WT}, s{S_WD}, s{S_T0}
        s_addc_u32 s{R_WT+1}, s{S_WD+1}, 0
        s_sub_u32 s{R_WT+2}, {7340032}, s{S_T0}
        s_branch {lE}
        """)
        A.place(lN)
        A(f"""
        s_mov_b32 s{S_ROLE}, 3
        s_mov_b32 s{S_J1}, 0
        s_mov_b32 s{S_PITCH}, 2048
        s_mov_b32 s{S_NJ}, 0
        s_mov_b32 s{R_WT}, s{S_WD}
        s_mov_b32 s{R_WT+1}, s{S_WD+1}
        s_mov_b32 s{R_WT+2}, 0
        """)
        A.place(lE)
        A(f"s_mov_b32 s{R_WT+3}, 0x20000")

    def entry(self):
        A = self.A
        A.header(256, 512, LDS_BYTES, comments=[
            "Fused decode layer: preLN + MHA over KV cache + out-proj + preLN + GEGLU FFN (one persistent launch, 256 WGs x 512).",
        ])
        A(f"""
        s_cmp_ge_u32 s2, 256
        s_cbranch_scc1 L_end
        s_load_dwordx16 s[16:31], s[0:1], 0
        s_load_dwordx8 s[32:39], s[0:1], 64
        v_and_b32 v1, 63, v0
        v_lshrrev_b32 v4, 6, v0
        v_lshlrev_b32 v2, 4, v1
        v_readfirstlane_b32 s{S_WAVE}, v4
        v_lshlrev_b32 v3, 2, v1
        s_lshr_b32 s{S_H}, s2, 3
        s_and_b32 s{S_B}, s2, 7
        s_mov_b32 s{S_M1}, 0x22222222
        s_mov_b32 s{S_M1+1}, 0x22222222
        s_mov_b32 s{S_M2}, 0x44444444
        s_mov_b32 s{S_M2+1}, 0x44444444
        s_mov_b32 s{S_M3}, 0x88888888
        s_mov_b32 s{S_M3+1}, 0x88888888
        s_mov_b32 s{S_MJ8}, 0x00ff00ff
        s_mov_b32 s{S_MJ8+1}, 0x00ff00ff
        s_mov_b32 s{S_MQ}, 0x11111111
        s_mov_b32 s{S_MQ+1}, 0x11111111
        s_mov_b32 s{S_ME}, 0x01010101
        s_mov_b32 s{S_ME+1}, 0x01010101
        v_mov_b32 v204, 0
        v_mov_b32 v4, {LDS_CNT}
        v_mov_b32 v6, 0
        v_mov_b32 v7, 0
        ds_write_b64 v4, v[6:7]
        ds_write_b64 v4, v[6:7] offset:8
        v_mov_b32 v7, {self.N}
        ds_write_b64 v4, v[6:7] offset:16
        s_and_b32 s{S_SW}, s{S_WAVE}, 3
        s_mov_b64 s[4:5], 0
        s_mov_b64 s[6:7], 0
        s_mov_b64 s[8:9], 0
        s_mov_b64 s[10:11], 0
        s_mov_b64 s[12:13], 0
        s_mov_b64 s[14:15], 0
        s_cmp_ge_u32 s{S_WAVE}, 4
        s_cbranch_scc1 L_stream
        """)

    def service(self):
        A = self.A
        A.c("==== service waves: LN(x), q partial, exchange ====")
        A(f"""
        v_lshrrev_b32 v4, 4, v1
        v_and_b32 v5, 15, v1
        s_lshr_b32 s{S_T0}, s{S_SW}, 1
        s_lshl_b32 s{S_T0}, s{S_T0}, 2
        v_or_b32 v6, s{S_T0}, v4
        v_lshlrev_b32 v6, 1, v6
        v_xor_b32 v6, v6, v5
        v_lshlrev_b32 v6, 4, v6
        v_lshlrev_b32 v7, 13, v4
        v_add_u32 v6, v6, v7
        s_lshl_b32 s{S_T0}, s{S_B}, 20
        s_lshl_b32 s{S_T1}, s{S_SW}, 15
        s_add_u32 s{S_T0}, s{S_T0}, s{S_T1}
        s_lshl_b32 s{S_T1}, s{S_H}, 8
        s_add_u32 s{S_T0}, s{S_T0}, s{S_T1}
        s_lshl_b32 s{S_T1}, s{S_SW}, 10
        s_add_u32 s{S_T1}, s{S_T1}, {LDS_WQ}
        s_lshl_b32 s{S_T2}, s{S_SW}, 12
        v_mov_b32 v126, 0
        s_mov_b32 s{S_T3}, {WS_EPOCH}
        s_waitcnt lgkmcnt(0)
        """)
        self.mk_srd(R_X, S_X, 16384)
        A(f"buffer_load_dwordx4 v[8:11], v2, {srd(R_X)}, s{S_T2} offen")
        A(f"buffer_load_dwordx4 v[12:15], v2, {srd(R_X)}, s{S_T2} offen offset:1024")
        A(f"buffer_load_dwordx4 v[16:19], v2, {srd(R_X)}, s{S_T2} offen offset:2048")
        A(f"buffer_load_dwordx4 v[20:23], v2, {srd(R_X)}, s{S_T2} offen offset:3072")
        self.mk_srd(R_WQ, S_WQ, 8 << 20)
        for j in range(8):
            A(f"s_mov_b32 m0, s{S_T1}")
            A(f"s_add_u32 s{S_T1}, s{S_T1}, 4096")
            A(f"buffer_load_dwordx4 v6, {srd(R_WQ)}, s{S_T0} offen {self.WP} lds")
            if j < 7:
                A(f"s_add_u32 s{S_T0}, s{S_T0}, {4*32768}")
        self.mk_srd(R_WS, S_WS, WS_SIZE)
        A(f"buffer_load_dword v126, v126, {srd(R_WS)}, s{S_T3} offen {self.LP}")
        A("s_barrier")
        self.stamp(0)
        if self.stamps and self.stamps not in ("tail", "early", "svc"):
            A("s_getreg_b32 s10, hwreg(HW_REG_XCC_ID)")
            self.stampval(31, 10)
        A(f"""
        v_mov_b32 v24, -1
        v_mov_b32 v25, -1
        v_mov_b32 v26, -1
        v_mov_b32 v27, -1
        s_lshl_b32 s{S_T0}, s2, 12
        s_lshl_b32 s{S_T1}, s{S_SW}, 10
        s_add_u32 s{S_T0}, s{S_T0}, s{S_T1}
        s_add_u32 s{S_T0}, s{S_T0}, {WS_SLOT}
        buffer_store_dwordx4 v[24:27], v2, {srd(R_WS)}, s{S_T0} offen sc0 sc1
        """)
        nst = 2 if (self.stamps and self.stamps not in ('tail', 'early', 'svc')) else 0
        self.role_params()
        A(f"s_waitcnt vmcnt({10 + nst})")
        self.stamp(10)
        F, D = 32, 48
        S1, S2, T1, T2, VMB, VRS = 64, 66, 68, 69, 70, 72
        for r in range(2):
            base = 8 + 8 * r
            for i in range(8):
                A(f"v_lshlrev_b32 v{F+2*i}, 16, v{base+i}")
                A(f"v_and_b32 v{F+2*i+1}, 0xffff0000, v{base+i}")
            self.ln_stats(F, D, S1, S2, T1, T2, VMB, VRS)
            lab = A.label()
            A(f"s_cmp_lt_u32 s{S_B}, 4")
            A(f"s_cbranch_scc1 {lab}")
            for i in range(0, 8, 2):
                A(f"v_pk_mov_b32 {vr(F+i,2)}, {vr(F+8+i,2)}, {vr(F+8+i,2)} op_sel:[0,1]")
            A.place(lab)
            for i in range(4):
                self.ln_apply(76 + i, F + 2*i, VMB, VRS, 74)
            A(f"""
            s_and_b32 s{S_T0}, s{S_B}, 3
            s_lshl_b32 s{S_T0}, s{S_T0}, 4
            s_mov_b64 s[{S_EX}:{S_EX+1}], 0xffff
            s_lshl_b64 s[{S_EX}:{S_EX+1}], s[{S_EX}:{S_EX+1}], s{S_T0}
            s_lshl_b32 s{S_T1}, s{S_SW}, 1
            s_add_u32 s{S_T1}, s{S_T1}, {r}
            s_mul_i32 s{S_T1}, s{S_T1}, 272
            s_add_u32 s{S_T1}, s{S_T1}, {LDS_XN}
            v_and_b32 v80, 15, v1
            v_lshlrev_b32 v80, 4, v80
            v_add_u32 v80, s{S_T1}, v80
            s_mov_b64 exec, s[{S_EX}:{S_EX+1}]
            ds_write_b128 v80, v[76:79]
            s_mov_b64 exec, -1
            """)
        self.stamp(12)
        A(f"""
        v_and_b32 v58, 7, v1
        v_mul_u32_u24 v58, 272, v58
        v_lshrrev_b32 v59, 4, v1
        v_lshlrev_b32 v60, 4, v59
        v_add_u32 v58, v58, v60
        v_add_u32 v58, {LDS_XN}, v58
        v_and_b32 v60, 15, v1
        v_lshrrev_b32 v61, 2, v60
        v_and_b32 v62, 3, v60
        v_and_b32 v63, 1, v59
        v_lshlrev_b32 v63, 2, v63
        v_or_b32 v63, v63, v61
        v_lshlrev_b32 v80, 3, v59
        v_add_u32 v80, v80, v61
        v_lshlrev_b32 v80, 8, v80
        v_lshlrev_b32 v62, 3, v62
        v_add_u32 v80, v80, v62
        v_add_u32 v80, {LDS_WQ}, v80
        s_lshl_b32 s{S_T0}, s{S_SW}, 1
        v_xor_b32 v81, s{S_T0}, v63
        v_lshlrev_b32 v81, 5, v81
        v_add_u32 v81, v81, v80
        s_add_u32 s{S_T0}, s{S_T0}, 1
        v_xor_b32 v82, s{S_T0}, v63
        v_lshlrev_b32 v82, 5, v82
        v_add_u32 v82, v82, v80
        v_and_b32 v56, 15, v1
        v_lshlrev_b32 v56, 12, v56
        v_lshlrev_b32 v60, 4, v59
        v_add_u32 v56, v56, v60
        """)
        A(f"s_waitcnt vmcnt({2 + 2*nst}) lgkmcnt(0)")
        self.stamp(13)
        self.lds_signal(LDS_CNT + 0, 124, 125)
        self.lds_wait(LDS_CNT + 0, 4, 124, 125, sleep=0)
        for s in range(4):
            A(f"ds_read_b128 {vr(64+4*s,4)}, v58 offset:{s*64}")
        for c in range(2):
            for s in range(4):
                r = 84 + (c * 4 + s) * 4
                A(f"ds_read_b64_tr_b16 {vr(r,2)}, v{81+c} offset:{s*8192}")
                A(f"ds_read_b64_tr_b16 {vr(r+2,2)}, v{81+c} offset:{s*8192+1024}")
        A(f"""
        s_lshl_b32 s{S_T0}, s{S_H}, 15
        s_lshl_b32 s{S_T1}, s{S_B}, 9
        s_add_u32 s{S_T0}, s{S_T0}, s{S_T1}
        s_lshl_b32 s{S_T1}, s{S_SW}, 7
        s_add_u32 s{S_T0}, s{S_T0}, s{S_T1}
        s_waitcnt lgkmcnt(0)
        """)
        for s in range(4):
            for c in range(2):
                r = 84 + (c * 4 + s) * 4
                acc = 116 + 4 * c
                src = "0" if s == 0 else vr(acc, 4)
                A(f"v_mfma_f32_16x16x32_bf16 {vr(acc,4)}, {vr(r,4)}, {vr(64+4*s,4)}, {src}")
        self.lds_signal(LDS_CNT + 4, 124, 125)
        A(f"""
        s_mov_b64 exec, s[{S_MJ8}:{S_MJ8+1}]
        buffer_store_dwordx4 v[116:119], v56, {srd(R_WS)}, s{S_T0} offen sc0 sc1
        buffer_store_dwordx4 v[120:123], v56, {srd(R_WS)}, s{S_T0} offen offset:64 sc0 sc1
        s_mov_b64 exec, -1
        s_lshl_b32 s{S_T0}, s{S_H}, 7
        s_add_u32 s{S_T0}, s{S_T0}, {WS_FLAG}
        s_lshl_b32 s{S_T1}, s{S_B}, 4
        s_lshl_b32 s{S_T2}, s{S_SW}, 2
        s_add_u32 s{S_T1}, s{S_T1}, s{S_T2}
        s_getreg_b32 s{S_XCC}, hwreg(HW_REG_XCC_ID)
        s_and_b32 s{S_XCC}, s{S_XCC}, 7
        s_lshl_b32 s{S_XCC}, s{S_XCC}, 24
        v_mov_b32 v58, s{S_T1}
        s_waitcnt vmcnt(0)
        v_readfirstlane_b32 s{S_TAG}, v126
        s_add_u32 s{S_TAG}, s{S_TAG}, 1
        s_add_u32 s{S_XCC}, s{S_XCC}, s{S_TAG}
        v_mov_b32 v59, s{S_XCC}
        s_mov_b64 exec, 1
        buffer_store_dword v59, v58, {srd(R_WS)}, s{S_T0} offen sc0 sc1
        s_mov_b64 exec, -1
        """)
        self.stamp(1)
        A(f"s_cmp_eq_u32 s{S_SW}, 0")
        A(f"s_cbranch_scc0 L_svc_done")
        lp = A.label(); ex = A.label()
        A(f"s_mov_b64 exec, 0xffffffff")
        A(f"s_mov_b32 s{S_CNT}, 0")
        A.place(lp)
        A(f"""
        buffer_load_dword v60, v3, {srd(R_WS)}, s{S_T0} offen {self.LP}
        s_waitcnt vmcnt(0)
        v_subrev_u32 v60, s{S_TAG}, v60
        v_and_b32 v60, 0xf8ffffff, v60
        v_cmp_ne_u32 vcc, 0, v60
        s_cbranch_vccz {ex}
        s_add_u32 s{S_CNT}, s{S_CNT}, 1
        s_cmp_gt_u32 s{S_CNT}, {SPIN}
        s_cbranch_scc0 {lp}
        """)
        A.place(ex)
        A("s_mov_b64 exec, -1")
        self.stamp(11)
        A(f"s_lshl_b32 s{S_T0}, s2, 12")
        for j in range(4):
            A(f"buffer_load_dwordx4 {vr(64+4*j,4)}, v2, {srd(R_WS)}, s{S_T0} offen offset:{j*1024} {self.LP}")
        A(f"""
        v_and_b32 v58, 31, v1
        v_lshlrev_b32 v58, 3, v58
        v_add_u32 v58, {LDS_Q}, v58
        s_waitcnt vmcnt(0)
        """)
        for e in range(0, 4, 2):
            A(f"v_pk_add_f32 {vr(64+e,2)}, {vr(64+e,2)}, {vr(68+e,2)}")
            A(f"v_pk_add_f32 {vr(72+e,2)}, {vr(72+e,2)}, {vr(76+e,2)}")
        for e in range(0, 4, 2):
            A(f"v_pk_add_f32 {vr(64+e,2)}, {vr(64+e,2)}, {vr(72+e,2)}")
        for e in range(4):
            A(f"v_mov_b32 v{68+e}, v{64+e}")
        for e in range(4):
            A(f"v_permlane32_swap_b32 v{64+e}, v{68+e}")
        for e in range(0, 4, 2):
            A(f"v_pk_add_f32 {vr(64+e,2)}, {vr(64+e,2)}, {vr(68+e,2)}")
        A(f"""
        v_cvt_pk_bf16_f32 v64, v64, v65
        v_cvt_pk_bf16_f32 v65, v66, v67
        ds_write_b64 v58, v[64:65]
        s_waitcnt lgkmcnt(0)
        """)
        self.lds_signal(LDS_CNT + 12, 124, 125)
        self.stamp(2)
        if self.debug:
            A(f"""
            v_and_b32 v58, 31, v1
            v_lshlrev_b32 v58, 3, v58
            s_lshl_b32 s{S_T0}, s2, 8
            s_add_u32 s{S_T0}, s{S_T0}, {WS_DBG}
            buffer_store_dwordx2 v[64:65], v58, {srd(R_WS)}, s{S_T0} offen
            """)
        lp = A.label(); ex = A.label()
        A(f"s_mov_b32 s{S_T0}, {WS_FLAG}")
        A(f"s_mov_b32 s{S_CNT}, 0")
        A.place(lp)
        for j in range(4):
            A(f"buffer_load_dwordx4 {vr(64+4*j,4)}, v2, {srd(R_WS)}, s{S_T0} offen offset:{j*1024} {self.LP}")
        A("s_waitcnt vmcnt(0)")
        for i in range(16):
            A(f"v_subrev_u32 v{64+i}, s{S_TAG}, v{64+i}")
        for i in range(16):
            A(f"v_and_b32 v{80+i}, 0xf8ffffff, v{64+i}")
        t = self.maxred(60, range(80, 96))
        A(f"""
        v_cmp_ne_u32 vcc, 0, v{t}
        s_cbranch_vccz {ex}
        s_add_u32 s{S_CNT}, s{S_CNT}, 1
        s_cmp_gt_u32 s{S_CNT}, {SPIN}
        s_cbranch_scc1 {ex}
        s_sleep 16
        s_branch {lp}
        """)
        A.place(ex)
        A(f"v_add_u32 v60, {LDS_XCC}, v3")
        for t in range(4):
            A(f"ds_write_b32 v60, v{64+4*t} offset:{t*256}")
        A("s_waitcnt lgkmcnt(0)")
        if self.pace:
            self.local_flag()
            self.controller(self.PK0, 13)
            A("s_barrier")
            A("s_barrier")
            self.controller(16, 29)
            A("s_branch L_join3")
        A.place("L_svc_done")
        A("s_barrier")
        A("s_barrier")
        A("s_branch L_join3")

    def controller(self, k0, k1):
        A = self.A
        lp = A.label(); lw = A.label(); lx = A.label(); lend = A.label()
        A(f"s_cmp_eq_u32 s{S_LOC}, 1")
        A(f"s_cbranch_scc0 {lend}")
        A(f"s_mov_b32 s{S_T0}, {k0}")
        A(f"v_mov_b32 v60, {LDS_BLK}")
        A(f"v_mov_b32 v61, {LDS_N}")
        A(f"v_mov_b32 v62, 1")
        A(f"s_lshl_b32 s{S_T3}, s{S_H}, 2")
        A(f"v_mov_b32 v63, s{S_T3}")
        A.place(lp)
        A(f"s_mov_b32 s{S_CNT}, 0")
        A.place(lw)
        A(f"ds_read_b32 v64, v60")
        A(f"s_waitcnt lgkmcnt(0)")
        A(f"v_readfirstlane_b32 s{S_T1}, v64")
        A(f"s_cmp_gt_u32 s{S_T1}, s{S_T0}")
        A(f"s_cbranch_scc1 {lx}")
        A(f"s_add_u32 s{S_CNT}, s{S_CNT}, 1")
        A(f"s_cmp_gt_u32 s{S_CNT}, {SPIN}")
        A(f"s_cbranch_scc1 {lx}")
        A(f"s_sleep 8")
        A(f"s_branch {lw}")
        A.place(lx)
        A(f"s_sub_u32 s{S_T1}, s{S_T1}, 1")
        A(f"s_min_u32 s{S_T0}, s{S_T1}, {k1}")
        A(f"s_lshl_b32 s{S_T2}, s{S_T0}, 10")
        A(f"s_lshl_b32 s{S_T4}, s{S_B}, 7")
        A(f"s_add_u32 s{S_T2}, s{S_T2}, s{S_T4}")
        A(f"s_add_u32 s{S_T2}, s{S_T2}, {WS_PROG}")
        A(f"s_mov_b64 exec, 1")
        A(f"buffer_store_dword v62, v63, {srd(R_WS)}, s{S_T2} offen")
        A(f"s_mov_b64 exec, 0xffffffff")
        A(f"buffer_load_dword v64, v3, {srd(R_WS)}, s{S_T2} offen {self.LP}")
        A(f"s_waitcnt vmcnt(0)")
        A(f"v_cmp_ne_u32 vcc, -1, v64")
        A(f"s_mov_b64 exec, -1")
        A(f"s_bcnt1_i32_b64 s{S_T4}, vcc")
        if self.GTH:
            lg = A.label()
            A(f"s_lshl_b32 s{S_T2}, s{S_T0}, 7")
            A(f"s_add_u32 s{S_T2}, s{S_T2}, {WS_GP}")
            A(f"s_cmp_eq_u32 s{S_T4}, {self.GM}")
            A(f"s_cbranch_scc0 {lg}")
            A(f"s_lshl_b32 s{S_T5}, s{S_B}, 2")
            A(f"v_mov_b32 v65, s{S_T5}")
            A(f"s_mov_b64 exec, 1")
            A(f"buffer_store_dword v62, v65, {srd(R_WS)}, s{S_T2} offen sc0 sc1")
            A(f"s_mov_b64 exec, -1")
            A.place(lg)
            A(f"s_mov_b64 exec, 0xff")
            A(f"buffer_load_dword v64, v3, {srd(R_WS)}, s{S_T2} offen {self.LP}")
            A(f"s_waitcnt vmcnt(0)")
            A(f"v_cmp_ne_u32 vcc, -1, v64")
            A(f"s_mov_b64 exec, -1")
            A(f"s_bcnt1_i32_b64 s{S_T2}, vcc")
        A(f"s_mov_b32 s{S_T5}, {self.NMIN}")
        for th in self.TH:
            A(f"s_cmp_gt_u32 s{S_T4}, {th}")
            A(f"s_addc_u32 s{S_T5}, s{S_T5}, 0")
        for th in self.GTH:
            A(f"s_cmp_ge_u32 s{S_T2}, {th}")
            A(f"s_addc_u32 s{S_T5}, s{S_T5}, 0")
        A(f"s_min_u32 s{S_T5}, s{S_T5}, {self.D}")
        A(f"v_mov_b32 v64, s{S_T5}")
        A(f"ds_write_b32 v61, v64")
        A(f"s_add_u32 s{S_T0}, s{S_T0}, 1")
        A(f"s_cmp_le_u32 s{S_T0}, {k1}")
        A(f"s_cbranch_scc1 {lp}")
        A(f"s_waitcnt lgkmcnt(0)")
        A.place(lend)

    RING = 64
    R = 32
    QF = 8
    VN = 200
    def slot(self, t): return self.RING + 4 * (t % self.R)
    def issue(self, t, which):
        A = self.A
        r = self.slot(t)
        A(f"buffer_load_dwordx4 {vr(r,4)}, v2, {srd(R_K if which == 'K' else R_V)}, s{S_OFF} offen {self.KP if which == 'K' else self.VP}")
        A(f"s_add_u32 s{S_OFF}, s{S_OFF}, 4096")
        if self.rot: A(f"s_and_b32 s{S_OFF}, s{S_OFF}, 0xfffff")

    def vwait(self):
        A = self.A
        if not self.pace and not self.NW and not (self.defer and self.D > self.N):
            A(f"s_waitcnt vmcnt({self.N-1})"); return
        L = A.label()
        lv = list(range(self.D, self.NMIN, -1))
        for n in lv:
            A(f"s_waitcnt vmcnt({n-1})")
            A(f"s_cmp_ge_u32 s{S_NCUR}, {n}")
            A(f"s_cbranch_scc1 {L}")
        A(f"s_waitcnt vmcnt({self.NMIN-1})")
        A.place(L)
    def blk_begin(self):
        if not self.pace: return
        A = self.A
        A(f"s_waitcnt lgkmcnt(0)")
        A(f"v_readfirstlane_b32 s{S_NCUR}, v{self.VN}")
        A(f"ds_read_b32 v{self.VN}, v{self.VN+1}")
    def blk_end(self):
        if not self.pace: return
        A = self.A
        L = A.label()
        A(f"v_add_u32 v{self.VN+2}, 1, v{self.VN+2}")
        A(f"s_cmp_eq_u32 s{S_SW}, 0")
        A(f"s_cbranch_scc0 {L}")
        A(f"ds_write_b32 v{self.VN+1}, v{self.VN+2} offset:-4".replace("offset:-4", "offset:0") if False else f"ds_write_b32 v{self.VN+3}, v{self.VN+2}")
        A.place(L)

    def k_block(self, t0, plan):
        A = self.A
        q = self.QF
        ACC = [12, 13, 14, 15]; B0, B1 = 16, 17; E = [18, 19, 20, 21]; M = 22
        MX = 24; SA = 25
        def reduce_group(c):
            a0, a1, a2, a3 = ACC
            e = E[c]
            A(f"v_add_f32_dpp v{B0}, v{a0}, v{a0} row_ror:8 row_mask:0xf bank_mask:0x3")
            A(f"v_add_f32_dpp v{B1}, v{a2}, v{a2} row_ror:8 row_mask:0xf bank_mask:0x3")
            A(f"v_add_f32_dpp v{B0}, v{a1}, v{a1} row_ror:8 row_mask:0xf bank_mask:0xc")
            A(f"v_add_f32_dpp v{B1}, v{a3}, v{a3} row_ror:8 row_mask:0xf bank_mask:0xc")
            A(f"v_add_f32_dpp v{e}, v{B0}, v{B0} row_half_mirror row_mask:0xf bank_mask:0x5")
            A(f"v_add_f32_dpp v{e}, v{B1}, v{B1} row_half_mirror row_mask:0xf bank_mask:0xa")
            A(f"v_add_f32_dpp v{e}, v{e}, v{e} quad_perm:[1,0,3,2] row_mask:0xf bank_mask:0xf")
            A(f"v_add_f32_dpp v{e}, v{e}, v{e} quad_perm:[2,3,0,1] row_mask:0xf bank_mask:0xf")
        self.blk_begin()
        for t in range(16):
            cnt, iss = plan(t0 + t)
            if cnt is None: self.vwait()
            else: A(f"s_waitcnt vmcnt({cnt})")
            if iss is not None:
                if iss[1] == 'V' and iss[0] == 0:
                    A(f"s_mov_b32 s{S_OFF}, s{S_ROT}")
                self.issue(iss[0], iss[1])
            r = self.slot(t0 + t)
            a = ACC[t % 4]
            A(f"v_dot2_f32_bf16 v{a}, v{r}, v{q}, 0")
            A(f"v_dot2_f32_bf16 v{a}, v{r+1}, v{q+1}, v{a}")
            A(f"v_dot2_f32_bf16 v{a}, v{r+2}, v{q+2}, v{a}")
            A(f"v_dot2_f32_bf16 v{a}, v{r+3}, v{q+3}, v{a}")
            if t % 4 == 3:
                reduce_group(t // 4)
        A(f"v_cndmask_b32 v{M}, v{E[0]}, v{E[1]}, s[{S_M1}:{S_M1+1}]")
        A(f"v_cndmask_b32 v{M}, v{M}, v{E[2]}, s[{S_M2}:{S_M2+1}]")
        A(f"v_cndmask_b32 v{M}, v{M}, v{E[3]}, s[{S_M3}:{S_M3+1}]")
        self.rnd_bf16(M, M)
        A(f"v_mul_f32 v{M}, 0x3db504f3, v{M}")
        self.rnd_bf16(M, M)
        A(f"ds_write_b32 v{SA}, v{M}")
        A(f"v_max_f32 v{MX}, v{MX}, v{M}")
        A(f"v_add_u32 v{SA}, 256, v{SA}")
        self.blk_end()

    def v_block(self, t0, plan, last=False):
        A = self.A
        P, PN, PA = 12, 13, 14
        MK = [16, 17, 18, 19]
        BS = [[20, 21, 22, 23], [24, 25, 26, 27]]
        ACC = 28
        A(f"s_waitcnt lgkmcnt(0)")
        A(f"v_mov_b32 v{P}, v{PN}")
        self.blk_begin()
        if not last:
            A(f"ds_read_b32 v{PN}, v{PA}")
            A(f"v_add_u32 v{PA}, 256, v{PA}")
        for t in range(16):
            cnt, iss = plan(t0 + t)
            if cnt is None: self.vwait()
            else: A(f"s_waitcnt vmcnt({cnt})")
            if iss is not None:
                self.issue(iss[0], iss[1])
            B = BS[t % 2]
            for j in range(4):
                A(f"v_and_b32_dpp v{B[j]}, v{P}, v{MK[j]} row_newbcast:{t} row_mask:0xf bank_mask:0xf")
            r = self.slot(t0 + t)
            A(f"v_mfma_f32_16x16x32_bf16 {vr(ACC,4)}, {vr(r,4)}, {vr(B[0],4)}, {vr(ACC,4)}")
        self.blk_end()

    def stream(self):
        A = self.A
        N, NP, PV, R = self.N, self.NP, self.PV, self.R
        A.place("L_stream")
        A.c("==== stream waves ====")
        A(f"""
        v_lshrrev_b32 v4, 3, v1
        v_and_b32 v5, 7, v1
        v_lshrrev_b32 v6, 4, v1
        v_and_b32 v6, 1, v6
        v_lshlrev_b32 v6, 1, v6
        v_xor_b32 v5, v5, v6
        s_and_b32 s{S_T0}, s{S_SW}, 1
        s_lshl_b32 s{S_T0}, s{S_T0}, 2
        v_xor_b32 v5, s{S_T0}, v5
        v_lshlrev_b32 v5, 4, v5
        s_waitcnt lgkmcnt(0)
        """)
        self.mk_srd(R_WS, S_WS, WS_SIZE)
        self.role_params()
        A(f"""
        s_lshl_b32 s{S_T0}, s{S_B}, 5
        s_add_u32 s{S_T0}, s{S_T0}, s{S_H}
        s_lshl_b32 s{S_T0}, s{S_T0}, 20
        """)
        self.mk_srd(R_K, S_K, 1 << 20, f"s{S_T0}")
        self.mk_srd(R_V, S_V, 1 << 20, f"s{S_T0}")
        A(f"""
        v_mul_lo_u32 v4, v4, s{S_PITCH}
        v_add_u32 v4, v4, v5
        s_lshl_b32 s{S_T0}, s{S_PITCH}, 3
        s_mul_i32 s{S_T1}, s{S_T0}, s{S_SW}
        s_lshl_b32 s{S_T0}, s{S_T0}, 2
        s_lshl_b32 s{S_T2}, s{S_SW}, 10
        s_mov_b32 s{S_T3}, 0
        s_barrier
        """)
        self.stamp(0)
        if self.stamps and self.stamps not in ("tail", "early", "svc"):
            A("s_getreg_b32 s4, hwreg(HW_REG_XCC_ID)")
            A(f"s_lshl_b32 s6, s{S_WG}, 3")
            A(f"s_add_u32 s6, s6, s{S_WAVE}")
            A(f"s_lshl_b32 s6, s6, 7")
            A(f"s_add_u32 s6, s6, {WS_DBG + 0x100000 + 31*4}")
            A(f"s_mov_b64 exec, 1")
            A(f"v_mov_b32 v254, s4")
            A(f"v_mov_b32 v255, 0")
            A(f"buffer_store_dword v254, v255, {srd(R_WS)}, s6 offen")
            A(f"s_mov_b64 exec, -1")
        lp1, lp2, ld = A.label(), A.label(), A.label()
        def dma_iter(wait):
            A(f"""
            s_mov_b32 m0, s{S_T2}
            s_waitcnt vmcnt({wait})
            buffer_load_dwordx4 v4, {srd(R_WT)}, s{S_T1} offen {self.WP} lds
            s_add_u32 s{S_T1}, s{S_T1}, s{S_T0}
            s_add_u32 s{S_T2}, s{S_T2}, 4096
            s_add_u32 s{S_T3}, s{S_T3}, 1
            s_cmp_eq_u32 s{S_T3}, s{S_JJ}
            s_cselect_b32 s{S_T4}, s{S_JA}, 0
            s_add_u32 s{S_T1}, s{S_T1}, s{S_T4}
            """)
        self.dma_iter = dma_iter
        A(f"s_cmp_eq_u32 s{S_J1}, 0")
        A(f"s_cbranch_scc1 {ld}")
        A.place(lp1)
        dma_iter(NP - 1)
        A(f"s_cmp_lt_u32 s{S_T3}, s{S_J1}")
        A(f"s_cbranch_scc1 {lp1}")
        A.place(ld)
        if self.rot:
            A(f"s_mul_i32 s{S_ROT}, s2, {self.rot}")
            A(f"s_and_b32 s{S_ROT}, s{S_ROT}, 255")
            A(f"s_lshl_b32 s{S_ROT}, s{S_ROT}, 12")
        else:
            A(f"s_mov_b32 s{S_ROT}, 0")
        A(f"s_lshl_b32 s{S_T5}, s{S_SW}, 10")
        A(f"s_add_u32 s{S_ROT}, s{S_ROT}, s{S_T5}")
        A(f"s_mov_b32 s{S_OFF}, s{S_ROT}")
        for t in range(R):
            A(f"s_waitcnt vmcnt({NP-1})")
            self.issue(t, 'K')
        self.stamp(15)
        ld2 = A.label()
        if self.defer:
            A(f"s_cmp_eq_u32 s{S_ROLE}, 0")
            A(f"s_cbranch_scc0 {ld2}")
        else:
            A(f"s_cmp_eq_u32 s{S_NJ}, 0")
            A(f"s_cbranch_scc1 {ld2}")
        self.lds_wait(LDS_CNT + 4, 4, 6, 7)
        A.place(lp2)
        dma_iter(NP - 1)
        A(f"s_cmp_lt_u32 s{S_T3}, s{S_NJ}")
        A(f"s_cbranch_scc1 {lp2}")
        A.place(ld2)
        A(f"s_mov_b32 s{S_DS}, s{S_T1}")
        A(f"s_mov_b32 s{S_DM}, s{S_T2}")
        A(f"s_mov_b32 s{S_DJ}, s{S_T3}")
        A(f"s_mov_b32 s{S_DST}, s{S_T0}")
        A(f"v_mov_b32 v204, v4")
        self.stamp(14)
        self.lds_wait(LDS_CNT + 12, 1, 6, 7)
        self.stamp(3)
        self.cstamp(20)
        A(f"""
        v_and_b32 v6, 15, v1
        v_lshlrev_b32 v6, 4, v6
        v_add_u32 v6, {LDS_Q}, v6
        ds_read_b128 v[8:11], v6
        v_mov_b32 v24, 0xff800000
        v_and_b32 v6, 3, v1
        v_lshlrev_b32 v6, 2, v6
        v_bfe_u32 v7, v1, 2, 1
        v_lshlrev_b32 v7, 1, v7
        v_bfe_u32 v5, v1, 3, 1
        v_or_b32 v7, v7, v5
        v_add_u32 v6, v6, v7
        v_and_b32 v7, 48, v1
        v_add_u32 v6, v6, v7
        v_lshlrev_b32 v6, 2, v6
        s_lshl_b32 s{S_T0}, s{S_SW}, 12
        s_add_u32 s{S_T0}, s{S_T0}, {LDS_SC}
        v_add_u32 v25, s{S_T0}, v6
        v_mov_b32 v201, {LDS_N}
        v_mov_b32 v202, 0
        v_mov_b32 v203, {LDS_BLK}
        ds_read_b32 v200, v201
        """)
        if self.defer:
            A(f"s_cmp_eq_u32 s{S_ROLE}, 0")
            A(f"s_cselect_b32 s{S_NCUR}, {self.NOK}, {self.N}")
        if self.NW:
            A(f"s_mov_b32 s{S_NCUR}, {self.NW[0]}")
            for w in range(1, 4):
                A(f"s_cmp_eq_u32 s{S_SW}, {w}")
                A(f"s_cselect_b32 s{S_NCUR}, {self.NW[w]}, s{S_NCUR}")
        A(f"""
        s_waitcnt lgkmcnt(0)
        """)
        D = self.D
        def plan_first(t):
            if t < R - D: return (R - 1 - t, None)
            return (None, (t + D, 'K'))
        def plan_mid(t): return (None, (t + D, 'K'))
        def plan_klast(t):
            if t + D < 256: return (None, (t + D, 'K'))
            return (None, (t + D - 256, 'V'))
        self.k_block(0, plan_first)
        self.k_block(16, plan_first)
        lp = A.label()
        A(f"s_mov_b32 s{S_T3}, 0")
        A.place(lp)
        self.k_block(32, plan_mid)
        self.k_block(48, plan_mid)
        A(f"s_add_u32 s{S_T3}, s{S_T3}, 1")
        A(f"s_cmp_lt_u32 s{S_T3}, 6")
        A(f"s_cbranch_scc1 {lp}")
        self.k_block(224, plan_mid)
        self.k_block(240, plan_klast)
        for t in range(D, PV):
            self.issue(t, 'V')
        self.stamp(4)
        MX, T = 24, 23
        for r in (8, 4, 2, 1):
            A(f"v_max_f32_dpp v{MX}, v{MX}, v{MX} row_ror:{r} row_mask:0xf bank_mask:0xf")
        A(f"""
        v_lshrrev_b32 v6, 4, v1
        v_lshlrev_b32 v6, 2, v6
        s_lshl_b32 s{S_T0}, s{S_SW}, 4
        v_add_u32 v6, s{S_T0}, v6
        v_add_u32 v7, {LDS_WM}, v6
        ds_write_b32 v7, v{MX}
        s_lshl_b32 s{S_T0}, s{S_SW}, 12
        s_add_u32 s{S_T0}, s{S_T0}, {LDS_SC}
        v_add_u32 v14, s{S_T0}, v3
        s_waitcnt lgkmcnt(0)
        """)
        for i in range(16):
            A(f"ds_read_b32 v{48+i}, v14 offset:{i*256}")
        A(f"""
        s_barrier
        v_mov_b32 v7, {LDS_WM}
        ds_read_b128 v[32:35], v7
        ds_read_b128 v[36:39], v7 offset:16
        ds_read_b128 v[40:43], v7 offset:32
        ds_read_b128 v[44:47], v7 offset:48
        s_mov_b32 s{S_T1}, 0x3fb8aa3b
        s_waitcnt lgkmcnt(0)
        """)
        A(f"v_max3_f32 v{MX}, v32, v33, v34")
        for i in range(35, 47, 2):
            A(f"v_max3_f32 v{MX}, v{MX}, v{i}, v{i+1}")
        A(f"v_max_f32 v{MX}, v{MX}, v47")
        for i in range(16):
            A(f"v_sub_f32 v{48+i}, v{48+i}, v{MX}")
        for i in range(16):
            A(f"v_mul_f32 v{48+i}, s{S_T1}, v{48+i}")
        for i in range(16):
            A(f"v_exp_f32 v{48+i}, v{48+i}")
        A(f"v_add_f32 v{T}, v48, v49")
        for i in range(2, 16):
            A(f"v_add_f32 v{T}, v{T}, v{48+i}")
        for r in (8, 4, 2, 1):
            A(f"v_add_f32_dpp v{T}, v{T}, v{T} row_ror:{r} row_mask:0xf bank_mask:0xf")
        A(f"""
        v_add_u32 v7, {LDS_WS}, v6
        ds_write_b32 v7, v{T}
        s_waitcnt lgkmcnt(0)
        s_barrier
        v_mov_b32 v7, {LDS_WS}
        ds_read_b128 v[32:35], v7
        ds_read_b128 v[36:39], v7 offset:16
        ds_read_b128 v[40:43], v7 offset:32
        ds_read_b128 v[44:47], v7 offset:48
        v_and_b32 v6, 15, v1
        v_lshrrev_b32 v7, 1, v6
        v_and_b32 v5, 1, v6
        v_lshlrev_b32 v5, 4, v5
        v_mov_b32 v4, 0xffff
        v_lshlrev_b32 v4, v5, v4
        """)
        for j in range(4):
            A(f"v_cmp_eq_u32 vcc, {j}, v7")
            A(f"v_cndmask_b32 v{16+j}, 0, v4, vcc")
        A("s_waitcnt lgkmcnt(0)")
        for i in range(0, 16, 2):
            A(f"v_add_f32 v{32+i}, v{32+i}, v{33+i}")
        for i in range(0, 16, 4):
            A(f"v_add_f32 v{32+i}, v{32+i}, v{34+i}")
        A(f"v_add_f32 v32, v32, v36")
        A(f"v_add_f32 v40, v40, v44")
        A(f"v_add_f32 v32, v32, v40")
        A(f"v_rcp_f32 v32, v32")
        for i in range(16):
            A(f"v_mul_f32 v{48+i}, v{48+i}, v32")
        for i in range(16):
            A(f"v_cvt_pk_bf16_f32 v{48+i}, v{48+i}, v{48+i}")
        for i in range(1, 16):
            A(f"ds_write_b32 v14, v{48+i} offset:{i*256}")
        A(f"""
        v_mov_b32 v13, v48
        v_add_u32 v14, 256, v14
        v_mov_b32 v28, 0
        v_mov_b32 v29, 0
        v_mov_b32 v30, 0
        v_mov_b32 v31, 0
        """)
        if self.defer:
            A(f"s_cmp_eq_u32 s{S_ROLE}, 0")
            A(f"s_cselect_b32 s{S_NCUR}, {self.NOV}, {self.N}")
        self.stamp(5)
        def plan_vfirst(t):
            if t < PV - D: return (PV - 1 - t, None)
            return (None, (t + D, 'V'))
        def plan_vmid(t): return (None, (t + D, 'V'))
        def plan_vlast(t):
            if t + D < 256: return (None, (t + D, 'V'))
            return (255 - t, None)
        assert PV == 16
        self.v_block(0, plan_vfirst)
        lp = A.label()
        A(f"s_mov_b32 s{S_T3}, 0")
        A.place(lp)
        self.v_block(16, plan_vmid)
        self.v_block(32, plan_vmid)
        A(f"s_add_u32 s{S_T3}, s{S_T3}, 1")
        A(f"s_cmp_lt_u32 s{S_T3}, 7")
        A(f"s_cbranch_scc1 {lp}")
        self.v_block(240, plan_vlast, last=True)
        A(f"""
        v_lshrrev_b32 v6, 4, v1
        v_lshlrev_b32 v6, 7, v6
        v_and_b32 v7, 15, v1
        v_lshlrev_b32 v7, 2, v7
        v_add_u32 v6, v6, v7
        s_lshl_b32 s{S_T0}, s{S_SW}, 9
        s_add_u32 s{S_T0}, s{S_T0}, {LDS_ORED}
        v_add_u32 v6, s{S_T0}, v6
        s_mov_b64 exec, s[{S_MJ8}:{S_MJ8+1}]
        ds_write_b32 v6, v28
        ds_write_b32 v6, v29 offset:32
        ds_write_b32 v6, v30 offset:64
        ds_write_b32 v6, v31 offset:96
        s_mov_b64 exec, -1
        s_waitcnt lgkmcnt(0)
        """)
        self.stamp(6)
        self.cstamp(21)
        A.place("L_join3")

    def tile_afrags(self, base):
        A = self.A
        A(f"""
        v_lshrrev_b32 v4, 4, v1
        v_and_b32 v5, 15, v1
        v_lshrrev_b32 v6, 2, v5
        v_and_b32 v5, 3, v5
        v_lshrrev_b32 v7, 1, v6
        v_and_b32 v8, 1, v4
        v_lshlrev_b32 v8, 1, v8
        v_or_b32 v7, v7, v8
        v_lshlrev_b32 v8, 3, v4
        v_add_u32 v8, v8, v6
        v_lshlrev_b32 v8, 7, v8
        v_lshlrev_b32 v5, 3, v5
        v_add_u32 v8, v8, v5
        s_lshl_b32 s{S_T0}, s{S_WAVE}, 14
        v_add_u32 v8, s{S_T0}, v8
        """)
        for cb in range(4):
            A(f"v_xor_b32 v{9+cb}, {cb}, v7")
            A(f"v_lshlrev_b32 v{9+cb}, 5, v{9+cb}")
            A(f"v_add_u32 v{9+cb}, v{9+cb}, v8")
        for s in range(4):
            for cb in range(4):
                r = base + (s * 4 + cb) * 4
                A(f"ds_read_b64_tr_b16 {vr(r,2)}, v{9+cb} offset:{s*4096}")
                A(f"ds_read_b64_tr_b16 {vr(r+2,2)}, v{9+cb} offset:{s*4096+512}")

    RW = 240
    def red_addrs(self):
        A = self.A
        RW = self.RW
        A(f"""
        v_and_b32 v4, 15, v1
        v_lshrrev_b32 v5, 4, v1
        s_lshl_b32 s{S_T0}, s{S_WAVE}, 11
        s_add_u32 s{S_T0}, s{S_T0}, {LDS_RED}
        v_lshlrev_b32 v6, 8, v4
        v_add_u32 v6, s{S_T0}, v6
        """)
        for cb in range(4):
            A(f"v_add_u32 v7, {4*cb}, v5")
            A(f"v_xor_b32 v7, v7, v4")
            A(f"v_lshlrev_b32 v7, 4, v7")
            A(f"v_add_u32 v{RW+cb}, v7, v6")
        A(f"""
        v_lshrrev_b32 v4, 2, v1
        v_xor_b32 v4, s{S_WAVE}, v4
        v_lshlrev_b32 v4, 4, v4
        v_and_b32 v5, 3, v1
        v_lshlrev_b32 v5, 2, v5
        v_add_u32 v4, v4, v5
        s_lshl_b32 s{S_T0}, s{S_WAVE}, 8
        s_add_u32 s{S_T0}, s{S_T0}, {LDS_RED}
        v_add_u32 v{RW+4}, s{S_T0}, v4
        """)

    def mfma16(self, abase, bregs, acc):
        A = self.A
        for s in range(4):
            for cb in range(4):
                r = abase + (s * 4 + cb) * 4
                a = acc + 4 * cb
                src = "0" if s == 0 else vr(a, 4)
                A(f"v_mfma_f32_16x16x32_bf16 {vr(a,4)}, {vr(r,4)}, {vr(bregs[s],4)}, {src}")

    def red_write(self, acc):
        A = self.A
        A(f"s_mov_b64 exec, s[{S_MJ8}:{S_MJ8+1}]")
        for cb in range(4):
            A(f"ds_write_b128 v{self.RW+cb}, {vr(acc+4*cb,4)}")
        A("s_mov_b64 exec, -1")
        A("s_waitcnt lgkmcnt(0)")

    def red_sum(self, nw, dst):
        A = self.A
        for v in range(nw):
            A(f"ds_read_b32 v{dst+v}, v{self.RW+4} offset:{v*2048}")
        A("s_waitcnt lgkmcnt(0)")
        regs = [dst + v for v in range(nw)]
        while len(regs) > 1:
            nxt = []
            for i in range(0, len(regs) - 1, 2):
                A(f"v_add_f32 v{regs[i]}, v{regs[i]}, v{regs[i+1]}")
                nxt.append(regs[i])
            if len(regs) % 2: nxt.append(regs[-1])
            regs = nxt

    def tail(self):
        A = self.A
        A("s_barrier")
        lskip = A.label()
        A(f"s_cmp_eq_u32 s{S_WAVE}, 0")
        A(f"s_cbranch_scc0 {lskip}")
        A(f"""
        v_lshlrev_b32 v4, 3, v1
        v_add_u32 v4, {LDS_ORED}, v4
        ds_read_b64 v[8:9], v4
        ds_read_b64 v[10:11], v4 offset:512
        ds_read_b64 v[12:13], v4 offset:1024
        ds_read_b64 v[14:15], v4 offset:1536
        s_lshl_b32 s{S_T0}, s{S_B}, 13
        s_lshl_b32 s{S_T1}, s{S_H}, 8
        s_add_u32 s{S_T0}, s{S_T0}, s{S_T1}
        s_add_u32 s{S_T0}, s{S_T0}, {WS_OB}
        s_waitcnt lgkmcnt(0)
        v_pk_add_f32 v[8:9], v[8:9], v[10:11]
        v_pk_add_f32 v[12:13], v[12:13], v[14:15]
        v_pk_add_f32 v[8:9], v[8:9], v[12:13]
        v_cvt_pk_bf16_f32 v8, v8, v9
        v_min_u32 v8, -2, v8
        """)
        self.quad_gather(8, 8)
        A(f"""
        s_mov_b64 exec, s[{S_MQ}:{S_MQ+1}]
        buffer_store_dwordx4 v[8:11], v3, {srd(R_WS)}, s{S_T0} offen sc0 sc1
        s_mov_b64 exec, -1
        """)
        A.place(lskip)
        self.stamp(7)
        if self.defer:
            lnd = A.label(); lp = A.label()
            A("s_barrier")
            A(f"s_cmp_lt_u32 s{S_WAVE}, 4")
            A(f"s_cbranch_scc1 {lnd}")
            A(f"s_cmp_ge_u32 s{S_DJ}, s{S_NJ}")
            A(f"s_cbranch_scc1 {lnd}")
            A(f"s_mov_b32 s{S_T1}, s{S_DS}")
            A(f"s_mov_b32 s{S_T2}, s{S_DM}")
            A(f"s_mov_b32 s{S_T3}, s{S_DJ}")
            A(f"s_mov_b32 s{S_T0}, s{S_DST}")
            A(f"v_mov_b32 v4, v204")
            A.place(lp)
            self.dma_iter(self.NT - 1)
            A(f"s_cmp_lt_u32 s{S_T3}, s{S_NJ}")
            A(f"s_cbranch_scc1 {lp}")
            A.place(lnd)
        if self.stop_after == "attn":
            A("s_branch L_end")
        A(f"""
        s_cmp_eq_u32 s{S_ROLE}, 0
        s_cbranch_scc1 L_roleO
        s_cmp_eq_u32 s{S_ROLE}, 1
        s_cbranch_scc1 L_roleG
        s_cmp_eq_u32 s{S_ROLE}, 2
        s_cbranch_scc1 L_roleD
        s_branch L_roleF
        """)
        self.role_O()
        self.role_G()
        self.role_D()
        self.role_F()

    def role_O(self):
        A = self.A
        A.place("L_roleO")
        AB = 64
        A(f"s_lshr_b32 s{S_NJ}, s{S_H}, 1")
        A(f"s_and_b32 s{S_PITCH}, s{S_H}, 1")
        A(f"s_lshl_b32 s{S_T0}, s{S_B}, 1")
        A(f"s_add_u32 s{S_PITCH}, s{S_PITCH}, s{S_T0}")
        self.local_flag()
        self.mk_srd(R_X, S_X, 16384)
        A(f"""
        v_bfe_u32 v14, v1, 2, 3
        v_lshlrev_b32 v14, 11, v14
        v_and_b32 v15, 3, v1
        v_lshlrev_b32 v13, 3, v15
        v_add_u32 v13, v13, v14
        s_lshl_b32 s{S_T0}, s{S_PITCH}, 7
        s_lshl_b32 s{S_T1}, s{S_NJ}, 5
        s_add_u32 s{S_T0}, s{S_T0}, s{S_T1}
        buffer_load_dwordx2 v[28:29], v13, {srd(R_X)}, s{S_T0} offen
        s_add_u32 s{S_OFF}, s{S_T0}, {WS_H}
        v_lshrrev_b32 v15, 1, v15
        v_lshlrev_b32 v15, 4, v15
        v_add_u32 v14, v14, v15
        """)
        self.tile_afrags(AB)
        self.red_addrs()
        A(f"""
        v_bfe_u32 v4, v1, 2, 3
        v_and_b32 v5, 3, v1
        s_lshl_b32 s{S_T0}, s{S_WAVE}, 2
        v_add_u32 v5, s{S_T0}, v5
        v_xor_b32 v5, v5, v4
        v_lshlrev_b32 v5, 4, v5
        v_lshlrev_b32 v4, 8, v4
        v_add_u32 v4, v4, v5
        v_lshrrev_b32 v5, 5, v1
        v_lshlrev_b32 v5, 13, v5
        v_add_u32 v4, v4, v5
        v_add_u32 v19, {LDS_RED}, v4
        v_and_b32 v4, 31, v1
        v_lshlrev_b32 v13, 4, v4
        v_and_b32 v4, 15, v1
        v_lshlrev_b32 v4, 13, v4
        v_lshrrev_b32 v5, 4, v1
        v_lshlrev_b32 v5, 4, v5
        v_add_u32 v16, v4, v5
        s_lshl_b32 s{S_T0}, s{S_NJ}, 11
        s_lshl_b32 s{S_T1}, s{S_WAVE}, 8
        s_add_u32 s{S_T0}, s{S_T0}, s{S_T1}
        s_add_u32 s{S_T0}, s{S_T0}, {WS_OB}
        s_lshl_b32 s{S_T2}, s{S_PITCH}, 13
        s_add_u32 s{S_T2}, s{S_T2}, {WS_OP}
        s_lshl_b32 s{S_T1}, s{S_WAVE}, 11
        s_add_u32 s{S_T3}, s{S_T2}, s{S_T1}
        s_lshl_b32 s{S_T1}, s{S_NJ}, 9
        s_add_u32 s{S_T3}, s{S_T3}, s{S_T1}
        s_lshl_b32 s{S_T1}, s{S_NJ}, 11
        s_add_u32 s{S_T2}, s{S_T2}, s{S_T1}
        """)
        self.prepoll(f"buffer_load_dword v18, v16, {srd(R_WS)}, s{S_T0} offen {self.LP}", 18, mask=S_MJ8, sleep=2)
        loads = [f"buffer_load_dwordx4 {vr(32+4*s,4)}, v16, {srd(R_WS)}, s{S_T0} offen offset:{s*64} {self.LP}" for s in range(4)]
        self.poll_pipe(loads, range(32, 48), 17, mask=S_MJ8, depth=1, sleep=self.PS)
        self.stamp(8)
        A("s_waitcnt lgkmcnt(0)")
        self.mfma16(AB, [32, 36, 40, 44], 48)
        self.red_write(48)
        A("s_barrier")
        lr1 = A.label()
        A(f"s_cmp_ge_u32 s{S_WAVE}, 4")
        A(f"s_cbranch_scc1 {lr1}")
        for v in range(4):
            A(f"ds_read_b128 {vr(32+4*v,4)}, v19 offset:{v*2048}")
        A("s_waitcnt lgkmcnt(0)")
        for e in (0, 2):
            A(f"v_pk_add_f32 {vr(32+e,2)}, {vr(32+e,2)}, {vr(36+e,2)}")
            A(f"v_pk_add_f32 {vr(40+e,2)}, {vr(40+e,2)}, {vr(44+e,2)}")
        for e in (0, 2):
            A(f"v_pk_add_f32 {vr(32+e,2)}, {vr(32+e,2)}, {vr(40+e,2)}")
        for e in range(4):
            A(f"v_mov_b32 v{36+e}, v{32+e}")
        for e in range(4):
            A(f"v_permlane32_swap_b32 v{32+e}, v{36+e}")
        for e in (0, 2):
            A(f"v_pk_add_f32 {vr(32+e,2)}, {vr(32+e,2)}, {vr(36+e,2)}")
        for e in range(4):
            A(f"v_min_u32 v{32+e}, -2, v{32+e}")
        A("s_mov_b64 exec, 0xffffffff")
        self.store_sel(f"buffer_store_dwordx4 v[32:35], v13, {srd(R_WS)}, s{S_T3} offen")
        A("s_mov_b64 exec, -1")
        self.stamp(9)
        A("s_branch L_end")
        A.place(lr1)
        A(f"s_cmp_eq_u32 s{S_WAVE}, 4")
        A(f"s_cbranch_scc0 L_end")
        A(f"v_lshlrev_b32 v20, 16, v28")
        A(f"v_and_b32 v21, 0xffff0000, v28")
        A(f"v_lshlrev_b32 v22, 16, v29")
        A(f"v_and_b32 v23, 0xffff0000, v29")
        loads = [f"buffer_load_dwordx4 v[32:35], v2, {srd(R_WS)}, s{S_T2} offen {self.LP}",
                 f"buffer_load_dwordx4 v[36:39], v2, {srd(R_WS)}, s{S_T2} offen offset:1024 {self.LP}"]
        self.poll_pipe(loads, range(32, 40), 17, depth=1, sleep=0)
        self.stamp(9)
        for e in (0, 2):
            A(f"v_pk_add_f32 {vr(40+e,2)}, {vr(32+e,2)}, {vr(36+e,2)}")
        for e in range(4):
            A(f"v_mov_b32 v{44+e}, v{40+e}")
        for e in range(4):
            A(f"v_permlane32_swap_b32 v{40+e}, v{44+e}")
        for e in (0, 2):
            A(f"v_pk_add_f32 {vr(40+e,2)}, {vr(40+e,2)}, {vr(44+e,2)}")
        A(f"""
        v_cvt_pk_bf16_f32 v44, v40, v41
        v_cvt_pk_bf16_f32 v45, v42, v43
        v_lshlrev_b32 v40, 16, v44
        v_and_b32 v41, 0xffff0000, v44
        v_lshlrev_b32 v42, 16, v45
        v_and_b32 v43, 0xffff0000, v45
        v_pk_add_f32 v[40:41], v[40:41], v[20:21]
        v_pk_add_f32 v[42:43], v[42:43], v[22:23]
        v_cvt_pk_bf16_f32 v48, v40, v41
        v_cvt_pk_bf16_f32 v49, v42, v43
        v_min_u32 v48, -2, v48
        v_min_u32 v49, -2, v49
        v_mov_b32_dpp v50, v48 quad_perm:[1,1,3,3] row_mask:0xf bank_mask:0xf
        v_mov_b32_dpp v51, v49 quad_perm:[1,1,3,3] row_mask:0xf bank_mask:0xf
        s_mov_b64 exec, 0x55555555
        buffer_store_dwordx4 v[48:51], v14, {srd(R_WS)}, s{S_OFF} offen sc0 sc1
        s_mov_b64 exec, -1
        """)
        self.stamp(16)
        A("s_branch L_end")

    def role_G(self):
        A = self.A
        A.place("L_roleG")
        AB = 160
        self.local_flag()
        self.red_addrs()
        F, D = 96, 128
        A(f"""
        s_lshl_b32 s{S_T0}, s{S_WAVE}, 1
        v_xor_b32 v14, s{S_T0}, v1
        v_lshlrev_b32 v14, 4, v14
        s_lshl_b32 s{S_T0}, s{S_WAVE}, 11
        s_add_u32 s{S_T0}, s{S_T0}, {LDS_XN2}
        v_add_u32 v14, s{S_T0}, v14
        v_and_b32 v17, 7, v1
        v_lshrrev_b32 v18, 4, v1
        v_lshlrev_b32 v19, 11, v17
        s_lshl_b32 s{S_T0}, s{S_WAVE}, 8
        s_add_u32 s{S_T0}, s{S_T0}, {LDS_XN2}
        v_add_u32 v19, s{S_T0}, v19
        v_lshlrev_b32 v17, 1, v17
        """)
        for s_ in range(4):
            A(f"v_add_u32 v28, {4*s_}, v18")
            A(f"v_xor_b32 v28, v28, v17")
            A(f"v_lshlrev_b32 v28, 4, v28")
            A(f"v_add_u32 v{232+s_}, v28, v19")
        A(f"""
        s_sub_u32 s{S_T0}, s{S_H}, 8
        s_and_b32 s{S_T1}, s{S_T0}, 1
        s_mul_i32 s{S_T1}, s{S_T1}, 57344
        s_lshr_b32 s{S_T0}, s{S_T0}, 1
        s_mul_i32 s{S_T2}, s{S_B}, 7
        s_add_u32 s{S_T0}, s{S_T0}, s{S_T2}
        s_lshl_b32 s{S_T0}, s{S_T0}, 7
        s_add_u32 s{S_T0}, s{S_T0}, s{S_T1}
        s_mul_i32 s{S_T1}, s{S_WAVE}, 7168
        s_add_u32 s{S_T0}, s{S_T0}, s{S_T1}
        s_add_u32 s{S_OFF}, s{S_T0}, {WS_GU}
        v_lshlrev_b32 v15, 1, v1
        s_lshl_b32 s{S_T0}, s{S_WAVE}, 13
        s_add_u32 s{S_T0}, s{S_T0}, {WS_OB}
        v_lshlrev_b32 v17, 8, v1
        s_mov_b64 s[{S_EX}:{S_EX+1}], 0xffffffff
        """)
        self.sample_wait(False, 17, 18, self.HS)
        self.tile_afrags(AB)
        self.stamp(16)
        A(f"s_lshl_b32 s{S_T0}, s{S_WAVE}, 11")
        A(f"s_add_u32 s{S_T0}, s{S_T0}, {WS_H}")
        loads = [f"buffer_load_dwordx4 v[20:23], v2, {srd(R_WS)}, s{S_T0} offen {self.LP}",
                 f"buffer_load_dwordx4 v[24:27], v2, {srd(R_WS)}, s{S_T0} offen offset:1024 {self.LP}"]
        self.poll_pipe(loads, range(20, 28), 17, depth=1, sleep=self.GSL)
        self.stamp(8)
        for i in range(8):
            A(f"v_lshlrev_b32 v{F+2*i}, 16, v{20+i}")
            A(f"v_and_b32 v{F+2*i+1}, 0xffff0000, v{20+i}")
        S1, S2, T1, T2, VMB, VRS = 144, 146, 148, 149, 150, 152
        self.ln_stats(F, D, S1, S2, T1, T2, VMB, VRS)
        for i in range(8):
            self.ln_apply(48 + i, F + 2*i, VMB, VRS, 154 + 2 * (i % 2))
        A(f"ds_write_b128 v14, v[48:51]")
        A(f"ds_write_b128 v14, v[52:55] offset:1024")
        A("s_waitcnt lgkmcnt(0)")
        A("s_barrier")
        for s_ in range(4):
            A(f"ds_read_b128 {vr(32+4*s_,4)}, v{232+s_}")
        A("s_waitcnt lgkmcnt(0)")
        self.mfma16(AB, [32, 36, 40, 44], 48)
        self.red_write(48)
        A("s_waitcnt vmcnt(0)")
        A("s_barrier")
        self.red_sum(8, 20)
        self.rnd_bf16(20, 20)
        lup = A.label()
        A(f"s_bitcmp1_b32 s{S_H}, 0")
        A(f"s_cbranch_scc1 {lup}")
        A(f"""
        v_mul_f32 v17, v20, v20
        v_mul_f32 v18, v17, v20
        v_mul_f32 v18, 0x3d372713, v18
        v_add_f32 v18, v20, v18
        v_mul_f32 v18, 0x3f4c422a, v18
        v_mul_f32 v18, 0x4038aa3b, v18
        v_min_f32 v18, 0x42700000, v18
        v_exp_f32 v18, v18
        v_add_f32 v19, 1.0, v18
        v_rcp_f32 v19, v19
        v_mul_f32 v18, v18, v19
        v_mul_f32 v20, v20, v18
        """)
        A.place(lup)
        A(f"""
        v_mov_b32_dpp v17, v20 quad_perm:[1,1,3,3] row_mask:0xf bank_mask:0xf
        v_cvt_pk_bf16_f32 v20, v20, v17
        v_min_u32 v20, -2, v20
        """)
        self.even_gather(20, 20)
        A(f"s_mov_b64 exec, s[{S_ME}:{S_ME+1}]")
        self.store_sel(f"buffer_store_dwordx4 v[20:23], v15, {srd(R_WS)}, s{S_OFF} offen")
        A(f"s_mov_b64 exec, -1")
        self.stamp(9)
        A("s_branch L_end")

    def role_D(self):
        A = self.A
        A.place("L_roleD")
        AB = 160
        RW = 224
        A(f"""
        v_lshrrev_b32 v4, 1, v1
        v_xor_b32 v4, s{S_WAVE}, v4
        v_lshlrev_b32 v4, 4, v4
        v_and_b32 v5, 1, v1
        v_lshlrev_b32 v5, 3, v5
        v_add_u32 v4, v4, v5
        s_lshl_b32 s{S_T0}, s{S_WAVE}, 9
        s_add_u32 s{S_T0}, s{S_T0}, {LDS_RED}
        v_add_u32 v{RW+8}, s{S_T0}, v4
        s_lshl_b32 s{S_T0}, s{S_B}, 15
        s_lshl_b32 s{S_T1}, s{S_WAVE}, 12
        s_add_u32 s{S_T0}, s{S_T0}, s{S_T1}
        s_sub_u32 s{S_T1}, s{S_H}, 22
        s_lshl_b32 s{S_T1}, s{S_T1}, 9
        s_add_u32 s{S_T0}, s{S_T0}, s{S_T1}
        s_add_u32 s{S_OFF}, s{S_T0}, {WS_DP}
        v_lshlrev_b32 v15, 3, v1
        """)
        lno = A.label(); lgo = A.label()
        A(f"s_cmp_eq_u32 s{S_WAVE}, 7")
        A(f"s_cbranch_scc0 {lgo}")
        A("s_waitcnt vmcnt(0)")
        A("s_barrier")
        A(f"s_branch {lno}")
        A.place(lgo)
        A(f"""
        v_lshrrev_b32 v4, 4, v1
        v_and_b32 v5, 15, v1
        v_lshrrev_b32 v6, 2, v5
        v_and_b32 v5, 3, v5
        v_lshrrev_b32 v7, 1, v6
        v_and_b32 v8, 1, v4
        v_lshlrev_b32 v8, 1, v8
        v_or_b32 v7, v7, v8
        v_lshlrev_b32 v8, 3, v4
        v_add_u32 v8, v8, v6
        v_lshlrev_b32 v8, 7, v8
        v_lshlrev_b32 v5, 3, v5
        v_add_u32 v8, v8, v5
        s_lshl_b32 s{S_T0}, s{S_WAVE}, 13
        v_add_u32 v8, s{S_T0}, v8
        """)
        for cb in range(4):
            A(f"v_xor_b32 v{9+cb}, {cb}, v7")
            A(f"v_lshlrev_b32 v{9+cb}, 5, v{9+cb}")
            A(f"v_add_u32 v{9+cb}, v{9+cb}, v8")
        A(f"""
        v_and_b32 v4, 15, v1
        v_lshrrev_b32 v5, 4, v1
        s_lshl_b32 s{S_T0}, s{S_WAVE}, 12
        s_add_u32 s{S_T0}, s{S_T0}, {LDS_RED}
        v_lshlrev_b32 v6, 9, v4
        v_add_u32 v6, s{S_T0}, v6
        """)
        for cb in range(8):
            A(f"v_add_u32 v7, {4*cb}, v5")
            A(f"v_xor_b32 v7, v7, v4")
            A(f"v_lshlrev_b32 v7, 4, v7")
            A(f"v_add_u32 v{RW+cb}, v7, v6")
        A(f"""
        v_and_b32 v4, 7, v1
        v_mul_u32_u24 v4, 7168, v4
        v_bfe_u32 v5, v1, 3, 1
        v_lshlrev_b32 v5, 6, v5
        v_add_u32 v4, v4, v5
        v_lshrrev_b32 v5, 4, v1
        v_lshlrev_b32 v5, 4, v5
        v_add_u32 v16, v4, v5
        s_mul_i32 s{S_T0}, s{S_B}, 7
        s_add_u32 s{S_T0}, s{S_T0}, s{S_WAVE}
        s_lshl_b32 s{S_T0}, s{S_T0}, 7
        s_add_u32 s{S_T0}, s{S_T0}, {WS_GU}
        s_add_u32 s{S_T1}, s{S_T0}, 57344
        s_lshl_b32 s{S_T2}, s{S_WAVE}, 11
        s_add_u32 s{S_T2}, s{S_T2}, {WS_H}
        v_lshlrev_b32 v17, 5, v1
        """)
        A(f"s_mov_b32 s{S_T2}, s{S_T0}")
        A(f"s_mov_b32 s{S_T3}, s{S_T1}")
        self.sample_wait(True, 17, 18, self.HS)
        for s_ in range(2):
            for cb in range(8):
                r = AB + (s_ * 8 + cb) * 4
                off = s_ * 4096 + (cb // 4) * 57344
                A(f"ds_read_b64_tr_b16 {vr(r,2)}, v{9+cb%4} offset:{off}")
                A(f"ds_read_b64_tr_b16 {vr(r+2,2)}, v{9+cb%4} offset:{off+512}")
        self.stamp(16)
        loads = [f"buffer_load_dwordx4 v[32:35], v16, {srd(R_WS)}, s{S_T2} offen {self.LP}",
                 f"buffer_load_dwordx4 v[36:39], v16, {srd(R_WS)}, s{S_T3} offen {self.LP}"]
        self.poll_pipe(loads, range(32, 40), 17, depth=1, sleep=0)
        self.stamp(8)
        for i in range(0, 4, 2):
            g, u = 32 + i, 36 + i
            A(f"v_lshlrev_b32 v64, 16, v{g}")
            A(f"v_and_b32 v65, 0xffff0000, v{g}")
            A(f"v_lshlrev_b32 v66, 16, v{u}")
            A(f"v_and_b32 v67, 0xffff0000, v{u}")
            A(f"v_lshlrev_b32 v68, 16, v{g+1}")
            A(f"v_and_b32 v69, 0xffff0000, v{g+1}")
            A(f"v_lshlrev_b32 v70, 16, v{u+1}")
            A(f"v_and_b32 v71, 0xffff0000, v{u+1}")
            A(f"v_pk_mul_f32 v[64:65], v[64:65], v[66:67]")
            A(f"v_pk_mul_f32 v[68:69], v[68:69], v[70:71]")
            A(f"v_cvt_pk_bf16_f32 v{72+i}, v64, v65")
            A(f"v_cvt_pk_bf16_f32 v{73+i}, v68, v69")
        for e in range(4):
            A(f"v_mov_b32_dpp v{76+e}, v{72+e} row_shl:8 row_mask:0xf bank_mask:0xf")
        A("s_waitcnt lgkmcnt(0)")
        ACC = 88
        for cb in range(8):
            A(f"v_mfma_f32_16x16x32_bf16 {vr(ACC+4*cb,4)}, {vr(AB+cb*4,4)}, v[72:75], 0")
        for cb in range(8):
            A(f"v_mfma_f32_16x16x32_bf16 {vr(ACC+4*cb,4)}, {vr(AB+(8+cb)*4,4)}, v[76:79], {vr(ACC+4*cb,4)}")
        A(f"s_mov_b64 exec, s[{S_MJ8}:{S_MJ8+1}]")
        for cb in range(8):
            A(f"ds_write_b128 v{RW+cb}, {vr(ACC+4*cb,4)}")
        A("s_mov_b64 exec, -1")
        A("s_waitcnt lgkmcnt(0)")
        A.place(lno)
        A("s_barrier")
        for v in range(7):
            A(f"ds_read_b64 {vr(20+2*v,2)}, v{RW+8} offset:{v*4096}")
        A("s_waitcnt lgkmcnt(0)")
        A(f"""
        v_pk_add_f32 v[20:21], v[20:21], v[22:23]
        v_pk_add_f32 v[24:25], v[24:25], v[26:27]
        v_pk_add_f32 v[28:29], v[28:29], v[30:31]
        v_pk_add_f32 v[20:21], v[20:21], v[24:25]
        v_pk_add_f32 v[28:29], v[28:29], v[32:33]
        v_pk_add_f32 v[20:21], v[20:21], v[28:29]
        v_min_u32 v20, -2, v20
        v_min_u32 v21, -2, v21
        v_mov_b32_dpp v22, v20 quad_perm:[1,1,3,3] row_mask:0xf bank_mask:0xf
        v_mov_b32_dpp v23, v21 quad_perm:[1,1,3,3] row_mask:0xf bank_mask:0xf
        s_mov_b32 s{S_T2}, 0x55555555
        s_mov_b32 s{S_T3}, 0x55555555
        s_mov_b64 exec, s[{S_T2}:{S_T3}]
        buffer_store_dwordx4 v[20:23], v15, {srd(R_WS)}, s{S_OFF} offen sc0 sc1
        s_mov_b64 exec, -1
        """)
        self.stamp(9)
        A("s_branch L_end")

    def role_F(self):
        A = self.A
        A.place("L_roleF")
        self.mk_srd(R_OUT, S_OUT, 16384)
        A(f"""
        s_sub_u32 s{S_T2}, s{S_H}, 30
        s_lshl_b32 s{S_T0}, s{S_B}, 1
        s_add_u32 s{S_T2}, s{S_T2}, s{S_T0}
        v_lshrrev_b32 v4, 4, v1
        v_lshlrev_b32 v4, 15, v4
        v_and_b32 v5, 15, v1
        v_lshlrev_b32 v6, 4, v5
        v_add_u32 v16, v4, v6
        v_lshlrev_b32 v15, 3, v5
        s_lshl_b32 s{S_T0}, s{S_WAVE}, 12
        s_lshl_b32 s{S_T1}, s{S_T2}, 8
        s_add_u32 s{S_T0}, s{S_T0}, s{S_T1}
        s_add_u32 s{S_T0}, s{S_T0}, {WS_DP}
        s_add_u32 s{S_T1}, s{S_T0}, 131072
        s_lshl_b32 s{S_PITCH}, s{S_WAVE}, 11
        s_lshl_b32 s{S_T3}, s{S_T2}, 7
        s_add_u32 s{S_PITCH}, s{S_PITCH}, s{S_T3}
        s_add_u32 s{S_T2}, s{S_PITCH}, {WS_H}
        s_mul_i32 s{S_T3}, s{S_WAVE}, 7168
        s_add_u32 s{S_T3}, s{S_T3}, {WS_GU}
        v_lshlrev_b32 v17, 7, v1
        s_mov_b32 s{S_EX}, -1
        s_mov_b32 s{S_EX+1}, 0x00ffffff
        """)
        self.sample_wait(True, 17, 18, self.HS)
        self.stamp(16)
        loads = [f"buffer_load_dwordx4 v[32:35], v16, {srd(R_WS)}, s{S_T0} offen {self.LP}",
                 f"buffer_load_dwordx4 v[36:39], v16, {srd(R_WS)}, s{S_T1} offen {self.LP}",
                 f"buffer_load_dwordx2 v[40:41], v15, {srd(R_WS)}, s{S_T2} offen {self.LP}"]
        self.poll_pipe(loads, range(32, 42), 17, depth=1, sleep=self.FSL)
        self.stamp(8)
        A(f"""
        v_pk_add_f32 v[20:21], v[32:33], v[36:37]
        v_pk_add_f32 v[22:23], v[34:35], v[38:39]
        """)
        for sw in ("v_permlane16_swap_b32", "v_permlane32_swap_b32"):
            for e in range(4):
                A(f"v_mov_b32 v{24+e}, v{20+e}")
            for e in range(4):
                A(f"{sw} v{20+e}, v{24+e}")
            A(f"v_pk_add_f32 v[20:21], v[20:21], v[24:25]")
            A(f"v_pk_add_f32 v[22:23], v[22:23], v[26:27]")
        A(f"""
        v_cvt_pk_bf16_f32 v24, v20, v21
        v_cvt_pk_bf16_f32 v25, v22, v23
        v_lshlrev_b32 v20, 16, v24
        v_and_b32 v21, 0xffff0000, v24
        v_lshlrev_b32 v22, 16, v25
        v_and_b32 v23, 0xffff0000, v25
        v_lshlrev_b32 v24, 16, v40
        v_and_b32 v25, 0xffff0000, v40
        v_lshlrev_b32 v26, 16, v41
        v_and_b32 v27, 0xffff0000, v41
        v_pk_add_f32 v[20:21], v[20:21], v[24:25]
        v_pk_add_f32 v[22:23], v[22:23], v[26:27]
        v_cvt_pk_bf16_f32 v20, v20, v21
        v_cvt_pk_bf16_f32 v21, v22, v23
        s_mov_b64 exec, 0xffff
        buffer_store_dwordx2 v[20:21], v15, {srd(R_OUT)}, s{S_PITCH} offen
        s_mov_b64 exec, -1
        """)
        lne = A.label()
        A(f"""
        s_cmp_eq_u32 s2, 240
        s_cbranch_scc0 {lne}
        s_cmp_eq_u32 s{S_WAVE}, 0
        s_cbranch_scc0 {lne}
        v_mov_b32 v20, 0
        v_mov_b32 v21, s{S_TAG}
        s_mov_b32 s{S_T1}, {WS_EPOCH}
        s_mov_b64 exec, 1
        buffer_store_dword v21, v20, {srd(R_WS)}, s{S_T1} offen sc0 sc1
        s_mov_b64 exec, -1
        """)
        A.place(lne)
        self.stamp(9)

    def build(self):
        A = self.A
        self.entry()
        self.service()
        self.stream()
        self.tail()
        A.place("L_end")
        if self.stamps in ("tail", "early", "svc"):
            A("s_cmp_ge_u32 s2, 256")
            A("s_cbranch_scc1 L_end2")
            A("s_waitcnt lgkmcnt(0)")
            A(f"s_lshl_b32 s3, s{S_WG}, 3")
            A(f"s_add_u32 s3, s3, s{S_WAVE}")
            A(f"s_lshl_b32 s3, s3, 7")
            A(f"s_add_u32 s3, s3, {WS_DBG + 0x100000}")
            A(f"s_mov_b64 exec, 1")
            A(f"v_mov_b32 v255, 0")
            A("s_getreg_b32 s16, hwreg(HW_REG_XCC_ID)")
            A(f"v_mov_b32 v254, s16")
            A(f"buffer_store_dword v254, v255, {srd(R_WS)}, s3 offen offset:124")
            for idx, j in self.LIGHT.items():
                A(f"v_mov_b32 v254, s{4+2*j}")
                A(f"buffer_store_dword v254, v255, {srd(R_WS)}, s3 offen offset:{idx*4}")
            A.place("L_end2")
        A("s_endpgm")
        A.footer(256, 102, 256)
        A.fix_hazards()
        return A.text()

if __name__ == "__main__":
    import argparse
    ap = argparse.ArgumentParser()
    ap.add_argument("-o", default="main.s")
    ap.add_argument("--N", type=int, default=5)
    ap.add_argument("--NP", type=int, default=8)
    ap.add_argument("--LP", default="sc1")
    ap.add_argument("--PD", type=int, default=1)
    ap.add_argument("--HG", type=int, default=48)
    ap.add_argument("--HD", type=int, default=64)
    ap.add_argument("--HS", type=int, default=2)
    ap.add_argument("--nolocal", action="store_true")
    ap.add_argument("--pace", action="store_true")
    ap.add_argument("--rot", type=int, default=0)
    ap.add_argument("--defer", action="store_true")
    ap.add_argument("--JU", type=int, default=8)
    ap.add_argument("--NOK", type=int, default=6)
    ap.add_argument("--NOV", type=int, default=5)
    ap.add_argument("--NT", type=int, default=16)
    ap.add_argument("--NW", default=None)
    ap.add_argument("--NMIN", type=int, default=4)
    ap.add_argument("--GTH", default="")
    ap.add_argument("--GM", type=int, default=16)
    ap.add_argument("--DMAX", type=int, default=7)
    ap.add_argument("--TH", default="64,192,240")
    ap.add_argument("--GSL", type=int, default=1)
    ap.add_argument("--FSL", type=int, default=1)
    ap.add_argument("--KP", default="nt")
    ap.add_argument("--VP", default="nt")
    ap.add_argument("--WP", default="nt")
    ap.add_argument("--PS", type=int, default=1)
    ap.add_argument("--debug", action="store_true")
    ap.add_argument("--stamps", default=None)
    ap.add_argument("--stop", default=None)
    a = ap.parse_args()
    g = Gen(N=a.N, NP=a.NP, LP=a.LP, PD=a.PD, PS=a.PS, HG=a.HG, HD=a.HD, HS=a.HS, nolocal=a.nolocal, pace=a.pace, GTH=tuple(int(x) for x in a.GTH.split(',') if x), GM=a.GM, DMAX=a.DMAX, rot=a.rot, defer=a.defer, JU=a.JU, NOK=a.NOK, NOV=a.NOV, NT=a.NT, NW=(tuple(int(x) for x in a.NW.split(',')) if a.NW else None), NMIN=a.NMIN, TH=tuple(int(x) for x in a.TH.split(',')), GSL=a.GSL, FSL=a.FSL, KP=a.KP, VP=a.VP, WP=a.WP, debug=a.debug, stamps=a.stamps, stop_after=a.stop)
    open(a.o, "w").write(g.build())
```

```python
import sys
from asmlib import *

LDS_WQ = 98304
LDS_SC = 131072
LDS_MISC = 147456
LDS_XN = LDS_MISC
LDS_Q = LDS_MISC + 2304
LDS_CNT = LDS_MISC + 2560
LDS_WM = LDS_MISC + 2624
LDS_WS = LDS_MISC + 2688
LDS_ORED = LDS_MISC + 4096
LDS_XCC = LDS_MISC + 8192
LDS_BLK = LDS_MISC + 2576
LDS_N = LDS_MISC + 2580
LDS_RED = LDS_SC
LDS_XN2 = LDS_MISC
LDS_BYTES = 163840

WS_QP = 0x000000
WS_SLOT = 0x100000
WS_OB = WS_SLOT + 0x00000
WS_OP = WS_SLOT + 0x10000
WS_H = WS_SLOT + 0x30000
WS_GU = WS_SLOT + 0x34000
WS_DP = WS_SLOT + 0x50000
WS_C2 = WS_SLOT + 0x90000
WS_C3 = WS_SLOT + 0x90100
WS_PROG = WS_SLOT + 0xA0000
WS_GP = WS_SLOT + 0xB0000
WS_FLAG = 0x200000
WS_EPOCH = 0x210000
WS_DBG = 0x300000
WS_SIZE = 0x600000
SPIN = 1 << 20

S_WG = 2
S_X, S_K, S_V, S_WQ, S_WO, S_BX, S_WG_, S_WU, S_WD, S_OUT, S_DBG, S_WS = 16, 18, 20, 22, 24, 26, 28, 30, 32, 34, 36, 38
R_K, R_V, R_X, R_WQ, R_WT, R_WS, R_OUT = 40, 44, 48, 52, 56, 60, 68
S_WAVE, S_H, S_B, S_SW = 72, 73, 74, 75
S_T0, S_T1, S_T2, S_T3, S_T4, S_T5 = 76, 77, 78, 79, 80, 81
S_OFF, S_CNT, S_PITCH, S_NJ, S_ROLE = 82, 83, 84, 85, 86
S_M1, S_M2, S_M3 = 88, 90, 92
S_MJ8 = 94
S_EX = 96
S_TAG = 98
S_MQ = 64
S_JJ = 100
S_ROT = 50
S_J1 = 51
S_DS, S_DM, S_DJ, S_DST = 52, 53, 54, 55
S_NCUR = 3
S_JA = 101
S_LOC = 87
S_XCC = 99
S_ME = 66
S_PM = 40
def srd(r): return f"s[{r}:{r+3}]"
def vr(a, n): return f"v[{a}:{a+n-1}]"

class Gen:
    def __init__(self, N=5, NP=8, PV=16, LP='sc1', PD=1, PS=1, HG=64, HD=64, HS=4, nolocal=False, rot=0, defer=False, JU=8, NOK=6, NOV=5, NT=16, NTD=4, pace=False, NW=None, NMIN=4, TH=(64, 192, 240), GTH=(), GM=16, DMAX=7, GSL=1, FSL=1, KP='nt', VP='nt', WP='nt', debug=False, stamps=False, stop_after=None):
        self.A = Asm()
        self.N, self.NP, self.PV, self.LP = N, NP, PV, LP
        self.debug, self.stamps, self.stop_after = debug, stamps, stop_after
        self.OSLEEP, self.GSLEEP, self.DSLEEP = 1, 0, 0
        self.PD, self.PS = PD, PS
        self.nolocal = nolocal
        self.rot = rot
        self.defer, self.JU, self.NOK, self.NOV, self.NT = defer, (JU if defer else 24), NOK, NOV, NT
        self.NTD = NTD
        self.pace = pace
        self.GTH, self.GM = GTH, GM
        self.D = min(NMIN + len(TH) + len(GTH), DMAX) if pace else N
        self.NW = NW
        if defer and not pace: self.D = max(N, NOK, NOV); NMIN = min(N, NOK, NOV)
        if NW:
            self.D = max(NW); NMIN = min(NW)
        self.NMIN, self.TH, self.PK0 = NMIN, TH, 2
        self.GSL, self.FSL = GSL, FSL
        self.KP, self.VP, self.WP = KP, VP, WP
        self.HG, self.HD, self.HS = HG, HD, HS

    def mk_srd(self, r, ptr, size, add_lo=None):
        A = self.A
        if add_lo is None:
            A(f"s_mov_b32 s{r}, s{ptr}")
            A(f"s_mov_b32 s{r+1}, s{ptr+1}")
        else:
            A(f"s_add_u32 s{r}, s{ptr}, {add_lo}")
            A(f"s_addc_u32 s{r+1}, s{ptr+1}, 0")
        A(f"s_mov_b32 s{r+2}, {size}")
        A(f"s_mov_b32 s{r+3}, 0x20000")

    def lds_signal(self, off, va, vd):
        A = self.A
        A(f"s_mov_b64 exec, 1")
        A(f"v_mov_b32 v{va}, {off}")
        A(f"v_mov_b32 v{vd}, 1")
        A(f"ds_add_u32 v{va}, v{vd}")
        A(f"s_mov_b64 exec, -1")

    def lds_wait(self, off, val, va, vd, sleep=1):
        A = self.A
        lp = A.label(); ex = A.label()
        A(f"v_mov_b32 v{va}, {off}")
        A(f"s_mov_b32 s{S_CNT}, 0")
        A.place(lp)
        A(f"ds_read_b32 v{vd}, v{va}")
        A(f"s_waitcnt lgkmcnt(0)")
        A(f"v_readfirstlane_b32 s{S_T5}, v{vd}")
        A(f"s_cmp_ge_u32 s{S_T5}, {val}")
        A(f"s_cbranch_scc1 {ex}")
        A(f"s_add_u32 s{S_CNT}, s{S_CNT}, 1")
        A(f"s_cmp_gt_u32 s{S_CNT}, {SPIN*4}")
        A(f"s_cbranch_scc1 {ex}")
        if sleep: A(f"s_sleep {sleep}")
        A(f"s_branch {lp}")
        A.place(ex)

    def allreduce2(self, a, b, ta, tb, op="v_add_f32"):
        A = self.A
        for r in (8, 4, 2, 1):
            A(f"{op}_dpp v{a}, v{a}, v{a} row_ror:{r} row_mask:0xf bank_mask:0xf")
            A(f"{op}_dpp v{b}, v{b}, v{b} row_ror:{r} row_mask:0xf bank_mask:0xf")
        for sw in ("v_permlane16_swap_b32", "v_permlane32_swap_b32"):
            A(f"v_mov_b32 v{ta}, v{a}")
            A(f"v_mov_b32 v{tb}, v{b}")
            A(f"{sw} v{a}, v{ta}")
            A(f"{sw} v{b}, v{tb}")
            A(f"{op} v{a}, v{a}, v{ta}")
            A(f"{op} v{b}, v{b}, v{tb}")

    def rnd_bf16(self, d, s):
        A = self.A
        A(f"v_cvt_pk_bf16_f32 v{d}, v{s}, v{s}")
        A(f"v_lshlrev_b32 v{d}, 16, v{d}")

    def ln_stats(self, F, D, s1, s2, t1, t2, vmb, vrs):
        A = self.A
        A(f"v_readfirstlane_b32 s{S_T4}, v{F}")
        for i in range(0, 16, 2):
            A(f"v_pk_add_f32 {vr(D+i,2)}, {vr(F+i,2)}, s[{S_T4}:{S_T4+1}] op_sel_hi:[1,0] neg_lo:[0,1] neg_hi:[0,1]")
        A(f"v_pk_add_f32 {vr(s1,2)}, {vr(D,2)}, {vr(D+2,2)}")
        A(f"v_pk_mul_f32 {vr(s2,2)}, {vr(D,2)}, {vr(D,2)}")
        A(f"v_pk_fma_f32 {vr(s2,2)}, {vr(D+2,2)}, {vr(D+2,2)}, {vr(s2,2)}")
        for i in range(4, 16, 2):
            A(f"v_pk_add_f32 {vr(s1,2)}, {vr(s1,2)}, {vr(D+i,2)}")
            A(f"v_pk_fma_f32 {vr(s2,2)}, {vr(D+i,2)}, {vr(D+i,2)}, {vr(s2,2)}")
        A(f"v_add_f32 v{s1}, v{s1}, v{s1+1}")
        A(f"v_add_f32 v{s2}, v{s2}, v{s2+1}")
        self.allreduce2(s1, s2, t1, t2)
        A(f"v_mul_f32 v{s1}, 0x3a800000, v{s1}")
        A(f"v_mul_f32 v{s2}, 0x3a800000, v{s2}")
        A(f"v_add_f32 v{vmb}, s{S_T4}, v{s1}")
        A(f"v_fma_f32 v{vrs}, -v{s1}, v{s1}, v{s2}")
        A(f"v_max_f32 v{vrs}, 0, v{vrs}")
        A(f"v_cvt_pk_bf16_f32 v{vmb}, v{vmb}, v{vrs}")
        A(f"v_and_b32 v{vrs}, 0xffff0000, v{vmb}")
        A(f"v_lshlrev_b32 v{vmb}, 16, v{vmb}")
        A(f"v_add_f32 v{vrs}, 0x3727c5ac, v{vrs}")
        self.rnd_bf16(vrs, vrs)
        A(f"v_sqrt_f32 v{vrs}, v{vrs}")
        self.rnd_bf16(vrs, vrs)
        A(f"v_rcp_f32 v{vrs}, v{vrs}")

    def ln_apply(self, d, f, vmb, vrs, t):
        A = self.A
        A(f"v_pk_add_f32 {vr(t,2)}, {vr(f,2)}, {vr(vmb,2)} op_sel_hi:[1,0] neg_lo:[0,1] neg_hi:[0,1]")
        A(f"v_cvt_pk_bf16_f32 v{t}, v{t}, v{t+1}")
        A(f"v_and_b32 v{t+1}, 0xffff0000, v{t}")
        A(f"v_lshlrev_b32 v{t}, 16, v{t}")
        A(f"v_pk_mul_f32 {vr(t,2)}, {vr(t,2)}, {vr(vrs,2)} op_sel_hi:[1,0]")
        A(f"v_cvt_pk_bf16_f32 v{d}, v{t}, v{t+1}")

    LIGHT_TAIL = {0: 0, 6: 1, 7: 2, 16: 3, 8: 4, 9: 5}
    LIGHT_EARLY = {0: 0, 15: 1, 3: 2, 4: 3, 14: 4, 6: 5}
    LIGHT_SVC = {0: 0, 13: 1, 1: 2, 11: 3, 2: 4, 12: 5}
    @property
    def LIGHT(self): return {"tail": self.LIGHT_TAIL, "early": self.LIGHT_EARLY, "svc": self.LIGHT_SVC}[self.stamps]
    def stamp(self, idx):
        if self.stamps in ("tail", "early", "svc"):
            if idx in self.LIGHT:
                j = 4 + 2 * self.LIGHT[idx]
                self.A(f"s_memrealtime s[{j}:{j+1}]")
            return
        if not self.stamps: return
        A = self.A
        A(f"s_memrealtime s[4:5]")
        A(f"s_waitcnt lgkmcnt(0)")
        A(f"s_lshl_b32 s6, s{S_WG}, 3")
        A(f"s_add_u32 s6, s6, s{S_WAVE}")
        A(f"s_lshl_b32 s6, s6, 7")
        A(f"s_add_u32 s6, s6, {WS_DBG + 0x100000 + idx*4}")
        A(f"s_mov_b64 s[8:9], exec")
        A(f"s_mov_b64 exec, 1")
        A(f"v_mov_b32 v254, s4")
        A(f"v_mov_b32 v255, 0")
        A(f"buffer_store_dword v254, v255, {srd(R_WS)}, s6 offen")
        A(f"s_mov_b64 exec, s[8:9]")

    def stampval(self, idx, sreg):
        if not self.stamps or self.stamps in ("tail", "early", "svc"): return
        A = self.A
        A(f"s_lshl_b32 s6, s{S_WG}, 3")
        A(f"s_add_u32 s6, s6, s{S_WAVE}")
        A(f"s_lshl_b32 s6, s6, 7")
        A(f"s_add_u32 s6, s6, {WS_DBG + 0x100000 + idx*4}")
        A(f"s_mov_b64 s[8:9], exec")
        A(f"s_mov_b64 exec, 1")
        A(f"v_mov_b32 v254, s{sreg}")
        A(f"v_mov_b32 v255, 0")
        A(f"buffer_store_dword v254, v255, {srd(R_WS)}, s6 offen")
        A(f"s_mov_b64 exec, s[8:9]")

    def cstamp(self, idx):
        if not self.stamps or self.stamps in ("tail", "early", "svc"): return
        A = self.A
        A(f"s_memtime s[10:11]")
        A(f"s_waitcnt lgkmcnt(0)")
        self.stampval(idx, 10)

    def quad_gather(self, d, src):
        A = self.A
        A(f"v_mov_b32_dpp v{d+1}, v{src} quad_perm:[1,1,1,1] row_mask:0xf bank_mask:0xf")
        A(f"v_mov_b32_dpp v{d+2}, v{src} quad_perm:[2,2,2,2] row_mask:0xf bank_mask:0xf")
        A(f"v_mov_b32_dpp v{d+3}, v{src} quad_perm:[3,3,3,3] row_mask:0xf bank_mask:0xf")
        if d != src: A(f"v_mov_b32 v{d}, v{src}")
    def even_gather(self, d, src):
        A = self.A
        A(f"v_mov_b32_dpp v{d+1}, v{src} row_shl:2 row_mask:0xf bank_mask:0xf")
        A(f"v_mov_b32_dpp v{d+2}, v{src} row_shl:4 row_mask:0xf bank_mask:0xf")
        A(f"v_mov_b32_dpp v{d+3}, v{src} row_shl:6 row_mask:0xf bank_mask:0xf")
        if d != src: A(f"v_mov_b32 v{d}, v{src}")

    def hint_add(self, off, va, vd):
        A = self.A
        A(f"v_mov_b32 v{va}, {off}")
        A(f"v_mov_b32 v{vd}, 1")
        A(f"s_mov_b64 exec, 1")
        A(f"buffer_atomic_add v{vd}, v{va}, {srd(R_WS)}, 0 offen sc1")
        A(f"s_mov_b64 exec, -1")
    def hint_wait(self, off, target, va, vd, sleep):
        A = self.A
        lp = A.label(); ex = A.label()
        A(f"s_cmp_eq_u32 s{S_WAVE}, 0")
        A(f"s_cbranch_scc0 {ex}")
        A(f"v_mov_b32 v{va}, {off}")
        A(f"s_mov_b32 s{S_CNT}, 0")
        A(f"s_mov_b64 exec, 1")
        A.place(lp)
        A(f"buffer_load_dword v{vd}, v{va}, {srd(R_WS)}, 0 offen {self.LP}")
        A("s_waitcnt vmcnt(0)")
        A(f"v_readfirstlane_b32 s{S_T5}, v{vd}")
        A(f"s_add_u32 s{S_T5}, s{S_T5}, 1")
        A(f"s_cmp_ge_u32 s{S_T5}, {target}")
        A(f"s_cbranch_scc1 {ex}")
        A(f"s_add_u32 s{S_CNT}, s{S_CNT}, 1")
        A(f"s_cmp_gt_u32 s{S_CNT}, {SPIN}")
        A(f"s_cbranch_scc1 {ex}")
        A(f"s_sleep {sleep}")
        A(f"s_branch {lp}")
        A.place(ex)
        A("s_mov_b64 exec, -1")
        A("s_barrier")

    def local_flag(self):
        A = self.A
        A(f"v_and_b32 v4, 31, v1")
        A(f"v_lshlrev_b32 v4, 5, v4")
        A(f"s_lshl_b32 s{S_T5}, s{S_B}, 2")
        A(f"s_add_u32 s{S_T5}, s{S_T5}, {LDS_XCC}")
        A(f"v_add_u32 v4, s{S_T5}, v4")
        A(f"ds_read_b32 v5, v4")
        A(f"s_waitcnt lgkmcnt(0)")
        A(f"v_readfirstlane_b32 s{S_LOC}, v5")
        A(f"v_cmp_ne_u32 vcc, s{S_LOC}, v5")
        A(f"s_cmp_eq_u64 vcc, 0")
        A(f"s_cselect_b32 s{S_LOC}, 1, 0")
        if self.nolocal: A(f"s_mov_b32 s{S_LOC}, 0")
    def store_sel(self, ins):
        A = self.A
        l1 = A.label(); l2 = A.label()
        A(f"s_cmp_eq_u32 s{S_LOC}, 1")
        A(f"s_cbranch_scc1 {l1}")
        A(f"{ins} sc0 sc1")
        A(f"s_branch {l2}")
        A.place(l1)
        A(ins)
        A.place(l2)

    def sample_wait(self, need_all, va, vd, sleep):
        A = self.A
        lp = A.label(); ex = A.label()
        A(f"s_cmp_eq_u32 s{S_WAVE}, 0")
        A(f"s_cbranch_scc0 {ex}")
        A(f"v_lshlrev_b32 v{va}, 8, v1")
        A(f"v_add_u32 v{va}, {WS_H + 7*32}, v{va}")
        A(f"s_mov_b32 s{S_CNT}, 0")
        A(f"s_mov_b64 exec, 0xff")
        A.place(lp)
        A(f"buffer_load_dword v{vd}, v{va}, {srd(R_WS)}, 0 offen {self.LP}")
        A("s_waitcnt vmcnt(0)")
        if need_all:
            A(f"v_cmp_eq_u32 vcc, -1, v{vd}")
            A(f"s_cbranch_vccz {ex}")
        else:
            A(f"v_cmp_ne_u32 vcc, -1, v{vd}")
            A(f"s_cbranch_vccnz {ex}")
        A(f"s_add_u32 s{S_CNT}, s{S_CNT}, 1")
        A(f"s_cmp_gt_u32 s{S_CNT}, 4000")
        A(f"s_cbranch_scc1 {ex}")
        A(f"s_sleep {sleep}")
        A(f"s_branch {lp}")
        A.place(ex)
        A("s_mov_b64 exec, -1")
        A("s_waitcnt vmcnt(0)")
        A("s_barrier")

    def maxred(self, tmp, regs):
        A = self.A
        rs = list(regs)
        if len(rs) == 1:
            return rs[0]
        if len(rs) == 2:
            A(f"v_max_u32 v{tmp}, v{rs[0]}, v{rs[1]}"); return tmp
        A(f"v_max3_u32 v{tmp}, v{rs[0]}, v{rs[1]}, v{rs[2]}")
        rs = rs[3:]
        while len(rs) >= 2:
            A(f"v_max3_u32 v{tmp}, v{tmp}, v{rs[0]}, v{rs[1]}")
            rs = rs[2:]
        if rs:
            A(f"v_max_u32 v{tmp}, v{tmp}, v{rs[0]}")
        return tmp

    def prepoll(self, load, reg, mask=None, sleep=4, need_all=False):
        A = self.A
        lp = A.label(); ex = A.label()
        if mask is not None:
            A(f"s_mov_b64 exec, s[{mask}:{mask+1}]")
        A(f"s_mov_b32 s{S_CNT}, 0")
        A.place(lp)
        A(load)
        A("s_waitcnt vmcnt(0)")
        if need_all:
            A(f"v_cmp_eq_u32 vcc, -1, v{reg}")
            A(f"s_cbranch_vccz {ex}")
        else:
            A(f"v_cmp_ne_u32 vcc, -1, v{reg}")
            A(f"s_cbranch_vccnz {ex}")
        A(f"s_add_u32 s{S_CNT}, s{S_CNT}, 1")
        A(f"s_cmp_gt_u32 s{S_CNT}, {SPIN}")
        A(f"s_cbranch_scc1 {ex}")
        A(f"s_sleep {sleep}")
        A(f"s_branch {lp}")
        A.place(ex)
        A(f"s_mov_b64 exec, -1")
        self.stamp(16)

    def poll_groups(self, groups, tmp, mask=None, sleep=0):
        A = self.A
        G = len(groups)
        lp = A.label(); ex = A.label()
        for g in range(G):
            m = S_PM + 2 * g
            if mask is None: A(f"s_mov_b64 s[{m}:{m+1}], -1")
            else: A(f"s_mov_b64 s[{m}:{m+1}], s[{mask}:{mask+1}]")
        A(f"s_mov_b32 s{S_CNT}, 0")
        A.place(lp)
        for g, (loads, regs) in enumerate(groups):
            m = S_PM + 2 * g
            sk = A.label()
            A(f"s_mov_b64 exec, s[{m}:{m+1}]")
            if G > 1: A(f"s_cbranch_execz {sk}")
            for l in loads: A(l)
            if G > 1: A.place(sk)
        A("s_waitcnt vmcnt(0)")
        for g, (loads, regs) in enumerate(groups):
            m = S_PM + 2 * g
            A(f"s_mov_b64 exec, s[{m}:{m+1}]")
            t = self.maxred(tmp, regs)
            A(f"v_cmp_eq_u32_e64 s[{m}:{m+1}], -1, v{t}")
        if G == 1:
            A(f"s_cmp_eq_u64 s[{S_PM}:{S_PM+1}], 0")
        else:
            A(f"s_or_b64 s[{S_EX}:{S_EX+1}], s[{S_PM}:{S_PM+1}], s[{S_PM+2}:{S_PM+3}]")
            for g in range(2, G):
                m = S_PM + 2 * g
                A(f"s_or_b64 s[{S_EX}:{S_EX+1}], s[{S_EX}:{S_EX+1}], s[{m}:{m+1}]")
            A(f"s_cmp_eq_u64 s[{S_EX}:{S_EX+1}], 0")
        A(f"s_cbranch_scc1 {ex}")
        A(f"s_add_u32 s{S_CNT}, s{S_CNT}, 1")
        if sleep: A(f"s_sleep {sleep}")
        A(f"s_cmp_gt_u32 s{S_CNT}, {SPIN}")
        A(f"s_cbranch_scc0 {lp}")
        A.place(ex)
        A(f"s_mov_b64 exec, -1")

    def poll_pipe(self, loads, regs, tmp, mask=None, depth=4, sleep=2):
        A = self.A
        n = len(loads)
        lp = A.label(); ex = A.label()
        for r in regs:
            A(f"v_mov_b32 v{r}, -1")
        if mask is not None:
            A(f"s_mov_b64 exec, s[{mask}:{mask+1}]")
        A(f"s_mov_b32 s{S_CNT}, 0")
        A.place(lp)
        for l in loads: A(l)
        if sleep: A(f"s_sleep {sleep}")
        A(f"s_waitcnt vmcnt({(depth-1)*n})")
        t = self.maxred(tmp, regs)
        A(f"v_cmp_eq_u32 vcc, -1, v{t}")
        A(f"s_cbranch_vccz {ex}")
        A(f"s_mov_b64 exec, vcc")
        A(f"s_add_u32 s{S_CNT}, s{S_CNT}, 1")
        A(f"s_cmp_gt_u32 s{S_CNT}, {SPIN}")
        A(f"s_cbranch_scc0 {lp}")
        A.place(ex)
        A(f"s_mov_b64 exec, -1")

    def role_params(self):
        A = self.A
        lG, lD, lN, lE = A.label(), A.label(), A.label(), A.label()
        A(f"""
        s_mov_b32 s{S_JJ}, 999
        s_mov_b32 s{S_JA}, 0
        s_cmp_ge_u32 s{S_H}, 8
        s_cbranch_scc1 {lG}
        s_mov_b32 s{S_ROLE}, 0
        s_mov_b32 s{S_J1}, 24
        s_mov_b32 s{S_PITCH}, 2048
        s_mov_b32 s{S_NJ}, 32
        s_lshr_b32 s{S_T0}, s{S_H}, 1
        s_lshl_b32 s{S_T0}, s{S_T0}, 21
        s_and_b32 s{S_T1}, s{S_H}, 1
        s_lshl_b32 s{S_T2}, s{S_B}, 1
        s_add_u32 s{S_T1}, s{S_T1}, s{S_T2}
        s_lshl_b32 s{S_T1}, s{S_T1}, 7
        s_add_u32 s{S_T0}, s{S_T0}, s{S_T1}
        s_add_u32 s{R_WT}, s{S_WO}, s{S_T0}
        s_addc_u32 s{R_WT+1}, s{S_WO+1}, 0
        s_sub_u32 s{R_WT+2}, {8<<20}, s{S_T0}
        s_branch {lE}
        """)
        A.place(lG)
        A(f"""
        s_cmp_ge_u32 s{S_H}, 22
        s_cbranch_scc1 {lD}
        s_mov_b32 s{S_ROLE}, 1
        s_mov_b32 s{S_J1}, {self.JU}
        s_mov_b32 s{S_PITCH}, 7168
        s_mov_b32 s{S_NJ}, 32
        s_sub_u32 s{S_T0}, s{S_H}, 8
        s_lshr_b32 s{S_T1}, s{S_T0}, 1
        s_mul_i32 s{S_T2}, s{S_B}, 7
        s_add_u32 s{S_T1}, s{S_T1}, s{S_T2}
        s_lshl_b32 s{S_T1}, s{S_T1}, 7
        s_bitcmp1_b32 s{S_T0}, 0
        s_cselect_b32 s{S_T2}, s{S_WU}, s{S_WG_}
        s_cselect_b32 s{S_T3}, s{S_WU+1}, s{S_WG_+1}
        s_add_u32 s{R_WT}, s{S_T2}, s{S_T1}
        s_addc_u32 s{R_WT+1}, s{S_T3}, 0
        s_sub_u32 s{R_WT+2}, {7340032}, s{S_T1}
        s_branch {lE}
        """)
        A.place(lD)
        A(f"""
        s_cmp_ge_u32 s{S_H}, 30
        s_cbranch_scc1 {lN}
        s_mov_b32 s{S_ROLE}, 2
        s_mov_b32 s{S_J1}, {self.JU}
        s_mov_b32 s{S_PITCH}, 2048
        s_mov_b32 s{S_NJ}, 28
        s_mov_b32 s{S_JJ}, 14
        s_mov_b32 s{S_JA}, {(128 - 448*2048) & 0xffffffff}
        s_mul_i32 s{S_T1}, s{S_B}, {448*2048}
        s_sub_u32 s{S_T0}, s{S_H}, 22
        s_lshl_b32 s{S_T0}, s{S_T0}, 8
        s_add_u32 s{S_T0}, s{S_T0}, s{S_T1}
        s_add_u32 s{R_WT}, s{S_WD}, s{S_T0}
        s_addc_u32 s{R_WT+1}, s{S_WD+1}, 0
        s_sub_u32 s{R_WT+2}, {7340032}, s{S_T0}
        s_branch {lE}
        """)
        A.place(lN)
        A(f"""
        s_mov_b32 s{S_ROLE}, 3
        s_mov_b32 s{S_J1}, 0
        s_mov_b32 s{S_PITCH}, 2048
        s_mov_b32 s{S_NJ}, 0
        s_mov_b32 s{R_WT}, s{S_WD}
        s_mov_b32 s{R_WT+1}, s{S_WD+1}
        s_mov_b32 s{R_WT+2}, 0
        """)
        A.place(lE)
        A(f"s_mov_b32 s{R_WT+3}, 0x20000")

    def entry(self):
        A = self.A
        A.header(256, 512, LDS_BYTES, comments=[
            "Fused decode layer: preLN + MHA over KV cache + out-proj + preLN + GEGLU FFN (one persistent launch, 256 WGs x 512).",
        ])
        A(f"""
        s_cmp_ge_u32 s2, 256
        s_cbranch_scc1 L_end
        s_load_dwordx16 s[16:31], s[0:1], 0
        s_load_dwordx8 s[32:39], s[0:1], 64
        v_and_b32 v1, 63, v0
        v_lshrrev_b32 v4, 6, v0
        v_lshlrev_b32 v2, 4, v1
        v_readfirstlane_b32 s{S_WAVE}, v4
        v_lshlrev_b32 v3, 2, v1
        s_lshr_b32 s{S_H}, s2, 3
        s_and_b32 s{S_B}, s2, 7
        s_mov_b32 s{S_M1}, 0x22222222
        s_mov_b32 s{S_M1+1}, 0x22222222
        s_mov_b32 s{S_M2}, 0x44444444
        s_mov_b32 s{S_M2+1}, 0x44444444
        s_mov_b32 s{S_M3}, 0x88888888
        s_mov_b32 s{S_M3+1}, 0x88888888
        s_mov_b32 s{S_MJ8}, 0x00ff00ff
        s_mov_b32 s{S_MJ8+1}, 0x00ff00ff
        s_mov_b32 s{S_MQ}, 0x11111111
        s_mov_b32 s{S_MQ+1}, 0x11111111
        s_mov_b32 s{S_ME}, 0x01010101
        s_mov_b32 s{S_ME+1}, 0x01010101
        v_mov_b32 v204, 0
        v_mov_b32 v4, {LDS_CNT}
        v_mov_b32 v6, 0
        v_mov_b32 v7, 0
        ds_write_b64 v4, v[6:7]
        ds_write_b64 v4, v[6:7] offset:8
        v_mov_b32 v7, {self.N}
        ds_write_b64 v4, v[6:7] offset:16
        s_and_b32 s{S_SW}, s{S_WAVE}, 3
        s_mov_b64 s[4:5], 0
        s_mov_b64 s[6:7], 0
        s_mov_b64 s[8:9], 0
        s_mov_b64 s[10:11], 0
        s_mov_b64 s[12:13], 0
        s_mov_b64 s[14:15], 0
        s_cmp_ge_u32 s{S_WAVE}, 4
        s_cbranch_scc1 L_stream
        """)

    def service(self):
        A = self.A
        A.c("==== service waves: LN(x), q partial, exchange ====")
        A(f"""
        v_lshrrev_b32 v4, 4, v1
        v_and_b32 v5, 15, v1
        s_lshr_b32 s{S_T0}, s{S_SW}, 1
        s_lshl_b32 s{S_T0}, s{S_T0}, 2
        v_or_b32 v6, s{S_T0}, v4
        v_lshlrev_b32 v6, 1, v6
        v_xor_b32 v6, v6, v5
        v_lshlrev_b32 v6, 4, v6
        v_lshlrev_b32 v7, 13, v4
        v_add_u32 v6, v6, v7
        s_lshl_b32 s{S_T0}, s{S_B}, 20
        s_lshl_b32 s{S_T1}, s{S_SW}, 15
        s_add_u32 s{S_T0}, s{S_T0}, s{S_T1}
        s_lshl_b32 s{S_T1}, s{S_H}, 8
        s_add_u32 s{S_T0}, s{S_T0}, s{S_T1}
        s_lshl_b32 s{S_T1}, s{S_SW}, 10
        s_add_u32 s{S_T1}, s{S_T1}, {LDS_WQ}
        s_lshl_b32 s{S_T2}, s{S_SW}, 12
        v_mov_b32 v126, 0
        s_mov_b32 s{S_T3}, {WS_EPOCH}
        s_waitcnt lgkmcnt(0)
        """)
        self.mk_srd(R_X, S_X, 16384)
        A(f"buffer_load_dwordx4 v[8:11], v2, {srd(R_X)}, s{S_T2} offen")
        A(f"buffer_load_dwordx4 v[12:15], v2, {srd(R_X)}, s{S_T2} offen offset:1024")
        A(f"buffer_load_dwordx4 v[16:19], v2, {srd(R_X)}, s{S_T2} offen offset:2048")
        A(f"buffer_load_dwordx4 v[20:23], v2, {srd(R_X)}, s{S_T2} offen offset:3072")
        self.mk_srd(R_WQ, S_WQ, 8 << 20)
        for j in range(8):
            A(f"s_mov_b32 m0, s{S_T1}")
            A(f"s_add_u32 s{S_T1}, s{S_T1}, 4096")
            A(f"buffer_load_dwordx4 v6, {srd(R_WQ)}, s{S_T0} offen {self.WP} lds")
            if j < 7:
                A(f"s_add_u32 s{S_T0}, s{S_T0}, {4*32768}")
        self.mk_srd(R_WS, S_WS, WS_SIZE)
        A(f"buffer_load_dword v126, v126, {srd(R_WS)}, s{S_T3} offen {self.LP}")
        A("s_barrier")
        self.stamp(0)
        if self.stamps and self.stamps not in ("tail", "early", "svc"):
            A("s_getreg_b32 s10, hwreg(HW_REG_XCC_ID)")
            self.stampval(31, 10)
        A(f"""
        v_mov_b32 v24, -1
        v_mov_b32 v25, -1
        v_mov_b32 v26, -1
        v_mov_b32 v27, -1
        s_lshl_b32 s{S_T0}, s2, 12
        s_lshl_b32 s{S_T1}, s{S_SW}, 10
        s_add_u32 s{S_T0}, s{S_T0}, s{S_T1}
        s_add_u32 s{S_T0}, s{S_T0}, {WS_SLOT}
        buffer_store_dwordx4 v[24:27], v2, {srd(R_WS)}, s{S_T0} offen sc0 sc1
        """)
        nst = 2 if (self.stamps and self.stamps not in ('tail', 'early', 'svc')) else 0
        self.role_params()
        A(f"s_waitcnt vmcnt({10 + nst})")
        self.stamp(10)
        F, D = 32, 48
        S1, S2, T1, T2, VMB, VRS = 64, 66, 68, 69, 70, 72
        for r in range(2):
            base = 8 + 8 * r
            for i in range(8):
                A(f"v_lshlrev_b32 v{F+2*i}, 16, v{base+i}")
                A(f"v_and_b32 v{F+2*i+1}, 0xffff0000, v{base+i}")
            self.ln_stats(F, D, S1, S2, T1, T2, VMB, VRS)
            lab = A.label()
            A(f"s_cmp_lt_u32 s{S_B}, 4")
            A(f"s_cbranch_scc1 {lab}")
            for i in range(0, 8, 2):
                A(f"v_pk_mov_b32 {vr(F+i,2)}, {vr(F+8+i,2)}, {vr(F+8+i,2)} op_sel:[0,1]")
            A.place(lab)
            for i in range(4):
                self.ln_apply(76 + i, F + 2*i, VMB, VRS, 74)
            A(f"""
            s_and_b32 s{S_T0}, s{S_B}, 3
            s_lshl_b32 s{S_T0}, s{S_T0}, 4
            s_mov_b64 s[{S_EX}:{S_EX+1}], 0xffff
            s_lshl_b64 s[{S_EX}:{S_EX+1}], s[{S_EX}:{S_EX+1}], s{S_T0}
            s_lshl_b32 s{S_T1}, s{S_SW}, 1
            s_add_u32 s{S_T1}, s{S_T1}, {r}
            s_mul_i32 s{S_T1}, s{S_T1}, 272
            s_add_u32 s{S_T1}, s{S_T1}, {LDS_XN}
            v_and_b32 v80, 15, v1
            v_lshlrev_b32 v80, 4, v80
            v_add_u32 v80, s{S_T1}, v80
            s_mov_b64 exec, s[{S_EX}:{S_EX+1}]
            ds_write_b128 v80, v[76:79]
            s_mov_b64 exec, -1
            """)
        self.stamp(12)
        A(f"""
        v_and_b32 v58, 7, v1
        v_mul_u32_u24 v58, 272, v58
        v_lshrrev_b32 v59, 4, v1
        v_lshlrev_b32 v60, 4, v59
        v_add_u32 v58, v58, v60
        v_add_u32 v58, {LDS_XN}, v58
        v_and_b32 v60, 15, v1
        v_lshrrev_b32 v61, 2, v60
        v_and_b32 v62, 3, v60
        v_and_b32 v63, 1, v59
        v_lshlrev_b32 v63, 2, v63
        v_or_b32 v63, v63, v61
        v_lshlrev_b32 v80, 3, v59
        v_add_u32 v80, v80, v61
        v_lshlrev_b32 v80, 8, v80
        v_lshlrev_b32 v62, 3, v62
        v_add_u32 v80, v80, v62
        v_add_u32 v80, {LDS_WQ}, v80
        s_lshl_b32 s{S_T0}, s{S_SW}, 1
        v_xor_b32 v81, s{S_T0}, v63
        v_lshlrev_b32 v81, 5, v81
        v_add_u32 v81, v81, v80
        s_add_u32 s{S_T0}, s{S_T0}, 1
        v_xor_b32 v82, s{S_T0}, v63
        v_lshlrev_b32 v82, 5, v82
        v_add_u32 v82, v82, v80
        v_and_b32 v56, 15, v1
        v_lshlrev_b32 v56, 12, v56
        v_lshlrev_b32 v60, 4, v59
        v_add_u32 v56, v56, v60
        """)
        A(f"s_waitcnt vmcnt({2 + 2*nst}) lgkmcnt(0)")
        self.stamp(13)
        self.lds_signal(LDS_CNT + 0, 124, 125)
        self.lds_wait(LDS_CNT + 0, 4, 124, 125, sleep=0)
        for s in range(4):
            A(f"ds_read_b128 {vr(64+4*s,4)}, v58 offset:{s*64}")
        for c in range(2):
            for s in range(4):
                r = 84 + (c * 4 + s) * 4
                A(f"ds_read_b64_tr_b16 {vr(r,2)}, v{81+c} offset:{s*8192}")
                A(f"ds_read_b64_tr_b16 {vr(r+2,2)}, v{81+c} offset:{s*8192+1024}")
        A(f"""
        s_lshl_b32 s{S_T0}, s{S_H}, 15
        s_lshl_b32 s{S_T1}, s{S_B}, 9
        s_add_u32 s{S_T0}, s{S_T0}, s{S_T1}
        s_lshl_b32 s{S_T1}, s{S_SW}, 7
        s_add_u32 s{S_T0}, s{S_T0}, s{S_T1}
        s_waitcnt lgkmcnt(0)
        """)
        for s in range(4):
            for c in range(2):
                r = 84 + (c * 4 + s) * 4
                acc = 116 + 4 * c
                src = "0" if s == 0 else vr(acc, 4)
                A(f"v_mfma_f32_16x16x32_bf16 {vr(acc,4)}, {vr(r,4)}, {vr(64+4*s,4)}, {src}")
        self.lds_signal(LDS_CNT + 4, 124, 125)
        A(f"""
        s_mov_b64 exec, s[{S_MJ8}:{S_MJ8+1}]
        buffer_store_dwordx4 v[116:119], v56, {srd(R_WS)}, s{S_T0} offen sc0 sc1
        buffer_store_dwordx4 v[120:123], v56, {srd(R_WS)}, s{S_T0} offen offset:64 sc0 sc1
        s_mov_b64 exec, -1
        s_lshl_b32 s{S_T0}, s{S_H}, 7
        s_add_u32 s{S_T0}, s{S_T0}, {WS_FLAG}
        s_lshl_b32 s{S_T1}, s{S_B}, 4
        s_lshl_b32 s{S_T2}, s{S_SW}, 2
        s_add_u32 s{S_T1}, s{S_T1}, s{S_T2}
        s_getreg_b32 s{S_XCC}, hwreg(HW_REG_XCC_ID)
        s_and_b32 s{S_XCC}, s{S_XCC}, 7
        s_lshl_b32 s{S_XCC}, s{S_XCC}, 24
        v_mov_b32 v58, s{S_T1}
        s_waitcnt vmcnt(0)
        v_readfirstlane_b32 s{S_TAG}, v126
        s_add_u32 s{S_TAG}, s{S_TAG}, 1
        s_add_u32 s{S_XCC}, s{S_XCC}, s{S_TAG}
        v_mov_b32 v59, s{S_XCC}
        s_mov_b64 exec, 1
        buffer_store_dword v59, v58, {srd(R_WS)}, s{S_T0} offen sc0 sc1
        s_mov_b64 exec, -1
        """)
        self.stamp(1)
        A(f"s_cmp_eq_u32 s{S_SW}, 0")
        A(f"s_cbranch_scc0 L_svc_done")
        lp = A.label(); ex = A.label()
        A(f"s_mov_b64 exec, 0xffffffff")
        A(f"s_mov_b32 s{S_CNT}, 0")
        A.place(lp)
        A(f"""
        buffer_load_dword v60, v3, {srd(R_WS)}, s{S_T0} offen {self.LP}
        s_waitcnt vmcnt(0)
        v_subrev_u32 v60, s{S_TAG}, v60
        v_and_b32 v60, 0xf8ffffff, v60
        v_cmp_ne_u32 vcc, 0, v60
        s_cbranch_vccz {ex}
        s_add_u32 s{S_CNT}, s{S_CNT}, 1
        s_cmp_gt_u32 s{S_CNT}, {SPIN}
        s_cbranch_scc0 {lp}
        """)
        A.place(ex)
        A("s_mov_b64 exec, -1")
        self.stamp(11)
        A(f"s_lshl_b32 s{S_T0}, s2, 12")
        for j in range(4):
            A(f"buffer_load_dwordx4 {vr(64+4*j,4)}, v2, {srd(R_WS)}, s{S_T0} offen offset:{j*1024} {self.LP}")
        A(f"""
        v_and_b32 v58, 31, v1
        v_lshlrev_b32 v58, 3, v58
        v_add_u32 v58, {LDS_Q}, v58
        s_waitcnt vmcnt(0)
        """)
        for e in range(0, 4, 2):
            A(f"v_pk_add_f32 {vr(64+e,2)}, {vr(64+e,2)}, {vr(68+e,2)}")
            A(f"v_pk_add_f32 {vr(72+e,2)}, {vr(72+e,2)}, {vr(76+e,2)}")
        for e in range(0, 4, 2):
            A(f"v_pk_add_f32 {vr(64+e,2)}, {vr(64+e,2)}, {vr(72+e,2)}")
        for e in range(4):
            A(f"v_mov_b32 v{68+e}, v{64+e}")
        for e in range(4):
            A(f"v_permlane32_swap_b32 v{64+e}, v{68+e}")
        for e in range(0, 4, 2):
            A(f"v_pk_add_f32 {vr(64+e,2)}, {vr(64+e,2)}, {vr(68+e,2)}")
        A(f"""
        v_cvt_pk_bf16_f32 v64, v64, v65
        v_cvt_pk_bf16_f32 v65, v66, v67
        ds_write_b64 v58, v[64:65]
        s_waitcnt lgkmcnt(0)
        """)
        self.lds_signal(LDS_CNT + 12, 124, 125)
        self.stamp(2)
        if self.debug:
            A(f"""
            v_and_b32 v58, 31, v1
            v_lshlrev_b32 v58, 3, v58
            s_lshl_b32 s{S_T0}, s2, 8
            s_add_u32 s{S_T0}, s{S_T0}, {WS_DBG}
            buffer_store_dwordx2 v[64:65], v58, {srd(R_WS)}, s{S_T0} offen
            """)
        lp = A.label(); ex = A.label()
        A(f"s_mov_b32 s{S_T0}, {WS_FLAG}")
        A(f"s_mov_b32 s{S_CNT}, 0")
        A.place(lp)
        for j in range(4):
            A(f"buffer_load_dwordx4 {vr(64+4*j,4)}, v2, {srd(R_WS)}, s{S_T0} offen offset:{j*1024} {self.LP}")
        A("s_waitcnt vmcnt(0)")
        for i in range(16):
            A(f"v_subrev_u32 v{64+i}, s{S_TAG}, v{64+i}")
        for i in range(16):
            A(f"v_and_b32 v{80+i}, 0xf8ffffff, v{64+i}")
        t = self.maxred(60, range(80, 96))
        A(f"""
        v_cmp_ne_u32 vcc, 0, v{t}
        s_cbranch_vccz {ex}
        s_add_u32 s{S_CNT}, s{S_CNT}, 1
        s_cmp_gt_u32 s{S_CNT}, {SPIN}
        s_cbranch_scc1 {ex}
        s_sleep 16
        s_branch {lp}
        """)
        A.place(ex)
        A(f"v_add_u32 v60, {LDS_XCC}, v3")
        for t in range(4):
            A(f"ds_write_b32 v60, v{64+4*t} offset:{t*256}")
        A("s_waitcnt lgkmcnt(0)")
        if self.pace:
            self.local_flag()
            self.controller(self.PK0, 13)
            A("s_barrier")
            A("s_barrier")
            self.controller(16, 29)
            A("s_branch L_join3")
        A.place("L_svc_done")
        A("s_barrier")
        A("s_barrier")
        A("s_branch L_join3")

    def controller(self, k0, k1):
        A = self.A
        lp = A.label(); lw = A.label(); lx = A.label(); lend = A.label()
        A(f"s_cmp_eq_u32 s{S_LOC}, 1")
        A(f"s_cbranch_scc0 {lend}")
        A(f"s_mov_b32 s{S_T0}, {k0}")
        A(f"v_mov_b32 v60, {LDS_BLK}")
        A(f"v_mov_b32 v61, {LDS_N}")
        A(f"v_mov_b32 v62, 1")
        A(f"s_lshl_b32 s{S_T3}, s{S_H}, 2")
        A(f"v_mov_b32 v63, s{S_T3}")
        A.place(lp)
        A(f"s_mov_b32 s{S_CNT}, 0")
        A.place(lw)
        A(f"ds_read_b32 v64, v60")
        A(f"s_waitcnt lgkmcnt(0)")
        A(f"v_readfirstlane_b32 s{S_T1}, v64")
        A(f"s_cmp_gt_u32 s{S_T1}, s{S_T0}")
        A(f"s_cbranch_scc1 {lx}")
        A(f"s_add_u32 s{S_CNT}, s{S_CNT}, 1")
        A(f"s_cmp_gt_u32 s{S_CNT}, {SPIN}")
        A(f"s_cbranch_scc1 {lx}")
        A(f"s_sleep 8")
        A(f"s_branch {lw}")
        A.place(lx)
        A(f"s_sub_u32 s{S_T1}, s{S_T1}, 1")
        A(f"s_min_u32 s{S_T0}, s{S_T1}, {k1}")
        A(f"s_lshl_b32 s{S_T2}, s{S_T0}, 10")
        A(f"s_lshl_b32 s{S_T4}, s{S_B}, 7")
        A(f"s_add_u32 s{S_T2}, s{S_T2}, s{S_T4}")
        A(f"s_add_u32 s{S_T2}, s{S_T2}, {WS_PROG}")
        A(f"s_mov_b64 exec, 1")
        A(f"buffer_store_dword v62, v63, {srd(R_WS)}, s{S_T2} offen")
        A(f"s_mov_b64 exec, 0xffffffff")
        A(f"buffer_load_dword v64, v3, {srd(R_WS)}, s{S_T2} offen {self.LP}")
        A(f"s_waitcnt vmcnt(0)")
        A(f"v_cmp_ne_u32 vcc, -1, v64")
        A(f"s_mov_b64 exec, -1")
        A(f"s_bcnt1_i32_b64 s{S_T4}, vcc")
        if self.GTH:
            lg = A.label()
            A(f"s_lshl_b32 s{S_T2}, s{S_T0}, 7")
            A(f"s_add_u32 s{S_T2}, s{S_T2}, {WS_GP}")
            A(f"s_cmp_eq_u32 s{S_T4}, {self.GM}")
            A(f"s_cbranch_scc0 {lg}")
            A(f"s_lshl_b32 s{S_T5}, s{S_B}, 2")
            A(f"v_mov_b32 v65, s{S_T5}")
            A(f"s_mov_b64 exec, 1")
            A(f"buffer_store_dword v62, v65, {srd(R_WS)}, s{S_T2} offen sc0 sc1")
            A(f"s_mov_b64 exec, -1")
            A.place(lg)
            A(f"s_mov_b64 exec, 0xff")
            A(f"buffer_load_dword v64, v3, {srd(R_WS)}, s{S_T2} offen {self.LP}")
            A(f"s_waitcnt vmcnt(0)")
            A(f"v_cmp_ne_u32 vcc, -1, v64")
            A(f"s_mov_b64 exec, -1")
            A(f"s_bcnt1_i32_b64 s{S_T2}, vcc")
        A(f"s_mov_b32 s{S_T5}, {self.NMIN}")
        for th in self.TH:
            A(f"s_cmp_gt_u32 s{S_T4}, {th}")
            A(f"s_addc_u32 s{S_T5}, s{S_T5}, 0")
        for th in self.GTH:
            A(f"s_cmp_ge_u32 s{S_T2}, {th}")
            A(f"s_addc_u32 s{S_T5}, s{S_T5}, 0")
        A(f"s_min_u32 s{S_T5}, s{S_T5}, {self.D}")
        A(f"v_mov_b32 v64, s{S_T5}")
        A(f"ds_write_b32 v61, v64")
        A(f"s_add_u32 s{S_T0}, s{S_T0}, 1")
        A(f"s_cmp_le_u32 s{S_T0}, {k1}")
        A(f"s_cbranch_scc1 {lp}")
        A(f"s_waitcnt lgkmcnt(0)")
        A.place(lend)

    RING = 64
    R = 32
    QF = 8
    VN = 200
    def slot(self, t): return self.RING + 4 * (t % self.R)
    def issue(self, t, which):
        A = self.A
        r = self.slot(t)
        A(f"buffer_load_dwordx4 {vr(r,4)}, v2, {srd(R_K if which == 'K' else R_V)}, s{S_OFF} offen {self.KP if which == 'K' else self.VP}")
        A(f"s_add_u32 s{S_OFF}, s{S_OFF}, 4096")
        if self.rot: A(f"s_and_b32 s{S_OFF}, s{S_OFF}, 0xfffff")

    def vwait(self):
        A = self.A
        if not self.pace and not self.NW and not (self.defer and self.D > self.N):
            A(f"s_waitcnt vmcnt({self.N-1})"); return
        L = A.label()
        lv = list(range(self.D, self.NMIN, -1))
        for n in lv:
            A(f"s_waitcnt vmcnt({n-1})")
            A(f"s_cmp_ge_u32 s{S_NCUR}, {n}")
            A(f"s_cbranch_scc1 {L}")
        A(f"s_waitcnt vmcnt({self.NMIN-1})")
        A.place(L)
    def blk_begin(self):
        if not self.pace: return
        A = self.A
        A(f"s_waitcnt lgkmcnt(0)")
        A(f"v_readfirstlane_b32 s{S_NCUR}, v{self.VN}")
        A(f"ds_read_b32 v{self.VN}, v{self.VN+1}")
    def blk_end(self):
        if not self.pace: return
        A = self.A
        L = A.label()
        A(f"v_add_u32 v{self.VN+2}, 1, v{self.VN+2}")
        A(f"s_cmp_eq_u32 s{S_SW}, 0")
        A(f"s_cbranch_scc0 {L}")
        A(f"ds_write_b32 v{self.VN+1}, v{self.VN+2} offset:-4".replace("offset:-4", "offset:0") if False else f"ds_write_b32 v{self.VN+3}, v{self.VN+2}")
        A.place(L)

    def k_block(self, t0, plan):
        A = self.A
        q = self.QF
        ACC = [12, 13, 14, 15]; B0, B1 = 16, 17; E = [18, 19, 20, 21]; M = 22
        MX = 24; SA = 25
        def reduce_group(c):
            a0, a1, a2, a3 = ACC
            e = E[c]
            A(f"v_add_f32_dpp v{B0}, v{a0}, v{a0} row_ror:8 row_mask:0xf bank_mask:0x3")
            A(f"v_add_f32_dpp v{B1}, v{a2}, v{a2} row_ror:8 row_mask:0xf bank_mask:0x3")
            A(f"v_add_f32_dpp v{B0}, v{a1}, v{a1} row_ror:8 row_mask:0xf bank_mask:0xc")
            A(f"v_add_f32_dpp v{B1}, v{a3}, v{a3} row_ror:8 row_mask:0xf bank_mask:0xc")
            A(f"v_add_f32_dpp v{e}, v{B0}, v{B0} row_half_mirror row_mask:0xf bank_mask:0x5")
            A(f"v_add_f32_dpp v{e}, v{B1}, v{B1} row_half_mirror row_mask:0xf bank_mask:0xa")
            A(f"v_add_f32_dpp v{e}, v{e}, v{e} quad_perm:[1,0,3,2] row_mask:0xf bank_mask:0xf")
            A(f"v_add_f32_dpp v{e}, v{e}, v{e} quad_perm:[2,3,0,1] row_mask:0xf bank_mask:0xf")
        self.blk_begin()
        for t in range(16):
            cnt, iss = plan(t0 + t)
            if cnt is None: self.vwait()
            else: A(f"s_waitcnt vmcnt({cnt})")
            if iss is not None:
                if iss[1] == 'V' and iss[0] == 0:
                    A(f"s_mov_b32 s{S_OFF}, s{S_ROT}")
                self.issue(iss[0], iss[1])
            r = self.slot(t0 + t)
            a = ACC[t % 4]
            A(f"v_dot2_f32_bf16 v{a}, v{r}, v{q}, 0")
            A(f"v_dot2_f32_bf16 v{a}, v{r+1}, v{q+1}, v{a}")
            A(f"v_dot2_f32_bf16 v{a}, v{r+2}, v{q+2}, v{a}")
            A(f"v_dot2_f32_bf16 v{a}, v{r+3}, v{q+3}, v{a}")
            if t % 4 == 3:
                reduce_group(t // 4)
        A(f"v_cndmask_b32 v{M}, v{E[0]}, v{E[1]}, s[{S_M1}:{S_M1+1}]")
        A(f"v_cndmask_b32 v{M}, v{M}, v{E[2]}, s[{S_M2}:{S_M2+1}]")
        A(f"v_cndmask_b32 v{M}, v{M}, v{E[3]}, s[{S_M3}:{S_M3+1}]")
        self.rnd_bf16(M, M)
        A(f"v_mul_f32 v{M}, 0x3db504f3, v{M}")
        self.rnd_bf16(M, M)
        A(f"ds_write_b32 v{SA}, v{M}")
        A(f"v_max_f32 v{MX}, v{MX}, v{M}")
        A(f"v_add_u32 v{SA}, 256, v{SA}")
        self.blk_end()

    def v_block(self, t0, plan, last=False):
        A = self.A
        P, PN, PA = 12, 13, 14
        MK = [16, 17, 18, 19]
        BS = [[20, 21, 22, 23], [24, 25, 26, 27]]
        ACC = 28
        A(f"s_waitcnt lgkmcnt(0)")
        A(f"v_mov_b32 v{P}, v{PN}")
        self.blk_begin()
        if not last:
            A(f"ds_read_b32 v{PN}, v{PA}")
            A(f"v_add_u32 v{PA}, 256, v{PA}")
        for t in range(16):
            cnt, iss = plan(t0 + t)
            if cnt is None: self.vwait()
            else: A(f"s_waitcnt vmcnt({cnt})")
            if iss is not None:
                self.issue(iss[0], iss[1])
            B = BS[t % 2]
            for j in range(4):
                A(f"v_and_b32_dpp v{B[j]}, v{P}, v{MK[j]} row_newbcast:{t} row_mask:0xf bank_mask:0xf")
            r = self.slot(t0 + t)
            A(f"v_mfma_f32_16x16x32_bf16 {vr(ACC,4)}, {vr(r,4)}, {vr(B[0],4)}, {vr(ACC,4)}")
        self.blk_end()

    def stream(self):
        A = self.A
        N, NP, PV, R = self.N, self.NP, self.PV, self.R
        A.place("L_stream")
        A.c("==== stream waves ====")
        A(f"""
        v_lshrrev_b32 v4, 3, v1
        v_and_b32 v5, 7, v1
        v_lshrrev_b32 v6, 4, v1
        v_and_b32 v6, 1, v6
        v_lshlrev_b32 v6, 1, v6
        v_xor_b32 v5, v5, v6
        s_and_b32 s{S_T0}, s{S_SW}, 1
        s_lshl_b32 s{S_T0}, s{S_T0}, 2
        v_xor_b32 v5, s{S_T0}, v5
        v_lshlrev_b32 v5, 4, v5
        s_waitcnt lgkmcnt(0)
        """)
        self.mk_srd(R_WS, S_WS, WS_SIZE)
        self.role_params()
        A(f"""
        s_lshl_b32 s{S_T0}, s{S_B}, 5
        s_add_u32 s{S_T0}, s{S_T0}, s{S_H}
        s_lshl_b32 s{S_T0}, s{S_T0}, 20
        """)
        self.mk_srd(R_K, S_K, 1 << 20, f"s{S_T0}")
        self.mk_srd(R_V, S_V, 1 << 20, f"s{S_T0}")
        A(f"""
        v_mul_lo_u32 v4, v4, s{S_PITCH}
        v_add_u32 v4, v4, v5
        s_lshl_b32 s{S_T0}, s{S_PITCH}, 3
        s_mul_i32 s{S_T1}, s{S_T0}, s{S_SW}
        s_lshl_b32 s{S_T0}, s{S_T0}, 2
        s_lshl_b32 s{S_T2}, s{S_SW}, 10
        s_mov_b32 s{S_T3}, 0
        s_barrier
        """)
        self.stamp(0)
        if self.stamps and self.stamps not in ("tail", "early", "svc"):
            A("s_getreg_b32 s4, hwreg(HW_REG_XCC_ID)")
            A(f"s_lshl_b32 s6, s{S_WG}, 3")
            A(f"s_add_u32 s6, s6, s{S_WAVE}")
            A(f"s_lshl_b32 s6, s6, 7")
            A(f"s_add_u32 s6, s6, {WS_DBG + 0x100000 + 31*4}")
            A(f"s_mov_b64 exec, 1")
            A(f"v_mov_b32 v254, s4")
            A(f"v_mov_b32 v255, 0")
            A(f"buffer_store_dword v254, v255, {srd(R_WS)}, s6 offen")
            A(f"s_mov_b64 exec, -1")
        lp1, lp2, ld = A.label(), A.label(), A.label()
        def dma_iter(wait):
            A(f"""
            s_mov_b32 m0, s{S_T2}
            s_waitcnt vmcnt({wait})
            buffer_load_dwordx4 v4, {srd(R_WT)}, s{S_T1} offen {self.WP} lds
            s_add_u32 s{S_T1}, s{S_T1}, s{S_T0}
            s_add_u32 s{S_T2}, s{S_T2}, 4096
            s_add_u32 s{S_T3}, s{S_T3}, 1
            s_cmp_eq_u32 s{S_T3}, s{S_JJ}
            s_cselect_b32 s{S_T4}, s{S_JA}, 0
            s_add_u32 s{S_T1}, s{S_T1}, s{S_T4}
            """)
        self.dma_iter = dma_iter
        A(f"s_cmp_eq_u32 s{S_J1}, 0")
        A(f"s_cbranch_scc1 {ld}")
        A.place(lp1)
        dma_iter(NP - 1)
        A(f"s_cmp_lt_u32 s{S_T3}, s{S_J1}")
        A(f"s_cbranch_scc1 {lp1}")
        A.place(ld)
        if self.rot:
            A(f"s_mul_i32 s{S_ROT}, s2, {self.rot}")
            A(f"s_and_b32 s{S_ROT}, s{S_ROT}, 255")
            A(f"s_lshl_b32 s{S_ROT}, s{S_ROT}, 12")
        else:
            A(f"s_mov_b32 s{S_ROT}, 0")
        A(f"s_lshl_b32 s{S_T5}, s{S_SW}, 10")
        A(f"s_add_u32 s{S_ROT}, s{S_ROT}, s{S_T5}")
        A(f"s_mov_b32 s{S_OFF}, s{S_ROT}")
        for t in range(R):
            A(f"s_waitcnt vmcnt({NP-1})")
            self.issue(t, 'K')
        self.stamp(15)
        ld2 = A.label()
        if self.defer:
            A(f"s_cmp_eq_u32 s{S_ROLE}, 0")
            A(f"s_cbranch_scc0 {ld2}")
        else:
            A(f"s_cmp_eq_u32 s{S_NJ}, 0")
            A(f"s_cbranch_scc1 {ld2}")
        self.lds_wait(LDS_CNT + 4, 4, 6, 7)
        A.place(lp2)
        dma_iter(NP - 1)
        A(f"s_cmp_lt_u32 s{S_T3}, s{S_NJ}")
        A(f"s_cbranch_scc1 {lp2}")
        A.place(ld2)
        A(f"s_mov_b32 s{S_DS}, s{S_T1}")
        A(f"s_mov_b32 s{S_DM}, s{S_T2}")
        A(f"s_mov_b32 s{S_DJ}, s{S_T3}")
        A(f"s_mov_b32 s{S_DST}, s{S_T0}")
        A(f"v_mov_b32 v204, v4")
        self.stamp(14)
        self.lds_wait(LDS_CNT + 12, 1, 6, 7)
        self.stamp(3)
        self.cstamp(20)
        A(f"""
        v_and_b32 v6, 15, v1
        v_lshlrev_b32 v6, 4, v6
        v_add_u32 v6, {LDS_Q}, v6
        ds_read_b128 v[8:11], v6
        v_mov_b32 v24, 0xff800000
        v_and_b32 v6, 3, v1
        v_lshlrev_b32 v6, 2, v6
        v_bfe_u32 v7, v1, 2, 1
        v_lshlrev_b32 v7, 1, v7
        v_bfe_u32 v5, v1, 3, 1
        v_or_b32 v7, v7, v5
        v_add_u32 v6, v6, v7
        v_and_b32 v7, 48, v1
        v_add_u32 v6, v6, v7
        v_lshlrev_b32 v6, 2, v6
        s_lshl_b32 s{S_T0}, s{S_SW}, 12
        s_add_u32 s{S_T0}, s{S_T0}, {LDS_SC}
        v_add_u32 v25, s{S_T0}, v6
        v_mov_b32 v201, {LDS_N}
        v_mov_b32 v202, 0
        v_mov_b32 v203, {LDS_BLK}
        ds_read_b32 v200, v201
        """)
        if self.defer and not self.pace:
            A(f"s_cmp_eq_u32 s{S_ROLE}, 0")
            A(f"s_cselect_b32 s{S_NCUR}, {self.NOK}, {self.N}")
        if self.NW:
            A(f"s_mov_b32 s{S_NCUR}, {self.NW[0]}")
            for w in range(1, 4):
                A(f"s_cmp_eq_u32 s{S_SW}, {w}")
                A(f"s_cselect_b32 s{S_NCUR}, {self.NW[w]}, s{S_NCUR}")
        A(f"""
        s_waitcnt lgkmcnt(0)
        """)
        D = self.D
        def plan_first(t):
            if t < R - D: return (R - 1 - t, None)
            return (None, (t + D, 'K'))
        def plan_mid(t): return (None, (t + D, 'K'))
        def plan_klast(t):
            if t + D < 256: return (None, (t + D, 'K'))
            return (None, (t + D - 256, 'V'))
        self.k_block(0, plan_first)
        self.k_block(16, plan_first)
        lp = A.label()
        A(f"s_mov_b32 s{S_T3}, 0")
        A.place(lp)
        self.k_block(32, plan_mid)
        self.k_block(48, plan_mid)
        A(f"s_add_u32 s{S_T3}, s{S_T3}, 1")
        A(f"s_cmp_lt_u32 s{S_T3}, 6")
        A(f"s_cbranch_scc1 {lp}")
        self.k_block(224, plan_mid)
        self.k_block(240, plan_klast)
        for t in range(D, PV):
            self.issue(t, 'V')
        self.stamp(4)
        MX, T = 24, 23
        for r in (8, 4, 2, 1):
            A(f"v_max_f32_dpp v{MX}, v{MX}, v{MX} row_ror:{r} row_mask:0xf bank_mask:0xf")
        A(f"""
        v_lshrrev_b32 v6, 4, v1
        v_lshlrev_b32 v6, 2, v6
        s_lshl_b32 s{S_T0}, s{S_SW}, 4
        v_add_u32 v6, s{S_T0}, v6
        v_add_u32 v7, {LDS_WM}, v6
        ds_write_b32 v7, v{MX}
        s_lshl_b32 s{S_T0}, s{S_SW}, 12
        s_add_u32 s{S_T0}, s{S_T0}, {LDS_SC}
        v_add_u32 v14, s{S_T0}, v3
        s_waitcnt lgkmcnt(0)
        """)
        for i in range(16):
            A(f"ds_read_b32 v{48+i}, v14 offset:{i*256}")
        A(f"""
        s_barrier
        v_mov_b32 v7, {LDS_WM}
        ds_read_b128 v[32:35], v7
        ds_read_b128 v[36:39], v7 offset:16
        ds_read_b128 v[40:43], v7 offset:32
        ds_read_b128 v[44:47], v7 offset:48
        s_mov_b32 s{S_T1}, 0x3fb8aa3b
        s_waitcnt lgkmcnt(0)
        """)
        A(f"v_max3_f32 v{MX}, v32, v33, v34")
        for i in range(35, 47, 2):
            A(f"v_max3_f32 v{MX}, v{MX}, v{i}, v{i+1}")
        A(f"v_max_f32 v{MX}, v{MX}, v47")
        for i in range(16):
            A(f"v_sub_f32 v{48+i}, v{48+i}, v{MX}")
        for i in range(16):
            A(f"v_mul_f32 v{48+i}, s{S_T1}, v{48+i}")
        for i in range(16):
            A(f"v_exp_f32 v{48+i}, v{48+i}")
        A(f"v_add_f32 v{T}, v48, v49")
        for i in range(2, 16):
            A(f"v_add_f32 v{T}, v{T}, v{48+i}")
        for r in (8, 4, 2, 1):
            A(f"v_add_f32_dpp v{T}, v{T}, v{T} row_ror:{r} row_mask:0xf bank_mask:0xf")
        A(f"""
        v_add_u32 v7, {LDS_WS}, v6
        ds_write_b32 v7, v{T}
        s_waitcnt lgkmcnt(0)
        s_barrier
        v_mov_b32 v7, {LDS_WS}
        ds_read_b128 v[32:35], v7
        ds_read_b128 v[36:39], v7 offset:16
        ds_read_b128 v[40:43], v7 offset:32
        ds_read_b128 v[44:47], v7 offset:48
        v_and_b32 v6, 15, v1
        v_lshrrev_b32 v7, 1, v6
        v_and_b32 v5, 1, v6
        v_lshlrev_b32 v5, 4, v5
        v_mov_b32 v4, 0xffff
        v_lshlrev_b32 v4, v5, v4
        """)
        for j in range(4):
            A(f"v_cmp_eq_u32 vcc, {j}, v7")
            A(f"v_cndmask_b32 v{16+j}, 0, v4, vcc")
        A("s_waitcnt lgkmcnt(0)")
        for i in range(0, 16, 2):
            A(f"v_add_f32 v{32+i}, v{32+i}, v{33+i}")
        for i in range(0, 16, 4):
            A(f"v_add_f32 v{32+i}, v{32+i}, v{34+i}")
        A(f"v_add_f32 v32, v32, v36")
        A(f"v_add_f32 v40, v40, v44")
        A(f"v_add_f32 v32, v32, v40")
        A(f"v_rcp_f32 v32, v32")
        for i in range(16):
            A(f"v_mul_f32 v{48+i}, v{48+i}, v32")
        for i in range(16):
            A(f"v_cvt_pk_bf16_f32 v{48+i}, v{48+i}, v{48+i}")
        for i in range(1, 16):
            A(f"ds_write_b32 v14, v{48+i} offset:{i*256}")
        A(f"""
        v_mov_b32 v13, v48
        v_add_u32 v14, 256, v14
        v_mov_b32 v28, 0
        v_mov_b32 v29, 0
        v_mov_b32 v30, 0
        v_mov_b32 v31, 0
        """)
        if self.defer and not self.pace:
            A(f"s_cmp_eq_u32 s{S_ROLE}, 0")
            A(f"s_cselect_b32 s{S_NCUR}, {self.NOV}, {self.N}")
        self.stamp(5)
        def plan_vfirst(t):
            if t < PV - D: return (PV - 1 - t, None)
            return (None, (t + D, 'V'))
        def plan_vmid(t): return (None, (t + D, 'V'))
        def plan_vlast(t):
            if t + D < 256: return (None, (t + D, 'V'))
            return (255 - t, None)
        assert PV == 16
        self.v_block(0, plan_vfirst)
        lp = A.label()
        A(f"s_mov_b32 s{S_T3}, 0")
        A.place(lp)
        self.v_block(16, plan_vmid)
        self.v_block(32, plan_vmid)
        A(f"s_add_u32 s{S_T3}, s{S_T3}, 1")
        A(f"s_cmp_lt_u32 s{S_T3}, 7")
        A(f"s_cbranch_scc1 {lp}")
        self.v_block(240, plan_vlast, last=True)
        A(f"""
        v_lshrrev_b32 v6, 4, v1
        v_lshlrev_b32 v6, 7, v6
        v_and_b32 v7, 15, v1
        v_lshlrev_b32 v7, 2, v7
        v_add_u32 v6, v6, v7
        s_lshl_b32 s{S_T0}, s{S_SW}, 9
        s_add_u32 s{S_T0}, s{S_T0}, {LDS_ORED}
        v_add_u32 v6, s{S_T0}, v6
        s_mov_b64 exec, s[{S_MJ8}:{S_MJ8+1}]
        ds_write_b32 v6, v28
        ds_write_b32 v6, v29 offset:32
        ds_write_b32 v6, v30 offset:64
        ds_write_b32 v6, v31 offset:96
        s_mov_b64 exec, -1
        s_waitcnt lgkmcnt(0)
        """)
        self.stamp(6)
        self.cstamp(21)
        A.place("L_join3")

    def tile_afrags(self, base):
        A = self.A
        A(f"""
        v_lshrrev_b32 v4, 4, v1
        v_and_b32 v5, 15, v1
        v_lshrrev_b32 v6, 2, v5
        v_and_b32 v5, 3, v5
        v_lshrrev_b32 v7, 1, v6
        v_and_b32 v8, 1, v4
        v_lshlrev_b32 v8, 1, v8
        v_or_b32 v7, v7, v8
        v_lshlrev_b32 v8, 3, v4
        v_add_u32 v8, v8, v6
        v_lshlrev_b32 v8, 7, v8
        v_lshlrev_b32 v5, 3, v5
        v_add_u32 v8, v8, v5
        s_lshl_b32 s{S_T0}, s{S_WAVE}, 14
        v_add_u32 v8, s{S_T0}, v8
        """)
        for cb in range(4):
            A(f"v_xor_b32 v{9+cb}, {cb}, v7")
            A(f"v_lshlrev_b32 v{9+cb}, 5, v{9+cb}")
            A(f"v_add_u32 v{9+cb}, v{9+cb}, v8")
        for s in range(4):
            for cb in range(4):
                r = base + (s * 4 + cb) * 4
                A(f"ds_read_b64_tr_b16 {vr(r,2)}, v{9+cb} offset:{s*4096}")
                A(f"ds_read_b64_tr_b16 {vr(r+2,2)}, v{9+cb} offset:{s*4096+512}")

    RW = 240
    def red_addrs(self):
        A = self.A
        RW = self.RW
        A(f"""
        v_and_b32 v4, 15, v1
        v_lshrrev_b32 v5, 4, v1
        s_lshl_b32 s{S_T0}, s{S_WAVE}, 11
        s_add_u32 s{S_T0}, s{S_T0}, {LDS_RED}
        v_lshlrev_b32 v6, 8, v4
        v_add_u32 v6, s{S_T0}, v6
        """)
        for cb in range(4):
            A(f"v_add_u32 v7, {4*cb}, v5")
            A(f"v_xor_b32 v7, v7, v4")
            A(f"v_lshlrev_b32 v7, 4, v7")
            A(f"v_add_u32 v{RW+cb}, v7, v6")
        A(f"""
        v_lshrrev_b32 v4, 2, v1
        v_xor_b32 v4, s{S_WAVE}, v4
        v_lshlrev_b32 v4, 4, v4
        v_and_b32 v5, 3, v1
        v_lshlrev_b32 v5, 2, v5
        v_add_u32 v4, v4, v5
        s_lshl_b32 s{S_T0}, s{S_WAVE}, 8
        s_add_u32 s{S_T0}, s{S_T0}, {LDS_RED}
        v_add_u32 v{RW+4}, s{S_T0}, v4
        """)

    def mfma16(self, abase, bregs, acc):
        A = self.A
        for s in range(4):
            for cb in range(4):
                r = abase + (s * 4 + cb) * 4
                a = acc + 4 * cb
                src = "0" if s == 0 else vr(a, 4)
                A(f"v_mfma_f32_16x16x32_bf16 {vr(a,4)}, {vr(r,4)}, {vr(bregs[s],4)}, {src}")

    def red_write(self, acc):
        A = self.A
        A(f"s_mov_b64 exec, s[{S_MJ8}:{S_MJ8+1}]")
        for cb in range(4):
            A(f"ds_write_b128 v{self.RW+cb}, {vr(acc+4*cb,4)}")
        A("s_mov_b64 exec, -1")
        A("s_waitcnt lgkmcnt(0)")

    def red_sum(self, nw, dst):
        A = self.A
        for v in range(nw):
            A(f"ds_read_b32 v{dst+v}, v{self.RW+4} offset:{v*2048}")
        A("s_waitcnt lgkmcnt(0)")
        regs = [dst + v for v in range(nw)]
        while len(regs) > 1:
            nxt = []
            for i in range(0, len(regs) - 1, 2):
                A(f"v_add_f32 v{regs[i]}, v{regs[i]}, v{regs[i+1]}")
                nxt.append(regs[i])
            if len(regs) % 2: nxt.append(regs[-1])
            regs = nxt

    def tail(self):
        A = self.A
        A("s_barrier")
        lskip = A.label()
        A(f"s_cmp_eq_u32 s{S_WAVE}, 0")
        A(f"s_cbranch_scc0 {lskip}")
        A(f"""
        v_lshlrev_b32 v4, 3, v1
        v_add_u32 v4, {LDS_ORED}, v4
        ds_read_b64 v[8:9], v4
        ds_read_b64 v[10:11], v4 offset:512
        ds_read_b64 v[12:13], v4 offset:1024
        ds_read_b64 v[14:15], v4 offset:1536
        s_lshl_b32 s{S_T0}, s{S_B}, 13
        s_lshl_b32 s{S_T1}, s{S_H}, 8
        s_add_u32 s{S_T0}, s{S_T0}, s{S_T1}
        s_add_u32 s{S_T0}, s{S_T0}, {WS_OB}
        s_waitcnt lgkmcnt(0)
        v_pk_add_f32 v[8:9], v[8:9], v[10:11]
        v_pk_add_f32 v[12:13], v[12:13], v[14:15]
        v_pk_add_f32 v[8:9], v[8:9], v[12:13]
        v_cvt_pk_bf16_f32 v8, v8, v9
        v_min_u32 v8, -2, v8
        """)
        self.quad_gather(8, 8)
        A(f"""
        s_mov_b64 exec, s[{S_MQ}:{S_MQ+1}]
        buffer_store_dwordx4 v[8:11], v3, {srd(R_WS)}, s{S_T0} offen sc0 sc1
        s_mov_b64 exec, -1
        """)
        A.place(lskip)
        self.stamp(7)
        if self.defer:
            lnd = A.label(); lp = A.label()
            A("s_barrier")
            A(f"s_cmp_lt_u32 s{S_WAVE}, 4")
            A(f"s_cbranch_scc1 {lnd}")
            A(f"s_cmp_ge_u32 s{S_DJ}, s{S_NJ}")
            A(f"s_cbranch_scc1 {lnd}")
            A(f"s_mov_b32 s{S_T1}, s{S_DS}")
            A(f"s_mov_b32 s{S_T2}, s{S_DM}")
            A(f"s_mov_b32 s{S_T3}, s{S_DJ}")
            A(f"s_mov_b32 s{S_T0}, s{S_DST}")
            A(f"v_mov_b32 v4, v204")
            lpd = A.label()
            A(f"s_cmp_eq_u32 s{S_ROLE}, 2")
            A(f"s_cbranch_scc1 {lpd}")
            A.place(lp)
            self.dma_iter(self.NT - 1)
            A(f"s_cmp_lt_u32 s{S_T3}, s{S_NJ}")
            A(f"s_cbranch_scc1 {lp}")
            A(f"s_branch {lnd}")
            A.place(lpd)
            self.dma_iter(self.NTD - 1)
            A(f"s_cmp_lt_u32 s{S_T3}, s{S_NJ}")
            A(f"s_cbranch_scc1 {lpd}")
            A.place(lnd)
        if self.stop_after == "attn":
            A("s_branch L_end")
        A(f"""
        s_cmp_eq_u32 s{S_ROLE}, 0
        s_cbranch_scc1 L_roleO
        s_cmp_eq_u32 s{S_ROLE}, 1
        s_cbranch_scc1 L_roleG
        s_cmp_eq_u32 s{S_ROLE}, 2
        s_cbranch_scc1 L_roleD
        s_branch L_roleF
        """)
        self.role_O()
        self.role_G()
        self.role_D()
        self.role_F()

    def role_O(self):
        A = self.A
        A.place("L_roleO")
        AB = 64
        A(f"s_lshr_b32 s{S_NJ}, s{S_H}, 1")
        A(f"s_and_b32 s{S_PITCH}, s{S_H}, 1")
        A(f"s_lshl_b32 s{S_T0}, s{S_B}, 1")
        A(f"s_add_u32 s{S_PITCH}, s{S_PITCH}, s{S_T0}")
        self.local_flag()
        self.mk_srd(R_X, S_X, 16384)
        A(f"""
        v_bfe_u32 v14, v1, 2, 3
        v_lshlrev_b32 v14, 11, v14
        v_and_b32 v15, 3, v1
        v_lshlrev_b32 v13, 3, v15
        v_add_u32 v13, v13, v14
        s_lshl_b32 s{S_T0}, s{S_PITCH}, 7
        s_lshl_b32 s{S_T1}, s{S_NJ}, 5
        s_add_u32 s{S_T0}, s{S_T0}, s{S_T1}
        buffer_load_dwordx2 v[28:29], v13, {srd(R_X)}, s{S_T0} offen
        s_add_u32 s{S_OFF}, s{S_T0}, {WS_H}
        v_lshrrev_b32 v15, 1, v15
        v_lshlrev_b32 v15, 4, v15
        v_add_u32 v14, v14, v15
        """)
        self.tile_afrags(AB)
        self.red_addrs()
        A(f"""
        v_bfe_u32 v4, v1, 2, 3
        v_and_b32 v5, 3, v1
        s_lshl_b32 s{S_T0}, s{S_WAVE}, 2
        v_add_u32 v5, s{S_T0}, v5
        v_xor_b32 v5, v5, v4
        v_lshlrev_b32 v5, 4, v5
        v_lshlrev_b32 v4, 8, v4
        v_add_u32 v4, v4, v5
        v_lshrrev_b32 v5, 5, v1
        v_lshlrev_b32 v5, 13, v5
        v_add_u32 v4, v4, v5
        v_add_u32 v19, {LDS_RED}, v4
        v_and_b32 v4, 31, v1
        v_lshlrev_b32 v13, 4, v4
        v_and_b32 v4, 15, v1
        v_lshlrev_b32 v4, 13, v4
        v_lshrrev_b32 v5, 4, v1
        v_lshlrev_b32 v5, 4, v5
        v_add_u32 v16, v4, v5
        s_lshl_b32 s{S_T0}, s{S_NJ}, 11
        s_lshl_b32 s{S_T1}, s{S_WAVE}, 8
        s_add_u32 s{S_T0}, s{S_T0}, s{S_T1}
        s_add_u32 s{S_T0}, s{S_T0}, {WS_OB}
        s_lshl_b32 s{S_T2}, s{S_PITCH}, 13
        s_add_u32 s{S_T2}, s{S_T2}, {WS_OP}
        s_lshl_b32 s{S_T1}, s{S_WAVE}, 11
        s_add_u32 s{S_T3}, s{S_T2}, s{S_T1}
        s_lshl_b32 s{S_T1}, s{S_NJ}, 9
        s_add_u32 s{S_T3}, s{S_T3}, s{S_T1}
        s_lshl_b32 s{S_T1}, s{S_NJ}, 11
        s_add_u32 s{S_T2}, s{S_T2}, s{S_T1}
        """)
        self.prepoll(f"buffer_load_dword v18, v16, {srd(R_WS)}, s{S_T0} offen {self.LP}", 18, mask=S_MJ8, sleep=2)
        loads = [f"buffer_load_dwordx4 {vr(32+4*s,4)}, v16, {srd(R_WS)}, s{S_T0} offen offset:{s*64} {self.LP}" for s in range(4)]
        self.poll_pipe(loads, range(32, 48), 17, mask=S_MJ8, depth=1, sleep=self.PS)
        self.stamp(8)
        A("s_waitcnt lgkmcnt(0)")
        self.mfma16(AB, [32, 36, 40, 44], 48)
        self.red_write(48)
        A("s_barrier")
        lr1 = A.label()
        A(f"s_cmp_ge_u32 s{S_WAVE}, 4")
        A(f"s_cbranch_scc1 {lr1}")
        for v in range(4):
            A(f"ds_read_b128 {vr(32+4*v,4)}, v19 offset:{v*2048}")
        A("s_waitcnt lgkmcnt(0)")
        for e in (0, 2):
            A(f"v_pk_add_f32 {vr(32+e,2)}, {vr(32+e,2)}, {vr(36+e,2)}")
            A(f"v_pk_add_f32 {vr(40+e,2)}, {vr(40+e,2)}, {vr(44+e,2)}")
        for e in (0, 2):
            A(f"v_pk_add_f32 {vr(32+e,2)}, {vr(32+e,2)}, {vr(40+e,2)}")
        for e in range(4):
            A(f"v_mov_b32 v{36+e}, v{32+e}")
        for e in range(4):
            A(f"v_permlane32_swap_b32 v{32+e}, v{36+e}")
        for e in (0, 2):
            A(f"v_pk_add_f32 {vr(32+e,2)}, {vr(32+e,2)}, {vr(36+e,2)}")
        for e in range(4):
            A(f"v_min_u32 v{32+e}, -2, v{32+e}")
        A("s_mov_b64 exec, 0xffffffff")
        self.store_sel(f"buffer_store_dwordx4 v[32:35], v13, {srd(R_WS)}, s{S_T3} offen")
        A("s_mov_b64 exec, -1")
        self.stamp(9)
        A("s_branch L_end")
        A.place(lr1)
        A(f"s_cmp_eq_u32 s{S_WAVE}, 4")
        A(f"s_cbranch_scc0 L_end")
        A(f"v_lshlrev_b32 v20, 16, v28")
        A(f"v_and_b32 v21, 0xffff0000, v28")
        A(f"v_lshlrev_b32 v22, 16, v29")
        A(f"v_and_b32 v23, 0xffff0000, v29")
        loads = [f"buffer_load_dwordx4 v[32:35], v2, {srd(R_WS)}, s{S_T2} offen {self.LP}",
                 f"buffer_load_dwordx4 v[36:39], v2, {srd(R_WS)}, s{S_T2} offen offset:1024 {self.LP}"]
        self.poll_pipe(loads, range(32, 40), 17, depth=1, sleep=0)
        self.stamp(9)
        for e in (0, 2):
            A(f"v_pk_add_f32 {vr(40+e,2)}, {vr(32+e,2)}, {vr(36+e,2)}")
        for e in range(4):
            A(f"v_mov_b32 v{44+e}, v{40+e}")
        for e in range(4):
            A(f"v_permlane32_swap_b32 v{40+e}, v{44+e}")
        for e in (0, 2):
            A(f"v_pk_add_f32 {vr(40+e,2)}, {vr(40+e,2)}, {vr(44+e,2)}")
        A(f"""
        v_cvt_pk_bf16_f32 v44, v40, v41
        v_cvt_pk_bf16_f32 v45, v42, v43
        v_lshlrev_b32 v40, 16, v44
        v_and_b32 v41, 0xffff0000, v44
        v_lshlrev_b32 v42, 16, v45
        v_and_b32 v43, 0xffff0000, v45
        v_pk_add_f32 v[40:41], v[40:41], v[20:21]
        v_pk_add_f32 v[42:43], v[42:43], v[22:23]
        v_cvt_pk_bf16_f32 v48, v40, v41
        v_cvt_pk_bf16_f32 v49, v42, v43
        v_min_u32 v48, -2, v48
        v_min_u32 v49, -2, v49
        v_mov_b32_dpp v50, v48 quad_perm:[1,1,3,3] row_mask:0xf bank_mask:0xf
        v_mov_b32_dpp v51, v49 quad_perm:[1,1,3,3] row_mask:0xf bank_mask:0xf
        s_mov_b64 exec, 0x55555555
        buffer_store_dwordx4 v[48:51], v14, {srd(R_WS)}, s{S_OFF} offen sc0 sc1
        s_mov_b64 exec, -1
        """)
        self.stamp(16)
        A("s_branch L_end")

    def role_G(self):
        A = self.A
        A.place("L_roleG")
        AB = 160
        self.local_flag()
        self.red_addrs()
        F, D = 96, 128
        A(f"""
        s_lshl_b32 s{S_T0}, s{S_WAVE}, 1
        v_xor_b32 v14, s{S_T0}, v1
        v_lshlrev_b32 v14, 4, v14
        s_lshl_b32 s{S_T0}, s{S_WAVE}, 11
        s_add_u32 s{S_T0}, s{S_T0}, {LDS_XN2}
        v_add_u32 v14, s{S_T0}, v14
        v_and_b32 v17, 7, v1
        v_lshrrev_b32 v18, 4, v1
        v_lshlrev_b32 v19, 11, v17
        s_lshl_b32 s{S_T0}, s{S_WAVE}, 8
        s_add_u32 s{S_T0}, s{S_T0}, {LDS_XN2}
        v_add_u32 v19, s{S_T0}, v19
        v_lshlrev_b32 v17, 1, v17
        """)
        for s_ in range(4):
            A(f"v_add_u32 v28, {4*s_}, v18")
            A(f"v_xor_b32 v28, v28, v17")
            A(f"v_lshlrev_b32 v28, 4, v28")
            A(f"v_add_u32 v{232+s_}, v28, v19")
        A(f"""
        s_sub_u32 s{S_T0}, s{S_H}, 8
        s_and_b32 s{S_T1}, s{S_T0}, 1
        s_mul_i32 s{S_T1}, s{S_T1}, 57344
        s_lshr_b32 s{S_T0}, s{S_T0}, 1
        s_mul_i32 s{S_T2}, s{S_B}, 7
        s_add_u32 s{S_T0}, s{S_T0}, s{S_T2}
        s_lshl_b32 s{S_T0}, s{S_T0}, 7
        s_add_u32 s{S_T0}, s{S_T0}, s{S_T1}
        s_mul_i32 s{S_T1}, s{S_WAVE}, 7168
        s_add_u32 s{S_T0}, s{S_T0}, s{S_T1}
        s_add_u32 s{S_OFF}, s{S_T0}, {WS_GU}
        v_lshlrev_b32 v15, 1, v1
        s_lshl_b32 s{S_T0}, s{S_WAVE}, 13
        s_add_u32 s{S_T0}, s{S_T0}, {WS_OB}
        v_lshlrev_b32 v17, 8, v1
        s_mov_b64 s[{S_EX}:{S_EX+1}], 0xffffffff
        """)
        self.sample_wait(False, 17, 18, self.HS)
        self.tile_afrags(AB)
        self.stamp(16)
        A(f"s_lshl_b32 s{S_T0}, s{S_WAVE}, 11")
        A(f"s_add_u32 s{S_T0}, s{S_T0}, {WS_H}")
        loads = [f"buffer_load_dwordx4 v[20:23], v2, {srd(R_WS)}, s{S_T0} offen {self.LP}",
                 f"buffer_load_dwordx4 v[24:27], v2, {srd(R_WS)}, s{S_T0} offen offset:1024 {self.LP}"]
        self.poll_pipe(loads, range(20, 28), 17, depth=1, sleep=self.GSL)
        self.stamp(8)
        for i in range(8):
            A(f"v_lshlrev_b32 v{F+2*i}, 16, v{20+i}")
            A(f"v_and_b32 v{F+2*i+1}, 0xffff0000, v{20+i}")
        S1, S2, T1, T2, VMB, VRS = 144, 146, 148, 149, 150, 152
        self.ln_stats(F, D, S1, S2, T1, T2, VMB, VRS)
        for i in range(8):
            self.ln_apply(48 + i, F + 2*i, VMB, VRS, 154 + 2 * (i % 2))
        A(f"ds_write_b128 v14, v[48:51]")
        A(f"ds_write_b128 v14, v[52:55] offset:1024")
        A("s_waitcnt lgkmcnt(0)")
        A("s_barrier")
        for s_ in range(4):
            A(f"ds_read_b128 {vr(32+4*s_,4)}, v{232+s_}")
        A("s_waitcnt lgkmcnt(0)")
        self.mfma16(AB, [32, 36, 40, 44], 48)
        self.red_write(48)
        A("s_waitcnt vmcnt(0)")
        A("s_barrier")
        self.red_sum(8, 20)
        self.rnd_bf16(20, 20)
        lup = A.label()
        A(f"s_bitcmp1_b32 s{S_H}, 0")
        A(f"s_cbranch_scc1 {lup}")
        A(f"""
        v_mul_f32 v17, v20, v20
        v_mul_f32 v18, v17, v20
        v_mul_f32 v18, 0x3d372713, v18
        v_add_f32 v18, v20, v18
        v_mul_f32 v18, 0x3f4c422a, v18
        v_mul_f32 v18, 0x4038aa3b, v18
        v_min_f32 v18, 0x42700000, v18
        v_exp_f32 v18, v18
        v_add_f32 v19, 1.0, v18
        v_rcp_f32 v19, v19
        v_mul_f32 v18, v18, v19
        v_mul_f32 v20, v20, v18
        """)
        A.place(lup)
        A(f"""
        v_mov_b32_dpp v17, v20 quad_perm:[1,1,3,3] row_mask:0xf bank_mask:0xf
        v_cvt_pk_bf16_f32 v20, v20, v17
        v_min_u32 v20, -2, v20
        """)
        self.even_gather(20, 20)
        A(f"s_mov_b64 exec, s[{S_ME}:{S_ME+1}]")
        self.store_sel(f"buffer_store_dwordx4 v[20:23], v15, {srd(R_WS)}, s{S_OFF} offen")
        A(f"s_mov_b64 exec, -1")
        self.stamp(9)
        A("s_branch L_end")

    def role_D(self):
        A = self.A
        A.place("L_roleD")
        AB = 160
        RW = 224
        A(f"""
        v_lshrrev_b32 v4, 1, v1
        v_xor_b32 v4, s{S_WAVE}, v4
        v_lshlrev_b32 v4, 4, v4
        v_and_b32 v5, 1, v1
        v_lshlrev_b32 v5, 3, v5
        v_add_u32 v4, v4, v5
        s_lshl_b32 s{S_T0}, s{S_WAVE}, 9
        s_add_u32 s{S_T0}, s{S_T0}, {LDS_RED}
        v_add_u32 v{RW+8}, s{S_T0}, v4
        s_lshl_b32 s{S_T0}, s{S_B}, 15
        s_lshl_b32 s{S_T1}, s{S_WAVE}, 12
        s_add_u32 s{S_T0}, s{S_T0}, s{S_T1}
        s_sub_u32 s{S_T1}, s{S_H}, 22
        s_lshl_b32 s{S_T1}, s{S_T1}, 9
        s_add_u32 s{S_T0}, s{S_T0}, s{S_T1}
        s_add_u32 s{S_OFF}, s{S_T0}, {WS_DP}
        v_lshlrev_b32 v15, 3, v1
        """)
        lno = A.label(); lgo = A.label()
        A(f"s_cmp_eq_u32 s{S_WAVE}, 7")
        A(f"s_cbranch_scc0 {lgo}")
        A("s_waitcnt vmcnt(0)")
        A("s_barrier")
        A(f"s_branch {lno}")
        A.place(lgo)
        A(f"""
        v_lshrrev_b32 v4, 4, v1
        v_and_b32 v5, 15, v1
        v_lshrrev_b32 v6, 2, v5
        v_and_b32 v5, 3, v5
        v_lshrrev_b32 v7, 1, v6
        v_and_b32 v8, 1, v4
        v_lshlrev_b32 v8, 1, v8
        v_or_b32 v7, v7, v8
        v_lshlrev_b32 v8, 3, v4
        v_add_u32 v8, v8, v6
        v_lshlrev_b32 v8, 7, v8
        v_lshlrev_b32 v5, 3, v5
        v_add_u32 v8, v8, v5
        s_lshl_b32 s{S_T0}, s{S_WAVE}, 13
        v_add_u32 v8, s{S_T0}, v8
        """)
        for cb in range(4):
            A(f"v_xor_b32 v{9+cb}, {cb}, v7")
            A(f"v_lshlrev_b32 v{9+cb}, 5, v{9+cb}")
            A(f"v_add_u32 v{9+cb}, v{9+cb}, v8")
        A(f"""
        v_and_b32 v4, 15, v1
        v_lshrrev_b32 v5, 4, v1
        s_lshl_b32 s{S_T0}, s{S_WAVE}, 12
        s_add_u32 s{S_T0}, s{S_T0}, {LDS_RED}
        v_lshlrev_b32 v6, 9, v4
        v_add_u32 v6, s{S_T0}, v6
        """)
        for cb in range(8):
            A(f"v_add_u32 v7, {4*cb}, v5")
            A(f"v_xor_b32 v7, v7, v4")
            A(f"v_lshlrev_b32 v7, 4, v7")
            A(f"v_add_u32 v{RW+cb}, v7, v6")
        A(f"""
        v_and_b32 v4, 7, v1
        v_mul_u32_u24 v4, 7168, v4
        v_bfe_u32 v5, v1, 3, 1
        v_lshlrev_b32 v5, 6, v5
        v_add_u32 v4, v4, v5
        v_lshrrev_b32 v5, 4, v1
        v_lshlrev_b32 v5, 4, v5
        v_add_u32 v16, v4, v5
        s_mul_i32 s{S_T0}, s{S_B}, 7
        s_add_u32 s{S_T0}, s{S_T0}, s{S_WAVE}
        s_lshl_b32 s{S_T0}, s{S_T0}, 7
        s_add_u32 s{S_T0}, s{S_T0}, {WS_GU}
        s_add_u32 s{S_T1}, s{S_T0}, 57344
        s_lshl_b32 s{S_T2}, s{S_WAVE}, 11
        s_add_u32 s{S_T2}, s{S_T2}, {WS_H}
        v_lshlrev_b32 v17, 5, v1
        """)
        A(f"s_mov_b32 s{S_T2}, s{S_T0}")
        A(f"s_mov_b32 s{S_T3}, s{S_T1}")
        self.sample_wait(True, 17, 18, self.HS)
        for s_ in range(2):
            for cb in range(8):
                r = AB + (s_ * 8 + cb) * 4
                off = s_ * 4096 + (cb // 4) * 57344
                A(f"ds_read_b64_tr_b16 {vr(r,2)}, v{9+cb%4} offset:{off}")
                A(f"ds_read_b64_tr_b16 {vr(r+2,2)}, v{9+cb%4} offset:{off+512}")
        self.stamp(16)
        loads = [f"buffer_load_dwordx4 v[32:35], v16, {srd(R_WS)}, s{S_T2} offen {self.LP}",
                 f"buffer_load_dwordx4 v[36:39], v16, {srd(R_WS)}, s{S_T3} offen {self.LP}"]
        self.poll_pipe(loads, range(32, 40), 17, depth=1, sleep=0)
        self.stamp(8)
        for i in range(0, 4, 2):
            g, u = 32 + i, 36 + i
            A(f"v_lshlrev_b32 v64, 16, v{g}")
            A(f"v_and_b32 v65, 0xffff0000, v{g}")
            A(f"v_lshlrev_b32 v66, 16, v{u}")
            A(f"v_and_b32 v67, 0xffff0000, v{u}")
            A(f"v_lshlrev_b32 v68, 16, v{g+1}")
            A(f"v_and_b32 v69, 0xffff0000, v{g+1}")
            A(f"v_lshlrev_b32 v70, 16, v{u+1}")
            A(f"v_and_b32 v71, 0xffff0000, v{u+1}")
            A(f"v_pk_mul_f32 v[64:65], v[64:65], v[66:67]")
            A(f"v_pk_mul_f32 v[68:69], v[68:69], v[70:71]")
            A(f"v_cvt_pk_bf16_f32 v{72+i}, v64, v65")
            A(f"v_cvt_pk_bf16_f32 v{73+i}, v68, v69")
        for e in range(4):
            A(f"v_mov_b32_dpp v{76+e}, v{72+e} row_shl:8 row_mask:0xf bank_mask:0xf")
        A("s_waitcnt lgkmcnt(0)")
        ACC = 88
        for cb in range(8):
            A(f"v_mfma_f32_16x16x32_bf16 {vr(ACC+4*cb,4)}, {vr(AB+cb*4,4)}, v[72:75], 0")
        for cb in range(8):
            A(f"v_mfma_f32_16x16x32_bf16 {vr(ACC+4*cb,4)}, {vr(AB+(8+cb)*4,4)}, v[76:79], {vr(ACC+4*cb,4)}")
        A(f"s_mov_b64 exec, s[{S_MJ8}:{S_MJ8+1}]")
        for cb in range(8):
            A(f"ds_write_b128 v{RW+cb}, {vr(ACC+4*cb,4)}")
        A("s_mov_b64 exec, -1")
        A("s_waitcnt lgkmcnt(0)")
        A.place(lno)
        A("s_barrier")
        for v in range(7):
            A(f"ds_read_b64 {vr(20+2*v,2)}, v{RW+8} offset:{v*4096}")
        A("s_waitcnt lgkmcnt(0)")
        A(f"""
        v_pk_add_f32 v[20:21], v[20:21], v[22:23]
        v_pk_add_f32 v[24:25], v[24:25], v[26:27]
        v_pk_add_f32 v[28:29], v[28:29], v[30:31]
        v_pk_add_f32 v[20:21], v[20:21], v[24:25]
        v_pk_add_f32 v[28:29], v[28:29], v[32:33]
        v_pk_add_f32 v[20:21], v[20:21], v[28:29]
        v_min_u32 v20, -2, v20
        v_min_u32 v21, -2, v21
        v_mov_b32_dpp v22, v20 quad_perm:[1,1,3,3] row_mask:0xf bank_mask:0xf
        v_mov_b32_dpp v23, v21 quad_perm:[1,1,3,3] row_mask:0xf bank_mask:0xf
        s_mov_b32 s{S_T2}, 0x55555555
        s_mov_b32 s{S_T3}, 0x55555555
        s_mov_b64 exec, s[{S_T2}:{S_T3}]
        buffer_store_dwordx4 v[20:23], v15, {srd(R_WS)}, s{S_OFF} offen sc0 sc1
        s_mov_b64 exec, -1
        """)
        self.stamp(9)
        A("s_branch L_end")

    def role_F(self):
        A = self.A
        A.place("L_roleF")
        self.mk_srd(R_OUT, S_OUT, 16384)
        A(f"""
        s_sub_u32 s{S_T2}, s{S_H}, 30
        s_lshl_b32 s{S_T0}, s{S_B}, 1
        s_add_u32 s{S_T2}, s{S_T2}, s{S_T0}
        v_lshrrev_b32 v4, 4, v1
        v_lshlrev_b32 v4, 15, v4
        v_and_b32 v5, 15, v1
        v_lshlrev_b32 v6, 4, v5
        v_add_u32 v16, v4, v6
        v_lshlrev_b32 v15, 3, v5
        s_lshl_b32 s{S_T0}, s{S_WAVE}, 12
        s_lshl_b32 s{S_T1}, s{S_T2}, 8
        s_add_u32 s{S_T0}, s{S_T0}, s{S_T1}
        s_add_u32 s{S_T0}, s{S_T0}, {WS_DP}
        s_add_u32 s{S_T1}, s{S_T0}, 131072
        s_lshl_b32 s{S_PITCH}, s{S_WAVE}, 11
        s_lshl_b32 s{S_T3}, s{S_T2}, 7
        s_add_u32 s{S_PITCH}, s{S_PITCH}, s{S_T3}
        s_add_u32 s{S_T2}, s{S_PITCH}, {WS_H}
        s_mul_i32 s{S_T3}, s{S_WAVE}, 7168
        s_add_u32 s{S_T3}, s{S_T3}, {WS_GU}
        v_lshlrev_b32 v17, 7, v1
        s_mov_b32 s{S_EX}, -1
        s_mov_b32 s{S_EX+1}, 0x00ffffff
        """)
        self.sample_wait(True, 17, 18, self.HS)
        self.stamp(16)
        loads = [f"buffer_load_dwordx4 v[32:35], v16, {srd(R_WS)}, s{S_T0} offen {self.LP}",
                 f"buffer_load_dwordx4 v[36:39], v16, {srd(R_WS)}, s{S_T1} offen {self.LP}",
                 f"buffer_load_dwordx2 v[40:41], v15, {srd(R_WS)}, s{S_T2} offen {self.LP}"]
        self.poll_pipe(loads, range(32, 42), 17, depth=1, sleep=self.FSL)
        self.stamp(8)
        A(f"""
        v_pk_add_f32 v[20:21], v[32:33], v[36:37]
        v_pk_add_f32 v[22:23], v[34:35], v[38:39]
        """)
        for sw in ("v_permlane16_swap_b32", "v_permlane32_swap_b32"):
            for e in range(4):
                A(f"v_mov_b32 v{24+e}, v{20+e}")
            for e in range(4):
                A(f"{sw} v{20+e}, v{24+e}")
            A(f"v_pk_add_f32 v[20:21], v[20:21], v[24:25]")
            A(f"v_pk_add_f32 v[22:23], v[22:23], v[26:27]")
        A(f"""
        v_cvt_pk_bf16_f32 v24, v20, v21
        v_cvt_pk_bf16_f32 v25, v22, v23
        v_lshlrev_b32 v20, 16, v24
        v_and_b32 v21, 0xffff0000, v24
        v_lshlrev_b32 v22, 16, v25
        v_and_b32 v23, 0xffff0000, v25
        v_lshlrev_b32 v24, 16, v40
        v_and_b32 v25, 0xffff0000, v40
        v_lshlrev_b32 v26, 16, v41
        v_and_b32 v27, 0xffff0000, v41
        v_pk_add_f32 v[20:21], v[20:21], v[24:25]
        v_pk_add_f32 v[22:23], v[22:23], v[26:27]
        v_cvt_pk_bf16_f32 v20, v20, v21
        v_cvt_pk_bf16_f32 v21, v22, v23
        s_mov_b64 exec, 0xffff
        buffer_store_dwordx2 v[20:21], v15, {srd(R_OUT)}, s{S_PITCH} offen
        s_mov_b64 exec, -1
        """)
        lne = A.label()
        A(f"""
        s_cmp_eq_u32 s2, 240
        s_cbranch_scc0 {lne}
        s_cmp_eq_u32 s{S_WAVE}, 0
        s_cbranch_scc0 {lne}
        v_mov_b32 v20, 0
        v_mov_b32 v21, s{S_TAG}
        s_mov_b32 s{S_T1}, {WS_EPOCH}
        s_mov_b64 exec, 1
        buffer_store_dword v21, v20, {srd(R_WS)}, s{S_T1} offen sc0 sc1
        s_mov_b64 exec, -1
        """)
        A.place(lne)
        self.stamp(9)

    def build(self):
        A = self.A
        self.entry()
        self.service()
        self.stream()
        self.tail()
        A.place("L_end")
        if self.stamps in ("tail", "early", "svc"):
            A("s_cmp_ge_u32 s2, 256")
            A("s_cbranch_scc1 L_end2")
            A("s_memrealtime s[18:19]")
            A("s_waitcnt lgkmcnt(0)")
            A(f"s_lshl_b32 s3, s{S_WG}, 3")
            A(f"s_add_u32 s3, s3, s{S_WAVE}")
            A(f"s_lshl_b32 s3, s3, 7")
            A(f"s_add_u32 s3, s3, {WS_DBG + 0x100000}")
            A(f"s_mov_b64 exec, 1")
            A(f"v_mov_b32 v255, 0")
            A(f"v_mov_b32 v254, s18")
            A(f"v_mov_b32 v255, 0")
            A(f"buffer_store_dword v254, v255, {srd(R_WS)}, s3 offen offset:120")
            A("s_getreg_b32 s16, hwreg(HW_REG_XCC_ID)")
            A(f"v_mov_b32 v254, s16")
            A(f"buffer_store_dword v254, v255, {srd(R_WS)}, s3 offen offset:124")
            for idx, j in self.LIGHT.items():
                A(f"v_mov_b32 v254, s{4+2*j}")
                A(f"buffer_store_dword v254, v255, {srd(R_WS)}, s3 offen offset:{idx*4}")
            A.place("L_end2")
        A("s_endpgm")
        A.footer(256, 102, 256)
        A.fix_hazards()
        return A.text()

if __name__ == "__main__":
    import argparse
    ap = argparse.ArgumentParser()
    ap.add_argument("-o", default="main.s")
    ap.add_argument("--N", type=int, default=5)
    ap.add_argument("--NP", type=int, default=8)
    ap.add_argument("--LP", default="sc1")
    ap.add_argument("--PD", type=int, default=1)
    ap.add_argument("--HG", type=int, default=48)
    ap.add_argument("--HD", type=int, default=64)
    ap.add_argument("--HS", type=int, default=2)
    ap.add_argument("--nolocal", action="store_true")
    ap.add_argument("--pace", action="store_true")
    ap.add_argument("--rot", type=int, default=0)
    ap.add_argument("--defer", action="store_true")
    ap.add_argument("--JU", type=int, default=8)
    ap.add_argument("--NOK", type=int, default=6)
    ap.add_argument("--NOV", type=int, default=5)
    ap.add_argument("--NT", type=int, default=16)
    ap.add_argument("--NTD", type=int, default=4)
    ap.add_argument("--NW", default=None)
    ap.add_argument("--NMIN", type=int, default=4)
    ap.add_argument("--GTH", default="")
    ap.add_argument("--GM", type=int, default=16)
    ap.add_argument("--DMAX", type=int, default=7)
    ap.add_argument("--TH", default="64,192,240")
    ap.add_argument("--GSL", type=int, default=1)
    ap.add_argument("--FSL", type=int, default=1)
    ap.add_argument("--KP", default="nt")
    ap.add_argument("--VP", default="nt")
    ap.add_argument("--WP", default="nt")
    ap.add_argument("--PS", type=int, default=1)
    ap.add_argument("--debug", action="store_true")
    ap.add_argument("--stamps", default=None)
    ap.add_argument("--stop", default=None)
    a = ap.parse_args()
    g = Gen(N=a.N, NP=a.NP, LP=a.LP, PD=a.PD, PS=a.PS, HG=a.HG, HD=a.HD, HS=a.HS, nolocal=a.nolocal, pace=a.pace, GTH=tuple(int(x) for x in a.GTH.split(',') if x), GM=a.GM, DMAX=a.DMAX, rot=a.rot, defer=a.defer, JU=a.JU, NOK=a.NOK, NOV=a.NOV, NT=a.NT, NTD=a.NTD, NW=(tuple(int(x) for x in a.NW.split(',')) if a.NW else None), NMIN=a.NMIN, TH=tuple(int(x) for x in a.TH.split(',')), GSL=a.GSL, FSL=a.FSL, KP=a.KP, VP=a.VP, WP=a.WP, debug=a.debug, stamps=a.stamps, stop_after=a.stop)
    open(a.o, "w").write(g.build())
```

```python
import sys
from asmlib import *

LDS_WQ = 98304
LDS_SC = 131072
LDS_MISC = 147456
LDS_XN = LDS_MISC
LDS_Q = LDS_MISC + 2304
LDS_CNT = LDS_MISC + 2560
LDS_WM = LDS_MISC + 2624
LDS_WS = LDS_MISC + 2688
LDS_ORED = LDS_MISC + 4096
LDS_XCC = LDS_MISC + 8192
LDS_BLK = LDS_MISC + 2576
LDS_N = LDS_MISC + 2580
LDS_RED = LDS_SC
LDS_XN2 = LDS_MISC
LDS_BYTES = 163840

WS_QP = 0x000000
WS_SLOT = 0x100000
WS_OB = WS_SLOT + 0x00000
WS_OP = WS_SLOT + 0x10000
WS_H = WS_SLOT + 0x30000
WS_GU = WS_SLOT + 0x34000
WS_DP = WS_SLOT + 0x50000
WS_C2 = WS_SLOT + 0x90000
WS_C3 = WS_SLOT + 0x90100
WS_PROG = WS_SLOT + 0xA0000
WS_GP = WS_SLOT + 0xB0000
WS_BIAS = WS_SLOT + 0xC0000
WS_FLAG = 0x200000
WS_EPOCH = 0x210000
WS_DBG = 0x300000
WS_SIZE = 0x600000
SPIN = 1 << 20

S_WG = 2
S_X, S_K, S_V, S_WQ, S_WO, S_BX, S_WG_, S_WU, S_WD, S_OUT, S_DBG, S_WS = 16, 18, 20, 22, 24, 26, 28, 30, 32, 34, 36, 38
R_K, R_V, R_X, R_WQ, R_WT, R_WS, R_OUT = 40, 44, 48, 52, 56, 60, 68
S_WAVE, S_H, S_B, S_SW = 72, 73, 74, 75
S_T0, S_T1, S_T2, S_T3, S_T4, S_T5 = 76, 77, 78, 79, 80, 81
S_OFF, S_CNT, S_PITCH, S_NJ, S_ROLE = 82, 83, 84, 85, 86
S_M1, S_M2, S_M3 = 88, 90, 92
S_MJ8 = 94
S_EX = 96
S_TAG = 98
S_MQ = 64
S_JJ = 100
S_ROT = 50
S_J1 = 51
S_DS, S_DM, S_DJ, S_DST = 52, 53, 54, 55
S_NCUR = 3
S_JA = 101
S_LOC = 87
S_XCC = 99
S_ME = 66
S_PM = 40
def srd(r): return f"s[{r}:{r+3}]"
def vr(a, n): return f"v[{a}:{a+n-1}]"

class Gen:
    def __init__(self, N=5, NP=8, PV=16, LP='sc1', PD=1, PS=1, HG=64, HD=64, HS=4, nolocal=False, rot=0, defer=False, JU=8, NOK=6, NOV=5, NT=16, NTD=4, pace=False, NW=None, NMIN=4, TH=(64, 192, 240), GTH=(), GM=16, DMAX=7, bias=False, GH=6, GL=2, GSL=1, FSL=1, KP='nt', VP='nt', WP='nt', debug=False, stamps=False, stop_after=None):
        self.A = Asm()
        self.N, self.NP, self.PV, self.LP = N, NP, PV, LP
        self.debug, self.stamps, self.stop_after = debug, stamps, stop_after
        self.OSLEEP, self.GSLEEP, self.DSLEEP = 1, 0, 0
        self.PD, self.PS = PD, PS
        self.nolocal = nolocal
        self.rot = rot
        self.defer, self.JU, self.NOK, self.NOV, self.NT = defer, (JU if defer else 24), NOK, NOV, NT
        self.NTD = NTD
        self.pace = pace
        self.GTH, self.GM = GTH, GM
        self.bias, self.GH, self.GL, self.NBASE = bias, GH, GL, NMIN
        self.D = min(NMIN + len(TH) + (1 if bias else 0), DMAX) if pace else N
        if bias and GL > 0: NMIN = NMIN - 1
        self.NW = NW
        if defer and not pace: self.D = max(N, NOK, NOV); NMIN = min(N, NOK, NOV)
        if NW:
            self.D = max(NW); NMIN = min(NW)
        self.NMIN, self.TH, self.PK0 = NMIN, TH, 2
        self.GSL, self.FSL = GSL, FSL
        self.KP, self.VP, self.WP = KP, VP, WP
        self.HG, self.HD, self.HS = HG, HD, HS

    def mk_srd(self, r, ptr, size, add_lo=None):
        A = self.A
        if add_lo is None:
            A(f"s_mov_b32 s{r}, s{ptr}")
            A(f"s_mov_b32 s{r+1}, s{ptr+1}")
        else:
            A(f"s_add_u32 s{r}, s{ptr}, {add_lo}")
            A(f"s_addc_u32 s{r+1}, s{ptr+1}, 0")
        A(f"s_mov_b32 s{r+2}, {size}")
        A(f"s_mov_b32 s{r+3}, 0x20000")

    def lds_signal(self, off, va, vd):
        A = self.A
        A(f"s_mov_b64 exec, 1")
        A(f"v_mov_b32 v{va}, {off}")
        A(f"v_mov_b32 v{vd}, 1")
        A(f"ds_add_u32 v{va}, v{vd}")
        A(f"s_mov_b64 exec, -1")

    def lds_wait(self, off, val, va, vd, sleep=1):
        A = self.A
        lp = A.label(); ex = A.label()
        A(f"v_mov_b32 v{va}, {off}")
        A(f"s_mov_b32 s{S_CNT}, 0")
        A.place(lp)
        A(f"ds_read_b32 v{vd}, v{va}")
        A(f"s_waitcnt lgkmcnt(0)")
        A(f"v_readfirstlane_b32 s{S_T5}, v{vd}")
        A(f"s_cmp_ge_u32 s{S_T5}, {val}")
        A(f"s_cbranch_scc1 {ex}")
        A(f"s_add_u32 s{S_CNT}, s{S_CNT}, 1")
        A(f"s_cmp_gt_u32 s{S_CNT}, {SPIN*4}")
        A(f"s_cbranch_scc1 {ex}")
        if sleep: A(f"s_sleep {sleep}")
        A(f"s_branch {lp}")
        A.place(ex)

    def allreduce2(self, a, b, ta, tb, op="v_add_f32"):
        A = self.A
        for r in (8, 4, 2, 1):
            A(f"{op}_dpp v{a}, v{a}, v{a} row_ror:{r} row_mask:0xf bank_mask:0xf")
            A(f"{op}_dpp v{b}, v{b}, v{b} row_ror:{r} row_mask:0xf bank_mask:0xf")
        for sw in ("v_permlane16_swap_b32", "v_permlane32_swap_b32"):
            A(f"v_mov_b32 v{ta}, v{a}")
            A(f"v_mov_b32 v{tb}, v{b}")
            A(f"{sw} v{a}, v{ta}")
            A(f"{sw} v{b}, v{tb}")
            A(f"{op} v{a}, v{a}, v{ta}")
            A(f"{op} v{b}, v{b}, v{tb}")

    def rnd_bf16(self, d, s):
        A = self.A
        A(f"v_cvt_pk_bf16_f32 v{d}, v{s}, v{s}")
        A(f"v_lshlrev_b32 v{d}, 16, v{d}")

    def ln_stats(self, F, D, s1, s2, t1, t2, vmb, vrs):
        A = self.A
        A(f"v_readfirstlane_b32 s{S_T4}, v{F}")
        for i in range(0, 16, 2):
            A(f"v_pk_add_f32 {vr(D+i,2)}, {vr(F+i,2)}, s[{S_T4}:{S_T4+1}] op_sel_hi:[1,0] neg_lo:[0,1] neg_hi:[0,1]")
        A(f"v_pk_add_f32 {vr(s1,2)}, {vr(D,2)}, {vr(D+2,2)}")
        A(f"v_pk_mul_f32 {vr(s2,2)}, {vr(D,2)}, {vr(D,2)}")
        A(f"v_pk_fma_f32 {vr(s2,2)}, {vr(D+2,2)}, {vr(D+2,2)}, {vr(s2,2)}")
        for i in range(4, 16, 2):
            A(f"v_pk_add_f32 {vr(s1,2)}, {vr(s1,2)}, {vr(D+i,2)}")
            A(f"v_pk_fma_f32 {vr(s2,2)}, {vr(D+i,2)}, {vr(D+i,2)}, {vr(s2,2)}")
        A(f"v_add_f32 v{s1}, v{s1}, v{s1+1}")
        A(f"v_add_f32 v{s2}, v{s2}, v{s2+1}")
        self.allreduce2(s1, s2, t1, t2)
        A(f"v_mul_f32 v{s1}, 0x3a800000, v{s1}")
        A(f"v_mul_f32 v{s2}, 0x3a800000, v{s2}")
        A(f"v_add_f32 v{vmb}, s{S_T4}, v{s1}")
        A(f"v_fma_f32 v{vrs}, -v{s1}, v{s1}, v{s2}")
        A(f"v_max_f32 v{vrs}, 0, v{vrs}")
        A(f"v_cvt_pk_bf16_f32 v{vmb}, v{vmb}, v{vrs}")
        A(f"v_and_b32 v{vrs}, 0xffff0000, v{vmb}")
        A(f"v_lshlrev_b32 v{vmb}, 16, v{vmb}")
        A(f"v_add_f32 v{vrs}, 0x3727c5ac, v{vrs}")
        self.rnd_bf16(vrs, vrs)
        A(f"v_sqrt_f32 v{vrs}, v{vrs}")
        self.rnd_bf16(vrs, vrs)
        A(f"v_rcp_f32 v{vrs}, v{vrs}")

    def ln_apply(self, d, f, vmb, vrs, t):
        A = self.A
        A(f"v_pk_add_f32 {vr(t,2)}, {vr(f,2)}, {vr(vmb,2)} op_sel_hi:[1,0] neg_lo:[0,1] neg_hi:[0,1]")
        A(f"v_cvt_pk_bf16_f32 v{t}, v{t}, v{t+1}")
        A(f"v_and_b32 v{t+1}, 0xffff0000, v{t}")
        A(f"v_lshlrev_b32 v{t}, 16, v{t}")
        A(f"v_pk_mul_f32 {vr(t,2)}, {vr(t,2)}, {vr(vrs,2)} op_sel_hi:[1,0]")
        A(f"v_cvt_pk_bf16_f32 v{d}, v{t}, v{t+1}")

    LIGHT_TAIL = {0: 0, 6: 1, 7: 2, 16: 3, 8: 4, 9: 5}
    LIGHT_EARLY = {0: 0, 15: 1, 3: 2, 4: 3, 14: 4, 6: 5}
    LIGHT_SVC = {0: 0, 13: 1, 1: 2, 11: 3, 2: 4, 12: 5}
    LIGHT_ENTRY = {0: 0, 10: 1, 12: 2, 13: 3, 1: 4, 29: 5}
    @property
    def LIGHT(self): return {"tail": self.LIGHT_TAIL, "early": self.LIGHT_EARLY, "svc": self.LIGHT_SVC, "entry": self.LIGHT_ENTRY}[self.stamps]
    def stamp(self, idx):
        if self.stamps in ("tail", "early", "svc", "entry"):
            if idx in self.LIGHT:
                j = 4 + 2 * self.LIGHT[idx]
                self.A(f"s_memrealtime s[{j}:{j+1}]")
            return
        if not self.stamps: return
        A = self.A
        A(f"s_memrealtime s[4:5]")
        A(f"s_waitcnt lgkmcnt(0)")
        A(f"s_lshl_b32 s6, s{S_WG}, 3")
        A(f"s_add_u32 s6, s6, s{S_WAVE}")
        A(f"s_lshl_b32 s6, s6, 7")
        A(f"s_add_u32 s6, s6, {WS_DBG + 0x100000 + idx*4}")
        A(f"s_mov_b64 s[8:9], exec")
        A(f"s_mov_b64 exec, 1")
        A(f"v_mov_b32 v254, s4")
        A(f"v_mov_b32 v255, 0")
        A(f"buffer_store_dword v254, v255, {srd(R_WS)}, s6 offen")
        A(f"s_mov_b64 exec, s[8:9]")

    def stampval(self, idx, sreg):
        if not self.stamps or self.stamps in ("tail", "early", "svc", "entry"): return
        A = self.A
        A(f"s_lshl_b32 s6, s{S_WG}, 3")
        A(f"s_add_u32 s6, s6, s{S_WAVE}")
        A(f"s_lshl_b32 s6, s6, 7")
        A(f"s_add_u32 s6, s6, {WS_DBG + 0x100000 + idx*4}")
        A(f"s_mov_b64 s[8:9], exec")
        A(f"s_mov_b64 exec, 1")
        A(f"v_mov_b32 v254, s{sreg}")
        A(f"v_mov_b32 v255, 0")
        A(f"buffer_store_dword v254, v255, {srd(R_WS)}, s6 offen")
        A(f"s_mov_b64 exec, s[8:9]")

    def cstamp(self, idx):
        if not self.stamps or self.stamps in ("tail", "early", "svc", "entry"): return
        A = self.A
        A(f"s_memtime s[10:11]")
        A(f"s_waitcnt lgkmcnt(0)")
        self.stampval(idx, 10)

    def quad_gather(self, d, src):
        A = self.A
        A(f"v_mov_b32_dpp v{d+1}, v{src} quad_perm:[1,1,1,1] row_mask:0xf bank_mask:0xf")
        A(f"v_mov_b32_dpp v{d+2}, v{src} quad_perm:[2,2,2,2] row_mask:0xf bank_mask:0xf")
        A(f"v_mov_b32_dpp v{d+3}, v{src} quad_perm:[3,3,3,3] row_mask:0xf bank_mask:0xf")
        if d != src: A(f"v_mov_b32 v{d}, v{src}")
    def even_gather(self, d, src):
        A = self.A
        A(f"v_mov_b32_dpp v{d+1}, v{src} row_shl:2 row_mask:0xf bank_mask:0xf")
        A(f"v_mov_b32_dpp v{d+2}, v{src} row_shl:4 row_mask:0xf bank_mask:0xf")
        A(f"v_mov_b32_dpp v{d+3}, v{src} row_shl:6 row_mask:0xf bank_mask:0xf")
        if d != src: A(f"v_mov_b32 v{d}, v{src}")

    def hint_add(self, off, va, vd):
        A = self.A
        A(f"v_mov_b32 v{va}, {off}")
        A(f"v_mov_b32 v{vd}, 1")
        A(f"s_mov_b64 exec, 1")
        A(f"buffer_atomic_add v{vd}, v{va}, {srd(R_WS)}, 0 offen sc1")
        A(f"s_mov_b64 exec, -1")
    def hint_wait(self, off, target, va, vd, sleep):
        A = self.A
        lp = A.label(); ex = A.label()
        A(f"s_cmp_eq_u32 s{S_WAVE}, 0")
        A(f"s_cbranch_scc0 {ex}")
        A(f"v_mov_b32 v{va}, {off}")
        A(f"s_mov_b32 s{S_CNT}, 0")
        A(f"s_mov_b64 exec, 1")
        A.place(lp)
        A(f"buffer_load_dword v{vd}, v{va}, {srd(R_WS)}, 0 offen {self.LP}")
        A("s_waitcnt vmcnt(0)")
        A(f"v_readfirstlane_b32 s{S_T5}, v{vd}")
        A(f"s_add_u32 s{S_T5}, s{S_T5}, 1")
        A(f"s_cmp_ge_u32 s{S_T5}, {target}")
        A(f"s_cbranch_scc1 {ex}")
        A(f"s_add_u32 s{S_CNT}, s{S_CNT}, 1")
        A(f"s_cmp_gt_u32 s{S_CNT}, {SPIN}")
        A(f"s_cbranch_scc1 {ex}")
        A(f"s_sleep {sleep}")
        A(f"s_branch {lp}")
        A.place(ex)
        A("s_mov_b64 exec, -1")
        A("s_barrier")

    def local_flag(self):
        A = self.A
        A(f"v_and_b32 v4, 31, v1")
        A(f"v_lshlrev_b32 v4, 5, v4")
        A(f"s_lshl_b32 s{S_T5}, s{S_B}, 2")
        A(f"s_add_u32 s{S_T5}, s{S_T5}, {LDS_XCC}")
        A(f"v_add_u32 v4, s{S_T5}, v4")
        A(f"ds_read_b32 v5, v4")
        A(f"s_waitcnt lgkmcnt(0)")
        A(f"v_readfirstlane_b32 s{S_LOC}, v5")
        A(f"v_cmp_ne_u32 vcc, s{S_LOC}, v5")
        A(f"s_cmp_eq_u64 vcc, 0")
        A(f"s_cselect_b32 s{S_LOC}, 1, 0")
        if self.nolocal: A(f"s_mov_b32 s{S_LOC}, 0")
    def store_sel(self, ins):
        A = self.A
        l1 = A.label(); l2 = A.label()
        A(f"s_cmp_eq_u32 s{S_LOC}, 1")
        A(f"s_cbranch_scc1 {l1}")
        A(f"{ins} sc0 sc1")
        A(f"s_branch {l2}")
        A.place(l1)
        A(ins)
        A.place(l2)

    def sample_wait(self, need_all, va, vd, sleep):
        A = self.A
        lp = A.label(); ex = A.label()
        A(f"s_cmp_eq_u32 s{S_WAVE}, 0")
        A(f"s_cbranch_scc0 {ex}")
        A(f"v_lshlrev_b32 v{va}, 8, v1")
        A(f"v_add_u32 v{va}, {WS_H + 7*32}, v{va}")
        A(f"s_mov_b32 s{S_CNT}, 0")
        A(f"s_mov_b64 exec, 0xff")
        A.place(lp)
        A(f"buffer_load_dword v{vd}, v{va}, {srd(R_WS)}, 0 offen {self.LP}")
        A("s_waitcnt vmcnt(0)")
        if need_all:
            A(f"v_cmp_eq_u32 vcc, -1, v{vd}")
            A(f"s_cbranch_vccz {ex}")
        else:
            A(f"v_cmp_ne_u32 vcc, -1, v{vd}")
            A(f"s_cbranch_vccnz {ex}")
        A(f"s_add_u32 s{S_CNT}, s{S_CNT}, 1")
        A(f"s_cmp_gt_u32 s{S_CNT}, 4000")
        A(f"s_cbranch_scc1 {ex}")
        A(f"s_sleep {sleep}")
        A(f"s_branch {lp}")
        A.place(ex)
        A("s_mov_b64 exec, -1")
        A("s_waitcnt vmcnt(0)")
        A("s_barrier")

    def maxred(self, tmp, regs):
        A = self.A
        rs = list(regs)
        if len(rs) == 1:
            return rs[0]
        if len(rs) == 2:
            A(f"v_max_u32 v{tmp}, v{rs[0]}, v{rs[1]}"); return tmp
        A(f"v_max3_u32 v{tmp}, v{rs[0]}, v{rs[1]}, v{rs[2]}")
        rs = rs[3:]
        while len(rs) >= 2:
            A(f"v_max3_u32 v{tmp}, v{tmp}, v{rs[0]}, v{rs[1]}")
            rs = rs[2:]
        if rs:
            A(f"v_max_u32 v{tmp}, v{tmp}, v{rs[0]}")
        return tmp

    def prepoll(self, load, reg, mask=None, sleep=4, need_all=False):
        A = self.A
        lp = A.label(); ex = A.label()
        if mask is not None:
            A(f"s_mov_b64 exec, s[{mask}:{mask+1}]")
        A(f"s_mov_b32 s{S_CNT}, 0")
        A.place(lp)
        A(load)
        A("s_waitcnt vmcnt(0)")
        if need_all:
            A(f"v_cmp_eq_u32 vcc, -1, v{reg}")
            A(f"s_cbranch_vccz {ex}")
        else:
            A(f"v_cmp_ne_u32 vcc, -1, v{reg}")
            A(f"s_cbranch_vccnz {ex}")
        A(f"s_add_u32 s{S_CNT}, s{S_CNT}, 1")
        A(f"s_cmp_gt_u32 s{S_CNT}, {SPIN}")
        A(f"s_cbranch_scc1 {ex}")
        A(f"s_sleep {sleep}")
        A(f"s_branch {lp}")
        A.place(ex)
        A(f"s_mov_b64 exec, -1")
        self.stamp(16)

    def poll_groups(self, groups, tmp, mask=None, sleep=0):
        A = self.A
        G = len(groups)
        lp = A.label(); ex = A.label()
        for g in range(G):
            m = S_PM + 2 * g
            if mask is None: A(f"s_mov_b64 s[{m}:{m+1}], -1")
            else: A(f"s_mov_b64 s[{m}:{m+1}], s[{mask}:{mask+1}]")
        A(f"s_mov_b32 s{S_CNT}, 0")
        A.place(lp)
        for g, (loads, regs) in enumerate(groups):
            m = S_PM + 2 * g
            sk = A.label()
            A(f"s_mov_b64 exec, s[{m}:{m+1}]")
            if G > 1: A(f"s_cbranch_execz {sk}")
            for l in loads: A(l)
            if G > 1: A.place(sk)
        A("s_waitcnt vmcnt(0)")
        for g, (loads, regs) in enumerate(groups):
            m = S_PM + 2 * g
            A(f"s_mov_b64 exec, s[{m}:{m+1}]")
            t = self.maxred(tmp, regs)
            A(f"v_cmp_eq_u32_e64 s[{m}:{m+1}], -1, v{t}")
        if G == 1:
            A(f"s_cmp_eq_u64 s[{S_PM}:{S_PM+1}], 0")
        else:
            A(f"s_or_b64 s[{S_EX}:{S_EX+1}], s[{S_PM}:{S_PM+1}], s[{S_PM+2}:{S_PM+3}]")
            for g in range(2, G):
                m = S_PM + 2 * g
                A(f"s_or_b64 s[{S_EX}:{S_EX+1}], s[{S_EX}:{S_EX+1}], s[{m}:{m+1}]")
            A(f"s_cmp_eq_u64 s[{S_EX}:{S_EX+1}], 0")
        A(f"s_cbranch_scc1 {ex}")
        A(f"s_add_u32 s{S_CNT}, s{S_CNT}, 1")
        if sleep: A(f"s_sleep {sleep}")
        A(f"s_cmp_gt_u32 s{S_CNT}, {SPIN}")
        A(f"s_cbranch_scc0 {lp}")
        A.place(ex)
        A(f"s_mov_b64 exec, -1")

    def poll_issue(self, loads, regs, mask=None):
        A = self.A
        if mask is not None:
            A(f"s_mov_b64 exec, s[{mask}:{mask+1}]")
        for l in loads: A(l)
        if mask is not None:
            A(f"s_mov_b64 exec, -1")

    def poll_pipe(self, loads, regs, tmp, mask=None, depth=1, sleep=2, issued=False):
        A = self.A
        lp = A.label(); ex = A.label(); chk = A.label()
        if mask is not None:
            A(f"s_mov_b64 exec, s[{mask}:{mask+1}]")
        A(f"s_mov_b32 s{S_CNT}, 0")
        if issued: A(f"s_branch {chk}")
        A.place(lp)
        for l in loads: A(l)
        if sleep: A(f"s_sleep {sleep}")
        A.place(chk)
        A(f"s_waitcnt vmcnt(0)")
        t = self.maxred(tmp, regs)
        A(f"v_cmp_eq_u32 vcc, -1, v{t}")
        A(f"s_cbranch_vccz {ex}")
        A(f"s_mov_b64 exec, vcc")
        A(f"s_add_u32 s{S_CNT}, s{S_CNT}, 1")
        A(f"s_cmp_gt_u32 s{S_CNT}, {SPIN}")
        A(f"s_cbranch_scc0 {lp}")
        A.place(ex)
        A(f"s_mov_b64 exec, -1")

    def role_params(self):
        A = self.A
        lG, lD, lN, lE = A.label(), A.label(), A.label(), A.label()
        A(f"""
        s_mov_b32 s{S_JJ}, 999
        s_mov_b32 s{S_JA}, 0
        s_cmp_ge_u32 s{S_H}, 8
        s_cbranch_scc1 {lG}
        s_mov_b32 s{S_ROLE}, 0
        s_mov_b32 s{S_J1}, 24
        s_mov_b32 s{S_PITCH}, 2048
        s_mov_b32 s{S_NJ}, 32
        s_lshr_b32 s{S_T0}, s{S_H}, 1
        s_lshl_b32 s{S_T0}, s{S_T0}, 21
        s_and_b32 s{S_T1}, s{S_H}, 1
        s_lshl_b32 s{S_T2}, s{S_B}, 1
        s_add_u32 s{S_T1}, s{S_T1}, s{S_T2}
        s_lshl_b32 s{S_T1}, s{S_T1}, 7
        s_add_u32 s{S_T0}, s{S_T0}, s{S_T1}
        s_add_u32 s{R_WT}, s{S_WO}, s{S_T0}
        s_addc_u32 s{R_WT+1}, s{S_WO+1}, 0
        s_sub_u32 s{R_WT+2}, {8<<20}, s{S_T0}
        s_branch {lE}
        """)
        A.place(lG)
        A(f"""
        s_cmp_ge_u32 s{S_H}, 22
        s_cbranch_scc1 {lD}
        s_mov_b32 s{S_ROLE}, 1
        s_mov_b32 s{S_J1}, {self.JU}
        s_mov_b32 s{S_PITCH}, 7168
        s_mov_b32 s{S_NJ}, 32
        s_sub_u32 s{S_T0}, s{S_H}, 8
        s_lshr_b32 s{S_T1}, s{S_T0}, 1
        s_mul_i32 s{S_T2}, s{S_B}, 7
        s_add_u32 s{S_T1}, s{S_T1}, s{S_T2}
        s_lshl_b32 s{S_T1}, s{S_T1}, 7
        s_bitcmp1_b32 s{S_T0}, 0
        s_cselect_b32 s{S_T2}, s{S_WU}, s{S_WG_}
        s_cselect_b32 s{S_T3}, s{S_WU+1}, s{S_WG_+1}
        s_add_u32 s{R_WT}, s{S_T2}, s{S_T1}
        s_addc_u32 s{R_WT+1}, s{S_T3}, 0
        s_sub_u32 s{R_WT+2}, {7340032}, s{S_T1}
        s_branch {lE}
        """)
        A.place(lD)
        A(f"""
        s_cmp_ge_u32 s{S_H}, 30
        s_cbranch_scc1 {lN}
        s_mov_b32 s{S_ROLE}, 2
        s_mov_b32 s{S_J1}, {self.JU}
        s_mov_b32 s{S_PITCH}, 2048
        s_mov_b32 s{S_NJ}, 28
        s_mov_b32 s{S_JJ}, 14
        s_mov_b32 s{S_JA}, {(128 - 448*2048) & 0xffffffff}
        s_mul_i32 s{S_T1}, s{S_B}, {448*2048}
        s_sub_u32 s{S_T0}, s{S_H}, 22
        s_lshl_b32 s{S_T0}, s{S_T0}, 8
        s_add_u32 s{S_T0}, s{S_T0}, s{S_T1}
        s_add_u32 s{R_WT}, s{S_WD}, s{S_T0}
        s_addc_u32 s{R_WT+1}, s{S_WD+1}, 0
        s_sub_u32 s{R_WT+2}, {7340032}, s{S_T0}
        s_branch {lE}
        """)
        A.place(lN)
        A(f"""
        s_mov_b32 s{S_ROLE}, 3
        s_mov_b32 s{S_J1}, 0
        s_mov_b32 s{S_PITCH}, 2048
        s_mov_b32 s{S_NJ}, 0
        s_mov_b32 s{R_WT}, s{S_WD}
        s_mov_b32 s{R_WT+1}, s{S_WD+1}
        s_mov_b32 s{R_WT+2}, 0
        """)
        A.place(lE)
        A(f"s_mov_b32 s{R_WT+3}, 0x20000")

    def entry(self):
        A = self.A
        A.header(256, 512, LDS_BYTES, comments=[
            "Fused decode layer: preLN + MHA over KV cache + out-proj + preLN + GEGLU FFN (one persistent launch, 256 WGs x 512).",
        ])
        if self.stamps == "entry":
            A("s_memrealtime s[14:15]")
        A(f"""
        s_cmp_ge_u32 s2, 256
        s_cbranch_scc1 L_end
        s_load_dwordx16 s[16:31], s[0:1], 0
        s_load_dwordx8 s[32:39], s[0:1], 64
        v_and_b32 v1, 63, v0
        v_lshrrev_b32 v4, 6, v0
        v_lshlrev_b32 v2, 4, v1
        v_readfirstlane_b32 s{S_WAVE}, v4
        v_lshlrev_b32 v3, 2, v1
        s_lshr_b32 s{S_H}, s2, 3
        s_and_b32 s{S_B}, s2, 7
        s_mov_b32 s{S_M1}, 0x22222222
        s_mov_b32 s{S_M1+1}, 0x22222222
        s_mov_b32 s{S_M2}, 0x44444444
        s_mov_b32 s{S_M2+1}, 0x44444444
        s_mov_b32 s{S_M3}, 0x88888888
        s_mov_b32 s{S_M3+1}, 0x88888888
        s_mov_b32 s{S_MJ8}, 0x00ff00ff
        s_mov_b32 s{S_MJ8+1}, 0x00ff00ff
        s_mov_b32 s{S_MQ}, 0x11111111
        s_mov_b32 s{S_MQ+1}, 0x11111111
        s_mov_b32 s{S_ME}, 0x01010101
        s_mov_b32 s{S_ME+1}, 0x01010101
        v_mov_b32 v204, 0
        v_mov_b32 v4, {LDS_CNT}
        v_mov_b32 v6, 0
        v_mov_b32 v7, 0
        ds_write_b64 v4, v[6:7]
        ds_write_b64 v4, v[6:7] offset:8
        v_mov_b32 v7, {self.N}
        ds_write_b64 v4, v[6:7] offset:16
        s_and_b32 s{S_SW}, s{S_WAVE}, 3
        s_mov_b64 s[4:5], 0
        s_mov_b64 s[6:7], 0
        s_mov_b64 s[8:9], 0
        s_mov_b64 s[10:11], 0
        s_mov_b64 s[12:13], 0
        """)
        if self.stamps != "entry": A("s_mov_b64 s[14:15], 0")
        A(f"""
        s_cmp_ge_u32 s{S_WAVE}, 4
        s_cbranch_scc1 L_stream
        """)

    def service(self):
        A = self.A
        A.c("==== service waves: LN(x), q partial, exchange ====")
        A(f"""
        v_lshrrev_b32 v4, 4, v1
        v_and_b32 v5, 15, v1
        s_lshr_b32 s{S_T0}, s{S_SW}, 1
        s_lshl_b32 s{S_T0}, s{S_T0}, 2
        v_or_b32 v6, s{S_T0}, v4
        v_lshlrev_b32 v6, 1, v6
        v_xor_b32 v6, v6, v5
        v_lshlrev_b32 v6, 4, v6
        v_lshlrev_b32 v7, 13, v4
        v_add_u32 v6, v6, v7
        s_lshl_b32 s{S_T0}, s{S_B}, 20
        s_lshl_b32 s{S_T1}, s{S_SW}, 15
        s_add_u32 s{S_T0}, s{S_T0}, s{S_T1}
        s_lshl_b32 s{S_T1}, s{S_H}, 8
        s_add_u32 s{S_T0}, s{S_T0}, s{S_T1}
        s_lshl_b32 s{S_T1}, s{S_SW}, 10
        s_add_u32 s{S_T1}, s{S_T1}, {LDS_WQ}
        s_lshl_b32 s{S_T2}, s{S_SW}, 12
        v_mov_b32 v126, 0
        s_mov_b32 s{S_T3}, {WS_EPOCH}
        s_waitcnt lgkmcnt(0)
        """)
        self.mk_srd(R_X, S_X, 16384)
        A(f"buffer_load_dwordx4 v[8:11], v2, {srd(R_X)}, s{S_T2} offen")
        A(f"buffer_load_dwordx4 v[12:15], v2, {srd(R_X)}, s{S_T2} offen offset:1024")
        A(f"buffer_load_dwordx4 v[16:19], v2, {srd(R_X)}, s{S_T2} offen offset:2048")
        A(f"buffer_load_dwordx4 v[20:23], v2, {srd(R_X)}, s{S_T2} offen offset:3072")
        self.mk_srd(R_WQ, S_WQ, 8 << 20)
        for j in range(8):
            A(f"s_mov_b32 m0, s{S_T1}")
            A(f"s_add_u32 s{S_T1}, s{S_T1}, 4096")
            A(f"buffer_load_dwordx4 v6, {srd(R_WQ)}, s{S_T0} offen {self.WP} lds")
            if j < 7:
                A(f"s_add_u32 s{S_T0}, s{S_T0}, {4*32768}")
        self.mk_srd(R_WS, S_WS, WS_SIZE)
        A(f"buffer_load_dword v126, v126, {srd(R_WS)}, s{S_T3} offen {self.LP}")
        A("s_barrier")
        self.stamp(0)
        if self.stamps and self.stamps not in ("tail", "early", "svc", "entry"):
            A("s_getreg_b32 s10, hwreg(HW_REG_XCC_ID)")
            self.stampval(31, 10)
        A(f"""
        v_mov_b32 v24, -1
        v_mov_b32 v25, -1
        v_mov_b32 v26, -1
        v_mov_b32 v27, -1
        s_lshl_b32 s{S_T0}, s2, 12
        s_lshl_b32 s{S_T1}, s{S_SW}, 10
        s_add_u32 s{S_T0}, s{S_T0}, s{S_T1}
        s_add_u32 s{S_T0}, s{S_T0}, {WS_SLOT}
        buffer_store_dwordx4 v[24:27], v2, {srd(R_WS)}, s{S_T0} offen sc0 sc1
        """)
        nst = 2 if (self.stamps and self.stamps not in ('tail', 'early', 'svc', 'entry')) else 0
        self.role_params()
        A(f"s_waitcnt vmcnt({10 + nst})")
        self.stamp(10)
        F, D = 32, 48
        S1, S2, T1, T2, VMB, VRS = 64, 66, 68, 69, 70, 72
        for r in range(2):
            base = 8 + 8 * r
            for i in range(8):
                A(f"v_lshlrev_b32 v{F+2*i}, 16, v{base+i}")
                A(f"v_and_b32 v{F+2*i+1}, 0xffff0000, v{base+i}")
            self.ln_stats(F, D, S1, S2, T1, T2, VMB, VRS)
            lab = A.label()
            A(f"s_cmp_lt_u32 s{S_B}, 4")
            A(f"s_cbranch_scc1 {lab}")
            for i in range(0, 8, 2):
                A(f"v_pk_mov_b32 {vr(F+i,2)}, {vr(F+8+i,2)}, {vr(F+8+i,2)} op_sel:[0,1]")
            A.place(lab)
            for i in range(4):
                self.ln_apply(76 + i, F + 2*i, VMB, VRS, 74)
            A(f"""
            s_and_b32 s{S_T0}, s{S_B}, 3
            s_lshl_b32 s{S_T0}, s{S_T0}, 4
            s_mov_b64 s[{S_EX}:{S_EX+1}], 0xffff
            s_lshl_b64 s[{S_EX}:{S_EX+1}], s[{S_EX}:{S_EX+1}], s{S_T0}
            s_lshl_b32 s{S_T1}, s{S_SW}, 1
            s_add_u32 s{S_T1}, s{S_T1}, {r}
            s_mul_i32 s{S_T1}, s{S_T1}, 272
            s_add_u32 s{S_T1}, s{S_T1}, {LDS_XN}
            v_and_b32 v80, 15, v1
            v_lshlrev_b32 v80, 4, v80
            v_add_u32 v80, s{S_T1}, v80
            s_mov_b64 exec, s[{S_EX}:{S_EX+1}]
            ds_write_b128 v80, v[76:79]
            s_mov_b64 exec, -1
            """)
        self.stamp(12)
        A(f"""
        v_and_b32 v58, 7, v1
        v_mul_u32_u24 v58, 272, v58
        v_lshrrev_b32 v59, 4, v1
        v_lshlrev_b32 v60, 4, v59
        v_add_u32 v58, v58, v60
        v_add_u32 v58, {LDS_XN}, v58
        v_and_b32 v60, 15, v1
        v_lshrrev_b32 v61, 2, v60
        v_and_b32 v62, 3, v60
        v_and_b32 v63, 1, v59
        v_lshlrev_b32 v63, 2, v63
        v_or_b32 v63, v63, v61
        v_lshlrev_b32 v80, 3, v59
        v_add_u32 v80, v80, v61
        v_lshlrev_b32 v80, 8, v80
        v_lshlrev_b32 v62, 3, v62
        v_add_u32 v80, v80, v62
        v_add_u32 v80, {LDS_WQ}, v80
        s_lshl_b32 s{S_T0}, s{S_SW}, 1
        v_xor_b32 v81, s{S_T0}, v63
        v_lshlrev_b32 v81, 5, v81
        v_add_u32 v81, v81, v80
        s_add_u32 s{S_T0}, s{S_T0}, 1
        v_xor_b32 v82, s{S_T0}, v63
        v_lshlrev_b32 v82, 5, v82
        v_add_u32 v82, v82, v80
        v_and_b32 v56, 15, v1
        v_lshlrev_b32 v56, 12, v56
        v_lshlrev_b32 v60, 4, v59
        v_add_u32 v56, v56, v60
        """)
        A(f"s_waitcnt vmcnt({2 + 2*nst}) lgkmcnt(0)")
        self.stamp(13)
        self.lds_signal(LDS_CNT + 0, 124, 125)
        self.lds_wait(LDS_CNT + 0, 4, 124, 125, sleep=0)
        for s in range(4):
            A(f"ds_read_b128 {vr(64+4*s,4)}, v58 offset:{s*64}")
        for c in range(2):
            for s in range(4):
                r = 84 + (c * 4 + s) * 4
                A(f"ds_read_b64_tr_b16 {vr(r,2)}, v{81+c} offset:{s*8192}")
                A(f"ds_read_b64_tr_b16 {vr(r+2,2)}, v{81+c} offset:{s*8192+1024}")
        A(f"""
        s_lshl_b32 s{S_T0}, s{S_H}, 15
        s_lshl_b32 s{S_T1}, s{S_B}, 9
        s_add_u32 s{S_T0}, s{S_T0}, s{S_T1}
        s_lshl_b32 s{S_T1}, s{S_SW}, 7
        s_add_u32 s{S_T0}, s{S_T0}, s{S_T1}
        s_waitcnt lgkmcnt(0)
        """)
        for s in range(4):
            for c in range(2):
                r = 84 + (c * 4 + s) * 4
                acc = 116 + 4 * c
                src = "0" if s == 0 else vr(acc, 4)
                A(f"v_mfma_f32_16x16x32_bf16 {vr(acc,4)}, {vr(r,4)}, {vr(64+4*s,4)}, {src}")
        self.lds_signal(LDS_CNT + 4, 124, 125)
        A(f"""
        s_mov_b64 exec, s[{S_MJ8}:{S_MJ8+1}]
        buffer_store_dwordx4 v[116:119], v56, {srd(R_WS)}, s{S_T0} offen sc0 sc1
        buffer_store_dwordx4 v[120:123], v56, {srd(R_WS)}, s{S_T0} offen offset:64 sc0 sc1
        s_mov_b64 exec, -1
        s_lshl_b32 s{S_T0}, s{S_H}, 7
        s_add_u32 s{S_T0}, s{S_T0}, {WS_FLAG}
        s_lshl_b32 s{S_T1}, s{S_B}, 4
        s_lshl_b32 s{S_T2}, s{S_SW}, 2
        s_add_u32 s{S_T1}, s{S_T1}, s{S_T2}
        s_getreg_b32 s{S_XCC}, hwreg(HW_REG_XCC_ID)
        s_and_b32 s{S_XCC}, s{S_XCC}, 7
        s_lshl_b32 s{S_XCC}, s{S_XCC}, 24
        v_mov_b32 v58, s{S_T1}
        s_waitcnt vmcnt(0)
        v_readfirstlane_b32 s{S_TAG}, v126
        s_add_u32 s{S_TAG}, s{S_TAG}, 1
        s_add_u32 s{S_XCC}, s{S_XCC}, s{S_TAG}
        v_mov_b32 v59, s{S_XCC}
        s_mov_b64 exec, 1
        buffer_store_dword v59, v58, {srd(R_WS)}, s{S_T0} offen sc0 sc1
        s_mov_b64 exec, -1
        """)
        self.stamp(1)
        A(f"s_cmp_eq_u32 s{S_SW}, 0")
        A(f"s_cbranch_scc0 L_svc_done")
        lp = A.label(); ex = A.label()
        A(f"s_mov_b64 exec, 0xffffffff")
        A(f"s_mov_b32 s{S_CNT}, 0")
        A.place(lp)
        A(f"""
        buffer_load_dword v60, v3, {srd(R_WS)}, s{S_T0} offen {self.LP}
        s_waitcnt vmcnt(0)
        v_subrev_u32 v60, s{S_TAG}, v60
        v_and_b32 v60, 0xf8ffffff, v60
        v_cmp_ne_u32 vcc, 0, v60
        s_cbranch_vccz {ex}
        s_add_u32 s{S_CNT}, s{S_CNT}, 1
        s_cmp_gt_u32 s{S_CNT}, {SPIN}
        s_cbranch_scc0 {lp}
        """)
        A.place(ex)
        A("s_mov_b64 exec, -1")
        self.stamp(11)
        A(f"s_lshl_b32 s{S_T0}, s2, 12")
        for j in range(4):
            A(f"buffer_load_dwordx4 {vr(64+4*j,4)}, v2, {srd(R_WS)}, s{S_T0} offen offset:{j*1024} {self.LP}")
        A(f"""
        v_and_b32 v58, 31, v1
        v_lshlrev_b32 v58, 3, v58
        v_add_u32 v58, {LDS_Q}, v58
        s_waitcnt vmcnt(0)
        """)
        for e in range(0, 4, 2):
            A(f"v_pk_add_f32 {vr(64+e,2)}, {vr(64+e,2)}, {vr(68+e,2)}")
            A(f"v_pk_add_f32 {vr(72+e,2)}, {vr(72+e,2)}, {vr(76+e,2)}")
        for e in range(0, 4, 2):
            A(f"v_pk_add_f32 {vr(64+e,2)}, {vr(64+e,2)}, {vr(72+e,2)}")
        for e in range(4):
            A(f"v_mov_b32 v{68+e}, v{64+e}")
        for e in range(4):
            A(f"v_permlane32_swap_b32 v{64+e}, v{68+e}")
        for e in range(0, 4, 2):
            A(f"v_pk_add_f32 {vr(64+e,2)}, {vr(64+e,2)}, {vr(68+e,2)}")
        A(f"""
        v_cvt_pk_bf16_f32 v64, v64, v65
        v_cvt_pk_bf16_f32 v65, v66, v67
        ds_write_b64 v58, v[64:65]
        s_waitcnt lgkmcnt(0)
        """)
        self.lds_signal(LDS_CNT + 12, 124, 125)
        self.stamp(2)
        if self.debug:
            A(f"""
            v_and_b32 v58, 31, v1
            v_lshlrev_b32 v58, 3, v58
            s_lshl_b32 s{S_T0}, s2, 8
            s_add_u32 s{S_T0}, s{S_T0}, {WS_DBG}
            buffer_store_dwordx2 v[64:65], v58, {srd(R_WS)}, s{S_T0} offen
            """)
        lp = A.label(); ex = A.label()
        A(f"s_mov_b32 s{S_T0}, {WS_FLAG}")
        A(f"s_mov_b32 s{S_CNT}, 0")
        A.place(lp)
        for j in range(4):
            A(f"buffer_load_dwordx4 {vr(64+4*j,4)}, v2, {srd(R_WS)}, s{S_T0} offen offset:{j*1024} {self.LP}")
        A("s_waitcnt vmcnt(0)")
        for i in range(16):
            A(f"v_subrev_u32 v{64+i}, s{S_TAG}, v{64+i}")
        for i in range(16):
            A(f"v_and_b32 v{80+i}, 0xf8ffffff, v{64+i}")
        t = self.maxred(60, range(80, 96))
        A(f"""
        v_cmp_ne_u32 vcc, 0, v{t}
        s_cbranch_vccz {ex}
        s_add_u32 s{S_CNT}, s{S_CNT}, 1
        s_cmp_gt_u32 s{S_CNT}, {SPIN}
        s_cbranch_scc1 {ex}
        s_sleep 16
        s_branch {lp}
        """)
        A.place(ex)
        A(f"v_add_u32 v60, {LDS_XCC}, v3")
        for t in range(4):
            A(f"ds_write_b32 v60, v{64+4*t} offset:{t*256}")
        A("s_waitcnt lgkmcnt(0)")
        if self.pace:
            self.local_flag()
            self.controller(self.PK0, 13)
            A("s_barrier")
            A("s_barrier")
            self.controller(16, 29)
            A("s_branch L_join3")
        A.place("L_svc_done")
        A("s_barrier")
        A("s_barrier")
        A("s_branch L_join3")

    def controller(self, k0, k1):
        A = self.A
        lp = A.label(); lw = A.label(); lx = A.label(); lend = A.label()
        A(f"s_cmp_eq_u32 s{S_LOC}, 1")
        A(f"s_cbranch_scc0 {lend}")
        A(f"s_mov_b32 s{S_T0}, {k0}")
        A(f"v_mov_b32 v60, {LDS_BLK}")
        A(f"v_mov_b32 v61, {LDS_N}")
        A(f"v_mov_b32 v62, 1")
        A(f"s_lshl_b32 s{S_T3}, s{S_H}, 2")
        A(f"v_mov_b32 v63, s{S_T3}")
        A.place(lp)
        A(f"s_mov_b32 s{S_CNT}, 0")
        A.place(lw)
        A(f"ds_read_b32 v64, v60")
        A(f"s_waitcnt lgkmcnt(0)")
        A(f"v_readfirstlane_b32 s{S_T1}, v64")
        A(f"s_cmp_gt_u32 s{S_T1}, s{S_T0}")
        A(f"s_cbranch_scc1 {lx}")
        A(f"s_add_u32 s{S_CNT}, s{S_CNT}, 1")
        A(f"s_cmp_gt_u32 s{S_CNT}, {SPIN}")
        A(f"s_cbranch_scc1 {lx}")
        A(f"s_sleep 8")
        A(f"s_branch {lw}")
        A.place(lx)
        A(f"s_sub_u32 s{S_T1}, s{S_T1}, 1")
        A(f"s_min_u32 s{S_T0}, s{S_T1}, {k1}")
        A(f"s_lshl_b32 s{S_T2}, s{S_T0}, 10")
        A(f"s_lshl_b32 s{S_T4}, s{S_B}, 7")
        A(f"s_add_u32 s{S_T2}, s{S_T2}, s{S_T4}")
        A(f"s_add_u32 s{S_T2}, s{S_T2}, {WS_PROG}")
        A(f"s_mov_b64 exec, 1")
        A(f"buffer_store_dword v62, v63, {srd(R_WS)}, s{S_T2} offen")
        if self.bias:
            A(f"s_lshl_b32 s{S_T4}, s{S_B}, 7")
            A(f"s_add_u32 s{S_OFF}, s{S_T4}, {WS_BIAS}")
            A(f"v_mov_b32 v66, 0")
            A(f"buffer_load_dword v67, v66, {srd(R_WS)}, s{S_OFF} offen {self.LP}")
        A(f"s_mov_b64 exec, 0xffffffff")
        A(f"buffer_load_dword v64, v3, {srd(R_WS)}, s{S_T2} offen {self.LP}")
        A(f"s_waitcnt vmcnt(0)")
        A(f"v_cmp_ne_u32 vcc, -1, v64")
        A(f"s_mov_b64 exec, -1")
        A(f"s_bcnt1_i32_b64 s{S_T4}, vcc")
        if self.bias:
            lg = A.label()
            A(f"v_readfirstlane_b32 s{S_PITCH}, v67")
            A(f"s_cmp_eq_u32 s{S_T4}, {self.GM}")
            A(f"s_cbranch_scc0 {lg}")
            A(f"s_lshl_b32 s{S_T2}, s{S_T0}, 7")
            A(f"s_add_u32 s{S_T2}, s{S_T2}, {WS_GP}")
            A(f"s_lshl_b32 s{S_T5}, s{S_B}, 2")
            A(f"v_mov_b32 v65, s{S_T5}")
            A(f"s_mov_b64 exec, 1")
            A(f"buffer_store_dword v62, v65, {srd(R_WS)}, s{S_T2} offen sc0 sc1")
            A(f"s_mov_b64 exec, 0xff")
            A(f"buffer_load_dword v65, v3, {srd(R_WS)}, s{S_T2} offen {self.LP}")
            A(f"s_waitcnt vmcnt(0)")
            A(f"v_cmp_ne_u32 vcc, -1, v65")
            A(f"s_mov_b64 exec, -1")
            A(f"s_bcnt1_i32_b64 s{S_T2}, vcc")
            A(f"s_mov_b32 s{S_PITCH}, 1")
            A(f"s_cmp_ge_u32 s{S_T2}, {self.GH}")
            A(f"s_addc_u32 s{S_PITCH}, s{S_PITCH}, 0")
            A(f"s_cmp_le_u32 s{S_T2}, {self.GL}")
            A(f"s_subb_u32 s{S_PITCH}, s{S_PITCH}, 0")
            A(f"v_mov_b32 v65, s{S_PITCH}")
            A(f"s_mov_b64 exec, 1")
            A(f"buffer_store_dword v65, v66, {srd(R_WS)}, s{S_OFF} offen")
            A(f"s_mov_b64 exec, -1")
            A.place(lg)
            A(f"s_cmp_eq_u32 s{S_PITCH}, -1")
            A(f"s_cselect_b32 s{S_PITCH}, 1, s{S_PITCH}")
        A(f"s_mov_b32 s{S_T5}, {self.NBASE}")
        for th in self.TH:
            A(f"s_cmp_gt_u32 s{S_T4}, {th}")
            A(f"s_addc_u32 s{S_T5}, s{S_T5}, 0")
        if self.bias:
            A(f"s_add_u32 s{S_T5}, s{S_T5}, s{S_PITCH}")
            A(f"s_sub_u32 s{S_T5}, s{S_T5}, 1")
            A(f"s_max_u32 s{S_T5}, s{S_T5}, {self.NMIN}")
        A(f"s_min_u32 s{S_T5}, s{S_T5}, {self.D}")
        A(f"v_mov_b32 v64, s{S_T5}")
        A(f"ds_write_b32 v61, v64")
        A(f"s_add_u32 s{S_T0}, s{S_T0}, 1")
        A(f"s_cmp_le_u32 s{S_T0}, {k1}")
        A(f"s_cbranch_scc1 {lp}")
        A(f"s_waitcnt lgkmcnt(0)")
        A.place(lend)

    RING = 64
    R = 32
    QF = 8
    VN = 200
    def slot(self, t): return self.RING + 4 * (t % self.R)
    def issue(self, t, which):
        A = self.A
        r = self.slot(t)
        A(f"buffer_load_dwordx4 {vr(r,4)}, v2, {srd(R_K if which == 'K' else R_V)}, s{S_OFF} offen {self.KP if which == 'K' else self.VP}")
        A(f"s_add_u32 s{S_OFF}, s{S_OFF}, 4096")
        if self.rot: A(f"s_and_b32 s{S_OFF}, s{S_OFF}, 0xfffff")

    def vwait(self):
        A = self.A
        if not self.pace and not self.NW and not (self.defer and self.D > self.N):
            A(f"s_waitcnt vmcnt({self.N-1})"); return
        L = A.label()
        lv = list(range(self.D, self.NMIN, -1))
        for n in lv:
            A(f"s_waitcnt vmcnt({n-1})")
            A(f"s_cmp_ge_u32 s{S_NCUR}, {n}")
            A(f"s_cbranch_scc1 {L}")
        A(f"s_waitcnt vmcnt({self.NMIN-1})")
        A.place(L)
    def blk_begin(self):
        if not self.pace: return
        A = self.A
        A(f"s_waitcnt lgkmcnt(0)")
        A(f"v_readfirstlane_b32 s{S_NCUR}, v{self.VN}")
        A(f"ds_read_b32 v{self.VN}, v{self.VN+1}")
    def blk_end(self):
        if not self.pace: return
        A = self.A
        L = A.label()
        A(f"v_add_u32 v{self.VN+2}, 1, v{self.VN+2}")
        A(f"s_cmp_eq_u32 s{S_SW}, 0")
        A(f"s_cbranch_scc0 {L}")
        A(f"ds_write_b32 v{self.VN+1}, v{self.VN+2} offset:-4".replace("offset:-4", "offset:0") if False else f"ds_write_b32 v{self.VN+3}, v{self.VN+2}")
        A.place(L)

    def k_block(self, t0, plan):
        A = self.A
        q = self.QF
        ACC = [12, 13, 14, 15]; B0, B1 = 16, 17; E = [18, 19, 20, 21]; M = 22
        MX = 24; SA = 25
        def reduce_group(c):
            a0, a1, a2, a3 = ACC
            e = E[c]
            A(f"v_add_f32_dpp v{B0}, v{a0}, v{a0} row_ror:8 row_mask:0xf bank_mask:0x3")
            A(f"v_add_f32_dpp v{B1}, v{a2}, v{a2} row_ror:8 row_mask:0xf bank_mask:0x3")
            A(f"v_add_f32_dpp v{B0}, v{a1}, v{a1} row_ror:8 row_mask:0xf bank_mask:0xc")
            A(f"v_add_f32_dpp v{B1}, v{a3}, v{a3} row_ror:8 row_mask:0xf bank_mask:0xc")
            A(f"v_add_f32_dpp v{e}, v{B0}, v{B0} row_half_mirror row_mask:0xf bank_mask:0x5")
            A(f"v_add_f32_dpp v{e}, v{B1}, v{B1} row_half_mirror row_mask:0xf bank_mask:0xa")
            A(f"v_add_f32_dpp v{e}, v{e}, v{e} quad_perm:[1,0,3,2] row_mask:0xf bank_mask:0xf")
            A(f"v_add_f32_dpp v{e}, v{e}, v{e} quad_perm:[2,3,0,1] row_mask:0xf bank_mask:0xf")
        self.blk_begin()
        for t in range(16):
            cnt, iss = plan(t0 + t)
            if cnt is None: self.vwait()
            else: A(f"s_waitcnt vmcnt({cnt})")
            if iss is not None:
                if iss[1] == 'V' and iss[0] == 0:
                    A(f"s_mov_b32 s{S_OFF}, s{S_ROT}")
                self.issue(iss[0], iss[1])
            r = self.slot(t0 + t)
            a = ACC[t % 4]
            A(f"v_dot2_f32_bf16 v{a}, v{r}, v{q}, 0")
            A(f"v_dot2_f32_bf16 v{a}, v{r+1}, v{q+1}, v{a}")
            A(f"v_dot2_f32_bf16 v{a}, v{r+2}, v{q+2}, v{a}")
            A(f"v_dot2_f32_bf16 v{a}, v{r+3}, v{q+3}, v{a}")
            if t % 4 == 3:
                reduce_group(t // 4)
        A(f"v_cndmask_b32 v{M}, v{E[0]}, v{E[1]}, s[{S_M1}:{S_M1+1}]")
        A(f"v_cndmask_b32 v{M}, v{M}, v{E[2]}, s[{S_M2}:{S_M2+1}]")
        A(f"v_cndmask_b32 v{M}, v{M}, v{E[3]}, s[{S_M3}:{S_M3+1}]")
        self.rnd_bf16(M, M)
        A(f"v_mul_f32 v{M}, 0x3db504f3, v{M}")
        self.rnd_bf16(M, M)
        A(f"ds_write_b32 v{SA}, v{M}")
        A(f"v_max_f32 v{MX}, v{MX}, v{M}")
        A(f"v_add_u32 v{SA}, 256, v{SA}")
        self.blk_end()

    def v_block(self, t0, plan, last=False):
        A = self.A
        P, PN, PA = 12, 13, 14
        MK = [16, 17, 18, 19]
        BS = [[20, 21, 22, 23], [24, 25, 26, 27]]
        ACC = 28
        A(f"s_waitcnt lgkmcnt(0)")
        A(f"v_mov_b32 v{P}, v{PN}")
        self.blk_begin()
        if not last:
            A(f"ds_read_b32 v{PN}, v{PA}")
            A(f"v_add_u32 v{PA}, 256, v{PA}")
        for t in range(16):
            cnt, iss = plan(t0 + t)
            if cnt is None: self.vwait()
            else: A(f"s_waitcnt vmcnt({cnt})")
            if iss is not None:
                self.issue(iss[0], iss[1])
            B = BS[t % 2]
            for j in range(4):
                A(f"v_and_b32_dpp v{B[j]}, v{P}, v{MK[j]} row_newbcast:{t} row_mask:0xf bank_mask:0xf")
            r = self.slot(t0 + t)
            A(f"v_mfma_f32_16x16x32_bf16 {vr(ACC,4)}, {vr(r,4)}, {vr(B[0],4)}, {vr(ACC,4)}")
        self.blk_end()

    def stream(self):
        A = self.A
        N, NP, PV, R = self.N, self.NP, self.PV, self.R
        A.place("L_stream")
        A.c("==== stream waves ====")
        A(f"""
        v_lshrrev_b32 v4, 3, v1
        v_and_b32 v5, 7, v1
        v_lshrrev_b32 v6, 4, v1
        v_and_b32 v6, 1, v6
        v_lshlrev_b32 v6, 1, v6
        v_xor_b32 v5, v5, v6
        s_and_b32 s{S_T0}, s{S_SW}, 1
        s_lshl_b32 s{S_T0}, s{S_T0}, 2
        v_xor_b32 v5, s{S_T0}, v5
        v_lshlrev_b32 v5, 4, v5
        s_waitcnt lgkmcnt(0)
        """)
        self.mk_srd(R_WS, S_WS, WS_SIZE)
        self.role_params()
        A(f"""
        s_lshl_b32 s{S_T0}, s{S_B}, 5
        s_add_u32 s{S_T0}, s{S_T0}, s{S_H}
        s_lshl_b32 s{S_T0}, s{S_T0}, 20
        """)
        self.mk_srd(R_K, S_K, 1 << 20, f"s{S_T0}")
        self.mk_srd(R_V, S_V, 1 << 20, f"s{S_T0}")
        A(f"""
        v_mul_lo_u32 v4, v4, s{S_PITCH}
        v_add_u32 v4, v4, v5
        s_lshl_b32 s{S_T0}, s{S_PITCH}, 3
        s_mul_i32 s{S_T1}, s{S_T0}, s{S_SW}
        s_lshl_b32 s{S_T0}, s{S_T0}, 2
        s_lshl_b32 s{S_T2}, s{S_SW}, 10
        s_mov_b32 s{S_T3}, 0
        s_barrier
        """)
        self.stamp(0)
        if self.stamps and self.stamps not in ("tail", "early", "svc", "entry"):
            A("s_getreg_b32 s4, hwreg(HW_REG_XCC_ID)")
            A(f"s_lshl_b32 s6, s{S_WG}, 3")
            A(f"s_add_u32 s6, s6, s{S_WAVE}")
            A(f"s_lshl_b32 s6, s6, 7")
            A(f"s_add_u32 s6, s6, {WS_DBG + 0x100000 + 31*4}")
            A(f"s_mov_b64 exec, 1")
            A(f"v_mov_b32 v254, s4")
            A(f"v_mov_b32 v255, 0")
            A(f"buffer_store_dword v254, v255, {srd(R_WS)}, s6 offen")
            A(f"s_mov_b64 exec, -1")
        lp1, lp2, ld = A.label(), A.label(), A.label()
        def dma_iter(wait):
            A(f"""
            s_mov_b32 m0, s{S_T2}
            s_waitcnt vmcnt({wait})
            buffer_load_dwordx4 v4, {srd(R_WT)}, s{S_T1} offen {self.WP} lds
            s_add_u32 s{S_T1}, s{S_T1}, s{S_T0}
            s_add_u32 s{S_T2}, s{S_T2}, 4096
            s_add_u32 s{S_T3}, s{S_T3}, 1
            s_cmp_eq_u32 s{S_T3}, s{S_JJ}
            s_cselect_b32 s{S_T4}, s{S_JA}, 0
            s_add_u32 s{S_T1}, s{S_T1}, s{S_T4}
            """)
        self.dma_iter = dma_iter
        A(f"s_cmp_eq_u32 s{S_J1}, 0")
        A(f"s_cbranch_scc1 {ld}")
        A.place(lp1)
        dma_iter(NP - 1)
        A(f"s_cmp_lt_u32 s{S_T3}, s{S_J1}")
        A(f"s_cbranch_scc1 {lp1}")
        A.place(ld)
        if self.rot:
            A(f"s_mul_i32 s{S_ROT}, s2, {self.rot}")
            A(f"s_and_b32 s{S_ROT}, s{S_ROT}, 255")
            A(f"s_lshl_b32 s{S_ROT}, s{S_ROT}, 12")
        else:
            A(f"s_mov_b32 s{S_ROT}, 0")
        A(f"s_lshl_b32 s{S_T5}, s{S_SW}, 10")
        A(f"s_add_u32 s{S_ROT}, s{S_ROT}, s{S_T5}")
        A(f"s_mov_b32 s{S_OFF}, s{S_ROT}")
        for t in range(R):
            A(f"s_waitcnt vmcnt({NP-1})")
            self.issue(t, 'K')
        self.stamp(15)
        ld2 = A.label()
        if self.defer:
            A(f"s_cmp_eq_u32 s{S_ROLE}, 0")
            A(f"s_cbranch_scc0 {ld2}")
        else:
            A(f"s_cmp_eq_u32 s{S_NJ}, 0")
            A(f"s_cbranch_scc1 {ld2}")
        self.lds_wait(LDS_CNT + 4, 4, 6, 7)
        A.place(lp2)
        dma_iter(NP - 1)
        A(f"s_cmp_lt_u32 s{S_T3}, s{S_NJ}")
        A(f"s_cbranch_scc1 {lp2}")
        A.place(ld2)
        A(f"s_mov_b32 s{S_DS}, s{S_T1}")
        A(f"s_mov_b32 s{S_DM}, s{S_T2}")
        A(f"s_mov_b32 s{S_DJ}, s{S_T3}")
        A(f"s_mov_b32 s{S_DST}, s{S_T0}")
        A(f"v_mov_b32 v204, v4")
        self.stamp(14)
        self.lds_wait(LDS_CNT + 12, 1, 6, 7)
        self.stamp(3)
        self.cstamp(20)
        A(f"""
        v_and_b32 v6, 15, v1
        v_lshlrev_b32 v6, 4, v6
        v_add_u32 v6, {LDS_Q}, v6
        ds_read_b128 v[8:11], v6
        v_mov_b32 v24, 0xff800000
        v_and_b32 v6, 3, v1
        v_lshlrev_b32 v6, 2, v6
        v_bfe_u32 v7, v1, 2, 1
        v_lshlrev_b32 v7, 1, v7
        v_bfe_u32 v5, v1, 3, 1
        v_or_b32 v7, v7, v5
        v_add_u32 v6, v6, v7
        v_and_b32 v7, 48, v1
        v_add_u32 v6, v6, v7
        v_lshlrev_b32 v6, 2, v6
        s_lshl_b32 s{S_T0}, s{S_SW}, 12
        s_add_u32 s{S_T0}, s{S_T0}, {LDS_SC}
        v_add_u32 v25, s{S_T0}, v6
        v_mov_b32 v201, {LDS_N}
        v_mov_b32 v202, 0
        v_mov_b32 v203, {LDS_BLK}
        ds_read_b32 v200, v201
        """)
        if self.defer and not self.pace:
            A(f"s_cmp_eq_u32 s{S_ROLE}, 0")
            A(f"s_cselect_b32 s{S_NCUR}, {self.NOK}, {self.N}")
        if self.NW:
            A(f"s_mov_b32 s{S_NCUR}, {self.NW[0]}")
            for w in range(1, 4):
                A(f"s_cmp_eq_u32 s{S_SW}, {w}")
                A(f"s_cselect_b32 s{S_NCUR}, {self.NW[w]}, s{S_NCUR}")
        A(f"""
        s_waitcnt lgkmcnt(0)
        """)
        D = self.D
        def plan_first(t):
            if t < R - D: return (R - 1 - t, None)
            return (None, (t + D, 'K'))
        def plan_mid(t): return (None, (t + D, 'K'))
        def plan_klast(t):
            if t + D < 256: return (None, (t + D, 'K'))
            return (None, (t + D - 256, 'V'))
        self.k_block(0, plan_first)
        self.k_block(16, plan_first)
        lp = A.label()
        A(f"s_mov_b32 s{S_T3}, 0")
        A.place(lp)
        self.k_block(32, plan_mid)
        self.k_block(48, plan_mid)
        A(f"s_add_u32 s{S_T3}, s{S_T3}, 1")
        A(f"s_cmp_lt_u32 s{S_T3}, 6")
        A(f"s_cbranch_scc1 {lp}")
        self.k_block(224, plan_mid)
        self.k_block(240, plan_klast)
        for t in range(D, PV):
            self.issue(t, 'V')
        self.stamp(4)
        MX, T = 24, 23
        for r in (8, 4, 2, 1):
            A(f"v_max_f32_dpp v{MX}, v{MX}, v{MX} row_ror:{r} row_mask:0xf bank_mask:0xf")
        A(f"""
        v_lshrrev_b32 v6, 4, v1
        v_lshlrev_b32 v6, 2, v6
        s_lshl_b32 s{S_T0}, s{S_SW}, 4
        v_add_u32 v6, s{S_T0}, v6
        v_add_u32 v7, {LDS_WM}, v6
        ds_write_b32 v7, v{MX}
        s_lshl_b32 s{S_T0}, s{S_SW}, 12
        s_add_u32 s{S_T0}, s{S_T0}, {LDS_SC}
        v_add_u32 v14, s{S_T0}, v3
        s_waitcnt lgkmcnt(0)
        """)
        for i in range(16):
            A(f"ds_read_b32 v{48+i}, v14 offset:{i*256}")
        A(f"""
        s_barrier
        v_mov_b32 v7, {LDS_WM}
        ds_read_b128 v[32:35], v7
        ds_read_b128 v[36:39], v7 offset:16
        ds_read_b128 v[40:43], v7 offset:32
        ds_read_b128 v[44:47], v7 offset:48
        s_mov_b32 s{S_T1}, 0x3fb8aa3b
        s_waitcnt lgkmcnt(0)
        """)
        A(f"v_max3_f32 v{MX}, v32, v33, v34")
        for i in range(35, 47, 2):
            A(f"v_max3_f32 v{MX}, v{MX}, v{i}, v{i+1}")
        A(f"v_max_f32 v{MX}, v{MX}, v47")
        for i in range(16):
            A(f"v_sub_f32 v{48+i}, v{48+i}, v{MX}")
        for i in range(16):
            A(f"v_mul_f32 v{48+i}, s{S_T1}, v{48+i}")
        for i in range(16):
            A(f"v_exp_f32 v{48+i}, v{48+i}")
        A(f"v_add_f32 v{T}, v48, v49")
        for i in range(2, 16):
            A(f"v_add_f32 v{T}, v{T}, v{48+i}")
        for r in (8, 4, 2, 1):
            A(f"v_add_f32_dpp v{T}, v{T}, v{T} row_ror:{r} row_mask:0xf bank_mask:0xf")
        A(f"""
        v_add_u32 v7, {LDS_WS}, v6
        ds_write_b32 v7, v{T}
        s_waitcnt lgkmcnt(0)
        s_barrier
        v_mov_b32 v7, {LDS_WS}
        ds_read_b128 v[32:35], v7
        ds_read_b128 v[36:39], v7 offset:16
        ds_read_b128 v[40:43], v7 offset:32
        ds_read_b128 v[44:47], v7 offset:48
        v_and_b32 v6, 15, v1
        v_lshrrev_b32 v7, 1, v6
        v_and_b32 v5, 1, v6
        v_lshlrev_b32 v5, 4, v5
        v_mov_b32 v4, 0xffff
        v_lshlrev_b32 v4, v5, v4
        """)
        for j in range(4):
            A(f"v_cmp_eq_u32 vcc, {j}, v7")
            A(f"v_cndmask_b32 v{16+j}, 0, v4, vcc")
        A("s_waitcnt lgkmcnt(0)")
        for i in range(0, 16, 2):
            A(f"v_add_f32 v{32+i}, v{32+i}, v{33+i}")
        for i in range(0, 16, 4):
            A(f"v_add_f32 v{32+i}, v{32+i}, v{34+i}")
        A(f"v_add_f32 v32, v32, v36")
        A(f"v_add_f32 v40, v40, v44")
        A(f"v_add_f32 v32, v32, v40")
        A(f"v_rcp_f32 v32, v32")
        for i in range(16):
            A(f"v_mul_f32 v{48+i}, v{48+i}, v32")
        for i in range(16):
            A(f"v_cvt_pk_bf16_f32 v{48+i}, v{48+i}, v{48+i}")
        for i in range(1, 16):
            A(f"ds_write_b32 v14, v{48+i} offset:{i*256}")
        A(f"""
        v_mov_b32 v13, v48
        v_add_u32 v14, 256, v14
        v_mov_b32 v28, 0
        v_mov_b32 v29, 0
        v_mov_b32 v30, 0
        v_mov_b32 v31, 0
        """)
        if self.defer and not self.pace:
            A(f"s_cmp_eq_u32 s{S_ROLE}, 0")
            A(f"s_cselect_b32 s{S_NCUR}, {self.NOV}, {self.N}")
        self.stamp(5)
        def plan_vfirst(t):
            if t < PV - D: return (PV - 1 - t, None)
            return (None, (t + D, 'V'))
        def plan_vmid(t): return (None, (t + D, 'V'))
        def plan_vlast(t):
            if t + D < 256: return (None, (t + D, 'V'))
            return (255 - t, None)
        assert PV == 16
        self.v_block(0, plan_vfirst)
        lp = A.label()
        A(f"s_mov_b32 s{S_T3}, 0")
        A.place(lp)
        self.v_block(16, plan_vmid)
        self.v_block(32, plan_vmid)
        A(f"s_add_u32 s{S_T3}, s{S_T3}, 1")
        A(f"s_cmp_lt_u32 s{S_T3}, 7")
        A(f"s_cbranch_scc1 {lp}")
        self.v_block(240, plan_vlast, last=True)
        A(f"""
        v_lshrrev_b32 v6, 4, v1
        v_lshlrev_b32 v6, 7, v6
        v_and_b32 v7, 15, v1
        v_lshlrev_b32 v7, 2, v7
        v_add_u32 v6, v6, v7
        s_lshl_b32 s{S_T0}, s{S_SW}, 9
        s_add_u32 s{S_T0}, s{S_T0}, {LDS_ORED}
        v_add_u32 v6, s{S_T0}, v6
        s_mov_b64 exec, s[{S_MJ8}:{S_MJ8+1}]
        ds_write_b32 v6, v28
        ds_write_b32 v6, v29 offset:32
        ds_write_b32 v6, v30 offset:64
        ds_write_b32 v6, v31 offset:96
        s_mov_b64 exec, -1
        s_waitcnt lgkmcnt(0)
        """)
        self.stamp(6)
        self.cstamp(21)
        A.place("L_join3")

    def tile_afrags(self, base):
        A = self.A
        A(f"""
        v_lshrrev_b32 v4, 4, v1
        v_and_b32 v5, 15, v1
        v_lshrrev_b32 v6, 2, v5
        v_and_b32 v5, 3, v5
        v_lshrrev_b32 v7, 1, v6
        v_and_b32 v8, 1, v4
        v_lshlrev_b32 v8, 1, v8
        v_or_b32 v7, v7, v8
        v_lshlrev_b32 v8, 3, v4
        v_add_u32 v8, v8, v6
        v_lshlrev_b32 v8, 7, v8
        v_lshlrev_b32 v5, 3, v5
        v_add_u32 v8, v8, v5
        s_lshl_b32 s{S_T0}, s{S_WAVE}, 14
        v_add_u32 v8, s{S_T0}, v8
        """)
        for cb in range(4):
            A(f"v_xor_b32 v{9+cb}, {cb}, v7")
            A(f"v_lshlrev_b32 v{9+cb}, 5, v{9+cb}")
            A(f"v_add_u32 v{9+cb}, v{9+cb}, v8")
        for s in range(4):
            for cb in range(4):
                r = base + (s * 4 + cb) * 4
                A(f"ds_read_b64_tr_b16 {vr(r,2)}, v{9+cb} offset:{s*4096}")
                A(f"ds_read_b64_tr_b16 {vr(r+2,2)}, v{9+cb} offset:{s*4096+512}")

    RW = 240
    def red_addrs(self):
        A = self.A
        RW = self.RW
        A(f"""
        v_and_b32 v4, 15, v1
        v_lshrrev_b32 v5, 4, v1
        s_lshl_b32 s{S_T0}, s{S_WAVE}, 11
        s_add_u32 s{S_T0}, s{S_T0}, {LDS_RED}
        v_lshlrev_b32 v6, 8, v4
        v_add_u32 v6, s{S_T0}, v6
        """)
        for cb in range(4):
            A(f"v_add_u32 v7, {4*cb}, v5")
            A(f"v_xor_b32 v7, v7, v4")
            A(f"v_lshlrev_b32 v7, 4, v7")
            A(f"v_add_u32 v{RW+cb}, v7, v6")
        A(f"""
        v_lshrrev_b32 v4, 2, v1
        v_xor_b32 v4, s{S_WAVE}, v4
        v_lshlrev_b32 v4, 4, v4
        v_and_b32 v5, 3, v1
        v_lshlrev_b32 v5, 2, v5
        v_add_u32 v4, v4, v5
        s_lshl_b32 s{S_T0}, s{S_WAVE}, 8
        s_add_u32 s{S_T0}, s{S_T0}, {LDS_RED}
        v_add_u32 v{RW+4}, s{S_T0}, v4
        """)

    def mfma16(self, abase, bregs, acc):
        A = self.A
        for s in range(4):
            for cb in range(4):
                r = abase + (s * 4 + cb) * 4
                a = acc + 4 * cb
                src = "0" if s == 0 else vr(a, 4)
                A(f"v_mfma_f32_16x16x32_bf16 {vr(a,4)}, {vr(r,4)}, {vr(bregs[s],4)}, {src}")

    def red_write(self, acc):
        A = self.A
        A(f"s_mov_b64 exec, s[{S_MJ8}:{S_MJ8+1}]")
        for cb in range(4):
            A(f"ds_write_b128 v{self.RW+cb}, {vr(acc+4*cb,4)}")
        A("s_mov_b64 exec, -1")
        A("s_waitcnt lgkmcnt(0)")

    def red_sum(self, nw, dst):
        A = self.A
        for v in range(nw):
            A(f"ds_read_b32 v{dst+v}, v{self.RW+4} offset:{v*2048}")
        A("s_waitcnt lgkmcnt(0)")
        regs = [dst + v for v in range(nw)]
        while len(regs) > 1:
            nxt = []
            for i in range(0, len(regs) - 1, 2):
                A(f"v_add_f32 v{regs[i]}, v{regs[i]}, v{regs[i+1]}")
                nxt.append(regs[i])
            if len(regs) % 2: nxt.append(regs[-1])
            regs = nxt

    def tail(self):
        A = self.A
        A("s_barrier")
        lskip = A.label()
        A(f"s_cmp_eq_u32 s{S_WAVE}, 0")
        A(f"s_cbranch_scc0 {lskip}")
        A(f"""
        v_lshlrev_b32 v4, 3, v1
        v_add_u32 v4, {LDS_ORED}, v4
        ds_read_b64 v[8:9], v4
        ds_read_b64 v[10:11], v4 offset:512
        ds_read_b64 v[12:13], v4 offset:1024
        ds_read_b64 v[14:15], v4 offset:1536
        s_lshl_b32 s{S_T0}, s{S_B}, 13
        s_lshl_b32 s{S_T1}, s{S_H}, 8
        s_add_u32 s{S_T0}, s{S_T0}, s{S_T1}
        s_add_u32 s{S_T0}, s{S_T0}, {WS_OB}
        s_waitcnt lgkmcnt(0)
        v_pk_add_f32 v[8:9], v[8:9], v[10:11]
        v_pk_add_f32 v[12:13], v[12:13], v[14:15]
        v_pk_add_f32 v[8:9], v[8:9], v[12:13]
        v_cvt_pk_bf16_f32 v8, v8, v9
        v_min_u32 v8, -2, v8
        """)
        self.quad_gather(8, 8)
        A(f"""
        s_mov_b64 exec, s[{S_MQ}:{S_MQ+1}]
        buffer_store_dwordx4 v[8:11], v3, {srd(R_WS)}, s{S_T0} offen sc0 sc1
        s_mov_b64 exec, -1
        """)
        A.place(lskip)
        self.stamp(7)
        if self.defer:
            lnd = A.label(); lp = A.label()
            A("s_barrier")
            A(f"s_cmp_lt_u32 s{S_WAVE}, 4")
            A(f"s_cbranch_scc1 {lnd}")
            A(f"s_cmp_ge_u32 s{S_DJ}, s{S_NJ}")
            A(f"s_cbranch_scc1 {lnd}")
            A(f"s_mov_b32 s{S_T1}, s{S_DS}")
            A(f"s_mov_b32 s{S_T2}, s{S_DM}")
            A(f"s_mov_b32 s{S_T3}, s{S_DJ}")
            A(f"s_mov_b32 s{S_T0}, s{S_DST}")
            A(f"v_mov_b32 v4, v204")
            lpd = A.label()
            A(f"s_cmp_eq_u32 s{S_ROLE}, 2")
            A(f"s_cbranch_scc1 {lpd}")
            A.place(lp)
            self.dma_iter(self.NT - 1)
            A(f"s_cmp_lt_u32 s{S_T3}, s{S_NJ}")
            A(f"s_cbranch_scc1 {lp}")
            A(f"s_branch {lnd}")
            A.place(lpd)
            self.dma_iter(self.NTD - 1)
            A(f"s_cmp_lt_u32 s{S_T3}, s{S_NJ}")
            A(f"s_cbranch_scc1 {lpd}")
            A.place(lnd)
        if self.stop_after == "attn":
            A("s_branch L_end")
        A(f"""
        s_cmp_eq_u32 s{S_ROLE}, 0
        s_cbranch_scc1 L_roleO
        s_cmp_eq_u32 s{S_ROLE}, 1
        s_cbranch_scc1 L_roleG
        s_cmp_eq_u32 s{S_ROLE}, 2
        s_cbranch_scc1 L_roleD
        s_branch L_roleF
        """)
        self.role_O()
        self.role_G()
        self.role_D()
        self.role_F()

    def role_O(self):
        A = self.A
        A.place("L_roleO")
        AB = 64
        A(f"s_lshr_b32 s{S_NJ}, s{S_H}, 1")
        A(f"s_and_b32 s{S_PITCH}, s{S_H}, 1")
        A(f"s_lshl_b32 s{S_T0}, s{S_B}, 1")
        A(f"s_add_u32 s{S_PITCH}, s{S_PITCH}, s{S_T0}")
        A(f"""
        v_and_b32 v4, 15, v1
        v_lshlrev_b32 v4, 13, v4
        v_lshrrev_b32 v5, 4, v1
        v_lshlrev_b32 v5, 4, v5
        v_add_u32 v16, v4, v5
        s_lshl_b32 s{S_JJ}, s{S_NJ}, 11
        s_lshl_b32 s{S_T1}, s{S_WAVE}, 8
        s_add_u32 s{S_JJ}, s{S_JJ}, s{S_T1}
        s_add_u32 s{S_JJ}, s{S_JJ}, {WS_OB}
        """)
        oloads = [f"buffer_load_dwordx4 {vr(32+4*s_,4)}, v16, {srd(R_WS)}, s{S_JJ} offen offset:{s_*64} {self.LP}" for s_ in range(4)]
        self.poll_issue(oloads, range(32, 48), mask=S_MJ8)
        self.local_flag()
        self.mk_srd(R_X, S_X, 16384)
        A(f"""
        v_bfe_u32 v14, v1, 2, 3
        v_lshlrev_b32 v14, 11, v14
        v_and_b32 v15, 3, v1
        v_lshlrev_b32 v13, 3, v15
        v_add_u32 v13, v13, v14
        s_lshl_b32 s{S_T0}, s{S_PITCH}, 7
        s_lshl_b32 s{S_T1}, s{S_NJ}, 5
        s_add_u32 s{S_T0}, s{S_T0}, s{S_T1}
        buffer_load_dwordx2 v[28:29], v13, {srd(R_X)}, s{S_T0} offen
        s_add_u32 s{S_OFF}, s{S_T0}, {WS_H}
        v_lshrrev_b32 v15, 1, v15
        v_lshlrev_b32 v15, 4, v15
        v_add_u32 v14, v14, v15
        """)
        self.tile_afrags(AB)
        self.red_addrs()
        A(f"""
        v_bfe_u32 v4, v1, 2, 3
        v_and_b32 v5, 3, v1
        s_lshl_b32 s{S_T0}, s{S_WAVE}, 2
        v_add_u32 v5, s{S_T0}, v5
        v_xor_b32 v5, v5, v4
        v_lshlrev_b32 v5, 4, v5
        v_lshlrev_b32 v4, 8, v4
        v_add_u32 v4, v4, v5
        v_lshrrev_b32 v5, 5, v1
        v_lshlrev_b32 v5, 13, v5
        v_add_u32 v4, v4, v5
        v_add_u32 v19, {LDS_RED}, v4
        v_and_b32 v4, 31, v1
        v_lshlrev_b32 v13, 4, v4
        s_lshl_b32 s{S_T2}, s{S_PITCH}, 13
        s_add_u32 s{S_T2}, s{S_T2}, {WS_OP}
        s_lshl_b32 s{S_T1}, s{S_WAVE}, 11
        s_add_u32 s{S_T3}, s{S_T2}, s{S_T1}
        s_lshl_b32 s{S_T1}, s{S_NJ}, 9
        s_add_u32 s{S_T3}, s{S_T3}, s{S_T1}
        s_lshl_b32 s{S_T1}, s{S_NJ}, 11
        s_add_u32 s{S_T2}, s{S_T2}, s{S_T1}
        """)
        self.poll_pipe(oloads, range(32, 48), 17, mask=S_MJ8, sleep=self.PS, issued=True)
        self.stamp(8)
        A("s_waitcnt lgkmcnt(0)")
        self.mfma16(AB, [32, 36, 40, 44], 48)
        self.red_write(48)
        A("s_barrier")
        lr1 = A.label()
        A(f"s_cmp_ge_u32 s{S_WAVE}, 4")
        A(f"s_cbranch_scc1 {lr1}")
        for v in range(4):
            A(f"ds_read_b128 {vr(32+4*v,4)}, v19 offset:{v*2048}")
        A("s_waitcnt lgkmcnt(0)")
        for e in (0, 2):
            A(f"v_pk_add_f32 {vr(32+e,2)}, {vr(32+e,2)}, {vr(36+e,2)}")
            A(f"v_pk_add_f32 {vr(40+e,2)}, {vr(40+e,2)}, {vr(44+e,2)}")
        for e in (0, 2):
            A(f"v_pk_add_f32 {vr(32+e,2)}, {vr(32+e,2)}, {vr(40+e,2)}")
        for e in range(4):
            A(f"v_mov_b32 v{36+e}, v{32+e}")
        for e in range(4):
            A(f"v_permlane32_swap_b32 v{32+e}, v{36+e}")
        for e in (0, 2):
            A(f"v_pk_add_f32 {vr(32+e,2)}, {vr(32+e,2)}, {vr(36+e,2)}")
        for e in range(4):
            A(f"v_min_u32 v{32+e}, -2, v{32+e}")
        A("s_mov_b64 exec, 0xffffffff")
        self.store_sel(f"buffer_store_dwordx4 v[32:35], v13, {srd(R_WS)}, s{S_T3} offen")
        A("s_mov_b64 exec, -1")
        self.stamp(9)
        A("s_branch L_end")
        A.place(lr1)
        A(f"s_cmp_eq_u32 s{S_WAVE}, 4")
        A(f"s_cbranch_scc0 L_end")
        A(f"v_lshlrev_b32 v20, 16, v28")
        A(f"v_and_b32 v21, 0xffff0000, v28")
        A(f"v_lshlrev_b32 v22, 16, v29")
        A(f"v_and_b32 v23, 0xffff0000, v29")
        loads = [f"buffer_load_dwordx4 v[32:35], v2, {srd(R_WS)}, s{S_T2} offen {self.LP}",
                 f"buffer_load_dwordx4 v[36:39], v2, {srd(R_WS)}, s{S_T2} offen offset:1024 {self.LP}"]
        self.poll_pipe(loads, range(32, 40), 17, sleep=0)
        self.stamp(9)
        for e in (0, 2):
            A(f"v_pk_add_f32 {vr(40+e,2)}, {vr(32+e,2)}, {vr(36+e,2)}")
        for e in range(4):
            A(f"v_mov_b32 v{44+e}, v{40+e}")
        for e in range(4):
            A(f"v_permlane32_swap_b32 v{40+e}, v{44+e}")
        for e in (0, 2):
            A(f"v_pk_add_f32 {vr(40+e,2)}, {vr(40+e,2)}, {vr(44+e,2)}")
        A(f"""
        v_cvt_pk_bf16_f32 v44, v40, v41
        v_cvt_pk_bf16_f32 v45, v42, v43
        v_lshlrev_b32 v40, 16, v44
        v_and_b32 v41, 0xffff0000, v44
        v_lshlrev_b32 v42, 16, v45
        v_and_b32 v43, 0xffff0000, v45
        v_pk_add_f32 v[40:41], v[40:41], v[20:21]
        v_pk_add_f32 v[42:43], v[42:43], v[22:23]
        v_cvt_pk_bf16_f32 v48, v40, v41
        v_cvt_pk_bf16_f32 v49, v42, v43
        v_min_u32 v48, -2, v48
        v_min_u32 v49, -2, v49
        v_mov_b32_dpp v50, v48 quad_perm:[1,1,3,3] row_mask:0xf bank_mask:0xf
        v_mov_b32_dpp v51, v49 quad_perm:[1,1,3,3] row_mask:0xf bank_mask:0xf
        s_mov_b64 exec, 0x55555555
        buffer_store_dwordx4 v[48:51], v14, {srd(R_WS)}, s{S_OFF} offen sc0 sc1
        s_mov_b64 exec, -1
        """)
        self.stamp(16)
        A("s_branch L_end")

    def role_G(self):
        A = self.A
        A.place("L_roleG")
        AB = 160
        self.local_flag()
        self.red_addrs()
        F, D = 96, 128
        A(f"""
        s_lshl_b32 s{S_T0}, s{S_WAVE}, 1
        v_xor_b32 v14, s{S_T0}, v1
        v_lshlrev_b32 v14, 4, v14
        s_lshl_b32 s{S_T0}, s{S_WAVE}, 11
        s_add_u32 s{S_T0}, s{S_T0}, {LDS_XN2}
        v_add_u32 v14, s{S_T0}, v14
        v_and_b32 v17, 7, v1
        v_lshrrev_b32 v18, 4, v1
        v_lshlrev_b32 v19, 11, v17
        s_lshl_b32 s{S_T0}, s{S_WAVE}, 8
        s_add_u32 s{S_T0}, s{S_T0}, {LDS_XN2}
        v_add_u32 v19, s{S_T0}, v19
        v_lshlrev_b32 v17, 1, v17
        """)
        for s_ in range(4):
            A(f"v_add_u32 v28, {4*s_}, v18")
            A(f"v_xor_b32 v28, v28, v17")
            A(f"v_lshlrev_b32 v28, 4, v28")
            A(f"v_add_u32 v{232+s_}, v28, v19")
        A(f"""
        s_sub_u32 s{S_T0}, s{S_H}, 8
        s_and_b32 s{S_T1}, s{S_T0}, 1
        s_mul_i32 s{S_T1}, s{S_T1}, 57344
        s_lshr_b32 s{S_T0}, s{S_T0}, 1
        s_mul_i32 s{S_T2}, s{S_B}, 7
        s_add_u32 s{S_T0}, s{S_T0}, s{S_T2}
        s_lshl_b32 s{S_T0}, s{S_T0}, 7
        s_add_u32 s{S_T0}, s{S_T0}, s{S_T1}
        s_mul_i32 s{S_T1}, s{S_WAVE}, 7168
        s_add_u32 s{S_T0}, s{S_T0}, s{S_T1}
        s_add_u32 s{S_OFF}, s{S_T0}, {WS_GU}
        v_lshlrev_b32 v15, 1, v1
        s_lshl_b32 s{S_T0}, s{S_WAVE}, 13
        s_add_u32 s{S_T0}, s{S_T0}, {WS_OB}
        v_lshlrev_b32 v17, 8, v1
        s_mov_b64 s[{S_EX}:{S_EX+1}], 0xffffffff
        """)
        self.sample_wait(False, 17, 18, self.HS)
        A(f"s_lshl_b32 s{S_JJ}, s{S_WAVE}, 11")
        A(f"s_add_u32 s{S_JJ}, s{S_JJ}, {WS_H}")
        loads = [f"buffer_load_dwordx4 v[20:23], v2, {srd(R_WS)}, s{S_JJ} offen {self.LP}",
                 f"buffer_load_dwordx4 v[24:27], v2, {srd(R_WS)}, s{S_JJ} offen offset:1024 {self.LP}"]
        self.poll_issue(loads, range(20, 28))
        self.tile_afrags(AB)
        self.stamp(16)
        self.poll_pipe(loads, range(20, 28), 17, sleep=self.GSL, issued=True)
        self.stamp(8)
        for i in range(8):
            A(f"v_lshlrev_b32 v{F+2*i}, 16, v{20+i}")
            A(f"v_and_b32 v{F+2*i+1}, 0xffff0000, v{20+i}")
        S1, S2, T1, T2, VMB, VRS = 144, 146, 148, 149, 150, 152
        self.ln_stats(F, D, S1, S2, T1, T2, VMB, VRS)
        for i in range(8):
            self.ln_apply(48 + i, F + 2*i, VMB, VRS, 154 + 2 * (i % 2))
        A(f"ds_write_b128 v14, v[48:51]")
        A(f"ds_write_b128 v14, v[52:55] offset:1024")
        A("s_waitcnt lgkmcnt(0)")
        A("s_barrier")
        for s_ in range(4):
            A(f"ds_read_b128 {vr(32+4*s_,4)}, v{232+s_}")
        A("s_waitcnt lgkmcnt(0)")
        self.mfma16(AB, [32, 36, 40, 44], 48)
        self.red_write(48)
        A("s_waitcnt vmcnt(0)")
        A("s_barrier")
        self.red_sum(8, 20)
        self.rnd_bf16(20, 20)
        lup = A.label()
        A(f"s_bitcmp1_b32 s{S_H}, 0")
        A(f"s_cbranch_scc1 {lup}")
        A(f"""
        v_mul_f32 v17, v20, v20
        v_mul_f32 v18, v17, v20
        v_mul_f32 v18, 0x3d372713, v18
        v_add_f32 v18, v20, v18
        v_mul_f32 v18, 0x3f4c422a, v18
        v_mul_f32 v18, 0x4038aa3b, v18
        v_min_f32 v18, 0x42700000, v18
        v_exp_f32 v18, v18
        v_add_f32 v19, 1.0, v18
        v_rcp_f32 v19, v19
        v_mul_f32 v18, v18, v19
        v_mul_f32 v20, v20, v18
        """)
        A.place(lup)
        A(f"""
        v_mov_b32_dpp v17, v20 quad_perm:[1,1,3,3] row_mask:0xf bank_mask:0xf
        v_cvt_pk_bf16_f32 v20, v20, v17
        v_min_u32 v20, -2, v20
        """)
        self.even_gather(20, 20)
        A(f"s_mov_b64 exec, s[{S_ME}:{S_ME+1}]")
        self.store_sel(f"buffer_store_dwordx4 v[20:23], v15, {srd(R_WS)}, s{S_OFF} offen")
        A(f"s_mov_b64 exec, -1")
        self.stamp(9)
        A("s_branch L_end")

    def role_D(self):
        A = self.A
        A.place("L_roleD")
        AB = 160
        RW = 224
        A(f"""
        v_lshrrev_b32 v4, 1, v1
        v_xor_b32 v4, s{S_WAVE}, v4
        v_lshlrev_b32 v4, 4, v4
        v_and_b32 v5, 1, v1
        v_lshlrev_b32 v5, 3, v5
        v_add_u32 v4, v4, v5
        s_lshl_b32 s{S_T0}, s{S_WAVE}, 9
        s_add_u32 s{S_T0}, s{S_T0}, {LDS_RED}
        v_add_u32 v{RW+8}, s{S_T0}, v4
        s_lshl_b32 s{S_T0}, s{S_B}, 15
        s_lshl_b32 s{S_T1}, s{S_WAVE}, 12
        s_add_u32 s{S_T0}, s{S_T0}, s{S_T1}
        s_sub_u32 s{S_T1}, s{S_H}, 22
        s_lshl_b32 s{S_T1}, s{S_T1}, 9
        s_add_u32 s{S_T0}, s{S_T0}, s{S_T1}
        s_add_u32 s{S_OFF}, s{S_T0}, {WS_DP}
        v_lshlrev_b32 v15, 3, v1
        """)
        lno = A.label(); lgo = A.label()
        A(f"s_cmp_eq_u32 s{S_WAVE}, 7")
        A(f"s_cbranch_scc0 {lgo}")
        A("s_waitcnt vmcnt(0)")
        A("s_barrier")
        A(f"s_branch {lno}")
        A.place(lgo)
        A(f"""
        v_lshrrev_b32 v4, 4, v1
        v_and_b32 v5, 15, v1
        v_lshrrev_b32 v6, 2, v5
        v_and_b32 v5, 3, v5
        v_lshrrev_b32 v7, 1, v6
        v_and_b32 v8, 1, v4
        v_lshlrev_b32 v8, 1, v8
        v_or_b32 v7, v7, v8
        v_lshlrev_b32 v8, 3, v4
        v_add_u32 v8, v8, v6
        v_lshlrev_b32 v8, 7, v8
        v_lshlrev_b32 v5, 3, v5
        v_add_u32 v8, v8, v5
        s_lshl_b32 s{S_T0}, s{S_WAVE}, 13
        v_add_u32 v8, s{S_T0}, v8
        """)
        for cb in range(4):
            A(f"v_xor_b32 v{9+cb}, {cb}, v7")
            A(f"v_lshlrev_b32 v{9+cb}, 5, v{9+cb}")
            A(f"v_add_u32 v{9+cb}, v{9+cb}, v8")
        A(f"""
        v_and_b32 v4, 15, v1
        v_lshrrev_b32 v5, 4, v1
        s_lshl_b32 s{S_T0}, s{S_WAVE}, 12
        s_add_u32 s{S_T0}, s{S_T0}, {LDS_RED}
        v_lshlrev_b32 v6, 9, v4
        v_add_u32 v6, s{S_T0}, v6
        """)
        for cb in range(8):
            A(f"v_add_u32 v7, {4*cb}, v5")
            A(f"v_xor_b32 v7, v7, v4")
            A(f"v_lshlrev_b32 v7, 4, v7")
            A(f"v_add_u32 v{RW+cb}, v7, v6")
        A(f"""
        v_and_b32 v4, 7, v1
        v_mul_u32_u24 v4, 7168, v4
        v_bfe_u32 v5, v1, 3, 1
        v_lshlrev_b32 v5, 6, v5
        v_add_u32 v4, v4, v5
        v_lshrrev_b32 v5, 4, v1
        v_lshlrev_b32 v5, 4, v5
        v_add_u32 v16, v4, v5
        s_mul_i32 s{S_T0}, s{S_B}, 7
        s_add_u32 s{S_T0}, s{S_T0}, s{S_WAVE}
        s_lshl_b32 s{S_T0}, s{S_T0}, 7
        s_add_u32 s{S_T0}, s{S_T0}, {WS_GU}
        s_add_u32 s{S_T1}, s{S_T0}, 57344
        s_lshl_b32 s{S_T2}, s{S_WAVE}, 11
        s_add_u32 s{S_T2}, s{S_T2}, {WS_H}
        v_lshlrev_b32 v17, 5, v1
        """)
        A(f"s_mov_b32 s{S_T2}, s{S_T0}")
        A(f"s_mov_b32 s{S_T3}, s{S_T1}")
        self.sample_wait(True, 17, 18, self.HS)
        loads = [f"buffer_load_dwordx4 v[32:35], v16, {srd(R_WS)}, s{S_T2} offen {self.LP}",
                 f"buffer_load_dwordx4 v[36:39], v16, {srd(R_WS)}, s{S_T3} offen {self.LP}"]
        self.poll_issue(loads, range(32, 40))
        for s_ in range(2):
            for cb in range(8):
                r = AB + (s_ * 8 + cb) * 4
                off = s_ * 4096 + (cb // 4) * 57344
                A(f"ds_read_b64_tr_b16 {vr(r,2)}, v{9+cb%4} offset:{off}")
                A(f"ds_read_b64_tr_b16 {vr(r+2,2)}, v{9+cb%4} offset:{off+512}")
        self.stamp(16)
        self.poll_pipe(loads, range(32, 40), 17, sleep=0, issued=True)
        self.stamp(8)
        for i in range(0, 4, 2):
            g, u = 32 + i, 36 + i
            A(f"v_lshlrev_b32 v64, 16, v{g}")
            A(f"v_and_b32 v65, 0xffff0000, v{g}")
            A(f"v_lshlrev_b32 v66, 16, v{u}")
            A(f"v_and_b32 v67, 0xffff0000, v{u}")
            A(f"v_lshlrev_b32 v68, 16, v{g+1}")
            A(f"v_and_b32 v69, 0xffff0000, v{g+1}")
            A(f"v_lshlrev_b32 v70, 16, v{u+1}")
            A(f"v_and_b32 v71, 0xffff0000, v{u+1}")
            A(f"v_pk_mul_f32 v[64:65], v[64:65], v[66:67]")
            A(f"v_pk_mul_f32 v[68:69], v[68:69], v[70:71]")
            A(f"v_cvt_pk_bf16_f32 v{72+i}, v64, v65")
            A(f"v_cvt_pk_bf16_f32 v{73+i}, v68, v69")
        for e in range(4):
            A(f"v_mov_b32_dpp v{76+e}, v{72+e} row_shl:8 row_mask:0xf bank_mask:0xf")
        A("s_waitcnt lgkmcnt(0)")
        ACC = 88
        for cb in range(8):
            A(f"v_mfma_f32_16x16x32_bf16 {vr(ACC+4*cb,4)}, {vr(AB+cb*4,4)}, v[72:75], 0")
        for cb in range(8):
            A(f"v_mfma_f32_16x16x32_bf16 {vr(ACC+4*cb,4)}, {vr(AB+(8+cb)*4,4)}, v[76:79], {vr(ACC+4*cb,4)}")
        A(f"s_mov_b64 exec, s[{S_MJ8}:{S_MJ8+1}]")
        for cb in range(8):
            A(f"ds_write_b128 v{RW+cb}, {vr(ACC+4*cb,4)}")
        A("s_mov_b64 exec, -1")
        A("s_waitcnt lgkmcnt(0)")
        A.place(lno)
        A("s_barrier")
        for v in range(7):
            A(f"ds_read_b64 {vr(20+2*v,2)}, v{RW+8} offset:{v*4096}")
        A("s_waitcnt lgkmcnt(0)")
        A(f"""
        v_pk_add_f32 v[20:21], v[20:21], v[22:23]
        v_pk_add_f32 v[24:25], v[24:25], v[26:27]
        v_pk_add_f32 v[28:29], v[28:29], v[30:31]
        v_pk_add_f32 v[20:21], v[20:21], v[24:25]
        v_pk_add_f32 v[28:29], v[28:29], v[32:33]
        v_pk_add_f32 v[20:21], v[20:21], v[28:29]
        v_min_u32 v20, -2, v20
        v_min_u32 v21, -2, v21
        v_mov_b32_dpp v22, v20 quad_perm:[1,1,3,3] row_mask:0xf bank_mask:0xf
        v_mov_b32_dpp v23, v21 quad_perm:[1,1,3,3] row_mask:0xf bank_mask:0xf
        s_mov_b32 s{S_T2}, 0x55555555
        s_mov_b32 s{S_T3}, 0x55555555
        s_mov_b64 exec, s[{S_T2}:{S_T3}]
        buffer_store_dwordx4 v[20:23], v15, {srd(R_WS)}, s{S_OFF} offen sc0 sc1
        s_mov_b64 exec, -1
        """)
        self.stamp(9)
        A("s_branch L_end")

    def role_F(self):
        A = self.A
        A.place("L_roleF")
        self.mk_srd(R_OUT, S_OUT, 16384)
        A(f"""
        s_sub_u32 s{S_T2}, s{S_H}, 30
        s_lshl_b32 s{S_T0}, s{S_B}, 1
        s_add_u32 s{S_T2}, s{S_T2}, s{S_T0}
        v_lshrrev_b32 v4, 4, v1
        v_lshlrev_b32 v4, 15, v4
        v_and_b32 v5, 15, v1
        v_lshlrev_b32 v6, 4, v5
        v_add_u32 v16, v4, v6
        v_lshlrev_b32 v15, 3, v5
        s_lshl_b32 s{S_T0}, s{S_WAVE}, 12
        s_lshl_b32 s{S_T1}, s{S_T2}, 8
        s_add_u32 s{S_T0}, s{S_T0}, s{S_T1}
        s_add_u32 s{S_T0}, s{S_T0}, {WS_DP}
        s_add_u32 s{S_T1}, s{S_T0}, 131072
        s_lshl_b32 s{S_PITCH}, s{S_WAVE}, 11
        s_lshl_b32 s{S_T3}, s{S_T2}, 7
        s_add_u32 s{S_PITCH}, s{S_PITCH}, s{S_T3}
        s_add_u32 s{S_T2}, s{S_PITCH}, {WS_H}
        s_mul_i32 s{S_T3}, s{S_WAVE}, 7168
        s_add_u32 s{S_T3}, s{S_T3}, {WS_GU}
        v_lshlrev_b32 v17, 7, v1
        s_mov_b32 s{S_EX}, -1
        s_mov_b32 s{S_EX+1}, 0x00ffffff
        """)
        self.sample_wait(True, 17, 18, self.HS)
        self.stamp(16)
        loads = [f"buffer_load_dwordx4 v[32:35], v16, {srd(R_WS)}, s{S_T0} offen {self.LP}",
                 f"buffer_load_dwordx4 v[36:39], v16, {srd(R_WS)}, s{S_T1} offen {self.LP}",
                 f"buffer_load_dwordx2 v[40:41], v15, {srd(R_WS)}, s{S_T2} offen {self.LP}"]
        self.poll_pipe(loads, range(32, 42), 17, sleep=self.FSL)
        self.stamp(8)
        A(f"""
        v_pk_add_f32 v[20:21], v[32:33], v[36:37]
        v_pk_add_f32 v[22:23], v[34:35], v[38:39]
        """)
        for sw in ("v_permlane16_swap_b32", "v_permlane32_swap_b32"):
            for e in range(4):
                A(f"v_mov_b32 v{24+e}, v{20+e}")
            for e in range(4):
                A(f"{sw} v{20+e}, v{24+e}")
            A(f"v_pk_add_f32 v[20:21], v[20:21], v[24:25]")
            A(f"v_pk_add_f32 v[22:23], v[22:23], v[26:27]")
        A(f"""
        v_cvt_pk_bf16_f32 v24, v20, v21
        v_cvt_pk_bf16_f32 v25, v22, v23
        v_lshlrev_b32 v20, 16, v24
        v_and_b32 v21, 0xffff0000, v24
        v_lshlrev_b32 v22, 16, v25
        v_and_b32 v23, 0xffff0000, v25
        v_lshlrev_b32 v24, 16, v40
        v_and_b32 v25, 0xffff0000, v40
        v_lshlrev_b32 v26, 16, v41
        v_and_b32 v27, 0xffff0000, v41
        v_pk_add_f32 v[20:21], v[20:21], v[24:25]
        v_pk_add_f32 v[22:23], v[22:23], v[26:27]
        v_cvt_pk_bf16_f32 v20, v20, v21
        v_cvt_pk_bf16_f32 v21, v22, v23
        s_mov_b64 exec, 0xffff
        buffer_store_dwordx2 v[20:21], v15, {srd(R_OUT)}, s{S_PITCH} offen
        s_mov_b64 exec, -1
        """)
        lne = A.label()
        A(f"""
        s_cmp_eq_u32 s2, 240
        s_cbranch_scc0 {lne}
        s_cmp_eq_u32 s{S_WAVE}, 0
        s_cbranch_scc0 {lne}
        v_mov_b32 v20, 0
        v_mov_b32 v21, s{S_TAG}
        s_mov_b32 s{S_T1}, {WS_EPOCH}
        s_mov_b64 exec, 1
        buffer_store_dword v21, v20, {srd(R_WS)}, s{S_T1} offen sc0 sc1
        s_mov_b64 exec, -1
        """)
        A.place(lne)
        self.stamp(9)

    def build(self):
        A = self.A
        self.entry()
        self.service()
        self.stream()
        self.tail()
        A.place("L_end")
        if self.stamps in ("tail", "early", "svc", "entry"):
            A("s_cmp_ge_u32 s2, 256")
            A("s_cbranch_scc1 L_end2")
            A("s_memrealtime s[18:19]")
            A("s_waitcnt lgkmcnt(0)")
            A(f"s_lshl_b32 s3, s{S_WG}, 3")
            A(f"s_add_u32 s3, s3, s{S_WAVE}")
            A(f"s_lshl_b32 s3, s3, 7")
            A(f"s_add_u32 s3, s3, {WS_DBG + 0x100000}")
            A(f"s_mov_b64 exec, 1")
            A(f"v_mov_b32 v255, 0")
            A(f"v_mov_b32 v254, s18")
            A(f"v_mov_b32 v255, 0")
            A(f"buffer_store_dword v254, v255, {srd(R_WS)}, s3 offen offset:120")
            A("s_getreg_b32 s16, hwreg(HW_REG_XCC_ID)")
            A(f"v_mov_b32 v254, s16")
            A(f"buffer_store_dword v254, v255, {srd(R_WS)}, s3 offen offset:124")
            for idx, j in self.LIGHT.items():
                A(f"v_mov_b32 v254, s{4+2*j}")
                A(f"buffer_store_dword v254, v255, {srd(R_WS)}, s3 offen offset:{idx*4}")
            A.place("L_end2")
        A("s_endpgm")
        A.footer(256, 102, 256)
        A.fix_hazards()
        return A.text()

if __name__ == "__main__":
    import argparse
    ap = argparse.ArgumentParser()
    ap.add_argument("-o", default="main.s")
    ap.add_argument("--N", type=int, default=5)
    ap.add_argument("--NP", type=int, default=8)
    ap.add_argument("--LP", default="sc1")
    ap.add_argument("--PD", type=int, default=1)
    ap.add_argument("--HG", type=int, default=48)
    ap.add_argument("--HD", type=int, default=64)
    ap.add_argument("--HS", type=int, default=2)
    ap.add_argument("--nolocal", action="store_true")
    ap.add_argument("--pace", action="store_true")
    ap.add_argument("--rot", type=int, default=0)
    ap.add_argument("--defer", action="store_true")
    ap.add_argument("--JU", type=int, default=8)
    ap.add_argument("--NOK", type=int, default=6)
    ap.add_argument("--NOV", type=int, default=5)
    ap.add_argument("--NT", type=int, default=16)
    ap.add_argument("--NTD", type=int, default=4)
    ap.add_argument("--NW", default=None)
    ap.add_argument("--NMIN", type=int, default=4)
    ap.add_argument("--GTH", default="")
    ap.add_argument("--GM", type=int, default=16)
    ap.add_argument("--bias", action="store_true")
    ap.add_argument("--GH", type=int, default=6)
    ap.add_argument("--GL", type=int, default=2)
    ap.add_argument("--DMAX", type=int, default=7)
    ap.add_argument("--TH", default="64,192,240")
    ap.add_argument("--GSL", type=int, default=1)
    ap.add_argument("--FSL", type=int, default=1)
    ap.add_argument("--KP", default="nt")
    ap.add_argument("--VP", default="nt")
    ap.add_argument("--WP", default="nt")
    ap.add_argument("--PS", type=int, default=1)
    ap.add_argument("--debug", action="store_true")
    ap.add_argument("--stamps", default=None)
    ap.add_argument("--stop", default=None)
    a = ap.parse_args()
    g = Gen(N=a.N, NP=a.NP, LP=a.LP, PD=a.PD, PS=a.PS, HG=a.HG, HD=a.HD, HS=a.HS, nolocal=a.nolocal, pace=a.pace, GTH=tuple(int(x) for x in a.GTH.split(',') if x), GM=a.GM, bias=a.bias, GH=a.GH, GL=a.GL, DMAX=a.DMAX, rot=a.rot, defer=a.defer, JU=a.JU, NOK=a.NOK, NOV=a.NOV, NT=a.NT, NTD=a.NTD, NW=(tuple(int(x) for x in a.NW.split(',')) if a.NW else None), NMIN=a.NMIN, TH=tuple(int(x) for x in a.TH.split(',')), GSL=a.GSL, FSL=a.FSL, KP=a.KP, VP=a.VP, WP=a.WP, debug=a.debug, stamps=a.stamps, stop_after=a.stop)
    open(a.o, "w").write(g.build())
```

```python
import sys
from asmlib import *

LDS_WQ = 98304
LDS_SC = 131072
LDS_MISC = 147456
LDS_XN = LDS_MISC
LDS_Q = LDS_MISC + 2304
LDS_CNT = LDS_MISC + 2560
LDS_WM = LDS_MISC + 2624
LDS_WS = LDS_MISC + 2688
LDS_ORED = LDS_MISC + 4096
LDS_XCC = LDS_MISC + 8192
LDS_BLK = LDS_MISC + 2576
LDS_N = LDS_MISC + 2580
LDS_RED = LDS_SC
LDS_XN2 = LDS_MISC
LDS_BYTES = 163840

WS_QP = 0x000000
WS_SLOT = 0x100000
WS_OB = WS_SLOT + 0x00000
WS_OP = WS_SLOT + 0x10000
WS_H = WS_SLOT + 0x30000
WS_GU = WS_SLOT + 0x34000
WS_DP = WS_SLOT + 0x50000
WS_C2 = WS_SLOT + 0x90000
WS_C3 = WS_SLOT + 0x90100
WS_PROG = WS_SLOT + 0xA0000
WS_GP = WS_SLOT + 0xB0000
WS_BIAS = WS_SLOT + 0xC0000
WS_FLAG = 0x200000
WS_EPOCH = 0x210000
WS_DBG = 0x300000
WS_SIZE = 0x600000
SPIN = 1 << 20

S_WG = 2
S_X, S_K, S_V, S_WQ, S_WO, S_BX, S_WG_, S_WU, S_WD, S_OUT, S_DBG, S_WS = 16, 18, 20, 22, 24, 26, 28, 30, 32, 34, 36, 38
R_K, R_V, R_X, R_WQ, R_WT, R_WS, R_OUT = 40, 44, 48, 52, 56, 60, 68
S_WAVE, S_H, S_B, S_SW = 72, 73, 74, 75
S_T0, S_T1, S_T2, S_T3, S_T4, S_T5 = 76, 77, 78, 79, 80, 81
S_OFF, S_CNT, S_PITCH, S_NJ, S_ROLE = 82, 83, 84, 85, 86
S_M1, S_M2, S_M3 = 88, 90, 92
S_MJ8 = 94
S_EX = 96
S_TAG = 98
S_MQ = 64
S_JJ = 100
S_ROT = 50
S_J1 = 51
S_DS, S_DM, S_DJ, S_DST = 52, 53, 54, 55
S_NCUR = 3
S_JA = 101
S_LOC = 87
S_XCC = 99
S_ME = 66
S_PM = 40
def srd(r): return f"s[{r}:{r+3}]"
def vr(a, n): return f"v[{a}:{a+n-1}]"

class Gen:
    def __init__(self, N=5, NP=8, PV=16, LP='sc1', PD=1, PS=1, HG=64, HD=64, HS=4, nolocal=False, rot=0, defer=False, JU=8, NOK=6, NOV=5, NT=16, NTD=4, pace=False, NW=None, NMIN=4, TH=(64, 192, 240), GTH=(), GM=16, DMAX=7, bias=False, GH=6, GL=2, GSL=1, FSL=1, KP='nt', VP='nt', WP='nt', debug=False, stamps=False, stop_after=None):
        self.A = Asm()
        self.N, self.NP, self.PV, self.LP = N, NP, PV, LP
        self.debug, self.stamps, self.stop_after = debug, stamps, stop_after
        self.OSLEEP, self.GSLEEP, self.DSLEEP = 1, 0, 0
        self.PD, self.PS = PD, PS
        self.nolocal = nolocal
        self.rot = rot
        self.defer, self.JU, self.NOK, self.NOV, self.NT = defer, (JU if defer else 24), NOK, NOV, NT
        self.NTD = NTD
        self.pace = pace
        self.GTH, self.GM = GTH, GM
        self.bias, self.GH, self.GL, self.NBASE = bias, GH, GL, NMIN
        self.D = min(NMIN + len(TH) + (1 if bias else 0), DMAX) if pace else N
        if bias and GL > 0: NMIN = NMIN - 1
        self.NW = NW
        if defer and not pace: self.D = max(N, NOK, NOV); NMIN = min(N, NOK, NOV)
        if NW:
            self.D = max(NW); NMIN = min(NW)
        self.NMIN, self.TH, self.PK0 = NMIN, TH, 2
        self.GSL, self.FSL = GSL, FSL
        self.KP, self.VP, self.WP = KP, VP, WP
        self.HG, self.HD, self.HS = HG, HD, HS

    def mk_srd(self, r, ptr, size, add_lo=None):
        A = self.A
        if add_lo is None:
            A(f"s_mov_b32 s{r}, s{ptr}")
            A(f"s_mov_b32 s{r+1}, s{ptr+1}")
        else:
            A(f"s_add_u32 s{r}, s{ptr}, {add_lo}")
            A(f"s_addc_u32 s{r+1}, s{ptr+1}, 0")
        A(f"s_mov_b32 s{r+2}, {size}")
        A(f"s_mov_b32 s{r+3}, 0x20000")

    def lds_signal(self, off, va, vd):
        A = self.A
        A(f"s_mov_b64 exec, 1")
        A(f"v_mov_b32 v{va}, {off}")
        A(f"v_mov_b32 v{vd}, 1")
        A(f"ds_add_u32 v{va}, v{vd}")
        A(f"s_mov_b64 exec, -1")

    def lds_wait(self, off, val, va, vd, sleep=1):
        A = self.A
        lp = A.label(); ex = A.label()
        A(f"v_mov_b32 v{va}, {off}")
        A(f"s_mov_b32 s{S_CNT}, 0")
        A.place(lp)
        A(f"ds_read_b32 v{vd}, v{va}")
        A(f"s_waitcnt lgkmcnt(0)")
        A(f"v_readfirstlane_b32 s{S_T5}, v{vd}")
        A(f"s_cmp_ge_u32 s{S_T5}, {val}")
        A(f"s_cbranch_scc1 {ex}")
        A(f"s_add_u32 s{S_CNT}, s{S_CNT}, 1")
        A(f"s_cmp_gt_u32 s{S_CNT}, {SPIN*4}")
        A(f"s_cbranch_scc1 {ex}")
        if sleep: A(f"s_sleep {sleep}")
        A(f"s_branch {lp}")
        A.place(ex)

    def allreduce2(self, a, b, ta, tb, op="v_add_f32"):
        A = self.A
        for r in (8, 4, 2, 1):
            A(f"{op}_dpp v{a}, v{a}, v{a} row_ror:{r} row_mask:0xf bank_mask:0xf")
            A(f"{op}_dpp v{b}, v{b}, v{b} row_ror:{r} row_mask:0xf bank_mask:0xf")
        for sw in ("v_permlane16_swap_b32", "v_permlane32_swap_b32"):
            A(f"v_mov_b32 v{ta}, v{a}")
            A(f"v_mov_b32 v{tb}, v{b}")
            A(f"{sw} v{a}, v{ta}")
            A(f"{sw} v{b}, v{tb}")
            A(f"{op} v{a}, v{a}, v{ta}")
            A(f"{op} v{b}, v{b}, v{tb}")

    def rnd_bf16(self, d, s):
        A = self.A
        A(f"v_cvt_pk_bf16_f32 v{d}, v{s}, v{s}")
        A(f"v_lshlrev_b32 v{d}, 16, v{d}")

    def ln_stats(self, F, D, s1, s2, t1, t2, vmb, vrs):
        A = self.A
        A(f"v_readfirstlane_b32 s{S_T4}, v{F}")
        for i in range(0, 16, 2):
            A(f"v_pk_add_f32 {vr(D+i,2)}, {vr(F+i,2)}, s[{S_T4}:{S_T4+1}] op_sel_hi:[1,0] neg_lo:[0,1] neg_hi:[0,1]")
        A(f"v_pk_add_f32 {vr(s1,2)}, {vr(D,2)}, {vr(D+2,2)}")
        A(f"v_pk_mul_f32 {vr(s2,2)}, {vr(D,2)}, {vr(D,2)}")
        A(f"v_pk_fma_f32 {vr(s2,2)}, {vr(D+2,2)}, {vr(D+2,2)}, {vr(s2,2)}")
        for i in range(4, 16, 2):
            A(f"v_pk_add_f32 {vr(s1,2)}, {vr(s1,2)}, {vr(D+i,2)}")
            A(f"v_pk_fma_f32 {vr(s2,2)}, {vr(D+i,2)}, {vr(D+i,2)}, {vr(s2,2)}")
        A(f"v_add_f32 v{s1}, v{s1}, v{s1+1}")
        A(f"v_add_f32 v{s2}, v{s2}, v{s2+1}")
        self.allreduce2(s1, s2, t1, t2)
        A(f"v_mul_f32 v{s1}, 0x3a800000, v{s1}")
        A(f"v_mul_f32 v{s2}, 0x3a800000, v{s2}")
        A(f"v_add_f32 v{vmb}, s{S_T4}, v{s1}")
        A(f"v_fma_f32 v{vrs}, -v{s1}, v{s1}, v{s2}")
        A(f"v_max_f32 v{vrs}, 0, v{vrs}")
        A(f"v_cvt_pk_bf16_f32 v{vmb}, v{vmb}, v{vrs}")
        A(f"v_and_b32 v{vrs}, 0xffff0000, v{vmb}")
        A(f"v_lshlrev_b32 v{vmb}, 16, v{vmb}")
        A(f"v_add_f32 v{vrs}, 0x3727c5ac, v{vrs}")
        self.rnd_bf16(vrs, vrs)
        A(f"v_sqrt_f32 v{vrs}, v{vrs}")
        self.rnd_bf16(vrs, vrs)
        A(f"v_rcp_f32 v{vrs}, v{vrs}")

    def ln_apply(self, d, f, vmb, vrs, t):
        A = self.A
        A(f"v_pk_add_f32 {vr(t,2)}, {vr(f,2)}, {vr(vmb,2)} op_sel_hi:[1,0] neg_lo:[0,1] neg_hi:[0,1]")
        A(f"v_cvt_pk_bf16_f32 v{t}, v{t}, v{t+1}")
        A(f"v_and_b32 v{t+1}, 0xffff0000, v{t}")
        A(f"v_lshlrev_b32 v{t}, 16, v{t}")
        A(f"v_pk_mul_f32 {vr(t,2)}, {vr(t,2)}, {vr(vrs,2)} op_sel_hi:[1,0]")
        A(f"v_cvt_pk_bf16_f32 v{d}, v{t}, v{t+1}")

    LIGHT_TAIL = {0: 0, 6: 1, 7: 2, 16: 3, 8: 4, 9: 5}
    LIGHT_EARLY = {0: 0, 15: 1, 3: 2, 4: 3, 14: 4, 6: 5}
    LIGHT_SVC = {0: 0, 13: 1, 1: 2, 11: 3, 2: 4, 12: 5}
    LIGHT_ENTRY = {0: 0, 10: 1, 12: 2, 13: 3, 1: 4, 29: 5}
    @property
    def LIGHT(self): return {"tail": self.LIGHT_TAIL, "early": self.LIGHT_EARLY, "svc": self.LIGHT_SVC, "entry": self.LIGHT_ENTRY}[self.stamps]
    def stamp(self, idx):
        if self.stamps in ("tail", "early", "svc", "entry"):
            if idx in self.LIGHT:
                j = 4 + 2 * self.LIGHT[idx]
                self.A(f"s_memrealtime s[{j}:{j+1}]")
            return
        if not self.stamps: return
        A = self.A
        A(f"s_memrealtime s[4:5]")
        A(f"s_waitcnt lgkmcnt(0)")
        A(f"s_lshl_b32 s6, s{S_WG}, 3")
        A(f"s_add_u32 s6, s6, s{S_WAVE}")
        A(f"s_lshl_b32 s6, s6, 7")
        A(f"s_add_u32 s6, s6, {WS_DBG + 0x100000 + idx*4}")
        A(f"s_mov_b64 s[8:9], exec")
        A(f"s_mov_b64 exec, 1")
        A(f"v_mov_b32 v254, s4")
        A(f"v_mov_b32 v255, 0")
        A(f"buffer_store_dword v254, v255, {srd(R_WS)}, s6 offen")
        A(f"s_mov_b64 exec, s[8:9]")

    def stampval(self, idx, sreg):
        if not self.stamps or self.stamps in ("tail", "early", "svc", "entry"): return
        A = self.A
        A(f"s_lshl_b32 s6, s{S_WG}, 3")
        A(f"s_add_u32 s6, s6, s{S_WAVE}")
        A(f"s_lshl_b32 s6, s6, 7")
        A(f"s_add_u32 s6, s6, {WS_DBG + 0x100000 + idx*4}")
        A(f"s_mov_b64 s[8:9], exec")
        A(f"s_mov_b64 exec, 1")
        A(f"v_mov_b32 v254, s{sreg}")
        A(f"v_mov_b32 v255, 0")
        A(f"buffer_store_dword v254, v255, {srd(R_WS)}, s6 offen")
        A(f"s_mov_b64 exec, s[8:9]")

    def cstamp(self, idx):
        if not self.stamps or self.stamps in ("tail", "early", "svc", "entry"): return
        A = self.A
        A(f"s_memtime s[10:11]")
        A(f"s_waitcnt lgkmcnt(0)")
        self.stampval(idx, 10)

    def quad_gather(self, d, src):
        A = self.A
        A(f"v_mov_b32_dpp v{d+1}, v{src} quad_perm:[1,1,1,1] row_mask:0xf bank_mask:0xf")
        A(f"v_mov_b32_dpp v{d+2}, v{src} quad_perm:[2,2,2,2] row_mask:0xf bank_mask:0xf")
        A(f"v_mov_b32_dpp v{d+3}, v{src} quad_perm:[3,3,3,3] row_mask:0xf bank_mask:0xf")
        if d != src: A(f"v_mov_b32 v{d}, v{src}")
    def even_gather(self, d, src):
        A = self.A
        A(f"v_mov_b32_dpp v{d+1}, v{src} row_shl:2 row_mask:0xf bank_mask:0xf")
        A(f"v_mov_b32_dpp v{d+2}, v{src} row_shl:4 row_mask:0xf bank_mask:0xf")
        A(f"v_mov_b32_dpp v{d+3}, v{src} row_shl:6 row_mask:0xf bank_mask:0xf")
        if d != src: A(f"v_mov_b32 v{d}, v{src}")

    def hint_add(self, off, va, vd):
        A = self.A
        A(f"v_mov_b32 v{va}, {off}")
        A(f"v_mov_b32 v{vd}, 1")
        A(f"s_mov_b64 exec, 1")
        A(f"buffer_atomic_add v{vd}, v{va}, {srd(R_WS)}, 0 offen sc1")
        A(f"s_mov_b64 exec, -1")
    def hint_wait(self, off, target, va, vd, sleep):
        A = self.A
        lp = A.label(); ex = A.label()
        A(f"s_cmp_eq_u32 s{S_WAVE}, 0")
        A(f"s_cbranch_scc0 {ex}")
        A(f"v_mov_b32 v{va}, {off}")
        A(f"s_mov_b32 s{S_CNT}, 0")
        A(f"s_mov_b64 exec, 1")
        A.place(lp)
        A(f"buffer_load_dword v{vd}, v{va}, {srd(R_WS)}, 0 offen {self.LP}")
        A("s_waitcnt vmcnt(0)")
        A(f"v_readfirstlane_b32 s{S_T5}, v{vd}")
        A(f"s_add_u32 s{S_T5}, s{S_T5}, 1")
        A(f"s_cmp_ge_u32 s{S_T5}, {target}")
        A(f"s_cbranch_scc1 {ex}")
        A(f"s_add_u32 s{S_CNT}, s{S_CNT}, 1")
        A(f"s_cmp_gt_u32 s{S_CNT}, {SPIN}")
        A(f"s_cbranch_scc1 {ex}")
        A(f"s_sleep {sleep}")
        A(f"s_branch {lp}")
        A.place(ex)
        A("s_mov_b64 exec, -1")
        A("s_barrier")

    def local_flag(self):
        A = self.A
        A(f"v_and_b32 v4, 31, v1")
        A(f"v_lshlrev_b32 v4, 5, v4")
        A(f"s_lshl_b32 s{S_T5}, s{S_B}, 2")
        A(f"s_add_u32 s{S_T5}, s{S_T5}, {LDS_XCC}")
        A(f"v_add_u32 v4, s{S_T5}, v4")
        A(f"ds_read_b32 v5, v4")
        A(f"s_waitcnt lgkmcnt(0)")
        A(f"v_readfirstlane_b32 s{S_LOC}, v5")
        A(f"v_cmp_ne_u32 vcc, s{S_LOC}, v5")
        A(f"s_cmp_eq_u64 vcc, 0")
        A(f"s_cselect_b32 s{S_LOC}, 1, 0")
        if self.nolocal: A(f"s_mov_b32 s{S_LOC}, 0")
    def store_sel(self, ins):
        A = self.A
        l1 = A.label(); l2 = A.label()
        A(f"s_cmp_eq_u32 s{S_LOC}, 1")
        A(f"s_cbranch_scc1 {l1}")
        A(f"{ins} sc0 sc1")
        A(f"s_branch {l2}")
        A.place(l1)
        A(ins)
        A.place(l2)

    def sample_wait(self, need_all, va, vd, sleep):
        A = self.A
        lp = A.label(); ex = A.label()
        A(f"s_cmp_eq_u32 s{S_WAVE}, 0")
        A(f"s_cbranch_scc0 {ex}")
        A(f"v_and_b32 v{vd}, 3, v1")
        A(f"v_lshlrev_b32 v{vd}, 12, v{vd}")
        A(f"v_lshlrev_b32 v{va}, 8, v1")
        A(f"v_add_u32 v{va}, v{va}, v{vd}")
        A(f"v_add_u32 v{va}, {WS_H + 128}, v{va}")
        A(f"s_mov_b32 s{S_CNT}, 0")
        A(f"s_mov_b64 exec, 0xff")
        A.place(lp)
        A(f"buffer_load_dword v{vd}, v{va}, {srd(R_WS)}, 0 offen {self.LP}")
        A("s_waitcnt vmcnt(0)")
        if need_all:
            A(f"v_cmp_eq_u32 vcc, -1, v{vd}")
            A(f"s_cbranch_vccz {ex}")
        else:
            A(f"v_cmp_ne_u32 vcc, -1, v{vd}")
            A(f"s_cbranch_vccnz {ex}")
        A(f"s_add_u32 s{S_CNT}, s{S_CNT}, 1")
        A(f"s_cmp_gt_u32 s{S_CNT}, 4000")
        A(f"s_cbranch_scc1 {ex}")
        A(f"s_sleep {sleep}")
        A(f"s_branch {lp}")
        A.place(ex)
        A("s_mov_b64 exec, -1")
        A("s_waitcnt vmcnt(0)")
        A("s_barrier")

    def maxred(self, tmp, regs):
        A = self.A
        rs = list(regs)
        if len(rs) == 1:
            return rs[0]
        if len(rs) == 2:
            A(f"v_max_u32 v{tmp}, v{rs[0]}, v{rs[1]}"); return tmp
        A(f"v_max3_u32 v{tmp}, v{rs[0]}, v{rs[1]}, v{rs[2]}")
        rs = rs[3:]
        while len(rs) >= 2:
            A(f"v_max3_u32 v{tmp}, v{tmp}, v{rs[0]}, v{rs[1]}")
            rs = rs[2:]
        if rs:
            A(f"v_max_u32 v{tmp}, v{tmp}, v{rs[0]}")
        return tmp

    def prepoll(self, load, reg, mask=None, sleep=4, need_all=False):
        A = self.A
        lp = A.label(); ex = A.label()
        if mask is not None:
            A(f"s_mov_b64 exec, s[{mask}:{mask+1}]")
        A(f"s_mov_b32 s{S_CNT}, 0")
        A.place(lp)
        A(load)
        A("s_waitcnt vmcnt(0)")
        if need_all:
            A(f"v_cmp_eq_u32 vcc, -1, v{reg}")
            A(f"s_cbranch_vccz {ex}")
        else:
            A(f"v_cmp_ne_u32 vcc, -1, v{reg}")
            A(f"s_cbranch_vccnz {ex}")
        A(f"s_add_u32 s{S_CNT}, s{S_CNT}, 1")
        A(f"s_cmp_gt_u32 s{S_CNT}, {SPIN}")
        A(f"s_cbranch_scc1 {ex}")
        A(f"s_sleep {sleep}")
        A(f"s_branch {lp}")
        A.place(ex)
        A(f"s_mov_b64 exec, -1")
        self.stamp(16)

    def poll_groups(self, groups, tmp, mask=None, sleep=0):
        A = self.A
        G = len(groups)
        lp = A.label(); ex = A.label()
        for g in range(G):
            m = S_PM + 2 * g
            if mask is None: A(f"s_mov_b64 s[{m}:{m+1}], -1")
            else: A(f"s_mov_b64 s[{m}:{m+1}], s[{mask}:{mask+1}]")
        A(f"s_mov_b32 s{S_CNT}, 0")
        A.place(lp)
        for g, (loads, regs) in enumerate(groups):
            m = S_PM + 2 * g
            sk = A.label()
            A(f"s_mov_b64 exec, s[{m}:{m+1}]")
            if G > 1: A(f"s_cbranch_execz {sk}")
            for l in loads: A(l)
            if G > 1: A.place(sk)
        A("s_waitcnt vmcnt(0)")
        for g, (loads, regs) in enumerate(groups):
            m = S_PM + 2 * g
            A(f"s_mov_b64 exec, s[{m}:{m+1}]")
            t = self.maxred(tmp, regs)
            A(f"v_cmp_eq_u32_e64 s[{m}:{m+1}], -1, v{t}")
        if G == 1:
            A(f"s_cmp_eq_u64 s[{S_PM}:{S_PM+1}], 0")
        else:
            A(f"s_or_b64 s[{S_EX}:{S_EX+1}], s[{S_PM}:{S_PM+1}], s[{S_PM+2}:{S_PM+3}]")
            for g in range(2, G):
                m = S_PM + 2 * g
                A(f"s_or_b64 s[{S_EX}:{S_EX+1}], s[{S_EX}:{S_EX+1}], s[{m}:{m+1}]")
            A(f"s_cmp_eq_u64 s[{S_EX}:{S_EX+1}], 0")
        A(f"s_cbranch_scc1 {ex}")
        A(f"s_add_u32 s{S_CNT}, s{S_CNT}, 1")
        if sleep: A(f"s_sleep {sleep}")
        A(f"s_cmp_gt_u32 s{S_CNT}, {SPIN}")
        A(f"s_cbranch_scc0 {lp}")
        A.place(ex)
        A(f"s_mov_b64 exec, -1")

    def poll_issue(self, loads, regs, mask=None):
        A = self.A
        if mask is not None:
            A(f"s_mov_b64 exec, s[{mask}:{mask+1}]")
        for l in loads: A(l)
        if mask is not None:
            A(f"s_mov_b64 exec, -1")

    def poll_pipe(self, loads, regs, tmp, mask=None, depth=1, sleep=2, issued=False):
        A = self.A
        lp = A.label(); ex = A.label(); chk = A.label()
        if mask is not None:
            A(f"s_mov_b64 exec, s[{mask}:{mask+1}]")
        A(f"s_mov_b32 s{S_CNT}, 0")
        if issued: A(f"s_branch {chk}")
        A.place(lp)
        for l in loads: A(l)
        if sleep: A(f"s_sleep {sleep}")
        A.place(chk)
        A(f"s_waitcnt vmcnt(0)")
        t = self.maxred(tmp, regs)
        A(f"v_cmp_eq_u32 vcc, -1, v{t}")
        A(f"s_cbranch_vccz {ex}")
        A(f"s_mov_b64 exec, vcc")
        A(f"s_add_u32 s{S_CNT}, s{S_CNT}, 1")
        A(f"s_cmp_gt_u32 s{S_CNT}, {SPIN}")
        A(f"s_cbranch_scc0 {lp}")
        A.place(ex)
        A(f"s_mov_b64 exec, -1")

    def role_params(self):
        A = self.A
        lG, lD, lN, lE = A.label(), A.label(), A.label(), A.label()
        A(f"""
        s_mov_b32 s{S_JJ}, 999
        s_mov_b32 s{S_JA}, 0
        s_cmp_ge_u32 s{S_H}, 8
        s_cbranch_scc1 {lG}
        s_mov_b32 s{S_ROLE}, 0
        s_mov_b32 s{S_J1}, 24
        s_mov_b32 s{S_PITCH}, 2048
        s_mov_b32 s{S_NJ}, 32
        s_lshr_b32 s{S_T0}, s{S_H}, 1
        s_lshl_b32 s{S_T0}, s{S_T0}, 21
        s_and_b32 s{S_T1}, s{S_H}, 1
        s_lshl_b32 s{S_T2}, s{S_B}, 1
        s_add_u32 s{S_T1}, s{S_T1}, s{S_T2}
        s_lshl_b32 s{S_T1}, s{S_T1}, 7
        s_add_u32 s{S_T0}, s{S_T0}, s{S_T1}
        s_add_u32 s{R_WT}, s{S_WO}, s{S_T0}
        s_addc_u32 s{R_WT+1}, s{S_WO+1}, 0
        s_sub_u32 s{R_WT+2}, {8<<20}, s{S_T0}
        s_branch {lE}
        """)
        A.place(lG)
        A(f"""
        s_cmp_ge_u32 s{S_H}, 22
        s_cbranch_scc1 {lD}
        s_mov_b32 s{S_ROLE}, 1
        s_mov_b32 s{S_J1}, {self.JU}
        s_mov_b32 s{S_PITCH}, 7168
        s_mov_b32 s{S_NJ}, 32
        s_sub_u32 s{S_T0}, s{S_H}, 8
        s_lshr_b32 s{S_T1}, s{S_T0}, 1
        s_mul_i32 s{S_T2}, s{S_B}, 7
        s_add_u32 s{S_T1}, s{S_T1}, s{S_T2}
        s_lshl_b32 s{S_T1}, s{S_T1}, 7
        s_bitcmp1_b32 s{S_T0}, 0
        s_cselect_b32 s{S_T2}, s{S_WU}, s{S_WG_}
        s_cselect_b32 s{S_T3}, s{S_WU+1}, s{S_WG_+1}
        s_add_u32 s{R_WT}, s{S_T2}, s{S_T1}
        s_addc_u32 s{R_WT+1}, s{S_T3}, 0
        s_sub_u32 s{R_WT+2}, {7340032}, s{S_T1}
        s_branch {lE}
        """)
        A.place(lD)
        A(f"""
        s_cmp_ge_u32 s{S_H}, 30
        s_cbranch_scc1 {lN}
        s_mov_b32 s{S_ROLE}, 2
        s_mov_b32 s{S_J1}, {self.JU}
        s_mov_b32 s{S_PITCH}, 2048
        s_mov_b32 s{S_NJ}, 28
        s_mov_b32 s{S_JJ}, 14
        s_mov_b32 s{S_JA}, {(128 - 448*2048) & 0xffffffff}
        s_mul_i32 s{S_T1}, s{S_B}, {448*2048}
        s_sub_u32 s{S_T0}, s{S_H}, 22
        s_lshl_b32 s{S_T0}, s{S_T0}, 8
        s_add_u32 s{S_T0}, s{S_T0}, s{S_T1}
        s_add_u32 s{R_WT}, s{S_WD}, s{S_T0}
        s_addc_u32 s{R_WT+1}, s{S_WD+1}, 0
        s_sub_u32 s{R_WT+2}, {7340032}, s{S_T0}
        s_branch {lE}
        """)
        A.place(lN)
        A(f"""
        s_mov_b32 s{S_ROLE}, 3
        s_mov_b32 s{S_J1}, 0
        s_mov_b32 s{S_PITCH}, 2048
        s_mov_b32 s{S_NJ}, 0
        s_mov_b32 s{R_WT}, s{S_WD}
        s_mov_b32 s{R_WT+1}, s{S_WD+1}
        s_mov_b32 s{R_WT+2}, 0
        """)
        A.place(lE)
        A(f"s_mov_b32 s{R_WT+3}, 0x20000")

    def entry(self):
        A = self.A
        A.header(256, 512, LDS_BYTES, comments=[
            "Fused decode layer: preLN + MHA over KV cache + out-proj + preLN + GEGLU FFN (one persistent launch, 256 WGs x 512).",
        ])
        if self.stamps == "entry":
            A("s_memrealtime s[14:15]")
        A(f"""
        s_cmp_ge_u32 s2, 256
        s_cbranch_scc1 L_end
        s_load_dwordx16 s[16:31], s[0:1], 0
        s_load_dwordx8 s[32:39], s[0:1], 64
        v_and_b32 v1, 63, v0
        v_lshrrev_b32 v4, 6, v0
        v_lshlrev_b32 v2, 4, v1
        v_readfirstlane_b32 s{S_WAVE}, v4
        v_lshlrev_b32 v3, 2, v1
        s_lshr_b32 s{S_H}, s2, 3
        s_and_b32 s{S_B}, s2, 7
        s_mov_b32 s{S_M1}, 0x22222222
        s_mov_b32 s{S_M1+1}, 0x22222222
        s_mov_b32 s{S_M2}, 0x44444444
        s_mov_b32 s{S_M2+1}, 0x44444444
        s_mov_b32 s{S_M3}, 0x88888888
        s_mov_b32 s{S_M3+1}, 0x88888888
        s_mov_b32 s{S_MJ8}, 0x00ff00ff
        s_mov_b32 s{S_MJ8+1}, 0x00ff00ff
        s_mov_b32 s{S_MQ}, 0x11111111
        s_mov_b32 s{S_MQ+1}, 0x11111111
        s_mov_b32 s{S_ME}, 0x01010101
        s_mov_b32 s{S_ME+1}, 0x01010101
        v_mov_b32 v204, 0
        v_mov_b32 v4, {LDS_CNT}
        v_mov_b32 v6, 0
        v_mov_b32 v7, 0
        ds_write_b64 v4, v[6:7]
        ds_write_b64 v4, v[6:7] offset:8
        v_mov_b32 v7, {self.N}
        ds_write_b64 v4, v[6:7] offset:16
        s_and_b32 s{S_SW}, s{S_WAVE}, 3
        s_mov_b64 s[4:5], 0
        s_mov_b64 s[6:7], 0
        s_mov_b64 s[8:9], 0
        s_mov_b64 s[10:11], 0
        s_mov_b64 s[12:13], 0
        """)
        if self.stamps != "entry": A("s_mov_b64 s[14:15], 0")
        A(f"""
        s_cmp_ge_u32 s{S_WAVE}, 4
        s_cbranch_scc1 L_stream
        """)

    def service(self):
        A = self.A
        A.c("==== service waves: LN(x), q partial, exchange ====")
        A(f"""
        v_lshrrev_b32 v4, 4, v1
        v_and_b32 v5, 15, v1
        s_lshr_b32 s{S_T0}, s{S_SW}, 1
        s_lshl_b32 s{S_T0}, s{S_T0}, 2
        v_or_b32 v6, s{S_T0}, v4
        v_lshlrev_b32 v6, 1, v6
        v_xor_b32 v6, v6, v5
        v_lshlrev_b32 v6, 4, v6
        v_lshlrev_b32 v7, 13, v4
        v_add_u32 v6, v6, v7
        s_lshl_b32 s{S_T0}, s{S_B}, 20
        s_lshl_b32 s{S_T1}, s{S_SW}, 15
        s_add_u32 s{S_T0}, s{S_T0}, s{S_T1}
        s_lshl_b32 s{S_T1}, s{S_H}, 8
        s_add_u32 s{S_T0}, s{S_T0}, s{S_T1}
        s_lshl_b32 s{S_T1}, s{S_SW}, 10
        s_add_u32 s{S_T1}, s{S_T1}, {LDS_WQ}
        s_lshl_b32 s{S_T2}, s{S_SW}, 12
        v_mov_b32 v126, 0
        s_mov_b32 s{S_T3}, {WS_EPOCH}
        s_waitcnt lgkmcnt(0)
        """)
        self.mk_srd(R_X, S_X, 16384)
        A(f"buffer_load_dwordx4 v[8:11], v2, {srd(R_X)}, s{S_T2} offen")
        A(f"buffer_load_dwordx4 v[12:15], v2, {srd(R_X)}, s{S_T2} offen offset:1024")
        A(f"buffer_load_dwordx4 v[16:19], v2, {srd(R_X)}, s{S_T2} offen offset:2048")
        A(f"buffer_load_dwordx4 v[20:23], v2, {srd(R_X)}, s{S_T2} offen offset:3072")
        self.mk_srd(R_WQ, S_WQ, 8 << 20)
        for j in range(8):
            A(f"s_mov_b32 m0, s{S_T1}")
            A(f"s_add_u32 s{S_T1}, s{S_T1}, 4096")
            A(f"buffer_load_dwordx4 v6, {srd(R_WQ)}, s{S_T0} offen {self.WP} lds")
            if j < 7:
                A(f"s_add_u32 s{S_T0}, s{S_T0}, {4*32768}")
        self.mk_srd(R_WS, S_WS, WS_SIZE)
        A(f"buffer_load_dword v126, v126, {srd(R_WS)}, s{S_T3} offen {self.LP}")
        A("s_barrier")
        self.stamp(0)
        if self.stamps and self.stamps not in ("tail", "early", "svc", "entry"):
            A("s_getreg_b32 s10, hwreg(HW_REG_XCC_ID)")
            self.stampval(31, 10)
        A(f"""
        v_mov_b32 v24, -1
        v_mov_b32 v25, -1
        v_mov_b32 v26, -1
        v_mov_b32 v27, -1
        s_lshl_b32 s{S_T0}, s2, 12
        s_lshl_b32 s{S_T1}, s{S_SW}, 10
        s_add_u32 s{S_T0}, s{S_T0}, s{S_T1}
        s_add_u32 s{S_T0}, s{S_T0}, {WS_SLOT}
        buffer_store_dwordx4 v[24:27], v2, {srd(R_WS)}, s{S_T0} offen sc0 sc1
        """)
        nst = 2 if (self.stamps and self.stamps not in ('tail', 'early', 'svc', 'entry')) else 0
        self.role_params()
        A(f"s_waitcnt vmcnt({10 + nst})")
        self.stamp(10)
        F, D = 32, 48
        S1, S2, T1, T2, VMB, VRS = 64, 66, 68, 69, 70, 72
        for r in range(2):
            base = 8 + 8 * r
            for i in range(8):
                A(f"v_lshlrev_b32 v{F+2*i}, 16, v{base+i}")
                A(f"v_and_b32 v{F+2*i+1}, 0xffff0000, v{base+i}")
            self.ln_stats(F, D, S1, S2, T1, T2, VMB, VRS)
            lab = A.label()
            A(f"s_cmp_lt_u32 s{S_B}, 4")
            A(f"s_cbranch_scc1 {lab}")
            for i in range(0, 8, 2):
                A(f"v_pk_mov_b32 {vr(F+i,2)}, {vr(F+8+i,2)}, {vr(F+8+i,2)} op_sel:[0,1]")
            A.place(lab)
            for i in range(4):
                self.ln_apply(76 + i, F + 2*i, VMB, VRS, 74)
            A(f"""
            s_and_b32 s{S_T0}, s{S_B}, 3
            s_lshl_b32 s{S_T0}, s{S_T0}, 4
            s_mov_b64 s[{S_EX}:{S_EX+1}], 0xffff
            s_lshl_b64 s[{S_EX}:{S_EX+1}], s[{S_EX}:{S_EX+1}], s{S_T0}
            s_lshl_b32 s{S_T1}, s{S_SW}, 1
            s_add_u32 s{S_T1}, s{S_T1}, {r}
            s_mul_i32 s{S_T1}, s{S_T1}, 272
            s_add_u32 s{S_T1}, s{S_T1}, {LDS_XN}
            v_and_b32 v80, 15, v1
            v_lshlrev_b32 v80, 4, v80
            v_add_u32 v80, s{S_T1}, v80
            s_mov_b64 exec, s[{S_EX}:{S_EX+1}]
            ds_write_b128 v80, v[76:79]
            s_mov_b64 exec, -1
            """)
        self.stamp(12)
        A(f"""
        v_and_b32 v58, 7, v1
        v_mul_u32_u24 v58, 272, v58
        v_lshrrev_b32 v59, 4, v1
        v_lshlrev_b32 v60, 4, v59
        v_add_u32 v58, v58, v60
        v_add_u32 v58, {LDS_XN}, v58
        v_and_b32 v60, 15, v1
        v_lshrrev_b32 v61, 2, v60
        v_and_b32 v62, 3, v60
        v_and_b32 v63, 1, v59
        v_lshlrev_b32 v63, 2, v63
        v_or_b32 v63, v63, v61
        v_lshlrev_b32 v80, 3, v59
        v_add_u32 v80, v80, v61
        v_lshlrev_b32 v80, 8, v80
        v_lshlrev_b32 v62, 3, v62
        v_add_u32 v80, v80, v62
        v_add_u32 v80, {LDS_WQ}, v80
        s_lshl_b32 s{S_T0}, s{S_SW}, 1
        v_xor_b32 v81, s{S_T0}, v63
        v_lshlrev_b32 v81, 5, v81
        v_add_u32 v81, v81, v80
        s_add_u32 s{S_T0}, s{S_T0}, 1
        v_xor_b32 v82, s{S_T0}, v63
        v_lshlrev_b32 v82, 5, v82
        v_add_u32 v82, v82, v80
        v_and_b32 v56, 15, v1
        v_lshlrev_b32 v56, 12, v56
        v_lshlrev_b32 v60, 4, v59
        v_add_u32 v56, v56, v60
        """)
        A(f"s_waitcnt vmcnt({2 + 2*nst}) lgkmcnt(0)")
        self.stamp(13)
        self.lds_signal(LDS_CNT + 0, 124, 125)
        self.lds_wait(LDS_CNT + 0, 4, 124, 125, sleep=0)
        for s in range(4):
            A(f"ds_read_b128 {vr(64+4*s,4)}, v58 offset:{s*64}")
        for c in range(2):
            for s in range(4):
                r = 84 + (c * 4 + s) * 4
                A(f"ds_read_b64_tr_b16 {vr(r,2)}, v{81+c} offset:{s*8192}")
                A(f"ds_read_b64_tr_b16 {vr(r+2,2)}, v{81+c} offset:{s*8192+1024}")
        A(f"""
        s_lshl_b32 s{S_T0}, s{S_H}, 15
        s_lshl_b32 s{S_T1}, s{S_B}, 9
        s_add_u32 s{S_T0}, s{S_T0}, s{S_T1}
        s_lshl_b32 s{S_T1}, s{S_SW}, 7
        s_add_u32 s{S_T0}, s{S_T0}, s{S_T1}
        s_waitcnt lgkmcnt(0)
        """)
        for s in range(4):
            for c in range(2):
                r = 84 + (c * 4 + s) * 4
                acc = 116 + 4 * c
                src = "0" if s == 0 else vr(acc, 4)
                A(f"v_mfma_f32_16x16x32_bf16 {vr(acc,4)}, {vr(r,4)}, {vr(64+4*s,4)}, {src}")
        self.lds_signal(LDS_CNT + 4, 124, 125)
        A(f"""
        s_mov_b64 exec, s[{S_MJ8}:{S_MJ8+1}]
        buffer_store_dwordx4 v[116:119], v56, {srd(R_WS)}, s{S_T0} offen sc0 sc1
        buffer_store_dwordx4 v[120:123], v56, {srd(R_WS)}, s{S_T0} offen offset:64 sc0 sc1
        s_mov_b64 exec, -1
        s_lshl_b32 s{S_T0}, s{S_H}, 7
        s_add_u32 s{S_T0}, s{S_T0}, {WS_FLAG}
        s_lshl_b32 s{S_T1}, s{S_B}, 4
        s_lshl_b32 s{S_T2}, s{S_SW}, 2
        s_add_u32 s{S_T1}, s{S_T1}, s{S_T2}
        s_getreg_b32 s{S_XCC}, hwreg(HW_REG_XCC_ID)
        s_and_b32 s{S_XCC}, s{S_XCC}, 7
        s_lshl_b32 s{S_XCC}, s{S_XCC}, 24
        v_mov_b32 v58, s{S_T1}
        s_waitcnt vmcnt(0)
        v_readfirstlane_b32 s{S_TAG}, v126
        s_add_u32 s{S_TAG}, s{S_TAG}, 1
        s_add_u32 s{S_XCC}, s{S_XCC}, s{S_TAG}
        v_mov_b32 v59, s{S_XCC}
        s_mov_b64 exec, 1
        buffer_store_dword v59, v58, {srd(R_WS)}, s{S_T0} offen sc0 sc1
        s_mov_b64 exec, -1
        """)
        self.stamp(1)
        A(f"s_cmp_eq_u32 s{S_SW}, 0")
        A(f"s_cbranch_scc0 L_svc_done")
        lp = A.label(); ex = A.label()
        A(f"s_mov_b64 exec, 0xffffffff")
        A(f"s_mov_b32 s{S_CNT}, 0")
        A.place(lp)
        A(f"""
        buffer_load_dword v60, v3, {srd(R_WS)}, s{S_T0} offen {self.LP}
        s_waitcnt vmcnt(0)
        v_subrev_u32 v60, s{S_TAG}, v60
        v_and_b32 v60, 0xf8ffffff, v60
        v_cmp_ne_u32 vcc, 0, v60
        s_cbranch_vccz {ex}
        s_add_u32 s{S_CNT}, s{S_CNT}, 1
        s_cmp_gt_u32 s{S_CNT}, {SPIN}
        s_cbranch_scc0 {lp}
        """)
        A.place(ex)
        A("s_mov_b64 exec, -1")
        self.stamp(11)
        A(f"s_lshl_b32 s{S_T0}, s2, 12")
        for j in range(4):
            A(f"buffer_load_dwordx4 {vr(64+4*j,4)}, v2, {srd(R_WS)}, s{S_T0} offen offset:{j*1024} {self.LP}")
        A(f"""
        v_and_b32 v58, 31, v1
        v_lshlrev_b32 v58, 3, v58
        v_add_u32 v58, {LDS_Q}, v58
        s_waitcnt vmcnt(0)
        """)
        for e in range(0, 4, 2):
            A(f"v_pk_add_f32 {vr(64+e,2)}, {vr(64+e,2)}, {vr(68+e,2)}")
            A(f"v_pk_add_f32 {vr(72+e,2)}, {vr(72+e,2)}, {vr(76+e,2)}")
        for e in range(0, 4, 2):
            A(f"v_pk_add_f32 {vr(64+e,2)}, {vr(64+e,2)}, {vr(72+e,2)}")
        for e in range(4):
            A(f"v_mov_b32 v{68+e}, v{64+e}")
        for e in range(4):
            A(f"v_permlane32_swap_b32 v{64+e}, v{68+e}")
        for e in range(0, 4, 2):
            A(f"v_pk_add_f32 {vr(64+e,2)}, {vr(64+e,2)}, {vr(68+e,2)}")
        A(f"""
        v_cvt_pk_bf16_f32 v64, v64, v65
        v_cvt_pk_bf16_f32 v65, v66, v67
        ds_write_b64 v58, v[64:65]
        s_waitcnt lgkmcnt(0)
        """)
        self.lds_signal(LDS_CNT + 12, 124, 125)
        self.stamp(2)
        if self.debug:
            A(f"""
            v_and_b32 v58, 31, v1
            v_lshlrev_b32 v58, 3, v58
            s_lshl_b32 s{S_T0}, s2, 8
            s_add_u32 s{S_T0}, s{S_T0}, {WS_DBG}
            buffer_store_dwordx2 v[64:65], v58, {srd(R_WS)}, s{S_T0} offen
            """)
        lp = A.label(); ex = A.label()
        A(f"s_mov_b32 s{S_T0}, {WS_FLAG}")
        A(f"s_mov_b32 s{S_CNT}, 0")
        A.place(lp)
        for j in range(4):
            A(f"buffer_load_dwordx4 {vr(64+4*j,4)}, v2, {srd(R_WS)}, s{S_T0} offen offset:{j*1024} {self.LP}")
        A("s_waitcnt vmcnt(0)")
        for i in range(16):
            A(f"v_subrev_u32 v{64+i}, s{S_TAG}, v{64+i}")
        for i in range(16):
            A(f"v_and_b32 v{80+i}, 0xf8ffffff, v{64+i}")
        t = self.maxred(60, range(80, 96))
        A(f"""
        v_cmp_ne_u32 vcc, 0, v{t}
        s_cbranch_vccz {ex}
        s_add_u32 s{S_CNT}, s{S_CNT}, 1
        s_cmp_gt_u32 s{S_CNT}, {SPIN}
        s_cbranch_scc1 {ex}
        s_sleep 16
        s_branch {lp}
        """)
        A.place(ex)
        A(f"v_add_u32 v60, {LDS_XCC}, v3")
        for t in range(4):
            A(f"ds_write_b32 v60, v{64+4*t} offset:{t*256}")
        A("s_waitcnt lgkmcnt(0)")
        if self.pace:
            self.local_flag()
            self.controller(self.PK0, 13)
            A("s_barrier")
            A("s_barrier")
            self.controller(16, 29)
            A("s_branch L_join3")
        A.place("L_svc_done")
        A("s_barrier")
        A("s_barrier")
        A("s_branch L_join3")

    def controller(self, k0, k1):
        A = self.A
        lp = A.label(); lw = A.label(); lx = A.label(); lend = A.label()
        A(f"s_cmp_eq_u32 s{S_LOC}, 1")
        A(f"s_cbranch_scc0 {lend}")
        A(f"s_mov_b32 s{S_T0}, {k0}")
        A(f"v_mov_b32 v60, {LDS_BLK}")
        A(f"v_mov_b32 v61, {LDS_N}")
        A(f"v_mov_b32 v62, 1")
        A(f"s_lshl_b32 s{S_T3}, s{S_H}, 2")
        A(f"v_mov_b32 v63, s{S_T3}")
        A.place(lp)
        A(f"s_mov_b32 s{S_CNT}, 0")
        A.place(lw)
        A(f"ds_read_b32 v64, v60")
        A(f"s_waitcnt lgkmcnt(0)")
        A(f"v_readfirstlane_b32 s{S_T1}, v64")
        A(f"s_cmp_gt_u32 s{S_T1}, s{S_T0}")
        A(f"s_cbranch_scc1 {lx}")
        A(f"s_add_u32 s{S_CNT}, s{S_CNT}, 1")
        A(f"s_cmp_gt_u32 s{S_CNT}, {SPIN}")
        A(f"s_cbranch_scc1 {lx}")
        A(f"s_sleep 8")
        A(f"s_branch {lw}")
        A.place(lx)
        A(f"s_sub_u32 s{S_T1}, s{S_T1}, 1")
        A(f"s_min_u32 s{S_T0}, s{S_T1}, {k1}")
        A(f"s_lshl_b32 s{S_T2}, s{S_T0}, 10")
        A(f"s_lshl_b32 s{S_T4}, s{S_B}, 7")
        A(f"s_add_u32 s{S_T2}, s{S_T2}, s{S_T4}")
        A(f"s_add_u32 s{S_T2}, s{S_T2}, {WS_PROG}")
        A(f"s_mov_b64 exec, 1")
        A(f"buffer_store_dword v62, v63, {srd(R_WS)}, s{S_T2} offen")
        if self.bias:
            A(f"s_lshl_b32 s{S_T4}, s{S_B}, 7")
            A(f"s_add_u32 s{S_OFF}, s{S_T4}, {WS_BIAS}")
            A(f"v_mov_b32 v66, 0")
            A(f"buffer_load_dword v67, v66, {srd(R_WS)}, s{S_OFF} offen {self.LP}")
        A(f"s_mov_b64 exec, 0xffffffff")
        A(f"buffer_load_dword v64, v3, {srd(R_WS)}, s{S_T2} offen {self.LP}")
        A(f"s_waitcnt vmcnt(0)")
        A(f"v_cmp_ne_u32 vcc, -1, v64")
        A(f"s_mov_b64 exec, -1")
        A(f"s_bcnt1_i32_b64 s{S_T4}, vcc")
        if self.bias:
            lg = A.label()
            A(f"v_readfirstlane_b32 s{S_PITCH}, v67")
            A(f"s_cmp_eq_u32 s{S_T4}, {self.GM}")
            A(f"s_cbranch_scc0 {lg}")
            A(f"s_lshl_b32 s{S_T2}, s{S_T0}, 7")
            A(f"s_add_u32 s{S_T2}, s{S_T2}, {WS_GP}")
            A(f"s_lshl_b32 s{S_T5}, s{S_B}, 2")
            A(f"v_mov_b32 v65, s{S_T5}")
            A(f"s_mov_b64 exec, 1")
            A(f"buffer_store_dword v62, v65, {srd(R_WS)}, s{S_T2} offen sc0 sc1")
            A(f"s_mov_b64 exec, 0xff")
            A(f"buffer_load_dword v65, v3, {srd(R_WS)}, s{S_T2} offen {self.LP}")
            A(f"s_waitcnt vmcnt(0)")
            A(f"v_cmp_ne_u32 vcc, -1, v65")
            A(f"s_mov_b64 exec, -1")
            A(f"s_bcnt1_i32_b64 s{S_T2}, vcc")
            A(f"s_mov_b32 s{S_PITCH}, 1")
            A(f"s_cmp_ge_u32 s{S_T2}, {self.GH}")
            A(f"s_addc_u32 s{S_PITCH}, s{S_PITCH}, 0")
            A(f"s_cmp_le_u32 s{S_T2}, {self.GL}")
            A(f"s_subb_u32 s{S_PITCH}, s{S_PITCH}, 0")
            A(f"v_mov_b32 v65, s{S_PITCH}")
            A(f"s_mov_b64 exec, 1")
            A(f"buffer_store_dword v65, v66, {srd(R_WS)}, s{S_OFF} offen")
            A(f"s_mov_b64 exec, -1")
            A.place(lg)
            A(f"s_cmp_eq_u32 s{S_PITCH}, -1")
            A(f"s_cselect_b32 s{S_PITCH}, 1, s{S_PITCH}")
        A(f"s_mov_b32 s{S_T5}, {self.NBASE}")
        for th in self.TH:
            A(f"s_cmp_gt_u32 s{S_T4}, {th}")
            A(f"s_addc_u32 s{S_T5}, s{S_T5}, 0")
        if self.bias:
            A(f"s_add_u32 s{S_T5}, s{S_T5}, s{S_PITCH}")
            A(f"s_sub_u32 s{S_T5}, s{S_T5}, 1")
            A(f"s_max_u32 s{S_T5}, s{S_T5}, {self.NMIN}")
        A(f"s_min_u32 s{S_T5}, s{S_T5}, {self.D}")
        A(f"v_mov_b32 v64, s{S_T5}")
        A(f"ds_write_b32 v61, v64")
        A(f"s_add_u32 s{S_T0}, s{S_T0}, 1")
        A(f"s_cmp_le_u32 s{S_T0}, {k1}")
        A(f"s_cbranch_scc1 {lp}")
        A(f"s_waitcnt lgkmcnt(0)")
        A.place(lend)

    RING = 64
    R = 32
    QF = 8
    VN = 200
    def slot(self, t): return self.RING + 4 * (t % self.R)
    def issue(self, t, which):
        A = self.A
        r = self.slot(t)
        A(f"buffer_load_dwordx4 {vr(r,4)}, v2, {srd(R_K if which == 'K' else R_V)}, s{S_OFF} offen {self.KP if which == 'K' else self.VP}")
        A(f"s_add_u32 s{S_OFF}, s{S_OFF}, 4096")
        if self.rot: A(f"s_and_b32 s{S_OFF}, s{S_OFF}, 0xfffff")

    def vwait(self):
        A = self.A
        if not self.pace and not self.NW and not (self.defer and self.D > self.N):
            A(f"s_waitcnt vmcnt({self.N-1})"); return
        L = A.label()
        lv = list(range(self.D, self.NMIN, -1))
        for n in lv:
            A(f"s_waitcnt vmcnt({n-1})")
            A(f"s_cmp_ge_u32 s{S_NCUR}, {n}")
            A(f"s_cbranch_scc1 {L}")
        A(f"s_waitcnt vmcnt({self.NMIN-1})")
        A.place(L)
    def blk_begin(self):
        if not self.pace: return
        A = self.A
        A(f"s_waitcnt lgkmcnt(0)")
        A(f"v_readfirstlane_b32 s{S_NCUR}, v{self.VN}")
        A(f"ds_read_b32 v{self.VN}, v{self.VN+1}")
    def blk_end(self):
        if not self.pace: return
        A = self.A
        L = A.label()
        A(f"v_add_u32 v{self.VN+2}, 1, v{self.VN+2}")
        A(f"s_cmp_eq_u32 s{S_SW}, 0")
        A(f"s_cbranch_scc0 {L}")
        A(f"ds_write_b32 v{self.VN+1}, v{self.VN+2} offset:-4".replace("offset:-4", "offset:0") if False else f"ds_write_b32 v{self.VN+3}, v{self.VN+2}")
        A.place(L)

    def k_block(self, t0, plan):
        A = self.A
        q = self.QF
        ACC = [12, 13, 14, 15]; B0, B1 = 16, 17; E = [18, 19, 20, 21]; M = 22
        MX = 24; SA = 25
        def reduce_group(c):
            a0, a1, a2, a3 = ACC
            e = E[c]
            A(f"v_add_f32_dpp v{B0}, v{a0}, v{a0} row_ror:8 row_mask:0xf bank_mask:0x3")
            A(f"v_add_f32_dpp v{B1}, v{a2}, v{a2} row_ror:8 row_mask:0xf bank_mask:0x3")
            A(f"v_add_f32_dpp v{B0}, v{a1}, v{a1} row_ror:8 row_mask:0xf bank_mask:0xc")
            A(f"v_add_f32_dpp v{B1}, v{a3}, v{a3} row_ror:8 row_mask:0xf bank_mask:0xc")
            A(f"v_add_f32_dpp v{e}, v{B0}, v{B0} row_half_mirror row_mask:0xf bank_mask:0x5")
            A(f"v_add_f32_dpp v{e}, v{B1}, v{B1} row_half_mirror row_mask:0xf bank_mask:0xa")
            A(f"v_add_f32_dpp v{e}, v{e}, v{e} quad_perm:[1,0,3,2] row_mask:0xf bank_mask:0xf")
            A(f"v_add_f32_dpp v{e}, v{e}, v{e} quad_perm:[2,3,0,1] row_mask:0xf bank_mask:0xf")
        self.blk_begin()
        for t in range(16):
            cnt, iss = plan(t0 + t)
            if cnt is None: self.vwait()
            else: A(f"s_waitcnt vmcnt({cnt})")
            if iss is not None:
                if iss[1] == 'V' and iss[0] == 0:
                    A(f"s_mov_b32 s{S_OFF}, s{S_ROT}")
                self.issue(iss[0], iss[1])
            r = self.slot(t0 + t)
            a = ACC[t % 4]
            A(f"v_dot2_f32_bf16 v{a}, v{r}, v{q}, 0")
            A(f"v_dot2_f32_bf16 v{a}, v{r+1}, v{q+1}, v{a}")
            A(f"v_dot2_f32_bf16 v{a}, v{r+2}, v{q+2}, v{a}")
            A(f"v_dot2_f32_bf16 v{a}, v{r+3}, v{q+3}, v{a}")
            if t % 4 == 3:
                reduce_group(t // 4)
        A(f"v_cndmask_b32 v{M}, v{E[0]}, v{E[1]}, s[{S_M1}:{S_M1+1}]")
        A(f"v_cndmask_b32 v{M}, v{M}, v{E[2]}, s[{S_M2}:{S_M2+1}]")
        A(f"v_cndmask_b32 v{M}, v{M}, v{E[3]}, s[{S_M3}:{S_M3+1}]")
        self.rnd_bf16(M, M)
        A(f"v_mul_f32 v{M}, 0x3db504f3, v{M}")
        self.rnd_bf16(M, M)
        A(f"ds_write_b32 v{SA}, v{M}")
        A(f"v_max_f32 v{MX}, v{MX}, v{M}")
        A(f"v_add_u32 v{SA}, 256, v{SA}")
        self.blk_end()

    def v_block(self, t0, plan, last=False):
        A = self.A
        P, PN, PA = 12, 13, 14
        MK = [16, 17, 18, 19]
        BS = [[20, 21, 22, 23], [24, 25, 26, 27]]
        ACC = 28
        A(f"s_waitcnt lgkmcnt(0)")
        A(f"v_mov_b32 v{P}, v{PN}")
        self.blk_begin()
        if not last:
            A(f"ds_read_b32 v{PN}, v{PA}")
            A(f"v_add_u32 v{PA}, 256, v{PA}")
        for t in range(16):
            cnt, iss = plan(t0 + t)
            if cnt is None: self.vwait()
            else: A(f"s_waitcnt vmcnt({cnt})")
            if iss is not None:
                self.issue(iss[0], iss[1])
            B = BS[t % 2]
            for j in range(4):
                A(f"v_and_b32_dpp v{B[j]}, v{P}, v{MK[j]} row_newbcast:{t} row_mask:0xf bank_mask:0xf")
            r = self.slot(t0 + t)
            A(f"v_mfma_f32_16x16x32_bf16 {vr(ACC,4)}, {vr(r,4)}, {vr(B[0],4)}, {vr(ACC,4)}")
        self.blk_end()

    def stream(self):
        A = self.A
        N, NP, PV, R = self.N, self.NP, self.PV, self.R
        A.place("L_stream")
        A.c("==== stream waves ====")
        A(f"""
        v_lshrrev_b32 v4, 3, v1
        v_and_b32 v5, 7, v1
        v_lshrrev_b32 v6, 4, v1
        v_and_b32 v6, 1, v6
        v_lshlrev_b32 v6, 1, v6
        v_xor_b32 v5, v5, v6
        s_and_b32 s{S_T0}, s{S_SW}, 1
        s_lshl_b32 s{S_T0}, s{S_T0}, 2
        v_xor_b32 v5, s{S_T0}, v5
        v_lshlrev_b32 v5, 4, v5
        s_waitcnt lgkmcnt(0)
        """)
        self.mk_srd(R_WS, S_WS, WS_SIZE)
        self.role_params()
        A(f"""
        s_lshl_b32 s{S_T0}, s{S_B}, 5
        s_add_u32 s{S_T0}, s{S_T0}, s{S_H}
        s_lshl_b32 s{S_T0}, s{S_T0}, 20
        """)
        self.mk_srd(R_K, S_K, 1 << 20, f"s{S_T0}")
        self.mk_srd(R_V, S_V, 1 << 20, f"s{S_T0}")
        A(f"""
        v_mul_lo_u32 v4, v4, s{S_PITCH}
        v_add_u32 v4, v4, v5
        s_lshl_b32 s{S_T0}, s{S_PITCH}, 3
        s_mul_i32 s{S_T1}, s{S_T0}, s{S_SW}
        s_lshl_b32 s{S_T0}, s{S_T0}, 2
        s_lshl_b32 s{S_T2}, s{S_SW}, 10
        s_mov_b32 s{S_T3}, 0
        s_barrier
        """)
        self.stamp(0)
        if self.stamps and self.stamps not in ("tail", "early", "svc", "entry"):
            A("s_getreg_b32 s4, hwreg(HW_REG_XCC_ID)")
            A(f"s_lshl_b32 s6, s{S_WG}, 3")
            A(f"s_add_u32 s6, s6, s{S_WAVE}")
            A(f"s_lshl_b32 s6, s6, 7")
            A(f"s_add_u32 s6, s6, {WS_DBG + 0x100000 + 31*4}")
            A(f"s_mov_b64 exec, 1")
            A(f"v_mov_b32 v254, s4")
            A(f"v_mov_b32 v255, 0")
            A(f"buffer_store_dword v254, v255, {srd(R_WS)}, s6 offen")
            A(f"s_mov_b64 exec, -1")
        lp1, lp2, ld = A.label(), A.label(), A.label()
        def dma_iter(wait):
            A(f"""
            s_mov_b32 m0, s{S_T2}
            s_waitcnt vmcnt({wait})
            buffer_load_dwordx4 v4, {srd(R_WT)}, s{S_T1} offen {self.WP} lds
            s_add_u32 s{S_T1}, s{S_T1}, s{S_T0}
            s_add_u32 s{S_T2}, s{S_T2}, 4096
            s_add_u32 s{S_T3}, s{S_T3}, 1
            s_cmp_eq_u32 s{S_T3}, s{S_JJ}
            s_cselect_b32 s{S_T4}, s{S_JA}, 0
            s_add_u32 s{S_T1}, s{S_T1}, s{S_T4}
            """)
        self.dma_iter = dma_iter
        A(f"s_cmp_eq_u32 s{S_J1}, 0")
        A(f"s_cbranch_scc1 {ld}")
        A.place(lp1)
        dma_iter(NP - 1)
        A(f"s_cmp_lt_u32 s{S_T3}, s{S_J1}")
        A(f"s_cbranch_scc1 {lp1}")
        A.place(ld)
        if self.rot:
            A(f"s_mul_i32 s{S_ROT}, s2, {self.rot}")
            A(f"s_and_b32 s{S_ROT}, s{S_ROT}, 255")
            A(f"s_lshl_b32 s{S_ROT}, s{S_ROT}, 12")
        else:
            A(f"s_mov_b32 s{S_ROT}, 0")
        A(f"s_lshl_b32 s{S_T5}, s{S_SW}, 10")
        A(f"s_add_u32 s{S_ROT}, s{S_ROT}, s{S_T5}")
        A(f"s_mov_b32 s{S_OFF}, s{S_ROT}")
        for t in range(R):
            A(f"s_waitcnt vmcnt({NP-1})")
            self.issue(t, 'K')
        self.stamp(15)
        ld2 = A.label()
        if self.defer:
            A(f"s_cmp_eq_u32 s{S_ROLE}, 0")
            A(f"s_cbranch_scc0 {ld2}")
        else:
            A(f"s_cmp_eq_u32 s{S_NJ}, 0")
            A(f"s_cbranch_scc1 {ld2}")
        self.lds_wait(LDS_CNT + 4, 4, 6, 7)
        A.place(lp2)
        dma_iter(NP - 1)
        A(f"s_cmp_lt_u32 s{S_T3}, s{S_NJ}")
        A(f"s_cbranch_scc1 {lp2}")
        A.place(ld2)
        A(f"s_mov_b32 s{S_DS}, s{S_T1}")
        A(f"s_mov_b32 s{S_DM}, s{S_T2}")
        A(f"s_mov_b32 s{S_DJ}, s{S_T3}")
        A(f"s_mov_b32 s{S_DST}, s{S_T0}")
        A(f"v_mov_b32 v204, v4")
        self.stamp(14)
        self.lds_wait(LDS_CNT + 12, 1, 6, 7)
        self.stamp(3)
        self.cstamp(20)
        A(f"""
        v_and_b32 v6, 15, v1
        v_lshlrev_b32 v6, 4, v6
        v_add_u32 v6, {LDS_Q}, v6
        ds_read_b128 v[8:11], v6
        v_mov_b32 v24, 0xff800000
        v_and_b32 v6, 3, v1
        v_lshlrev_b32 v6, 2, v6
        v_bfe_u32 v7, v1, 2, 1
        v_lshlrev_b32 v7, 1, v7
        v_bfe_u32 v5, v1, 3, 1
        v_or_b32 v7, v7, v5
        v_add_u32 v6, v6, v7
        v_and_b32 v7, 48, v1
        v_add_u32 v6, v6, v7
        v_lshlrev_b32 v6, 2, v6
        s_lshl_b32 s{S_T0}, s{S_SW}, 12
        s_add_u32 s{S_T0}, s{S_T0}, {LDS_SC}
        v_add_u32 v25, s{S_T0}, v6
        v_mov_b32 v201, {LDS_N}
        v_mov_b32 v202, 0
        v_mov_b32 v203, {LDS_BLK}
        ds_read_b32 v200, v201
        """)
        if self.defer and not self.pace:
            A(f"s_cmp_eq_u32 s{S_ROLE}, 0")
            A(f"s_cselect_b32 s{S_NCUR}, {self.NOK}, {self.N}")
        if self.NW:
            A(f"s_mov_b32 s{S_NCUR}, {self.NW[0]}")
            for w in range(1, 4):
                A(f"s_cmp_eq_u32 s{S_SW}, {w}")
                A(f"s_cselect_b32 s{S_NCUR}, {self.NW[w]}, s{S_NCUR}")
        A(f"""
        s_waitcnt lgkmcnt(0)
        """)
        D = self.D
        def plan_first(t):
            if t < R - D: return (R - 1 - t, None)
            return (None, (t + D, 'K'))
        def plan_mid(t): return (None, (t + D, 'K'))
        def plan_klast(t):
            if t + D < 256: return (None, (t + D, 'K'))
            return (None, (t + D - 256, 'V'))
        self.k_block(0, plan_first)
        self.k_block(16, plan_first)
        lp = A.label()
        A(f"s_mov_b32 s{S_T3}, 0")
        A.place(lp)
        self.k_block(32, plan_mid)
        self.k_block(48, plan_mid)
        A(f"s_add_u32 s{S_T3}, s{S_T3}, 1")
        A(f"s_cmp_lt_u32 s{S_T3}, 6")
        A(f"s_cbranch_scc1 {lp}")
        self.k_block(224, plan_mid)
        self.k_block(240, plan_klast)
        for t in range(D, PV):
            self.issue(t, 'V')
        self.stamp(4)
        MX, T = 24, 23
        for r in (8, 4, 2, 1):
            A(f"v_max_f32_dpp v{MX}, v{MX}, v{MX} row_ror:{r} row_mask:0xf bank_mask:0xf")
        A(f"""
        v_lshrrev_b32 v6, 4, v1
        v_lshlrev_b32 v6, 2, v6
        s_lshl_b32 s{S_T0}, s{S_SW}, 4
        v_add_u32 v6, s{S_T0}, v6
        v_add_u32 v7, {LDS_WM}, v6
        ds_write_b32 v7, v{MX}
        s_lshl_b32 s{S_T0}, s{S_SW}, 12
        s_add_u32 s{S_T0}, s{S_T0}, {LDS_SC}
        v_add_u32 v14, s{S_T0}, v3
        s_waitcnt lgkmcnt(0)
        """)
        for i in range(16):
            A(f"ds_read_b32 v{48+i}, v14 offset:{i*256}")
        A(f"""
        s_barrier
        v_mov_b32 v7, {LDS_WM}
        ds_read_b128 v[32:35], v7
        ds_read_b128 v[36:39], v7 offset:16
        ds_read_b128 v[40:43], v7 offset:32
        ds_read_b128 v[44:47], v7 offset:48
        s_mov_b32 s{S_T1}, 0x3fb8aa3b
        s_waitcnt lgkmcnt(0)
        """)
        A(f"v_max3_f32 v{MX}, v32, v33, v34")
        for i in range(35, 47, 2):
            A(f"v_max3_f32 v{MX}, v{MX}, v{i}, v{i+1}")
        A(f"v_max_f32 v{MX}, v{MX}, v47")
        for i in range(16):
            A(f"v_sub_f32 v{48+i}, v{48+i}, v{MX}")
        for i in range(16):
            A(f"v_mul_f32 v{48+i}, s{S_T1}, v{48+i}")
        for i in range(16):
            A(f"v_exp_f32 v{48+i}, v{48+i}")
        A(f"v_add_f32 v{T}, v48, v49")
        for i in range(2, 16):
            A(f"v_add_f32 v{T}, v{T}, v{48+i}")
        for r in (8, 4, 2, 1):
            A(f"v_add_f32_dpp v{T}, v{T}, v{T} row_ror:{r} row_mask:0xf bank_mask:0xf")
        A(f"""
        v_add_u32 v7, {LDS_WS}, v6
        ds_write_b32 v7, v{T}
        s_waitcnt lgkmcnt(0)
        s_barrier
        v_mov_b32 v7, {LDS_WS}
        ds_read_b128 v[32:35], v7
        ds_read_b128 v[36:39], v7 offset:16
        ds_read_b128 v[40:43], v7 offset:32
        ds_read_b128 v[44:47], v7 offset:48
        v_and_b32 v6, 15, v1
        v_lshrrev_b32 v7, 1, v6
        v_and_b32 v5, 1, v6
        v_lshlrev_b32 v5, 4, v5
        v_mov_b32 v4, 0xffff
        v_lshlrev_b32 v4, v5, v4
        """)
        for j in range(4):
            A(f"v_cmp_eq_u32 vcc, {j}, v7")
            A(f"v_cndmask_b32 v{16+j}, 0, v4, vcc")
        A("s_waitcnt lgkmcnt(0)")
        for i in range(0, 16, 2):
            A(f"v_add_f32 v{32+i}, v{32+i}, v{33+i}")
        for i in range(0, 16, 4):
            A(f"v_add_f32 v{32+i}, v{32+i}, v{34+i}")
        A(f"v_add_f32 v32, v32, v36")
        A(f"v_add_f32 v40, v40, v44")
        A(f"v_add_f32 v32, v32, v40")
        A(f"v_rcp_f32 v32, v32")
        for i in range(16):
            A(f"v_mul_f32 v{48+i}, v{48+i}, v32")
        for i in range(16):
            A(f"v_cvt_pk_bf16_f32 v{48+i}, v{48+i}, v{48+i}")
        for i in range(1, 16):
            A(f"ds_write_b32 v14, v{48+i} offset:{i*256}")
        A(f"""
        v_mov_b32 v13, v48
        v_add_u32 v14, 256, v14
        v_mov_b32 v28, 0
        v_mov_b32 v29, 0
        v_mov_b32 v30, 0
        v_mov_b32 v31, 0
        """)
        if self.defer and not self.pace:
            A(f"s_cmp_eq_u32 s{S_ROLE}, 0")
            A(f"s_cselect_b32 s{S_NCUR}, {self.NOV}, {self.N}")
        self.stamp(5)
        def plan_vfirst(t):
            if t < PV - D: return (PV - 1 - t, None)
            return (None, (t + D, 'V'))
        def plan_vmid(t): return (None, (t + D, 'V'))
        def plan_vlast(t):
            if t + D < 256: return (None, (t + D, 'V'))
            return (255 - t, None)
        assert PV == 16
        self.v_block(0, plan_vfirst)
        lp = A.label()
        A(f"s_mov_b32 s{S_T3}, 0")
        A.place(lp)
        self.v_block(16, plan_vmid)
        self.v_block(32, plan_vmid)
        A(f"s_add_u32 s{S_T3}, s{S_T3}, 1")
        A(f"s_cmp_lt_u32 s{S_T3}, 7")
        A(f"s_cbranch_scc1 {lp}")
        self.v_block(240, plan_vlast, last=True)
        A(f"""
        v_lshrrev_b32 v6, 4, v1
        v_lshlrev_b32 v6, 7, v6
        v_and_b32 v7, 15, v1
        v_lshlrev_b32 v7, 2, v7
        v_add_u32 v6, v6, v7
        s_lshl_b32 s{S_T0}, s{S_SW}, 9
        s_add_u32 s{S_T0}, s{S_T0}, {LDS_ORED}
        v_add_u32 v6, s{S_T0}, v6
        s_mov_b64 exec, s[{S_MJ8}:{S_MJ8+1}]
        ds_write_b32 v6, v28
        ds_write_b32 v6, v29 offset:32
        ds_write_b32 v6, v30 offset:64
        ds_write_b32 v6, v31 offset:96
        s_mov_b64 exec, -1
        s_waitcnt lgkmcnt(0)
        """)
        self.stamp(6)
        self.cstamp(21)
        A.place("L_join3")

    def tile_afrags(self, base):
        A = self.A
        A(f"""
        v_lshrrev_b32 v4, 4, v1
        v_and_b32 v5, 15, v1
        v_lshrrev_b32 v6, 2, v5
        v_and_b32 v5, 3, v5
        v_lshrrev_b32 v7, 1, v6
        v_and_b32 v8, 1, v4
        v_lshlrev_b32 v8, 1, v8
        v_or_b32 v7, v7, v8
        v_lshlrev_b32 v8, 3, v4
        v_add_u32 v8, v8, v6
        v_lshlrev_b32 v8, 7, v8
        v_lshlrev_b32 v5, 3, v5
        v_add_u32 v8, v8, v5
        s_lshl_b32 s{S_T0}, s{S_WAVE}, 14
        v_add_u32 v8, s{S_T0}, v8
        """)
        for cb in range(4):
            A(f"v_xor_b32 v{9+cb}, {cb}, v7")
            A(f"v_lshlrev_b32 v{9+cb}, 5, v{9+cb}")
            A(f"v_add_u32 v{9+cb}, v{9+cb}, v8")
        for s in range(4):
            for cb in range(4):
                r = base + (s * 4 + cb) * 4
                A(f"ds_read_b64_tr_b16 {vr(r,2)}, v{9+cb} offset:{s*4096}")
                A(f"ds_read_b64_tr_b16 {vr(r+2,2)}, v{9+cb} offset:{s*4096+512}")

    RW = 240
    def red_addrs(self):
        A = self.A
        RW = self.RW
        A(f"""
        v_and_b32 v4, 15, v1
        v_lshrrev_b32 v5, 4, v1
        s_lshl_b32 s{S_T0}, s{S_WAVE}, 11
        s_add_u32 s{S_T0}, s{S_T0}, {LDS_RED}
        v_lshlrev_b32 v6, 8, v4
        v_add_u32 v6, s{S_T0}, v6
        """)
        for cb in range(4):
            A(f"v_add_u32 v7, {4*cb}, v5")
            A(f"v_xor_b32 v7, v7, v4")
            A(f"v_lshlrev_b32 v7, 4, v7")
            A(f"v_add_u32 v{RW+cb}, v7, v6")
        A(f"""
        v_lshrrev_b32 v4, 2, v1
        v_xor_b32 v4, s{S_WAVE}, v4
        v_lshlrev_b32 v4, 4, v4
        v_and_b32 v5, 3, v1
        v_lshlrev_b32 v5, 2, v5
        v_add_u32 v4, v4, v5
        s_lshl_b32 s{S_T0}, s{S_WAVE}, 8
        s_add_u32 s{S_T0}, s{S_T0}, {LDS_RED}
        v_add_u32 v{RW+4}, s{S_T0}, v4
        """)

    def mfma16(self, abase, bregs, acc):
        A = self.A
        for s in range(4):
            for cb in range(4):
                r = abase + (s * 4 + cb) * 4
                a = acc + 4 * cb
                src = "0" if s == 0 else vr(a, 4)
                A(f"v_mfma_f32_16x16x32_bf16 {vr(a,4)}, {vr(r,4)}, {vr(bregs[s],4)}, {src}")

    def red_write(self, acc):
        A = self.A
        A(f"s_mov_b64 exec, s[{S_MJ8}:{S_MJ8+1}]")
        for cb in range(4):
            A(f"ds_write_b128 v{self.RW+cb}, {vr(acc+4*cb,4)}")
        A("s_mov_b64 exec, -1")
        A("s_waitcnt lgkmcnt(0)")

    def red_sum(self, nw, dst):
        A = self.A
        for v in range(nw):
            A(f"ds_read_b32 v{dst+v}, v{self.RW+4} offset:{v*2048}")
        A("s_waitcnt lgkmcnt(0)")
        regs = [dst + v for v in range(nw)]
        while len(regs) > 1:
            nxt = []
            for i in range(0, len(regs) - 1, 2):
                A(f"v_add_f32 v{regs[i]}, v{regs[i]}, v{regs[i+1]}")
                nxt.append(regs[i])
            if len(regs) % 2: nxt.append(regs[-1])
            regs = nxt

    def tail(self):
        A = self.A
        A("s_barrier")
        lskip = A.label()
        A(f"s_cmp_eq_u32 s{S_WAVE}, 0")
        A(f"s_cbranch_scc0 {lskip}")
        A(f"""
        v_lshlrev_b32 v4, 3, v1
        v_add_u32 v4, {LDS_ORED}, v4
        ds_read_b64 v[8:9], v4
        ds_read_b64 v[10:11], v4 offset:512
        ds_read_b64 v[12:13], v4 offset:1024
        ds_read_b64 v[14:15], v4 offset:1536
        s_lshl_b32 s{S_T0}, s{S_B}, 13
        s_lshl_b32 s{S_T1}, s{S_H}, 8
        s_add_u32 s{S_T0}, s{S_T0}, s{S_T1}
        s_add_u32 s{S_T0}, s{S_T0}, {WS_OB}
        s_waitcnt lgkmcnt(0)
        v_pk_add_f32 v[8:9], v[8:9], v[10:11]
        v_pk_add_f32 v[12:13], v[12:13], v[14:15]
        v_pk_add_f32 v[8:9], v[8:9], v[12:13]
        v_cvt_pk_bf16_f32 v8, v8, v9
        v_min_u32 v8, -2, v8
        """)
        self.quad_gather(8, 8)
        A(f"""
        s_mov_b64 exec, s[{S_MQ}:{S_MQ+1}]
        buffer_store_dwordx4 v[8:11], v3, {srd(R_WS)}, s{S_T0} offen sc0 sc1
        s_mov_b64 exec, -1
        """)
        A.place(lskip)
        self.stamp(7)
        if self.defer:
            lnd = A.label(); lp = A.label()
            A("s_barrier")
            A(f"s_cmp_lt_u32 s{S_WAVE}, 4")
            A(f"s_cbranch_scc1 {lnd}")
            A(f"s_cmp_ge_u32 s{S_DJ}, s{S_NJ}")
            A(f"s_cbranch_scc1 {lnd}")
            A(f"s_mov_b32 s{S_T1}, s{S_DS}")
            A(f"s_mov_b32 s{S_T2}, s{S_DM}")
            A(f"s_mov_b32 s{S_T3}, s{S_DJ}")
            A(f"s_mov_b32 s{S_T0}, s{S_DST}")
            A(f"v_mov_b32 v4, v204")
            lpd = A.label()
            A(f"s_cmp_eq_u32 s{S_ROLE}, 2")
            A(f"s_cbranch_scc1 {lpd}")
            A.place(lp)
            self.dma_iter(self.NT - 1)
            A(f"s_cmp_lt_u32 s{S_T3}, s{S_NJ}")
            A(f"s_cbranch_scc1 {lp}")
            A(f"s_branch {lnd}")
            A.place(lpd)
            self.dma_iter(self.NTD - 1)
            A(f"s_cmp_lt_u32 s{S_T3}, s{S_NJ}")
            A(f"s_cbranch_scc1 {lpd}")
            A.place(lnd)
        if self.stop_after == "attn":
            A("s_branch L_end")
        A(f"""
        s_cmp_eq_u32 s{S_ROLE}, 0
        s_cbranch_scc1 L_roleO
        s_cmp_eq_u32 s{S_ROLE}, 1
        s_cbranch_scc1 L_roleG
        s_cmp_eq_u32 s{S_ROLE}, 2
        s_cbranch_scc1 L_roleD
        s_branch L_roleF
        """)
        self.role_O()
        self.role_G()
        self.role_D()
        self.role_F()

    def role_O(self):
        A = self.A
        A.place("L_roleO")
        AB = 64
        A(f"s_lshr_b32 s{S_NJ}, s{S_H}, 1")
        A(f"s_and_b32 s{S_PITCH}, s{S_H}, 1")
        A(f"s_lshl_b32 s{S_T0}, s{S_B}, 1")
        A(f"s_add_u32 s{S_PITCH}, s{S_PITCH}, s{S_T0}")
        A(f"""
        v_and_b32 v4, 15, v1
        v_lshlrev_b32 v4, 13, v4
        v_lshrrev_b32 v5, 4, v1
        v_lshlrev_b32 v5, 4, v5
        v_add_u32 v16, v4, v5
        s_lshl_b32 s{S_JJ}, s{S_NJ}, 11
        s_lshl_b32 s{S_T1}, s{S_WAVE}, 8
        s_add_u32 s{S_JJ}, s{S_JJ}, s{S_T1}
        s_add_u32 s{S_JJ}, s{S_JJ}, {WS_OB}
        """)
        oloads = [f"buffer_load_dwordx4 {vr(32+4*s_,4)}, v16, {srd(R_WS)}, s{S_JJ} offen offset:{s_*64} {self.LP}" for s_ in range(4)]
        self.poll_issue(oloads, range(32, 48), mask=S_MJ8)
        self.local_flag()
        self.mk_srd(R_X, S_X, 16384)
        A(f"""
        v_bfe_u32 v14, v1, 4, 1
        v_lshlrev_b32 v14, 11, v14
        v_and_b32 v15, 15, v1
        v_lshlrev_b32 v13, 3, v15
        v_add_u32 v13, v13, v14
        s_lshl_b32 s{S_T0}, s{S_PITCH}, 7
        s_lshl_b32 s{S_T1}, s{S_NJ}, 12
        s_add_u32 s{S_T0}, s{S_T0}, s{S_T1}
        buffer_load_dwordx2 v[28:29], v13, {srd(R_X)}, s{S_T0} offen
        s_add_u32 s{S_OFF}, s{S_T0}, {WS_H}
        v_lshrrev_b32 v15, 1, v15
        v_lshlrev_b32 v15, 4, v15
        v_add_u32 v14, v14, v15
        """)
        self.tile_afrags(AB)
        self.red_addrs()
        A(f"""
        v_bfe_u32 v4, v1, 4, 1
        s_lshl_b32 s{S_T0}, s{S_WAVE}, 1
        v_add_u32 v4, s{S_T0}, v4
        v_and_b32 v5, 15, v1
        v_xor_b32 v5, v5, v4
        v_lshlrev_b32 v5, 4, v5
        v_lshlrev_b32 v4, 8, v4
        v_add_u32 v4, v4, v5
        v_lshrrev_b32 v5, 5, v1
        v_lshlrev_b32 v5, 13, v5
        v_add_u32 v4, v4, v5
        v_add_u32 v19, {LDS_RED}, v4
        v_and_b32 v4, 31, v1
        v_lshlrev_b32 v13, 4, v4
        s_lshl_b32 s{S_T2}, s{S_PITCH}, 13
        s_add_u32 s{S_T2}, s{S_T2}, {WS_OP}
        s_lshl_b32 s{S_T1}, s{S_WAVE}, 11
        s_add_u32 s{S_T3}, s{S_T2}, s{S_T1}
        s_lshl_b32 s{S_T1}, s{S_NJ}, 9
        s_add_u32 s{S_T3}, s{S_T3}, s{S_T1}
        s_lshl_b32 s{S_T1}, s{S_NJ}, 11
        s_add_u32 s{S_T2}, s{S_T2}, s{S_T1}
        """)
        self.poll_pipe(oloads, range(32, 48), 17, mask=S_MJ8, sleep=self.PS, issued=True)
        self.stamp(8)
        A("s_waitcnt lgkmcnt(0)")
        self.mfma16(AB, [32, 36, 40, 44], 48)
        self.red_write(48)
        A("s_barrier")
        lr1 = A.label()
        A(f"s_cmp_ge_u32 s{S_WAVE}, 4")
        A(f"s_cbranch_scc1 {lr1}")
        for v in range(4):
            A(f"ds_read_b128 {vr(32+4*v,4)}, v19 offset:{v*2048}")
        A("s_waitcnt lgkmcnt(0)")
        for e in (0, 2):
            A(f"v_pk_add_f32 {vr(32+e,2)}, {vr(32+e,2)}, {vr(36+e,2)}")
            A(f"v_pk_add_f32 {vr(40+e,2)}, {vr(40+e,2)}, {vr(44+e,2)}")
        for e in (0, 2):
            A(f"v_pk_add_f32 {vr(32+e,2)}, {vr(32+e,2)}, {vr(40+e,2)}")
        for e in range(4):
            A(f"v_mov_b32 v{36+e}, v{32+e}")
        for e in range(4):
            A(f"v_permlane32_swap_b32 v{32+e}, v{36+e}")
        for e in (0, 2):
            A(f"v_pk_add_f32 {vr(32+e,2)}, {vr(32+e,2)}, {vr(36+e,2)}")
        for e in range(4):
            A(f"v_min_u32 v{32+e}, -2, v{32+e}")
        A("s_mov_b64 exec, 0xffffffff")
        self.store_sel(f"buffer_store_dwordx4 v[32:35], v13, {srd(R_WS)}, s{S_T3} offen")
        A("s_mov_b64 exec, -1")
        self.stamp(9)
        A("s_branch L_end")
        A.place(lr1)
        A(f"s_cmp_eq_u32 s{S_WAVE}, 4")
        A(f"s_cbranch_scc0 L_end")
        A(f"v_lshlrev_b32 v20, 16, v28")
        A(f"v_and_b32 v21, 0xffff0000, v28")
        A(f"v_lshlrev_b32 v22, 16, v29")
        A(f"v_and_b32 v23, 0xffff0000, v29")
        loads = [f"buffer_load_dwordx4 v[32:35], v2, {srd(R_WS)}, s{S_T2} offen {self.LP}",
                 f"buffer_load_dwordx4 v[36:39], v2, {srd(R_WS)}, s{S_T2} offen offset:1024 {self.LP}"]
        self.poll_pipe(loads, range(32, 40), 17, sleep=0)
        self.stamp(9)
        for e in (0, 2):
            A(f"v_pk_add_f32 {vr(40+e,2)}, {vr(32+e,2)}, {vr(36+e,2)}")
        for e in range(4):
            A(f"v_mov_b32 v{44+e}, v{40+e}")
        for e in range(4):
            A(f"v_permlane32_swap_b32 v{40+e}, v{44+e}")
        for e in (0, 2):
            A(f"v_pk_add_f32 {vr(40+e,2)}, {vr(40+e,2)}, {vr(44+e,2)}")
        A(f"""
        v_cvt_pk_bf16_f32 v44, v40, v41
        v_cvt_pk_bf16_f32 v45, v42, v43
        v_lshlrev_b32 v40, 16, v44
        v_and_b32 v41, 0xffff0000, v44
        v_lshlrev_b32 v42, 16, v45
        v_and_b32 v43, 0xffff0000, v45
        v_pk_add_f32 v[40:41], v[40:41], v[20:21]
        v_pk_add_f32 v[42:43], v[42:43], v[22:23]
        v_cvt_pk_bf16_f32 v48, v40, v41
        v_cvt_pk_bf16_f32 v49, v42, v43
        v_min_u32 v48, -2, v48
        v_min_u32 v49, -2, v49
        v_mov_b32_dpp v50, v48 quad_perm:[1,1,3,3] row_mask:0xf bank_mask:0xf
        v_mov_b32_dpp v51, v49 quad_perm:[1,1,3,3] row_mask:0xf bank_mask:0xf
        s_mov_b64 exec, 0x55555555
        buffer_store_dwordx4 v[48:51], v14, {srd(R_WS)}, s{S_OFF} offen sc0 sc1
        s_mov_b64 exec, -1
        """)
        self.stamp(16)
        A("s_branch L_end")

    def role_G(self):
        A = self.A
        A.place("L_roleG")
        AB = 160
        self.local_flag()
        self.red_addrs()
        F, D = 96, 128
        A(f"""
        s_lshl_b32 s{S_T0}, s{S_WAVE}, 1
        v_xor_b32 v14, s{S_T0}, v1
        v_lshlrev_b32 v14, 4, v14
        s_lshl_b32 s{S_T0}, s{S_WAVE}, 11
        s_add_u32 s{S_T0}, s{S_T0}, {LDS_XN2}
        v_add_u32 v14, s{S_T0}, v14
        v_and_b32 v17, 7, v1
        v_lshrrev_b32 v18, 4, v1
        v_lshlrev_b32 v19, 11, v17
        s_lshl_b32 s{S_T0}, s{S_WAVE}, 8
        s_add_u32 s{S_T0}, s{S_T0}, {LDS_XN2}
        v_add_u32 v19, s{S_T0}, v19
        v_lshlrev_b32 v17, 1, v17
        """)
        for s_ in range(4):
            A(f"v_add_u32 v28, {4*s_}, v18")
            A(f"v_xor_b32 v28, v28, v17")
            A(f"v_lshlrev_b32 v28, 4, v28")
            A(f"v_add_u32 v{232+s_}, v28, v19")
        A(f"""
        s_sub_u32 s{S_T0}, s{S_H}, 8
        s_and_b32 s{S_T1}, s{S_T0}, 1
        s_mul_i32 s{S_T1}, s{S_T1}, 57344
        s_lshr_b32 s{S_T0}, s{S_T0}, 1
        s_mul_i32 s{S_T2}, s{S_B}, 7
        s_add_u32 s{S_T0}, s{S_T0}, s{S_T2}
        s_lshl_b32 s{S_T0}, s{S_T0}, 7
        s_add_u32 s{S_T0}, s{S_T0}, s{S_T1}
        s_mul_i32 s{S_T1}, s{S_WAVE}, 7168
        s_add_u32 s{S_T0}, s{S_T0}, s{S_T1}
        s_add_u32 s{S_OFF}, s{S_T0}, {WS_GU}
        v_lshlrev_b32 v15, 1, v1
        s_lshl_b32 s{S_T0}, s{S_WAVE}, 13
        s_add_u32 s{S_T0}, s{S_T0}, {WS_OB}
        v_lshlrev_b32 v17, 8, v1
        s_mov_b64 s[{S_EX}:{S_EX+1}], 0xffffffff
        """)
        self.sample_wait(False, 17, 18, self.HS)
        A(f"s_lshl_b32 s{S_JJ}, s{S_WAVE}, 11")
        A(f"s_add_u32 s{S_JJ}, s{S_JJ}, {WS_H}")
        loads = [f"buffer_load_dwordx4 v[20:23], v2, {srd(R_WS)}, s{S_JJ} offen {self.LP}",
                 f"buffer_load_dwordx4 v[24:27], v2, {srd(R_WS)}, s{S_JJ} offen offset:1024 {self.LP}"]
        self.poll_issue(loads, range(20, 28))
        self.tile_afrags(AB)
        self.stamp(16)
        self.poll_pipe(loads, range(20, 28), 17, sleep=self.GSL, issued=True)
        self.stamp(8)
        for i in range(8):
            A(f"v_lshlrev_b32 v{F+2*i}, 16, v{20+i}")
            A(f"v_and_b32 v{F+2*i+1}, 0xffff0000, v{20+i}")
        S1, S2, T1, T2, VMB, VRS = 144, 146, 148, 149, 150, 152
        self.ln_stats(F, D, S1, S2, T1, T2, VMB, VRS)
        for i in range(8):
            self.ln_apply(48 + i, F + 2*i, VMB, VRS, 154 + 2 * (i % 2))
        A(f"ds_write_b128 v14, v[48:51]")
        A(f"ds_write_b128 v14, v[52:55] offset:1024")
        A("s_waitcnt lgkmcnt(0)")
        A("s_barrier")
        for s_ in range(4):
            A(f"ds_read_b128 {vr(32+4*s_,4)}, v{232+s_}")
        A("s_waitcnt lgkmcnt(0)")
        self.mfma16(AB, [32, 36, 40, 44], 48)
        self.red_write(48)
        A("s_waitcnt vmcnt(0)")
        A("s_barrier")
        self.red_sum(8, 20)
        self.rnd_bf16(20, 20)
        lup = A.label()
        A(f"s_bitcmp1_b32 s{S_H}, 0")
        A(f"s_cbranch_scc1 {lup}")
        A(f"""
        v_mul_f32 v17, v20, v20
        v_mul_f32 v18, v17, v20
        v_mul_f32 v18, 0x3d372713, v18
        v_add_f32 v18, v20, v18
        v_mul_f32 v18, 0x3f4c422a, v18
        v_mul_f32 v18, 0x4038aa3b, v18
        v_min_f32 v18, 0x42700000, v18
        v_exp_f32 v18, v18
        v_add_f32 v19, 1.0, v18
        v_rcp_f32 v19, v19
        v_mul_f32 v18, v18, v19
        v_mul_f32 v20, v20, v18
        """)
        A.place(lup)
        A(f"""
        v_mov_b32_dpp v17, v20 quad_perm:[1,1,3,3] row_mask:0xf bank_mask:0xf
        v_cvt_pk_bf16_f32 v20, v20, v17
        v_min_u32 v20, -2, v20
        """)
        self.even_gather(20, 20)
        A(f"s_mov_b64 exec, s[{S_ME}:{S_ME+1}]")
        self.store_sel(f"buffer_store_dwordx4 v[20:23], v15, {srd(R_WS)}, s{S_OFF} offen")
        A(f"s_mov_b64 exec, -1")
        self.stamp(9)
        A("s_branch L_end")

    def role_D(self):
        A = self.A
        A.place("L_roleD")
        AB = 160
        RW = 224
        A(f"""
        v_lshrrev_b32 v4, 1, v1
        v_xor_b32 v4, s{S_WAVE}, v4
        v_lshlrev_b32 v4, 4, v4
        v_and_b32 v5, 1, v1
        v_lshlrev_b32 v5, 3, v5
        v_add_u32 v4, v4, v5
        s_lshl_b32 s{S_T0}, s{S_WAVE}, 9
        s_add_u32 s{S_T0}, s{S_T0}, {LDS_RED}
        v_add_u32 v{RW+8}, s{S_T0}, v4
        s_lshl_b32 s{S_T0}, s{S_B}, 15
        s_lshl_b32 s{S_T1}, s{S_WAVE}, 12
        s_add_u32 s{S_T0}, s{S_T0}, s{S_T1}
        s_sub_u32 s{S_T1}, s{S_H}, 22
        s_lshl_b32 s{S_T1}, s{S_T1}, 9
        s_add_u32 s{S_T0}, s{S_T0}, s{S_T1}
        s_add_u32 s{S_OFF}, s{S_T0}, {WS_DP}
        v_lshlrev_b32 v15, 3, v1
        """)
        lno = A.label(); lgo = A.label()
        A(f"s_cmp_eq_u32 s{S_WAVE}, 7")
        A(f"s_cbranch_scc0 {lgo}")
        A("s_waitcnt vmcnt(0)")
        A("s_barrier")
        A(f"s_branch {lno}")
        A.place(lgo)
        A(f"""
        v_lshrrev_b32 v4, 4, v1
        v_and_b32 v5, 15, v1
        v_lshrrev_b32 v6, 2, v5
        v_and_b32 v5, 3, v5
        v_lshrrev_b32 v7, 1, v6
        v_and_b32 v8, 1, v4
        v_lshlrev_b32 v8, 1, v8
        v_or_b32 v7, v7, v8
        v_lshlrev_b32 v8, 3, v4
        v_add_u32 v8, v8, v6
        v_lshlrev_b32 v8, 7, v8
        v_lshlrev_b32 v5, 3, v5
        v_add_u32 v8, v8, v5
        s_lshl_b32 s{S_T0}, s{S_WAVE}, 13
        v_add_u32 v8, s{S_T0}, v8
        """)
        for cb in range(4):
            A(f"v_xor_b32 v{9+cb}, {cb}, v7")
            A(f"v_lshlrev_b32 v{9+cb}, 5, v{9+cb}")
            A(f"v_add_u32 v{9+cb}, v{9+cb}, v8")
        A(f"""
        v_and_b32 v4, 15, v1
        v_lshrrev_b32 v5, 4, v1
        s_lshl_b32 s{S_T0}, s{S_WAVE}, 12
        s_add_u32 s{S_T0}, s{S_T0}, {LDS_RED}
        v_lshlrev_b32 v6, 9, v4
        v_add_u32 v6, s{S_T0}, v6
        """)
        for cb in range(8):
            A(f"v_add_u32 v7, {4*cb}, v5")
            A(f"v_xor_b32 v7, v7, v4")
            A(f"v_lshlrev_b32 v7, 4, v7")
            A(f"v_add_u32 v{RW+cb}, v7, v6")
        A(f"""
        v_and_b32 v4, 7, v1
        v_mul_u32_u24 v4, 7168, v4
        v_bfe_u32 v5, v1, 3, 1
        v_lshlrev_b32 v5, 6, v5
        v_add_u32 v4, v4, v5
        v_lshrrev_b32 v5, 4, v1
        v_lshlrev_b32 v5, 4, v5
        v_add_u32 v16, v4, v5
        s_mul_i32 s{S_T0}, s{S_B}, 7
        s_add_u32 s{S_T0}, s{S_T0}, s{S_WAVE}
        s_lshl_b32 s{S_T0}, s{S_T0}, 7
        s_add_u32 s{S_T0}, s{S_T0}, {WS_GU}
        s_add_u32 s{S_T1}, s{S_T0}, 57344
        s_lshl_b32 s{S_T2}, s{S_WAVE}, 11
        s_add_u32 s{S_T2}, s{S_T2}, {WS_H}
        v_lshlrev_b32 v17, 5, v1
        """)
        A(f"s_mov_b32 s{S_T2}, s{S_T0}")
        A(f"s_mov_b32 s{S_T3}, s{S_T1}")
        self.sample_wait(True, 17, 18, self.HS)
        loads = [f"buffer_load_dwordx4 v[32:35], v16, {srd(R_WS)}, s{S_T2} offen {self.LP}",
                 f"buffer_load_dwordx4 v[36:39], v16, {srd(R_WS)}, s{S_T3} offen {self.LP}"]
        self.poll_issue(loads, range(32, 40))
        for s_ in range(2):
            for cb in range(8):
                r = AB + (s_ * 8 + cb) * 4
                off = s_ * 4096 + (cb // 4) * 57344
                A(f"ds_read_b64_tr_b16 {vr(r,2)}, v{9+cb%4} offset:{off}")
                A(f"ds_read_b64_tr_b16 {vr(r+2,2)}, v{9+cb%4} offset:{off+512}")
        self.stamp(16)
        self.poll_pipe(loads, range(32, 40), 17, sleep=0, issued=True)
        self.stamp(8)
        for i in range(0, 4, 2):
            g, u = 32 + i, 36 + i
            A(f"v_lshlrev_b32 v64, 16, v{g}")
            A(f"v_and_b32 v65, 0xffff0000, v{g}")
            A(f"v_lshlrev_b32 v66, 16, v{u}")
            A(f"v_and_b32 v67, 0xffff0000, v{u}")
            A(f"v_lshlrev_b32 v68, 16, v{g+1}")
            A(f"v_and_b32 v69, 0xffff0000, v{g+1}")
            A(f"v_lshlrev_b32 v70, 16, v{u+1}")
            A(f"v_and_b32 v71, 0xffff0000, v{u+1}")
            A(f"v_pk_mul_f32 v[64:65], v[64:65], v[66:67]")
            A(f"v_pk_mul_f32 v[68:69], v[68:69], v[70:71]")
            A(f"v_cvt_pk_bf16_f32 v{72+i}, v64, v65")
            A(f"v_cvt_pk_bf16_f32 v{73+i}, v68, v69")
        for e in range(4):
            A(f"v_mov_b32_dpp v{76+e}, v{72+e} row_shl:8 row_mask:0xf bank_mask:0xf")
        A("s_waitcnt lgkmcnt(0)")
        ACC = 88
        for cb in range(8):
            A(f"v_mfma_f32_16x16x32_bf16 {vr(ACC+4*cb,4)}, {vr(AB+cb*4,4)}, v[72:75], 0")
        for cb in range(8):
            A(f"v_mfma_f32_16x16x32_bf16 {vr(ACC+4*cb,4)}, {vr(AB+(8+cb)*4,4)}, v[76:79], {vr(ACC+4*cb,4)}")
        A(f"s_mov_b64 exec, s[{S_MJ8}:{S_MJ8+1}]")
        for cb in range(8):
            A(f"ds_write_b128 v{RW+cb}, {vr(ACC+4*cb,4)}")
        A("s_mov_b64 exec, -1")
        A("s_waitcnt lgkmcnt(0)")
        A.place(lno)
        A("s_barrier")
        for v in range(7):
            A(f"ds_read_b64 {vr(20+2*v,2)}, v{RW+8} offset:{v*4096}")
        A("s_waitcnt lgkmcnt(0)")
        A(f"""
        v_pk_add_f32 v[20:21], v[20:21], v[22:23]
        v_pk_add_f32 v[24:25], v[24:25], v[26:27]
        v_pk_add_f32 v[28:29], v[28:29], v[30:31]
        v_pk_add_f32 v[20:21], v[20:21], v[24:25]
        v_pk_add_f32 v[28:29], v[28:29], v[32:33]
        v_pk_add_f32 v[20:21], v[20:21], v[28:29]
        v_min_u32 v20, -2, v20
        v_min_u32 v21, -2, v21
        v_mov_b32_dpp v22, v20 quad_perm:[1,1,3,3] row_mask:0xf bank_mask:0xf
        v_mov_b32_dpp v23, v21 quad_perm:[1,1,3,3] row_mask:0xf bank_mask:0xf
        s_mov_b32 s{S_T2}, 0x55555555
        s_mov_b32 s{S_T3}, 0x55555555
        s_mov_b64 exec, s[{S_T2}:{S_T3}]
        buffer_store_dwordx4 v[20:23], v15, {srd(R_WS)}, s{S_OFF} offen sc0 sc1
        s_mov_b64 exec, -1
        """)
        self.stamp(9)
        A("s_branch L_end")

    def role_F(self):
        A = self.A
        A.place("L_roleF")
        self.mk_srd(R_OUT, S_OUT, 16384)
        A(f"""
        s_sub_u32 s{S_T2}, s{S_H}, 30
        s_lshl_b32 s{S_T0}, s{S_B}, 1
        s_add_u32 s{S_T2}, s{S_T2}, s{S_T0}
        v_lshrrev_b32 v4, 4, v1
        v_lshlrev_b32 v4, 15, v4
        v_and_b32 v5, 15, v1
        v_lshlrev_b32 v6, 4, v5
        v_add_u32 v16, v4, v6
        v_lshlrev_b32 v15, 3, v5
        s_lshl_b32 s{S_T0}, s{S_WAVE}, 12
        s_lshl_b32 s{S_T1}, s{S_T2}, 8
        s_add_u32 s{S_T0}, s{S_T0}, s{S_T1}
        s_add_u32 s{S_T0}, s{S_T0}, {WS_DP}
        s_add_u32 s{S_T1}, s{S_T0}, 131072
        s_lshl_b32 s{S_PITCH}, s{S_WAVE}, 11
        s_lshl_b32 s{S_T3}, s{S_T2}, 7
        s_add_u32 s{S_PITCH}, s{S_PITCH}, s{S_T3}
        s_add_u32 s{S_T2}, s{S_PITCH}, {WS_H}
        s_mul_i32 s{S_T3}, s{S_WAVE}, 7168
        s_add_u32 s{S_T3}, s{S_T3}, {WS_GU}
        v_lshlrev_b32 v17, 7, v1
        s_mov_b32 s{S_EX}, -1
        s_mov_b32 s{S_EX+1}, 0x00ffffff
        """)
        self.sample_wait(True, 17, 18, self.HS)
        self.stamp(16)
        loads = [f"buffer_load_dwordx4 v[32:35], v16, {srd(R_WS)}, s{S_T0} offen {self.LP}",
                 f"buffer_load_dwordx4 v[36:39], v16, {srd(R_WS)}, s{S_T1} offen {self.LP}",
                 f"buffer_load_dwordx2 v[40:41], v15, {srd(R_WS)}, s{S_T2} offen {self.LP}"]
        self.poll_pipe(loads, range(32, 42), 17, sleep=self.FSL)
        self.stamp(8)
        A(f"""
        v_pk_add_f32 v[20:21], v[32:33], v[36:37]
        v_pk_add_f32 v[22:23], v[34:35], v[38:39]
        """)
        for sw in ("v_permlane16_swap_b32", "v_permlane32_swap_b32"):
            for e in range(4):
                A(f"v_mov_b32 v{24+e}, v{20+e}")
            for e in range(4):
                A(f"{sw} v{20+e}, v{24+e}")
            A(f"v_pk_add_f32 v[20:21], v[20:21], v[24:25]")
            A(f"v_pk_add_f32 v[22:23], v[22:23], v[26:27]")
        A(f"""
        v_cvt_pk_bf16_f32 v24, v20, v21
        v_cvt_pk_bf16_f32 v25, v22, v23
        v_lshlrev_b32 v20, 16, v24
        v_and_b32 v21, 0xffff0000, v24
        v_lshlrev_b32 v22, 16, v25
        v_and_b32 v23, 0xffff0000, v25
        v_lshlrev_b32 v24, 16, v40
        v_and_b32 v25, 0xffff0000, v40
        v_lshlrev_b32 v26, 16, v41
        v_and_b32 v27, 0xffff0000, v41
        v_pk_add_f32 v[20:21], v[20:21], v[24:25]
        v_pk_add_f32 v[22:23], v[22:23], v[26:27]
        v_cvt_pk_bf16_f32 v20, v20, v21
        v_cvt_pk_bf16_f32 v21, v22, v23
        s_mov_b64 exec, 0xffff
        buffer_store_dwordx2 v[20:21], v15, {srd(R_OUT)}, s{S_PITCH} offen
        s_mov_b64 exec, -1
        """)
        lne = A.label()
        A(f"""
        s_cmp_eq_u32 s2, 240
        s_cbranch_scc0 {lne}
        s_cmp_eq_u32 s{S_WAVE}, 0
        s_cbranch_scc0 {lne}
        v_mov_b32 v20, 0
        v_mov_b32 v21, s{S_TAG}
        s_mov_b32 s{S_T1}, {WS_EPOCH}
        s_mov_b64 exec, 1
        buffer_store_dword v21, v20, {srd(R_WS)}, s{S_T1} offen sc0 sc1
        s_mov_b64 exec, -1
        """)
        A.place(lne)
        self.stamp(9)

    def build(self):
        A = self.A
        self.entry()
        self.service()
        self.stream()
        self.tail()
        A.place("L_end")
        if self.stamps in ("tail", "early", "svc", "entry"):
            A("s_cmp_ge_u32 s2, 256")
            A("s_cbranch_scc1 L_end2")
            A("s_memrealtime s[18:19]")
            A("s_waitcnt lgkmcnt(0)")
            A(f"s_lshl_b32 s3, s{S_WG}, 3")
            A(f"s_add_u32 s3, s3, s{S_WAVE}")
            A(f"s_lshl_b32 s3, s3, 7")
            A(f"s_add_u32 s3, s3, {WS_DBG + 0x100000}")
            A(f"s_mov_b64 exec, 1")
            A(f"v_mov_b32 v255, 0")
            A(f"v_mov_b32 v254, s18")
            A(f"v_mov_b32 v255, 0")
            A(f"buffer_store_dword v254, v255, {srd(R_WS)}, s3 offen offset:120")
            A("s_getreg_b32 s16, hwreg(HW_REG_XCC_ID)")
            A(f"v_mov_b32 v254, s16")
            A(f"buffer_store_dword v254, v255, {srd(R_WS)}, s3 offen offset:124")
            for idx, j in self.LIGHT.items():
                A(f"v_mov_b32 v254, s{4+2*j}")
                A(f"buffer_store_dword v254, v255, {srd(R_WS)}, s3 offen offset:{idx*4}")
            A.place("L_end2")
        A("s_endpgm")
        A.footer(256, 102, 256)
        A.fix_hazards()
        return A.text()

if __name__ == "__main__":
    import argparse
    ap = argparse.ArgumentParser()
    ap.add_argument("-o", default="main.s")
    ap.add_argument("--N", type=int, default=5)
    ap.add_argument("--NP", type=int, default=8)
    ap.add_argument("--LP", default="sc1")
    ap.add_argument("--PD", type=int, default=1)
    ap.add_argument("--HG", type=int, default=48)
    ap.add_argument("--HD", type=int, default=64)
    ap.add_argument("--HS", type=int, default=2)
    ap.add_argument("--nolocal", action="store_true")
    ap.add_argument("--pace", action="store_true")
    ap.add_argument("--rot", type=int, default=0)
    ap.add_argument("--defer", action="store_true")
    ap.add_argument("--JU", type=int, default=12)
    ap.add_argument("--NOK", type=int, default=6)
    ap.add_argument("--NOV", type=int, default=5)
    ap.add_argument("--NT", type=int, default=6)
    ap.add_argument("--NTD", type=int, default=3)
    ap.add_argument("--NW", default=None)
    ap.add_argument("--NMIN", type=int, default=5)
    ap.add_argument("--GTH", default="")
    ap.add_argument("--GM", type=int, default=16)
    ap.add_argument("--bias", action="store_true")
    ap.add_argument("--GH", type=int, default=6)
    ap.add_argument("--GL", type=int, default=2)
    ap.add_argument("--DMAX", type=int, default=7)
    ap.add_argument("--TH", default="16")
    ap.add_argument("--GSL", type=int, default=1)
    ap.add_argument("--FSL", type=int, default=1)
    ap.add_argument("--KP", default="nt")
    ap.add_argument("--VP", default="nt")
    ap.add_argument("--WP", default="nt")
    ap.add_argument("--PS", type=int, default=1)
    ap.add_argument("--debug", action="store_true")
    ap.add_argument("--stamps", default=None)
    ap.add_argument("--stop", default=None)
    a = ap.parse_args()
    g = Gen(N=a.N, NP=a.NP, LP=a.LP, PD=a.PD, PS=a.PS, HG=a.HG, HD=a.HD, HS=a.HS, nolocal=a.nolocal, pace=a.pace, GTH=tuple(int(x) for x in a.GTH.split(',') if x), GM=a.GM, bias=a.bias, GH=a.GH, GL=a.GL, DMAX=a.DMAX, rot=a.rot, defer=a.defer, JU=a.JU, NOK=a.NOK, NOV=a.NOV, NT=a.NT, NTD=a.NTD, NW=(tuple(int(x) for x in a.NW.split(',')) if a.NW else None), NMIN=a.NMIN, TH=tuple(int(x) for x in a.TH.split(',')), GSL=a.GSL, FSL=a.FSL, KP=a.KP, VP=a.VP, WP=a.WP, debug=a.debug, stamps=a.stamps, stop_after=a.stop)
    open(a.o, "w").write(g.build())
```

```python
import sys
from asmlib import *

LDS_WQ = 98304
LDS_SC = 131072
LDS_MISC = 147456
LDS_XN = LDS_MISC
LDS_Q = LDS_MISC + 2304
LDS_CNT = LDS_MISC + 2560
LDS_WM = LDS_MISC + 2624
LDS_WS = LDS_MISC + 2688
LDS_ORED = LDS_MISC + 4096
LDS_XCC = LDS_MISC + 8192
LDS_BLK = LDS_MISC + 2576
LDS_N = LDS_MISC + 2580
LDS_RED = LDS_SC
LDS_XN2 = LDS_MISC
LDS_BYTES = 163840

WS_QP = 0x000000
WS_SLOT = 0x100000
WS_OB = WS_SLOT + 0x00000
WS_OP = WS_SLOT + 0x10000
WS_H = WS_SLOT + 0x30000
WS_GU = WS_SLOT + 0x34000
WS_DP = WS_SLOT + 0x50000
WS_C2 = WS_SLOT + 0x90000
WS_C3 = WS_SLOT + 0x90100
WS_PROG = WS_SLOT + 0xA0000
WS_GP = WS_SLOT + 0xB0000
WS_BIAS = WS_SLOT + 0xC0000
WS_FLAG = 0x200000
WS_EPOCH = 0x210000
WS_DBG = 0x300000
WS_SIZE = 0x600000
SPIN = 1 << 20

S_WG = 2
S_X, S_K, S_V, S_WQ, S_WO, S_BX, S_WG_, S_WU, S_WD, S_OUT, S_DBG, S_WS = 16, 18, 20, 22, 24, 26, 28, 30, 32, 34, 36, 38
R_K, R_V, R_X, R_WQ, R_WT, R_WS, R_OUT = 40, 44, 48, 52, 56, 60, 68
S_WAVE, S_H, S_B, S_SW = 72, 73, 74, 75
S_T0, S_T1, S_T2, S_T3, S_T4, S_T5 = 76, 77, 78, 79, 80, 81
S_OFF, S_CNT, S_PITCH, S_NJ, S_ROLE = 82, 83, 84, 85, 86
S_M1, S_M2, S_M3 = 88, 90, 92
S_MJ8 = 94
S_EX = 96
S_TAG = 98
S_MQ = 64
S_JJ = 100
S_ROT = 50
S_J1 = 51
S_DS, S_DM, S_DJ, S_DST = 52, 53, 54, 55
S_NCUR = 3
S_JA = 101
S_LOC = 87
S_XCC = 99
S_ME = 66
S_PM = 40
def srd(r): return f"s[{r}:{r+3}]"
def vr(a, n): return f"v[{a}:{a+n-1}]"

class Gen:
    def __init__(self, N=5, NP=8, PV=16, LP='sc1', PD=1, PS=1, HG=64, HD=64, HS=4, nolocal=False, DE=0, EB=13, rot=0, defer=False, JU=8, NOK=6, NOV=5, NT=16, NTD=4, pace=False, NW=None, NMIN=4, TH=(64, 192, 240), GTH=(), GM=16, DMAX=7, bias=False, GH=6, GL=2, GSL=1, FSL=1, KP='nt', VP='nt', WP='nt', debug=False, stamps=False, stop_after=None):
        self.A = Asm()
        self.N, self.NP, self.PV, self.LP = N, NP, PV, LP
        self.debug, self.stamps, self.stop_after = debug, stamps, stop_after
        self.OSLEEP, self.GSLEEP, self.DSLEEP = 1, 0, 0
        self.PD, self.PS = PD, PS
        self.nolocal = nolocal
        self.DE, self.EB = DE, EB
        self.rot = rot
        self.defer, self.JU, self.NOK, self.NOV, self.NT = defer, (JU if defer else 24), NOK, NOV, NT
        self.NTD = NTD
        self.pace = pace
        self.GTH, self.GM = GTH, GM
        self.bias, self.GH, self.GL, self.NBASE = bias, GH, GL, NMIN
        self.D = min(NMIN + len(TH) + (1 if bias else 0), DMAX) if pace else N
        if bias and GL > 0: NMIN = NMIN - 1
        self.NW = NW
        if defer and not pace: self.D = max(N, NOK, NOV); NMIN = min(N, NOK, NOV)
        if NW:
            self.D = max(NW); NMIN = min(NW)
        self.NMIN, self.TH, self.PK0 = NMIN, TH, 2
        self.GSL, self.FSL = GSL, FSL
        self.KP, self.VP, self.WP = KP, VP, WP
        self.HG, self.HD, self.HS = HG, HD, HS

    def mk_srd(self, r, ptr, size, add_lo=None):
        A = self.A
        if add_lo is None:
            A(f"s_mov_b32 s{r}, s{ptr}")
            A(f"s_mov_b32 s{r+1}, s{ptr+1}")
        else:
            A(f"s_add_u32 s{r}, s{ptr}, {add_lo}")
            A(f"s_addc_u32 s{r+1}, s{ptr+1}, 0")
        A(f"s_mov_b32 s{r+2}, {size}")
        A(f"s_mov_b32 s{r+3}, 0x20000")

    def lds_signal(self, off, va, vd):
        A = self.A
        A(f"s_mov_b64 exec, 1")
        A(f"v_mov_b32 v{va}, {off}")
        A(f"v_mov_b32 v{vd}, 1")
        A(f"ds_add_u32 v{va}, v{vd}")
        A(f"s_mov_b64 exec, -1")

    def lds_wait(self, off, val, va, vd, sleep=1):
        A = self.A
        lp = A.label(); ex = A.label()
        A(f"v_mov_b32 v{va}, {off}")
        A(f"s_mov_b32 s{S_CNT}, 0")
        A.place(lp)
        A(f"ds_read_b32 v{vd}, v{va}")
        A(f"s_waitcnt lgkmcnt(0)")
        A(f"v_readfirstlane_b32 s{S_T5}, v{vd}")
        A(f"s_cmp_ge_u32 s{S_T5}, {val}")
        A(f"s_cbranch_scc1 {ex}")
        A(f"s_add_u32 s{S_CNT}, s{S_CNT}, 1")
        A(f"s_cmp_gt_u32 s{S_CNT}, {SPIN*4}")
        A(f"s_cbranch_scc1 {ex}")
        if sleep: A(f"s_sleep {sleep}")
        A(f"s_branch {lp}")
        A.place(ex)

    def allreduce2(self, a, b, ta, tb, op="v_add_f32"):
        A = self.A
        for r in (8, 4, 2, 1):
            A(f"{op}_dpp v{a}, v{a}, v{a} row_ror:{r} row_mask:0xf bank_mask:0xf")
            A(f"{op}_dpp v{b}, v{b}, v{b} row_ror:{r} row_mask:0xf bank_mask:0xf")
        for sw in ("v_permlane16_swap_b32", "v_permlane32_swap_b32"):
            A(f"v_mov_b32 v{ta}, v{a}")
            A(f"v_mov_b32 v{tb}, v{b}")
            A(f"{sw} v{a}, v{ta}")
            A(f"{sw} v{b}, v{tb}")
            A(f"{op} v{a}, v{a}, v{ta}")
            A(f"{op} v{b}, v{b}, v{tb}")

    def rnd_bf16(self, d, s):
        A = self.A
        A(f"v_cvt_pk_bf16_f32 v{d}, v{s}, v{s}")
        A(f"v_lshlrev_b32 v{d}, 16, v{d}")

    def ln_stats(self, F, D, s1, s2, t1, t2, vmb, vrs):
        A = self.A
        A(f"v_readfirstlane_b32 s{S_T4}, v{F}")
        for i in range(0, 16, 2):
            A(f"v_pk_add_f32 {vr(D+i,2)}, {vr(F+i,2)}, s[{S_T4}:{S_T4+1}] op_sel_hi:[1,0] neg_lo:[0,1] neg_hi:[0,1]")
        A(f"v_pk_add_f32 {vr(s1,2)}, {vr(D,2)}, {vr(D+2,2)}")
        A(f"v_pk_mul_f32 {vr(s2,2)}, {vr(D,2)}, {vr(D,2)}")
        A(f"v_pk_fma_f32 {vr(s2,2)}, {vr(D+2,2)}, {vr(D+2,2)}, {vr(s2,2)}")
        for i in range(4, 16, 2):
            A(f"v_pk_add_f32 {vr(s1,2)}, {vr(s1,2)}, {vr(D+i,2)}")
            A(f"v_pk_fma_f32 {vr(s2,2)}, {vr(D+i,2)}, {vr(D+i,2)}, {vr(s2,2)}")
        A(f"v_add_f32 v{s1}, v{s1}, v{s1+1}")
        A(f"v_add_f32 v{s2}, v{s2}, v{s2+1}")
        self.allreduce2(s1, s2, t1, t2)
        A(f"v_mul_f32 v{s1}, 0x3a800000, v{s1}")
        A(f"v_mul_f32 v{s2}, 0x3a800000, v{s2}")
        A(f"v_add_f32 v{vmb}, s{S_T4}, v{s1}")
        A(f"v_fma_f32 v{vrs}, -v{s1}, v{s1}, v{s2}")
        A(f"v_max_f32 v{vrs}, 0, v{vrs}")
        A(f"v_cvt_pk_bf16_f32 v{vmb}, v{vmb}, v{vrs}")
        A(f"v_and_b32 v{vrs}, 0xffff0000, v{vmb}")
        A(f"v_lshlrev_b32 v{vmb}, 16, v{vmb}")
        A(f"v_add_f32 v{vrs}, 0x3727c5ac, v{vrs}")
        self.rnd_bf16(vrs, vrs)
        A(f"v_sqrt_f32 v{vrs}, v{vrs}")
        self.rnd_bf16(vrs, vrs)
        A(f"v_rcp_f32 v{vrs}, v{vrs}")

    def ln_apply(self, d, f, vmb, vrs, t):
        A = self.A
        A(f"v_pk_add_f32 {vr(t,2)}, {vr(f,2)}, {vr(vmb,2)} op_sel_hi:[1,0] neg_lo:[0,1] neg_hi:[0,1]")
        A(f"v_cvt_pk_bf16_f32 v{t}, v{t}, v{t+1}")
        A(f"v_and_b32 v{t+1}, 0xffff0000, v{t}")
        A(f"v_lshlrev_b32 v{t}, 16, v{t}")
        A(f"v_pk_mul_f32 {vr(t,2)}, {vr(t,2)}, {vr(vrs,2)} op_sel_hi:[1,0]")
        A(f"v_cvt_pk_bf16_f32 v{d}, v{t}, v{t+1}")

    LIGHT_TAIL = {0: 0, 6: 1, 7: 2, 16: 3, 8: 4, 9: 5}
    LIGHT_EARLY = {0: 0, 15: 1, 3: 2, 4: 3, 14: 4, 6: 5}
    LIGHT_SVC = {0: 0, 13: 1, 1: 2, 11: 3, 2: 4, 12: 5}
    LIGHT_ENTRY = {0: 0, 10: 1, 12: 2, 13: 3, 1: 4, 29: 5}
    @property
    def LIGHT(self): return {"tail": self.LIGHT_TAIL, "early": self.LIGHT_EARLY, "svc": self.LIGHT_SVC, "entry": self.LIGHT_ENTRY}[self.stamps]
    def stamp(self, idx):
        if self.stamps in ("tail", "early", "svc", "entry"):
            if idx in self.LIGHT:
                j = 4 + 2 * self.LIGHT[idx]
                self.A(f"s_memrealtime s[{j}:{j+1}]")
            return
        if not self.stamps: return
        A = self.A
        A(f"s_memrealtime s[4:5]")
        A(f"s_waitcnt lgkmcnt(0)")
        A(f"s_lshl_b32 s6, s{S_WG}, 3")
        A(f"s_add_u32 s6, s6, s{S_WAVE}")
        A(f"s_lshl_b32 s6, s6, 7")
        A(f"s_add_u32 s6, s6, {WS_DBG + 0x100000 + idx*4}")
        A(f"s_mov_b64 s[8:9], exec")
        A(f"s_mov_b64 exec, 1")
        A(f"v_mov_b32 v254, s4")
        A(f"v_mov_b32 v255, 0")
        A(f"buffer_store_dword v254, v255, {srd(R_WS)}, s6 offen")
        A(f"s_mov_b64 exec, s[8:9]")

    def stampval(self, idx, sreg):
        if not self.stamps or self.stamps in ("tail", "early", "svc", "entry"): return
        A = self.A
        A(f"s_lshl_b32 s6, s{S_WG}, 3")
        A(f"s_add_u32 s6, s6, s{S_WAVE}")
        A(f"s_lshl_b32 s6, s6, 7")
        A(f"s_add_u32 s6, s6, {WS_DBG + 0x100000 + idx*4}")
        A(f"s_mov_b64 s[8:9], exec")
        A(f"s_mov_b64 exec, 1")
        A(f"v_mov_b32 v254, s{sreg}")
        A(f"v_mov_b32 v255, 0")
        A(f"buffer_store_dword v254, v255, {srd(R_WS)}, s6 offen")
        A(f"s_mov_b64 exec, s[8:9]")

    def cstamp(self, idx):
        if not self.stamps or self.stamps in ("tail", "early", "svc", "entry"): return
        A = self.A
        A(f"s_memtime s[10:11]")
        A(f"s_waitcnt lgkmcnt(0)")
        self.stampval(idx, 10)

    def quad_gather(self, d, src):
        A = self.A
        A(f"v_mov_b32_dpp v{d+1}, v{src} quad_perm:[1,1,1,1] row_mask:0xf bank_mask:0xf")
        A(f"v_mov_b32_dpp v{d+2}, v{src} quad_perm:[2,2,2,2] row_mask:0xf bank_mask:0xf")
        A(f"v_mov_b32_dpp v{d+3}, v{src} quad_perm:[3,3,3,3] row_mask:0xf bank_mask:0xf")
        if d != src: A(f"v_mov_b32 v{d}, v{src}")
    def even_gather(self, d, src):
        A = self.A
        A(f"v_mov_b32_dpp v{d+1}, v{src} row_shl:2 row_mask:0xf bank_mask:0xf")
        A(f"v_mov_b32_dpp v{d+2}, v{src} row_shl:4 row_mask:0xf bank_mask:0xf")
        A(f"v_mov_b32_dpp v{d+3}, v{src} row_shl:6 row_mask:0xf bank_mask:0xf")
        if d != src: A(f"v_mov_b32 v{d}, v{src}")

    def hint_add(self, off, va, vd):
        A = self.A
        A(f"v_mov_b32 v{va}, {off}")
        A(f"v_mov_b32 v{vd}, 1")
        A(f"s_mov_b64 exec, 1")
        A(f"buffer_atomic_add v{vd}, v{va}, {srd(R_WS)}, 0 offen sc1")
        A(f"s_mov_b64 exec, -1")
    def hint_wait(self, off, target, va, vd, sleep):
        A = self.A
        lp = A.label(); ex = A.label()
        A(f"s_cmp_eq_u32 s{S_WAVE}, 0")
        A(f"s_cbranch_scc0 {ex}")
        A(f"v_mov_b32 v{va}, {off}")
        A(f"s_mov_b32 s{S_CNT}, 0")
        A(f"s_mov_b64 exec, 1")
        A.place(lp)
        A(f"buffer_load_dword v{vd}, v{va}, {srd(R_WS)}, 0 offen {self.LP}")
        A("s_waitcnt vmcnt(0)")
        A(f"v_readfirstlane_b32 s{S_T5}, v{vd}")
        A(f"s_add_u32 s{S_T5}, s{S_T5}, 1")
        A(f"s_cmp_ge_u32 s{S_T5}, {target}")
        A(f"s_cbranch_scc1 {ex}")
        A(f"s_add_u32 s{S_CNT}, s{S_CNT}, 1")
        A(f"s_cmp_gt_u32 s{S_CNT}, {SPIN}")
        A(f"s_cbranch_scc1 {ex}")
        A(f"s_sleep {sleep}")
        A(f"s_branch {lp}")
        A.place(ex)
        A("s_mov_b64 exec, -1")
        A("s_barrier")

    def local_flag(self):
        A = self.A
        A(f"v_and_b32 v4, 31, v1")
        A(f"v_lshlrev_b32 v4, 5, v4")
        A(f"s_lshl_b32 s{S_T5}, s{S_B}, 2")
        A(f"s_add_u32 s{S_T5}, s{S_T5}, {LDS_XCC}")
        A(f"v_add_u32 v4, s{S_T5}, v4")
        A(f"ds_read_b32 v5, v4")
        A(f"s_waitcnt lgkmcnt(0)")
        A(f"v_readfirstlane_b32 s{S_LOC}, v5")
        A(f"v_cmp_ne_u32 vcc, s{S_LOC}, v5")
        A(f"s_cmp_eq_u64 vcc, 0")
        A(f"s_cselect_b32 s{S_LOC}, 1, 0")
        if self.nolocal: A(f"s_mov_b32 s{S_LOC}, 0")
    def store_sel(self, ins):
        A = self.A
        l1 = A.label(); l2 = A.label()
        A(f"s_cmp_eq_u32 s{S_LOC}, 1")
        A(f"s_cbranch_scc1 {l1}")
        A(f"{ins} sc0 sc1")
        A(f"s_branch {l2}")
        A.place(l1)
        A(ins)
        A.place(l2)

    def sample_wait(self, need_all, va, vd, sleep):
        A = self.A
        lp = A.label(); ex = A.label()
        A(f"s_cmp_eq_u32 s{S_WAVE}, 0")
        A(f"s_cbranch_scc0 {ex}")
        A(f"v_and_b32 v{vd}, 3, v1")
        A(f"v_lshlrev_b32 v{vd}, 12, v{vd}")
        A(f"v_lshlrev_b32 v{va}, 8, v1")
        A(f"v_add_u32 v{va}, v{va}, v{vd}")
        A(f"v_add_u32 v{va}, {WS_H + 128}, v{va}")
        A(f"s_mov_b32 s{S_CNT}, 0")
        A(f"s_mov_b64 exec, 0xff")
        A.place(lp)
        A(f"buffer_load_dword v{vd}, v{va}, {srd(R_WS)}, 0 offen {self.LP}")
        A("s_waitcnt vmcnt(0)")
        if need_all:
            A(f"v_cmp_eq_u32 vcc, -1, v{vd}")
            A(f"s_cbranch_vccz {ex}")
        else:
            A(f"v_cmp_ne_u32 vcc, -1, v{vd}")
            A(f"s_cbranch_vccnz {ex}")
        A(f"s_add_u32 s{S_CNT}, s{S_CNT}, 1")
        A(f"s_cmp_gt_u32 s{S_CNT}, 4000")
        A(f"s_cbranch_scc1 {ex}")
        A(f"s_sleep {sleep}")
        A(f"s_branch {lp}")
        A.place(ex)
        A("s_mov_b64 exec, -1")
        A("s_waitcnt vmcnt(0)")
        A("s_barrier")

    def maxred(self, tmp, regs):
        A = self.A
        rs = list(regs)
        if len(rs) == 1:
            return rs[0]
        if len(rs) == 2:
            A(f"v_max_u32 v{tmp}, v{rs[0]}, v{rs[1]}"); return tmp
        A(f"v_max3_u32 v{tmp}, v{rs[0]}, v{rs[1]}, v{rs[2]}")
        rs = rs[3:]
        while len(rs) >= 2:
            A(f"v_max3_u32 v{tmp}, v{tmp}, v{rs[0]}, v{rs[1]}")
            rs = rs[2:]
        if rs:
            A(f"v_max_u32 v{tmp}, v{tmp}, v{rs[0]}")
        return tmp

    def prepoll(self, load, reg, mask=None, sleep=4, need_all=False):
        A = self.A
        lp = A.label(); ex = A.label()
        if mask is not None:
            A(f"s_mov_b64 exec, s[{mask}:{mask+1}]")
        A(f"s_mov_b32 s{S_CNT}, 0")
        A.place(lp)
        A(load)
        A("s_waitcnt vmcnt(0)")
        if need_all:
            A(f"v_cmp_eq_u32 vcc, -1, v{reg}")
            A(f"s_cbranch_vccz {ex}")
        else:
            A(f"v_cmp_ne_u32 vcc, -1, v{reg}")
            A(f"s_cbranch_vccnz {ex}")
        A(f"s_add_u32 s{S_CNT}, s{S_CNT}, 1")
        A(f"s_cmp_gt_u32 s{S_CNT}, {SPIN}")
        A(f"s_cbranch_scc1 {ex}")
        A(f"s_sleep {sleep}")
        A(f"s_branch {lp}")
        A.place(ex)
        A(f"s_mov_b64 exec, -1")
        self.stamp(16)

    def poll_groups(self, groups, tmp, mask=None, sleep=0):
        A = self.A
        G = len(groups)
        lp = A.label(); ex = A.label()
        for g in range(G):
            m = S_PM + 2 * g
            if mask is None: A(f"s_mov_b64 s[{m}:{m+1}], -1")
            else: A(f"s_mov_b64 s[{m}:{m+1}], s[{mask}:{mask+1}]")
        A(f"s_mov_b32 s{S_CNT}, 0")
        A.place(lp)
        for g, (loads, regs) in enumerate(groups):
            m = S_PM + 2 * g
            sk = A.label()
            A(f"s_mov_b64 exec, s[{m}:{m+1}]")
            if G > 1: A(f"s_cbranch_execz {sk}")
            for l in loads: A(l)
            if G > 1: A.place(sk)
        A("s_waitcnt vmcnt(0)")
        for g, (loads, regs) in enumerate(groups):
            m = S_PM + 2 * g
            A(f"s_mov_b64 exec, s[{m}:{m+1}]")
            t = self.maxred(tmp, regs)
            A(f"v_cmp_eq_u32_e64 s[{m}:{m+1}], -1, v{t}")
        if G == 1:
            A(f"s_cmp_eq_u64 s[{S_PM}:{S_PM+1}], 0")
        else:
            A(f"s_or_b64 s[{S_EX}:{S_EX+1}], s[{S_PM}:{S_PM+1}], s[{S_PM+2}:{S_PM+3}]")
            for g in range(2, G):
                m = S_PM + 2 * g
                A(f"s_or_b64 s[{S_EX}:{S_EX+1}], s[{S_EX}:{S_EX+1}], s[{m}:{m+1}]")
            A(f"s_cmp_eq_u64 s[{S_EX}:{S_EX+1}], 0")
        A(f"s_cbranch_scc1 {ex}")
        A(f"s_add_u32 s{S_CNT}, s{S_CNT}, 1")
        if sleep: A(f"s_sleep {sleep}")
        A(f"s_cmp_gt_u32 s{S_CNT}, {SPIN}")
        A(f"s_cbranch_scc0 {lp}")
        A.place(ex)
        A(f"s_mov_b64 exec, -1")

    def poll_issue(self, loads, regs, mask=None):
        A = self.A
        if mask is not None:
            A(f"s_mov_b64 exec, s[{mask}:{mask+1}]")
        for l in loads: A(l)
        if mask is not None:
            A(f"s_mov_b64 exec, -1")

    def poll_pipe(self, loads, regs, tmp, mask=None, depth=1, sleep=2, issued=False):
        A = self.A
        lp = A.label(); ex = A.label(); chk = A.label()
        if mask is not None:
            A(f"s_mov_b64 exec, s[{mask}:{mask+1}]")
        A(f"s_mov_b32 s{S_CNT}, 0")
        if issued: A(f"s_branch {chk}")
        A.place(lp)
        for l in loads: A(l)
        if sleep: A(f"s_sleep {sleep}")
        A.place(chk)
        A(f"s_waitcnt vmcnt(0)")
        t = self.maxred(tmp, regs)
        A(f"v_cmp_eq_u32 vcc, -1, v{t}")
        A(f"s_cbranch_vccz {ex}")
        A(f"s_mov_b64 exec, vcc")
        A(f"s_add_u32 s{S_CNT}, s{S_CNT}, 1")
        A(f"s_cmp_gt_u32 s{S_CNT}, {SPIN}")
        A(f"s_cbranch_scc0 {lp}")
        A.place(ex)
        A(f"s_mov_b64 exec, -1")

    def role_params(self):
        A = self.A
        lG, lD, lN, lE = A.label(), A.label(), A.label(), A.label()
        A(f"""
        s_mov_b32 s{S_JJ}, 999
        s_mov_b32 s{S_JA}, 0
        s_cmp_ge_u32 s{S_H}, 8
        s_cbranch_scc1 {lG}
        s_mov_b32 s{S_ROLE}, 0
        s_mov_b32 s{S_J1}, 24
        s_mov_b32 s{S_PITCH}, 2048
        s_mov_b32 s{S_NJ}, 32
        s_lshr_b32 s{S_T0}, s{S_H}, 1
        s_lshl_b32 s{S_T0}, s{S_T0}, 21
        s_and_b32 s{S_T1}, s{S_H}, 1
        s_lshl_b32 s{S_T2}, s{S_B}, 1
        s_add_u32 s{S_T1}, s{S_T1}, s{S_T2}
        s_lshl_b32 s{S_T1}, s{S_T1}, 7
        s_add_u32 s{S_T0}, s{S_T0}, s{S_T1}
        s_add_u32 s{R_WT}, s{S_WO}, s{S_T0}
        s_addc_u32 s{R_WT+1}, s{S_WO+1}, 0
        s_sub_u32 s{R_WT+2}, {8<<20}, s{S_T0}
        s_branch {lE}
        """)
        A.place(lG)
        A(f"""
        s_cmp_ge_u32 s{S_H}, 22
        s_cbranch_scc1 {lD}
        s_mov_b32 s{S_ROLE}, 1
        s_mov_b32 s{S_J1}, {self.JU}
        s_mov_b32 s{S_PITCH}, 7168
        s_mov_b32 s{S_NJ}, 32
        s_sub_u32 s{S_T0}, s{S_H}, 8
        s_lshr_b32 s{S_T1}, s{S_T0}, 1
        s_mul_i32 s{S_T2}, s{S_B}, 7
        s_add_u32 s{S_T1}, s{S_T1}, s{S_T2}
        s_lshl_b32 s{S_T1}, s{S_T1}, 7
        s_bitcmp1_b32 s{S_T0}, 0
        s_cselect_b32 s{S_T2}, s{S_WU}, s{S_WG_}
        s_cselect_b32 s{S_T3}, s{S_WU+1}, s{S_WG_+1}
        s_add_u32 s{R_WT}, s{S_T2}, s{S_T1}
        s_addc_u32 s{R_WT+1}, s{S_T3}, 0
        s_sub_u32 s{R_WT+2}, {7340032}, s{S_T1}
        s_branch {lE}
        """)
        A.place(lD)
        A(f"""
        s_cmp_ge_u32 s{S_H}, 30
        s_cbranch_scc1 {lN}
        s_mov_b32 s{S_ROLE}, 2
        s_mov_b32 s{S_J1}, {self.JU}
        s_mov_b32 s{S_PITCH}, 2048
        s_mov_b32 s{S_NJ}, 28
        s_mov_b32 s{S_JJ}, 14
        s_mov_b32 s{S_JA}, {(128 - 448*2048) & 0xffffffff}
        s_mul_i32 s{S_T1}, s{S_B}, {448*2048}
        s_sub_u32 s{S_T0}, s{S_H}, 22
        s_lshl_b32 s{S_T0}, s{S_T0}, 8
        s_add_u32 s{S_T0}, s{S_T0}, s{S_T1}
        s_add_u32 s{R_WT}, s{S_WD}, s{S_T0}
        s_addc_u32 s{R_WT+1}, s{S_WD+1}, 0
        s_sub_u32 s{R_WT+2}, {7340032}, s{S_T0}
        s_branch {lE}
        """)
        A.place(lN)
        A(f"""
        s_mov_b32 s{S_ROLE}, 3
        s_mov_b32 s{S_J1}, 0
        s_mov_b32 s{S_PITCH}, 2048
        s_mov_b32 s{S_NJ}, 0
        s_mov_b32 s{R_WT}, s{S_WD}
        s_mov_b32 s{R_WT+1}, s{S_WD+1}
        s_mov_b32 s{R_WT+2}, 0
        """)
        A.place(lE)
        A(f"s_mov_b32 s{R_WT+3}, 0x20000")

    def entry(self):
        A = self.A
        A.header(256, 512, LDS_BYTES, comments=[
            "Fused decode layer: preLN + MHA over KV cache + out-proj + preLN + GEGLU FFN (one persistent launch, 256 WGs x 512).",
        ])
        if self.stamps == "entry":
            A("s_memrealtime s[14:15]")
        A(f"""
        s_cmp_ge_u32 s2, 256
        s_cbranch_scc1 L_end
        s_load_dwordx16 s[16:31], s[0:1], 0
        s_load_dwordx8 s[32:39], s[0:1], 64
        v_and_b32 v1, 63, v0
        v_lshrrev_b32 v4, 6, v0
        v_lshlrev_b32 v2, 4, v1
        v_readfirstlane_b32 s{S_WAVE}, v4
        v_lshlrev_b32 v3, 2, v1
        s_lshr_b32 s{S_H}, s2, 3
        s_and_b32 s{S_B}, s2, 7
        s_mov_b32 s{S_M1}, 0x22222222
        s_mov_b32 s{S_M1+1}, 0x22222222
        s_mov_b32 s{S_M2}, 0x44444444
        s_mov_b32 s{S_M2+1}, 0x44444444
        s_mov_b32 s{S_M3}, 0x88888888
        s_mov_b32 s{S_M3+1}, 0x88888888
        s_mov_b32 s{S_MJ8}, 0x00ff00ff
        s_mov_b32 s{S_MJ8+1}, 0x00ff00ff
        s_mov_b32 s{S_MQ}, 0x11111111
        s_mov_b32 s{S_MQ+1}, 0x11111111
        s_mov_b32 s{S_ME}, 0x01010101
        s_mov_b32 s{S_ME+1}, 0x01010101
        v_mov_b32 v204, 0
        v_mov_b32 v4, {LDS_CNT}
        v_mov_b32 v6, 0
        v_mov_b32 v7, 0
        ds_write_b64 v4, v[6:7]
        ds_write_b64 v4, v[6:7] offset:8
        v_mov_b32 v7, {self.N}
        ds_write_b64 v4, v[6:7] offset:16
        s_and_b32 s{S_SW}, s{S_WAVE}, 3
        s_mov_b64 s[4:5], 0
        s_mov_b64 s[6:7], 0
        s_mov_b64 s[8:9], 0
        s_mov_b64 s[10:11], 0
        s_mov_b64 s[12:13], 0
        """)
        if self.stamps != "entry": A("s_mov_b64 s[14:15], 0")
        A(f"""
        s_cmp_ge_u32 s{S_WAVE}, 4
        s_cbranch_scc1 L_stream
        """)

    def service(self):
        A = self.A
        A.c("==== service waves: LN(x), q partial, exchange ====")
        A(f"""
        v_lshrrev_b32 v4, 4, v1
        v_and_b32 v5, 15, v1
        s_lshr_b32 s{S_T0}, s{S_SW}, 1
        s_lshl_b32 s{S_T0}, s{S_T0}, 2
        v_or_b32 v6, s{S_T0}, v4
        v_lshlrev_b32 v6, 1, v6
        v_xor_b32 v6, v6, v5
        v_lshlrev_b32 v6, 4, v6
        v_lshlrev_b32 v7, 13, v4
        v_add_u32 v6, v6, v7
        s_lshl_b32 s{S_T0}, s{S_B}, 20
        s_lshl_b32 s{S_T1}, s{S_SW}, 15
        s_add_u32 s{S_T0}, s{S_T0}, s{S_T1}
        s_lshl_b32 s{S_T1}, s{S_H}, 8
        s_add_u32 s{S_T0}, s{S_T0}, s{S_T1}
        s_lshl_b32 s{S_T1}, s{S_SW}, 10
        s_add_u32 s{S_T1}, s{S_T1}, {LDS_WQ}
        s_lshl_b32 s{S_T2}, s{S_SW}, 12
        v_mov_b32 v126, 0
        s_mov_b32 s{S_T3}, {WS_EPOCH}
        s_waitcnt lgkmcnt(0)
        """)
        self.mk_srd(R_X, S_X, 16384)
        A(f"buffer_load_dwordx4 v[8:11], v2, {srd(R_X)}, s{S_T2} offen")
        A(f"buffer_load_dwordx4 v[12:15], v2, {srd(R_X)}, s{S_T2} offen offset:1024")
        A(f"buffer_load_dwordx4 v[16:19], v2, {srd(R_X)}, s{S_T2} offen offset:2048")
        A(f"buffer_load_dwordx4 v[20:23], v2, {srd(R_X)}, s{S_T2} offen offset:3072")
        self.mk_srd(R_WQ, S_WQ, 8 << 20)
        for j in range(8):
            A(f"s_mov_b32 m0, s{S_T1}")
            A(f"s_add_u32 s{S_T1}, s{S_T1}, 4096")
            A(f"buffer_load_dwordx4 v6, {srd(R_WQ)}, s{S_T0} offen {self.WP} lds")
            if j < 7:
                A(f"s_add_u32 s{S_T0}, s{S_T0}, {4*32768}")
        self.mk_srd(R_WS, S_WS, WS_SIZE)
        A(f"buffer_load_dword v126, v126, {srd(R_WS)}, s{S_T3} offen {self.LP}")
        A("s_barrier")
        self.stamp(0)
        if self.stamps and self.stamps not in ("tail", "early", "svc", "entry"):
            A("s_getreg_b32 s10, hwreg(HW_REG_XCC_ID)")
            self.stampval(31, 10)
        A(f"""
        v_mov_b32 v24, -1
        v_mov_b32 v25, -1
        v_mov_b32 v26, -1
        v_mov_b32 v27, -1
        s_lshl_b32 s{S_T0}, s2, 12
        s_lshl_b32 s{S_T1}, s{S_SW}, 10
        s_add_u32 s{S_T0}, s{S_T0}, s{S_T1}
        s_add_u32 s{S_T0}, s{S_T0}, {WS_SLOT}
        buffer_store_dwordx4 v[24:27], v2, {srd(R_WS)}, s{S_T0} offen sc0 sc1
        """)
        nst = 2 if (self.stamps and self.stamps not in ('tail', 'early', 'svc', 'entry')) else 0
        self.role_params()
        A(f"s_waitcnt vmcnt({10 + nst})")
        self.stamp(10)
        F, D = 32, 48
        S1, S2, T1, T2, VMB, VRS = 64, 66, 68, 69, 70, 72
        for r in range(2):
            base = 8 + 8 * r
            for i in range(8):
                A(f"v_lshlrev_b32 v{F+2*i}, 16, v{base+i}")
                A(f"v_and_b32 v{F+2*i+1}, 0xffff0000, v{base+i}")
            self.ln_stats(F, D, S1, S2, T1, T2, VMB, VRS)
            lab = A.label()
            A(f"s_cmp_lt_u32 s{S_B}, 4")
            A(f"s_cbranch_scc1 {lab}")
            for i in range(0, 8, 2):
                A(f"v_pk_mov_b32 {vr(F+i,2)}, {vr(F+8+i,2)}, {vr(F+8+i,2)} op_sel:[0,1]")
            A.place(lab)
            for i in range(4):
                self.ln_apply(76 + i, F + 2*i, VMB, VRS, 74)
            A(f"""
            s_and_b32 s{S_T0}, s{S_B}, 3
            s_lshl_b32 s{S_T0}, s{S_T0}, 4
            s_mov_b64 s[{S_EX}:{S_EX+1}], 0xffff
            s_lshl_b64 s[{S_EX}:{S_EX+1}], s[{S_EX}:{S_EX+1}], s{S_T0}
            s_lshl_b32 s{S_T1}, s{S_SW}, 1
            s_add_u32 s{S_T1}, s{S_T1}, {r}
            s_mul_i32 s{S_T1}, s{S_T1}, 272
            s_add_u32 s{S_T1}, s{S_T1}, {LDS_XN}
            v_and_b32 v80, 15, v1
            v_lshlrev_b32 v80, 4, v80
            v_add_u32 v80, s{S_T1}, v80
            s_mov_b64 exec, s[{S_EX}:{S_EX+1}]
            ds_write_b128 v80, v[76:79]
            s_mov_b64 exec, -1
            """)
        self.stamp(12)
        A(f"""
        v_and_b32 v58, 7, v1
        v_mul_u32_u24 v58, 272, v58
        v_lshrrev_b32 v59, 4, v1
        v_lshlrev_b32 v60, 4, v59
        v_add_u32 v58, v58, v60
        v_add_u32 v58, {LDS_XN}, v58
        v_and_b32 v60, 15, v1
        v_lshrrev_b32 v61, 2, v60
        v_and_b32 v62, 3, v60
        v_and_b32 v63, 1, v59
        v_lshlrev_b32 v63, 2, v63
        v_or_b32 v63, v63, v61
        v_lshlrev_b32 v80, 3, v59
        v_add_u32 v80, v80, v61
        v_lshlrev_b32 v80, 8, v80
        v_lshlrev_b32 v62, 3, v62
        v_add_u32 v80, v80, v62
        v_add_u32 v80, {LDS_WQ}, v80
        s_lshl_b32 s{S_T0}, s{S_SW}, 1
        v_xor_b32 v81, s{S_T0}, v63
        v_lshlrev_b32 v81, 5, v81
        v_add_u32 v81, v81, v80
        s_add_u32 s{S_T0}, s{S_T0}, 1
        v_xor_b32 v82, s{S_T0}, v63
        v_lshlrev_b32 v82, 5, v82
        v_add_u32 v82, v82, v80
        v_and_b32 v56, 15, v1
        v_lshlrev_b32 v56, 12, v56
        v_lshlrev_b32 v60, 4, v59
        v_add_u32 v56, v56, v60
        """)
        A(f"s_waitcnt vmcnt({2 + 2*nst}) lgkmcnt(0)")
        self.stamp(13)
        self.lds_signal(LDS_CNT + 0, 124, 125)
        self.lds_wait(LDS_CNT + 0, 4, 124, 125, sleep=0)
        for s in range(4):
            A(f"ds_read_b128 {vr(64+4*s,4)}, v58 offset:{s*64}")
        for c in range(2):
            for s in range(4):
                r = 84 + (c * 4 + s) * 4
                A(f"ds_read_b64_tr_b16 {vr(r,2)}, v{81+c} offset:{s*8192}")
                A(f"ds_read_b64_tr_b16 {vr(r+2,2)}, v{81+c} offset:{s*8192+1024}")
        A(f"""
        s_lshl_b32 s{S_T0}, s{S_H}, 15
        s_lshl_b32 s{S_T1}, s{S_B}, 9
        s_add_u32 s{S_T0}, s{S_T0}, s{S_T1}
        s_lshl_b32 s{S_T1}, s{S_SW}, 7
        s_add_u32 s{S_T0}, s{S_T0}, s{S_T1}
        s_waitcnt lgkmcnt(0)
        """)
        for s in range(4):
            for c in range(2):
                r = 84 + (c * 4 + s) * 4
                acc = 116 + 4 * c
                src = "0" if s == 0 else vr(acc, 4)
                A(f"v_mfma_f32_16x16x32_bf16 {vr(acc,4)}, {vr(r,4)}, {vr(64+4*s,4)}, {src}")
        self.lds_signal(LDS_CNT + 4, 124, 125)
        A(f"""
        s_mov_b64 exec, s[{S_MJ8}:{S_MJ8+1}]
        buffer_store_dwordx4 v[116:119], v56, {srd(R_WS)}, s{S_T0} offen sc0 sc1
        buffer_store_dwordx4 v[120:123], v56, {srd(R_WS)}, s{S_T0} offen offset:64 sc0 sc1
        s_mov_b64 exec, -1
        s_lshl_b32 s{S_T0}, s{S_H}, 7
        s_add_u32 s{S_T0}, s{S_T0}, {WS_FLAG}
        s_lshl_b32 s{S_T1}, s{S_B}, 4
        s_lshl_b32 s{S_T2}, s{S_SW}, 2
        s_add_u32 s{S_T1}, s{S_T1}, s{S_T2}
        s_getreg_b32 s{S_XCC}, hwreg(HW_REG_XCC_ID)
        s_and_b32 s{S_XCC}, s{S_XCC}, 7
        s_lshl_b32 s{S_XCC}, s{S_XCC}, 24
        v_mov_b32 v58, s{S_T1}
        s_waitcnt vmcnt(0)
        v_readfirstlane_b32 s{S_TAG}, v126
        s_add_u32 s{S_TAG}, s{S_TAG}, 1
        s_add_u32 s{S_XCC}, s{S_XCC}, s{S_TAG}
        v_mov_b32 v59, s{S_XCC}
        s_mov_b64 exec, 1
        buffer_store_dword v59, v58, {srd(R_WS)}, s{S_T0} offen sc0 sc1
        s_mov_b64 exec, -1
        """)
        self.stamp(1)
        A(f"s_cmp_eq_u32 s{S_SW}, 0")
        A(f"s_cbranch_scc0 L_svc_done")
        lp = A.label(); ex = A.label()
        A(f"s_mov_b64 exec, 0xffffffff")
        A(f"s_mov_b32 s{S_CNT}, 0")
        A.place(lp)
        A(f"""
        buffer_load_dword v60, v3, {srd(R_WS)}, s{S_T0} offen {self.LP}
        s_waitcnt vmcnt(0)
        v_subrev_u32 v60, s{S_TAG}, v60
        v_and_b32 v60, 0xf8ffffff, v60
        v_cmp_ne_u32 vcc, 0, v60
        s_cbranch_vccz {ex}
        s_add_u32 s{S_CNT}, s{S_CNT}, 1
        s_cmp_gt_u32 s{S_CNT}, {SPIN}
        s_cbranch_scc0 {lp}
        """)
        A.place(ex)
        A("s_mov_b64 exec, -1")
        self.stamp(11)
        A(f"s_lshl_b32 s{S_T0}, s2, 12")
        for j in range(4):
            A(f"buffer_load_dwordx4 {vr(64+4*j,4)}, v2, {srd(R_WS)}, s{S_T0} offen offset:{j*1024} {self.LP}")
        A(f"""
        v_and_b32 v58, 31, v1
        v_lshlrev_b32 v58, 3, v58
        v_add_u32 v58, {LDS_Q}, v58
        s_waitcnt vmcnt(0)
        """)
        for e in range(0, 4, 2):
            A(f"v_pk_add_f32 {vr(64+e,2)}, {vr(64+e,2)}, {vr(68+e,2)}")
            A(f"v_pk_add_f32 {vr(72+e,2)}, {vr(72+e,2)}, {vr(76+e,2)}")
        for e in range(0, 4, 2):
            A(f"v_pk_add_f32 {vr(64+e,2)}, {vr(64+e,2)}, {vr(72+e,2)}")
        for e in range(4):
            A(f"v_mov_b32 v{68+e}, v{64+e}")
        for e in range(4):
            A(f"v_permlane32_swap_b32 v{64+e}, v{68+e}")
        for e in range(0, 4, 2):
            A(f"v_pk_add_f32 {vr(64+e,2)}, {vr(64+e,2)}, {vr(68+e,2)}")
        A(f"""
        v_cvt_pk_bf16_f32 v64, v64, v65
        v_cvt_pk_bf16_f32 v65, v66, v67
        ds_write_b64 v58, v[64:65]
        s_waitcnt lgkmcnt(0)
        """)
        self.lds_signal(LDS_CNT + 12, 124, 125)
        self.stamp(2)
        if self.debug:
            A(f"""
            v_and_b32 v58, 31, v1
            v_lshlrev_b32 v58, 3, v58
            s_lshl_b32 s{S_T0}, s2, 8
            s_add_u32 s{S_T0}, s{S_T0}, {WS_DBG}
            buffer_store_dwordx2 v[64:65], v58, {srd(R_WS)}, s{S_T0} offen
            """)
        lp = A.label(); ex = A.label()
        A(f"s_mov_b32 s{S_T0}, {WS_FLAG}")
        A(f"s_mov_b32 s{S_CNT}, 0")
        A.place(lp)
        for j in range(4):
            A(f"buffer_load_dwordx4 {vr(64+4*j,4)}, v2, {srd(R_WS)}, s{S_T0} offen offset:{j*1024} {self.LP}")
        A("s_waitcnt vmcnt(0)")
        for i in range(16):
            A(f"v_subrev_u32 v{64+i}, s{S_TAG}, v{64+i}")
        for i in range(16):
            A(f"v_and_b32 v{80+i}, 0xf8ffffff, v{64+i}")
        t = self.maxred(60, range(80, 96))
        A(f"""
        v_cmp_ne_u32 vcc, 0, v{t}
        s_cbranch_vccz {ex}
        s_add_u32 s{S_CNT}, s{S_CNT}, 1
        s_cmp_gt_u32 s{S_CNT}, {SPIN}
        s_cbranch_scc1 {ex}
        s_sleep 16
        s_branch {lp}
        """)
        A.place(ex)
        A(f"v_add_u32 v60, {LDS_XCC}, v3")
        for t in range(4):
            A(f"ds_write_b32 v60, v{64+4*t} offset:{t*256}")
        A("s_waitcnt lgkmcnt(0)")
        if self.pace:
            self.local_flag()
            self.controller(self.PK0, 13)
            A("s_barrier")
            A("s_barrier")
            self.controller(16, (16 + self.EB - 2) if self.DE else 29)
            A("s_branch L_join3")
        A.place("L_svc_done")
        A("s_barrier")
        A("s_barrier")
        A("s_branch L_join3")

    def controller(self, k0, k1):
        A = self.A
        lp = A.label(); lw = A.label(); lx = A.label(); lend = A.label()
        A(f"s_cmp_eq_u32 s{S_LOC}, 1")
        A(f"s_cbranch_scc0 {lend}")
        A(f"s_mov_b32 s{S_T0}, {k0}")
        A(f"v_mov_b32 v60, {LDS_BLK}")
        A(f"v_mov_b32 v61, {LDS_N}")
        A(f"v_mov_b32 v62, 1")
        A(f"s_lshl_b32 s{S_T3}, s{S_H}, 2")
        A(f"v_mov_b32 v63, s{S_T3}")
        A.place(lp)
        A(f"s_mov_b32 s{S_CNT}, 0")
        A.place(lw)
        A(f"ds_read_b32 v64, v60")
        A(f"s_waitcnt lgkmcnt(0)")
        A(f"v_readfirstlane_b32 s{S_T1}, v64")
        A(f"s_cmp_gt_u32 s{S_T1}, s{S_T0}")
        A(f"s_cbranch_scc1 {lx}")
        A(f"s_add_u32 s{S_CNT}, s{S_CNT}, 1")
        A(f"s_cmp_gt_u32 s{S_CNT}, {SPIN}")
        A(f"s_cbranch_scc1 {lx}")
        A(f"s_sleep 8")
        A(f"s_branch {lw}")
        A.place(lx)
        A(f"s_sub_u32 s{S_T1}, s{S_T1}, 1")
        A(f"s_min_u32 s{S_T0}, s{S_T1}, {k1}")
        A(f"s_lshl_b32 s{S_T2}, s{S_T0}, 10")
        A(f"s_lshl_b32 s{S_T4}, s{S_B}, 7")
        A(f"s_add_u32 s{S_T2}, s{S_T2}, s{S_T4}")
        A(f"s_add_u32 s{S_T2}, s{S_T2}, {WS_PROG}")
        A(f"s_mov_b64 exec, 1")
        A(f"buffer_store_dword v62, v63, {srd(R_WS)}, s{S_T2} offen")
        if self.bias:
            A(f"s_lshl_b32 s{S_T4}, s{S_B}, 7")
            A(f"s_add_u32 s{S_OFF}, s{S_T4}, {WS_BIAS}")
            A(f"v_mov_b32 v66, 0")
            A(f"buffer_load_dword v67, v66, {srd(R_WS)}, s{S_OFF} offen {self.LP}")
        A(f"s_mov_b64 exec, 0xffffffff")
        A(f"buffer_load_dword v64, v3, {srd(R_WS)}, s{S_T2} offen {self.LP}")
        A(f"s_waitcnt vmcnt(0)")
        A(f"v_cmp_ne_u32 vcc, -1, v64")
        A(f"s_mov_b64 exec, -1")
        A(f"s_bcnt1_i32_b64 s{S_T4}, vcc")
        if self.bias:
            lg = A.label()
            A(f"v_readfirstlane_b32 s{S_PITCH}, v67")
            A(f"s_cmp_eq_u32 s{S_T4}, {self.GM}")
            A(f"s_cbranch_scc0 {lg}")
            A(f"s_lshl_b32 s{S_T2}, s{S_T0}, 7")
            A(f"s_add_u32 s{S_T2}, s{S_T2}, {WS_GP}")
            A(f"s_lshl_b32 s{S_T5}, s{S_B}, 2")
            A(f"v_mov_b32 v65, s{S_T5}")
            A(f"s_mov_b64 exec, 1")
            A(f"buffer_store_dword v62, v65, {srd(R_WS)}, s{S_T2} offen sc0 sc1")
            A(f"s_mov_b64 exec, 0xff")
            A(f"buffer_load_dword v65, v3, {srd(R_WS)}, s{S_T2} offen {self.LP}")
            A(f"s_waitcnt vmcnt(0)")
            A(f"v_cmp_ne_u32 vcc, -1, v65")
            A(f"s_mov_b64 exec, -1")
            A(f"s_bcnt1_i32_b64 s{S_T2}, vcc")
            A(f"s_mov_b32 s{S_PITCH}, 1")
            A(f"s_cmp_ge_u32 s{S_T2}, {self.GH}")
            A(f"s_addc_u32 s{S_PITCH}, s{S_PITCH}, 0")
            A(f"s_cmp_le_u32 s{S_T2}, {self.GL}")
            A(f"s_subb_u32 s{S_PITCH}, s{S_PITCH}, 0")
            A(f"v_mov_b32 v65, s{S_PITCH}")
            A(f"s_mov_b64 exec, 1")
            A(f"buffer_store_dword v65, v66, {srd(R_WS)}, s{S_OFF} offen")
            A(f"s_mov_b64 exec, -1")
            A.place(lg)
            A(f"s_cmp_eq_u32 s{S_PITCH}, -1")
            A(f"s_cselect_b32 s{S_PITCH}, 1, s{S_PITCH}")
        A(f"s_mov_b32 s{S_T5}, {self.NBASE}")
        for th in self.TH:
            A(f"s_cmp_gt_u32 s{S_T4}, {th}")
            A(f"s_addc_u32 s{S_T5}, s{S_T5}, 0")
        if self.bias:
            A(f"s_add_u32 s{S_T5}, s{S_T5}, s{S_PITCH}")
            A(f"s_sub_u32 s{S_T5}, s{S_T5}, 1")
            A(f"s_max_u32 s{S_T5}, s{S_T5}, {self.NMIN}")
        A(f"s_min_u32 s{S_T5}, s{S_T5}, {self.D}")
        A(f"v_mov_b32 v64, s{S_T5}")
        A(f"ds_write_b32 v61, v64")
        A(f"s_add_u32 s{S_T0}, s{S_T0}, 1")
        A(f"s_cmp_le_u32 s{S_T0}, {k1}")
        A(f"s_cbranch_scc1 {lp}")
        A(f"s_waitcnt lgkmcnt(0)")
        A.place(lend)

    RING = 64
    R = 32
    QF = 8
    VN = 200
    def slot(self, t): return self.RING + 4 * (t % self.R)
    def issue(self, t, which):
        A = self.A
        r = self.slot(t)
        A(f"buffer_load_dwordx4 {vr(r,4)}, v2, {srd(R_K if which == 'K' else R_V)}, s{S_OFF} offen {self.KP if which == 'K' else self.VP}")
        A(f"s_add_u32 s{S_OFF}, s{S_OFF}, 4096")
        if self.rot: A(f"s_and_b32 s{S_OFF}, s{S_OFF}, 0xfffff")

    def vwait(self):
        A = self.A
        if not self.pace and not self.NW and not (self.defer and self.D > self.N):
            A(f"s_waitcnt vmcnt({self.N-1})"); return
        L = A.label()
        lv = list(range(self.D, self.NMIN, -1))
        for n in lv:
            A(f"s_waitcnt vmcnt({n-1})")
            A(f"s_cmp_ge_u32 s{S_NCUR}, {n}")
            A(f"s_cbranch_scc1 {L}")
        A(f"s_waitcnt vmcnt({self.NMIN-1})")
        A.place(L)
    def blk_begin(self):
        if not self.pace: return
        A = self.A
        A(f"s_waitcnt lgkmcnt(0)")
        A(f"v_readfirstlane_b32 s{S_NCUR}, v{self.VN}")
        A(f"ds_read_b32 v{self.VN}, v{self.VN+1}")
    def blk_end(self):
        if not self.pace: return
        A = self.A
        L = A.label()
        A(f"v_add_u32 v{self.VN+2}, 1, v{self.VN+2}")
        A(f"s_cmp_eq_u32 s{S_SW}, 0")
        A(f"s_cbranch_scc0 {L}")
        A(f"ds_write_b32 v{self.VN+1}, v{self.VN+2} offset:-4".replace("offset:-4", "offset:0") if False else f"ds_write_b32 v{self.VN+3}, v{self.VN+2}")
        A.place(L)

    def k_block(self, t0, plan):
        A = self.A
        q = self.QF
        ACC = [12, 13, 14, 15]; B0, B1 = 16, 17; E = [18, 19, 20, 21]; M = 22
        MX = 24; SA = 25
        def reduce_group(c):
            a0, a1, a2, a3 = ACC
            e = E[c]
            A(f"v_add_f32_dpp v{B0}, v{a0}, v{a0} row_ror:8 row_mask:0xf bank_mask:0x3")
            A(f"v_add_f32_dpp v{B1}, v{a2}, v{a2} row_ror:8 row_mask:0xf bank_mask:0x3")
            A(f"v_add_f32_dpp v{B0}, v{a1}, v{a1} row_ror:8 row_mask:0xf bank_mask:0xc")
            A(f"v_add_f32_dpp v{B1}, v{a3}, v{a3} row_ror:8 row_mask:0xf bank_mask:0xc")
            A(f"v_add_f32_dpp v{e}, v{B0}, v{B0} row_half_mirror row_mask:0xf bank_mask:0x5")
            A(f"v_add_f32_dpp v{e}, v{B1}, v{B1} row_half_mirror row_mask:0xf bank_mask:0xa")
            A(f"v_add_f32_dpp v{e}, v{e}, v{e} quad_perm:[1,0,3,2] row_mask:0xf bank_mask:0xf")
            A(f"v_add_f32_dpp v{e}, v{e}, v{e} quad_perm:[2,3,0,1] row_mask:0xf bank_mask:0xf")
        self.blk_begin()
        for t in range(16):
            cnt, iss = plan(t0 + t)
            if cnt is None: self.vwait()
            else: A(f"s_waitcnt vmcnt({cnt})")
            if iss is not None:
                if iss[1] == 'V' and iss[0] == 0:
                    A(f"s_mov_b32 s{S_OFF}, s{S_ROT}")
                self.issue(iss[0], iss[1])
            r = self.slot(t0 + t)
            a = ACC[t % 4]
            A(f"v_dot2_f32_bf16 v{a}, v{r}, v{q}, 0")
            A(f"v_dot2_f32_bf16 v{a}, v{r+1}, v{q+1}, v{a}")
            A(f"v_dot2_f32_bf16 v{a}, v{r+2}, v{q+2}, v{a}")
            A(f"v_dot2_f32_bf16 v{a}, v{r+3}, v{q+3}, v{a}")
            if t % 4 == 3:
                reduce_group(t // 4)
        A(f"v_cndmask_b32 v{M}, v{E[0]}, v{E[1]}, s[{S_M1}:{S_M1+1}]")
        A(f"v_cndmask_b32 v{M}, v{M}, v{E[2]}, s[{S_M2}:{S_M2+1}]")
        A(f"v_cndmask_b32 v{M}, v{M}, v{E[3]}, s[{S_M3}:{S_M3+1}]")
        self.rnd_bf16(M, M)
        A(f"v_mul_f32 v{M}, 0x3db504f3, v{M}")
        self.rnd_bf16(M, M)
        A(f"ds_write_b32 v{SA}, v{M}")
        A(f"v_max_f32 v{MX}, v{MX}, v{M}")
        A(f"v_add_u32 v{SA}, 256, v{SA}")
        self.blk_end()

    def v_block(self, t0, plan, last=False):
        A = self.A
        P, PN, PA = 12, 13, 14
        MK = [16, 17, 18, 19]
        BS = [[20, 21, 22, 23], [24, 25, 26, 27]]
        ACC = 28
        A(f"s_waitcnt lgkmcnt(0)")
        A(f"v_mov_b32 v{P}, v{PN}")
        self.blk_begin()
        if not last:
            A(f"ds_read_b32 v{PN}, v{PA}")
            A(f"v_add_u32 v{PA}, 256, v{PA}")
        for t in range(16):
            cnt, iss = plan(t0 + t)
            if cnt is None: self.vwait()
            else: A(f"s_waitcnt vmcnt({cnt})")
            if iss is not None:
                self.issue(iss[0], iss[1])
            B = BS[t % 2]
            for j in range(4):
                A(f"v_and_b32_dpp v{B[j]}, v{P}, v{MK[j]} row_newbcast:{t} row_mask:0xf bank_mask:0xf")
            r = self.slot(t0 + t)
            A(f"v_mfma_f32_16x16x32_bf16 {vr(ACC,4)}, {vr(r,4)}, {vr(B[0],4)}, {vr(ACC,4)}")
        self.blk_end()

    def stream(self):
        A = self.A
        N, NP, PV, R = self.N, self.NP, self.PV, self.R
        A.place("L_stream")
        A.c("==== stream waves ====")
        A(f"""
        v_lshrrev_b32 v4, 3, v1
        v_and_b32 v5, 7, v1
        v_lshrrev_b32 v6, 4, v1
        v_and_b32 v6, 1, v6
        v_lshlrev_b32 v6, 1, v6
        v_xor_b32 v5, v5, v6
        s_and_b32 s{S_T0}, s{S_SW}, 1
        s_lshl_b32 s{S_T0}, s{S_T0}, 2
        v_xor_b32 v5, s{S_T0}, v5
        v_lshlrev_b32 v5, 4, v5
        s_waitcnt lgkmcnt(0)
        """)
        self.mk_srd(R_WS, S_WS, WS_SIZE)
        self.role_params()
        A(f"""
        s_lshl_b32 s{S_T0}, s{S_B}, 5
        s_add_u32 s{S_T0}, s{S_T0}, s{S_H}
        s_lshl_b32 s{S_T0}, s{S_T0}, 20
        """)
        self.mk_srd(R_K, S_K, 1 << 20, f"s{S_T0}")
        self.mk_srd(R_V, S_V, 1 << 20, f"s{S_T0}")
        A(f"""
        v_mul_lo_u32 v4, v4, s{S_PITCH}
        v_add_u32 v4, v4, v5
        s_lshl_b32 s{S_T0}, s{S_PITCH}, 3
        s_mul_i32 s{S_T1}, s{S_T0}, s{S_SW}
        s_lshl_b32 s{S_T0}, s{S_T0}, 2
        s_lshl_b32 s{S_T2}, s{S_SW}, 10
        s_mov_b32 s{S_T3}, 0
        s_barrier
        """)
        self.stamp(0)
        if self.stamps and self.stamps not in ("tail", "early", "svc", "entry"):
            A("s_getreg_b32 s4, hwreg(HW_REG_XCC_ID)")
            A(f"s_lshl_b32 s6, s{S_WG}, 3")
            A(f"s_add_u32 s6, s6, s{S_WAVE}")
            A(f"s_lshl_b32 s6, s6, 7")
            A(f"s_add_u32 s6, s6, {WS_DBG + 0x100000 + 31*4}")
            A(f"s_mov_b64 exec, 1")
            A(f"v_mov_b32 v254, s4")
            A(f"v_mov_b32 v255, 0")
            A(f"buffer_store_dword v254, v255, {srd(R_WS)}, s6 offen")
            A(f"s_mov_b64 exec, -1")
        lp1, lp2, ld = A.label(), A.label(), A.label()
        def dma_iter(wait):
            A(f"""
            s_mov_b32 m0, s{S_T2}
            s_waitcnt vmcnt({wait})
            buffer_load_dwordx4 v4, {srd(R_WT)}, s{S_T1} offen {self.WP} lds
            s_add_u32 s{S_T1}, s{S_T1}, s{S_T0}
            s_add_u32 s{S_T2}, s{S_T2}, 4096
            s_add_u32 s{S_T3}, s{S_T3}, 1
            s_cmp_eq_u32 s{S_T3}, s{S_JJ}
            s_cselect_b32 s{S_T4}, s{S_JA}, 0
            s_add_u32 s{S_T1}, s{S_T1}, s{S_T4}
            """)
        self.dma_iter = dma_iter
        A(f"s_cmp_eq_u32 s{S_J1}, 0")
        A(f"s_cbranch_scc1 {ld}")
        A.place(lp1)
        dma_iter(NP - 1)
        A(f"s_cmp_lt_u32 s{S_T3}, s{S_J1}")
        A(f"s_cbranch_scc1 {lp1}")
        A.place(ld)
        if self.rot:
            A(f"s_mul_i32 s{S_ROT}, s2, {self.rot}")
            A(f"s_and_b32 s{S_ROT}, s{S_ROT}, 255")
            A(f"s_lshl_b32 s{S_ROT}, s{S_ROT}, 12")
        else:
            A(f"s_mov_b32 s{S_ROT}, 0")
        A(f"s_lshl_b32 s{S_T5}, s{S_SW}, 10")
        A(f"s_add_u32 s{S_ROT}, s{S_ROT}, s{S_T5}")
        A(f"s_mov_b32 s{S_OFF}, s{S_ROT}")
        for t in range(R):
            A(f"s_waitcnt vmcnt({NP-1})")
            self.issue(t, 'K')
        self.stamp(15)
        ld2 = A.label()
        if self.defer:
            A(f"s_cmp_eq_u32 s{S_ROLE}, 0")
            A(f"s_cbranch_scc0 {ld2}")
        else:
            A(f"s_cmp_eq_u32 s{S_NJ}, 0")
            A(f"s_cbranch_scc1 {ld2}")
        self.lds_wait(LDS_CNT + 4, 4, 6, 7)
        A.place(lp2)
        dma_iter(NP - 1)
        A(f"s_cmp_lt_u32 s{S_T3}, s{S_NJ}")
        A(f"s_cbranch_scc1 {lp2}")
        A.place(ld2)
        A(f"s_mov_b32 s{S_DS}, s{S_T1}")
        A(f"s_mov_b32 s{S_DM}, s{S_T2}")
        A(f"s_mov_b32 s{S_DJ}, s{S_T3}")
        A(f"s_mov_b32 s{S_DST}, s{S_T0}")
        A(f"v_mov_b32 v204, v4")
        self.stamp(14)
        self.lds_wait(LDS_CNT + 12, 1, 6, 7)
        self.stamp(3)
        self.cstamp(20)
        A(f"""
        v_and_b32 v6, 15, v1
        v_lshlrev_b32 v6, 4, v6
        v_add_u32 v6, {LDS_Q}, v6
        ds_read_b128 v[8:11], v6
        v_mov_b32 v24, 0xff800000
        v_and_b32 v6, 3, v1
        v_lshlrev_b32 v6, 2, v6
        v_bfe_u32 v7, v1, 2, 1
        v_lshlrev_b32 v7, 1, v7
        v_bfe_u32 v5, v1, 3, 1
        v_or_b32 v7, v7, v5
        v_add_u32 v6, v6, v7
        v_and_b32 v7, 48, v1
        v_add_u32 v6, v6, v7
        v_lshlrev_b32 v6, 2, v6
        s_lshl_b32 s{S_T0}, s{S_SW}, 12
        s_add_u32 s{S_T0}, s{S_T0}, {LDS_SC}
        v_add_u32 v25, s{S_T0}, v6
        v_mov_b32 v201, {LDS_N}
        v_mov_b32 v202, 0
        v_mov_b32 v203, {LDS_BLK}
        ds_read_b32 v200, v201
        """)
        if self.defer and not self.pace:
            A(f"s_cmp_eq_u32 s{S_ROLE}, 0")
            A(f"s_cselect_b32 s{S_NCUR}, {self.NOK}, {self.N}")
        if self.NW:
            A(f"s_mov_b32 s{S_NCUR}, {self.NW[0]}")
            for w in range(1, 4):
                A(f"s_cmp_eq_u32 s{S_SW}, {w}")
                A(f"s_cselect_b32 s{S_NCUR}, {self.NW[w]}, s{S_NCUR}")
        A(f"""
        s_waitcnt lgkmcnt(0)
        """)
        D = self.D
        def plan_first(t):
            if t < R - D: return (R - 1 - t, None)
            return (None, (t + D, 'K'))
        def plan_mid(t): return (None, (t + D, 'K'))
        def plan_klast(t):
            if t + D < 256: return (None, (t + D, 'K'))
            return (None, (t + D - 256, 'V'))
        self.k_block(0, plan_first)
        self.k_block(16, plan_first)
        lp = A.label()
        A(f"s_mov_b32 s{S_T3}, 0")
        A.place(lp)
        self.k_block(32, plan_mid)
        self.k_block(48, plan_mid)
        A(f"s_add_u32 s{S_T3}, s{S_T3}, 1")
        A(f"s_cmp_lt_u32 s{S_T3}, 6")
        A(f"s_cbranch_scc1 {lp}")
        self.k_block(224, plan_mid)
        self.k_block(240, plan_klast)
        for t in range(D, PV):
            self.issue(t, 'V')
        self.stamp(4)
        MX, T = 24, 23
        for r in (8, 4, 2, 1):
            A(f"v_max_f32_dpp v{MX}, v{MX}, v{MX} row_ror:{r} row_mask:0xf bank_mask:0xf")
        A(f"""
        v_lshrrev_b32 v6, 4, v1
        v_lshlrev_b32 v6, 2, v6
        s_lshl_b32 s{S_T0}, s{S_SW}, 4
        v_add_u32 v6, s{S_T0}, v6
        v_add_u32 v7, {LDS_WM}, v6
        ds_write_b32 v7, v{MX}
        s_lshl_b32 s{S_T0}, s{S_SW}, 12
        s_add_u32 s{S_T0}, s{S_T0}, {LDS_SC}
        v_add_u32 v14, s{S_T0}, v3
        s_waitcnt lgkmcnt(0)
        """)
        for i in range(16):
            A(f"ds_read_b32 v{48+i}, v14 offset:{i*256}")
        A(f"""
        s_barrier
        v_mov_b32 v7, {LDS_WM}
        ds_read_b128 v[32:35], v7
        ds_read_b128 v[36:39], v7 offset:16
        ds_read_b128 v[40:43], v7 offset:32
        ds_read_b128 v[44:47], v7 offset:48
        s_mov_b32 s{S_T1}, 0x3fb8aa3b
        s_waitcnt lgkmcnt(0)
        """)
        A(f"v_max3_f32 v{MX}, v32, v33, v34")
        for i in range(35, 47, 2):
            A(f"v_max3_f32 v{MX}, v{MX}, v{i}, v{i+1}")
        A(f"v_max_f32 v{MX}, v{MX}, v47")
        for i in range(16):
            A(f"v_sub_f32 v{48+i}, v{48+i}, v{MX}")
        for i in range(16):
            A(f"v_mul_f32 v{48+i}, s{S_T1}, v{48+i}")
        for i in range(16):
            A(f"v_exp_f32 v{48+i}, v{48+i}")
        A(f"v_add_f32 v{T}, v48, v49")
        for i in range(2, 16):
            A(f"v_add_f32 v{T}, v{T}, v{48+i}")
        for r in (8, 4, 2, 1):
            A(f"v_add_f32_dpp v{T}, v{T}, v{T} row_ror:{r} row_mask:0xf bank_mask:0xf")
        A(f"""
        v_add_u32 v7, {LDS_WS}, v6
        ds_write_b32 v7, v{T}
        s_waitcnt lgkmcnt(0)
        s_barrier
        v_mov_b32 v7, {LDS_WS}
        ds_read_b128 v[32:35], v7
        ds_read_b128 v[36:39], v7 offset:16
        ds_read_b128 v[40:43], v7 offset:32
        ds_read_b128 v[44:47], v7 offset:48
        v_and_b32 v6, 15, v1
        v_lshrrev_b32 v7, 1, v6
        v_and_b32 v5, 1, v6
        v_lshlrev_b32 v5, 4, v5
        v_mov_b32 v4, 0xffff
        v_lshlrev_b32 v4, v5, v4
        """)
        for j in range(4):
            A(f"v_cmp_eq_u32 vcc, {j}, v7")
            A(f"v_cndmask_b32 v{16+j}, 0, v4, vcc")
        A("s_waitcnt lgkmcnt(0)")
        for i in range(0, 16, 2):
            A(f"v_add_f32 v{32+i}, v{32+i}, v{33+i}")
        for i in range(0, 16, 4):
            A(f"v_add_f32 v{32+i}, v{32+i}, v{34+i}")
        A(f"v_add_f32 v32, v32, v36")
        A(f"v_add_f32 v40, v40, v44")
        A(f"v_add_f32 v32, v32, v40")
        A(f"v_rcp_f32 v32, v32")
        for i in range(16):
            A(f"v_mul_f32 v{48+i}, v{48+i}, v32")
        for i in range(16):
            A(f"v_cvt_pk_bf16_f32 v{48+i}, v{48+i}, v{48+i}")
        for i in range(1, 16):
            A(f"ds_write_b32 v14, v{48+i} offset:{i*256}")
        A(f"""
        v_mov_b32 v13, v48
        v_add_u32 v14, 256, v14
        v_mov_b32 v28, 0
        v_mov_b32 v29, 0
        v_mov_b32 v30, 0
        v_mov_b32 v31, 0
        """)
        if self.defer and not self.pace:
            A(f"s_cmp_eq_u32 s{S_ROLE}, 0")
            A(f"s_cselect_b32 s{S_NCUR}, {self.NOV}, {self.N}")
        self.stamp(5)
        def plan_vfirst(t):
            if t < PV - D: return (PV - 1 - t, None)
            return (None, (t + D, 'V'))
        def plan_vmid(t): return (None, (t + D, 'V'))
        def plan_vlast(t):
            if t + D < 256: return (None, (t + D, 'V'))
            return (255 - t, None)
        assert PV == 16
        self.v_block(0, plan_vfirst)
        lp = A.label()
        A(f"s_mov_b32 s{S_T3}, 0")
        A.place(lp)
        self.v_block(16, plan_vmid)
        self.v_block(32, plan_vmid)
        A(f"s_add_u32 s{S_T3}, s{S_T3}, 1")
        if self.DE:
            DE = self.DE; EB = self.EB
            A(f"s_cmp_lt_u32 s{S_T3}, {(EB - 1) // 2}")
            A(f"s_cbranch_scc1 {lp}")
            for u in range(16 * EB + D, 16 * EB + DE):
                self.issue(u, 'V')
            def plan_vend(t):
                if t + DE < 256: return (DE - 1, (t + DE, 'V'))
                return (255 - t, None)
            for blk in range(EB, 16):
                self.v_block(16 * blk, plan_vend, last=(blk == 15))
        else:
            A(f"s_cmp_lt_u32 s{S_T3}, 7")
            A(f"s_cbranch_scc1 {lp}")
            self.v_block(240, plan_vlast, last=True)
        A(f"""
        v_lshrrev_b32 v6, 4, v1
        v_lshlrev_b32 v6, 7, v6
        v_and_b32 v7, 15, v1
        v_lshlrev_b32 v7, 2, v7
        v_add_u32 v6, v6, v7
        s_lshl_b32 s{S_T0}, s{S_SW}, 9
        s_add_u32 s{S_T0}, s{S_T0}, {LDS_ORED}
        v_add_u32 v6, s{S_T0}, v6
        s_mov_b64 exec, s[{S_MJ8}:{S_MJ8+1}]
        ds_write_b32 v6, v28
        ds_write_b32 v6, v29 offset:32
        ds_write_b32 v6, v30 offset:64
        ds_write_b32 v6, v31 offset:96
        s_mov_b64 exec, -1
        s_waitcnt lgkmcnt(0)
        """)
        self.stamp(6)
        self.cstamp(21)
        A.place("L_join3")

    def tile_afrags(self, base):
        A = self.A
        A(f"""
        v_lshrrev_b32 v4, 4, v1
        v_and_b32 v5, 15, v1
        v_lshrrev_b32 v6, 2, v5
        v_and_b32 v5, 3, v5
        v_lshrrev_b32 v7, 1, v6
        v_and_b32 v8, 1, v4
        v_lshlrev_b32 v8, 1, v8
        v_or_b32 v7, v7, v8
        v_lshlrev_b32 v8, 3, v4
        v_add_u32 v8, v8, v6
        v_lshlrev_b32 v8, 7, v8
        v_lshlrev_b32 v5, 3, v5
        v_add_u32 v8, v8, v5
        s_lshl_b32 s{S_T0}, s{S_WAVE}, 14
        v_add_u32 v8, s{S_T0}, v8
        """)
        for cb in range(4):
            A(f"v_xor_b32 v{9+cb}, {cb}, v7")
            A(f"v_lshlrev_b32 v{9+cb}, 5, v{9+cb}")
            A(f"v_add_u32 v{9+cb}, v{9+cb}, v8")
        for s in range(4):
            for cb in range(4):
                r = base + (s * 4 + cb) * 4
                A(f"ds_read_b64_tr_b16 {vr(r,2)}, v{9+cb} offset:{s*4096}")
                A(f"ds_read_b64_tr_b16 {vr(r+2,2)}, v{9+cb} offset:{s*4096+512}")

    RW = 240
    def red_addrs(self):
        A = self.A
        RW = self.RW
        A(f"""
        v_and_b32 v4, 15, v1
        v_lshrrev_b32 v5, 4, v1
        s_lshl_b32 s{S_T0}, s{S_WAVE}, 11
        s_add_u32 s{S_T0}, s{S_T0}, {LDS_RED}
        v_lshlrev_b32 v6, 8, v4
        v_add_u32 v6, s{S_T0}, v6
        """)
        for cb in range(4):
            A(f"v_add_u32 v7, {4*cb}, v5")
            A(f"v_xor_b32 v7, v7, v4")
            A(f"v_lshlrev_b32 v7, 4, v7")
            A(f"v_add_u32 v{RW+cb}, v7, v6")
        A(f"""
        v_lshrrev_b32 v4, 2, v1
        v_xor_b32 v4, s{S_WAVE}, v4
        v_lshlrev_b32 v4, 4, v4
        v_and_b32 v5, 3, v1
        v_lshlrev_b32 v5, 2, v5
        v_add_u32 v4, v4, v5
        s_lshl_b32 s{S_T0}, s{S_WAVE}, 8
        s_add_u32 s{S_T0}, s{S_T0}, {LDS_RED}
        v_add_u32 v{RW+4}, s{S_T0}, v4
        """)

    def mfma16(self, abase, bregs, acc):
        A = self.A
        for s in range(4):
            for cb in range(4):
                r = abase + (s * 4 + cb) * 4
                a = acc + 4 * cb
                src = "0" if s == 0 else vr(a, 4)
                A(f"v_mfma_f32_16x16x32_bf16 {vr(a,4)}, {vr(r,4)}, {vr(bregs[s],4)}, {src}")

    def red_write(self, acc):
        A = self.A
        A(f"s_mov_b64 exec, s[{S_MJ8}:{S_MJ8+1}]")
        for cb in range(4):
            A(f"ds_write_b128 v{self.RW+cb}, {vr(acc+4*cb,4)}")
        A("s_mov_b64 exec, -1")
        A("s_waitcnt lgkmcnt(0)")

    def red_sum(self, nw, dst):
        A = self.A
        for v in range(nw):
            A(f"ds_read_b32 v{dst+v}, v{self.RW+4} offset:{v*2048}")
        A("s_waitcnt lgkmcnt(0)")
        regs = [dst + v for v in range(nw)]
        while len(regs) > 1:
            nxt = []
            for i in range(0, len(regs) - 1, 2):
                A(f"v_add_f32 v{regs[i]}, v{regs[i]}, v{regs[i+1]}")
                nxt.append(regs[i])
            if len(regs) % 2: nxt.append(regs[-1])
            regs = nxt

    def tail(self):
        A = self.A
        A("s_barrier")
        lskip = A.label()
        A(f"s_cmp_eq_u32 s{S_WAVE}, 0")
        A(f"s_cbranch_scc0 {lskip}")
        A(f"""
        v_lshlrev_b32 v4, 3, v1
        v_add_u32 v4, {LDS_ORED}, v4
        ds_read_b64 v[8:9], v4
        ds_read_b64 v[10:11], v4 offset:512
        ds_read_b64 v[12:13], v4 offset:1024
        ds_read_b64 v[14:15], v4 offset:1536
        s_lshl_b32 s{S_T0}, s{S_B}, 13
        s_lshl_b32 s{S_T1}, s{S_H}, 8
        s_add_u32 s{S_T0}, s{S_T0}, s{S_T1}
        s_add_u32 s{S_T0}, s{S_T0}, {WS_OB}
        s_waitcnt lgkmcnt(0)
        v_pk_add_f32 v[8:9], v[8:9], v[10:11]
        v_pk_add_f32 v[12:13], v[12:13], v[14:15]
        v_pk_add_f32 v[8:9], v[8:9], v[12:13]
        v_cvt_pk_bf16_f32 v8, v8, v9
        v_min_u32 v8, -2, v8
        """)
        self.quad_gather(8, 8)
        A(f"""
        s_mov_b64 exec, s[{S_MQ}:{S_MQ+1}]
        buffer_store_dwordx4 v[8:11], v3, {srd(R_WS)}, s{S_T0} offen sc0 sc1
        s_mov_b64 exec, -1
        """)
        A.place(lskip)
        self.stamp(7)
        if self.defer:
            lnd = A.label(); lp = A.label()
            A("s_barrier")
            A(f"s_cmp_lt_u32 s{S_WAVE}, 4")
            A(f"s_cbranch_scc1 {lnd}")
            A(f"s_cmp_ge_u32 s{S_DJ}, s{S_NJ}")
            A(f"s_cbranch_scc1 {lnd}")
            A(f"s_mov_b32 s{S_T1}, s{S_DS}")
            A(f"s_mov_b32 s{S_T2}, s{S_DM}")
            A(f"s_mov_b32 s{S_T3}, s{S_DJ}")
            A(f"s_mov_b32 s{S_T0}, s{S_DST}")
            A(f"v_mov_b32 v4, v204")
            lpd = A.label()
            A(f"s_cmp_eq_u32 s{S_ROLE}, 2")
            A(f"s_cbranch_scc1 {lpd}")
            A.place(lp)
            self.dma_iter(self.NT - 1)
            A(f"s_cmp_lt_u32 s{S_T3}, s{S_NJ}")
            A(f"s_cbranch_scc1 {lp}")
            A(f"s_branch {lnd}")
            A.place(lpd)
            self.dma_iter(self.NTD - 1)
            A(f"s_cmp_lt_u32 s{S_T3}, s{S_NJ}")
            A(f"s_cbranch_scc1 {lpd}")
            A.place(lnd)
        if self.stop_after == "attn":
            A("s_branch L_end")
        A(f"""
        s_cmp_eq_u32 s{S_ROLE}, 0
        s_cbranch_scc1 L_roleO
        s_cmp_eq_u32 s{S_ROLE}, 1
        s_cbranch_scc1 L_roleG
        s_cmp_eq_u32 s{S_ROLE}, 2
        s_cbranch_scc1 L_roleD
        s_branch L_roleF
        """)
        self.role_O()
        self.role_G()
        self.role_D()
        self.role_F()

    def role_O(self):
        A = self.A
        A.place("L_roleO")
        AB = 64
        A(f"s_lshr_b32 s{S_NJ}, s{S_H}, 1")
        A(f"s_and_b32 s{S_PITCH}, s{S_H}, 1")
        A(f"s_lshl_b32 s{S_T0}, s{S_B}, 1")
        A(f"s_add_u32 s{S_PITCH}, s{S_PITCH}, s{S_T0}")
        A(f"""
        v_and_b32 v4, 15, v1
        v_lshlrev_b32 v4, 13, v4
        v_lshrrev_b32 v5, 4, v1
        v_lshlrev_b32 v5, 4, v5
        v_add_u32 v16, v4, v5
        s_lshl_b32 s{S_JJ}, s{S_NJ}, 11
        s_lshl_b32 s{S_T1}, s{S_WAVE}, 8
        s_add_u32 s{S_JJ}, s{S_JJ}, s{S_T1}
        s_add_u32 s{S_JJ}, s{S_JJ}, {WS_OB}
        """)
        oloads = [f"buffer_load_dwordx4 {vr(32+4*s_,4)}, v16, {srd(R_WS)}, s{S_JJ} offen offset:{s_*64} {self.LP}" for s_ in range(4)]
        self.poll_issue(oloads, range(32, 48), mask=S_MJ8)
        self.local_flag()
        self.mk_srd(R_X, S_X, 16384)
        A(f"""
        v_bfe_u32 v14, v1, 4, 1
        v_lshlrev_b32 v14, 11, v14
        v_and_b32 v15, 15, v1
        v_lshlrev_b32 v13, 3, v15
        v_add_u32 v13, v13, v14
        s_lshl_b32 s{S_T0}, s{S_PITCH}, 7
        s_lshl_b32 s{S_T1}, s{S_NJ}, 12
        s_add_u32 s{S_T0}, s{S_T0}, s{S_T1}
        buffer_load_dwordx2 v[28:29], v13, {srd(R_X)}, s{S_T0} offen
        s_add_u32 s{S_OFF}, s{S_T0}, {WS_H}
        v_lshrrev_b32 v15, 1, v15
        v_lshlrev_b32 v15, 4, v15
        v_add_u32 v14, v14, v15
        """)
        self.tile_afrags(AB)
        self.red_addrs()
        A(f"""
        v_bfe_u32 v4, v1, 4, 1
        s_lshl_b32 s{S_T0}, s{S_WAVE}, 1
        v_add_u32 v4, s{S_T0}, v4
        v_and_b32 v5, 15, v1
        v_xor_b32 v5, v5, v4
        v_lshlrev_b32 v5, 4, v5
        v_lshlrev_b32 v4, 8, v4
        v_add_u32 v4, v4, v5
        v_lshrrev_b32 v5, 5, v1
        v_lshlrev_b32 v5, 13, v5
        v_add_u32 v4, v4, v5
        v_add_u32 v19, {LDS_RED}, v4
        v_and_b32 v4, 31, v1
        v_lshlrev_b32 v13, 4, v4
        s_lshl_b32 s{S_T2}, s{S_PITCH}, 13
        s_add_u32 s{S_T2}, s{S_T2}, {WS_OP}
        s_lshl_b32 s{S_T1}, s{S_WAVE}, 11
        s_add_u32 s{S_T3}, s{S_T2}, s{S_T1}
        s_lshl_b32 s{S_T1}, s{S_NJ}, 9
        s_add_u32 s{S_T3}, s{S_T3}, s{S_T1}
        s_lshl_b32 s{S_T1}, s{S_NJ}, 11
        s_add_u32 s{S_T2}, s{S_T2}, s{S_T1}
        """)
        self.poll_pipe(oloads, range(32, 48), 17, mask=S_MJ8, sleep=self.PS, issued=True)
        self.stamp(8)
        A("s_waitcnt lgkmcnt(0)")
        self.mfma16(AB, [32, 36, 40, 44], 48)
        self.red_write(48)
        A("s_barrier")
        lr1 = A.label()
        A(f"s_cmp_ge_u32 s{S_WAVE}, 4")
        A(f"s_cbranch_scc1 {lr1}")
        for v in range(4):
            A(f"ds_read_b128 {vr(32+4*v,4)}, v19 offset:{v*2048}")
        A("s_waitcnt lgkmcnt(0)")
        for e in (0, 2):
            A(f"v_pk_add_f32 {vr(32+e,2)}, {vr(32+e,2)}, {vr(36+e,2)}")
            A(f"v_pk_add_f32 {vr(40+e,2)}, {vr(40+e,2)}, {vr(44+e,2)}")
        for e in (0, 2):
            A(f"v_pk_add_f32 {vr(32+e,2)}, {vr(32+e,2)}, {vr(40+e,2)}")
        for e in range(4):
            A(f"v_mov_b32 v{36+e}, v{32+e}")
        for e in range(4):
            A(f"v_permlane32_swap_b32 v{32+e}, v{36+e}")
        for e in (0, 2):
            A(f"v_pk_add_f32 {vr(32+e,2)}, {vr(32+e,2)}, {vr(36+e,2)}")
        for e in range(4):
            A(f"v_min_u32 v{32+e}, -2, v{32+e}")
        A("s_mov_b64 exec, 0xffffffff")
        self.store_sel(f"buffer_store_dwordx4 v[32:35], v13, {srd(R_WS)}, s{S_T3} offen")
        A("s_mov_b64 exec, -1")
        self.stamp(9)
        A("s_branch L_end")
        A.place(lr1)
        A(f"s_cmp_eq_u32 s{S_WAVE}, 4")
        A(f"s_cbranch_scc0 L_end")
        A(f"v_lshlrev_b32 v20, 16, v28")
        A(f"v_and_b32 v21, 0xffff0000, v28")
        A(f"v_lshlrev_b32 v22, 16, v29")
        A(f"v_and_b32 v23, 0xffff0000, v29")
        loads = [f"buffer_load_dwordx4 v[32:35], v2, {srd(R_WS)}, s{S_T2} offen {self.LP}",
                 f"buffer_load_dwordx4 v[36:39], v2, {srd(R_WS)}, s{S_T2} offen offset:1024 {self.LP}"]
        self.poll_pipe(loads, range(32, 40), 17, sleep=0)
        self.stamp(9)
        for e in (0, 2):
            A(f"v_pk_add_f32 {vr(40+e,2)}, {vr(32+e,2)}, {vr(36+e,2)}")
        for e in range(4):
            A(f"v_mov_b32 v{44+e}, v{40+e}")
        for e in range(4):
            A(f"v_permlane32_swap_b32 v{40+e}, v{44+e}")
        for e in (0, 2):
            A(f"v_pk_add_f32 {vr(40+e,2)}, {vr(40+e,2)}, {vr(44+e,2)}")
        A(f"""
        v_cvt_pk_bf16_f32 v44, v40, v41
        v_cvt_pk_bf16_f32 v45, v42, v43
        v_lshlrev_b32 v40, 16, v44
        v_and_b32 v41, 0xffff0000, v44
        v_lshlrev_b32 v42, 16, v45
        v_and_b32 v43, 0xffff0000, v45
        v_pk_add_f32 v[40:41], v[40:41], v[20:21]
        v_pk_add_f32 v[42:43], v[42:43], v[22:23]
        v_cvt_pk_bf16_f32 v48, v40, v41
        v_cvt_pk_bf16_f32 v49, v42, v43
        v_min_u32 v48, -2, v48
        v_min_u32 v49, -2, v49
        v_mov_b32_dpp v50, v48 quad_perm:[1,1,3,3] row_mask:0xf bank_mask:0xf
        v_mov_b32_dpp v51, v49 quad_perm:[1,1,3,3] row_mask:0xf bank_mask:0xf
        s_mov_b64 exec, 0x55555555
        buffer_store_dwordx4 v[48:51], v14, {srd(R_WS)}, s{S_OFF} offen sc0 sc1
        s_mov_b64 exec, -1
        """)
        self.stamp(16)
        A("s_branch L_end")

    def role_G(self):
        A = self.A
        A.place("L_roleG")
        AB = 160
        self.local_flag()
        self.red_addrs()
        F, D = 96, 128
        A(f"""
        s_lshl_b32 s{S_T0}, s{S_WAVE}, 1
        v_xor_b32 v14, s{S_T0}, v1
        v_lshlrev_b32 v14, 4, v14
        s_lshl_b32 s{S_T0}, s{S_WAVE}, 11
        s_add_u32 s{S_T0}, s{S_T0}, {LDS_XN2}
        v_add_u32 v14, s{S_T0}, v14
        v_and_b32 v17, 7, v1
        v_lshrrev_b32 v18, 4, v1
        v_lshlrev_b32 v19, 11, v17
        s_lshl_b32 s{S_T0}, s{S_WAVE}, 8
        s_add_u32 s{S_T0}, s{S_T0}, {LDS_XN2}
        v_add_u32 v19, s{S_T0}, v19
        v_lshlrev_b32 v17, 1, v17
        """)
        for s_ in range(4):
            A(f"v_add_u32 v28, {4*s_}, v18")
            A(f"v_xor_b32 v28, v28, v17")
            A(f"v_lshlrev_b32 v28, 4, v28")
            A(f"v_add_u32 v{232+s_}, v28, v19")
        A(f"""
        s_sub_u32 s{S_T0}, s{S_H}, 8
        s_and_b32 s{S_T1}, s{S_T0}, 1
        s_mul_i32 s{S_T1}, s{S_T1}, 57344
        s_lshr_b32 s{S_T0}, s{S_T0}, 1
        s_mul_i32 s{S_T2}, s{S_B}, 7
        s_add_u32 s{S_T0}, s{S_T0}, s{S_T2}
        s_lshl_b32 s{S_T0}, s{S_T0}, 7
        s_add_u32 s{S_T0}, s{S_T0}, s{S_T1}
        s_mul_i32 s{S_T1}, s{S_WAVE}, 7168
        s_add_u32 s{S_T0}, s{S_T0}, s{S_T1}
        s_add_u32 s{S_OFF}, s{S_T0}, {WS_GU}
        v_lshlrev_b32 v15, 1, v1
        s_lshl_b32 s{S_T0}, s{S_WAVE}, 13
        s_add_u32 s{S_T0}, s{S_T0}, {WS_OB}
        v_lshlrev_b32 v17, 8, v1
        s_mov_b64 s[{S_EX}:{S_EX+1}], 0xffffffff
        """)
        self.sample_wait(False, 17, 18, self.HS)
        A(f"s_lshl_b32 s{S_JJ}, s{S_WAVE}, 11")
        A(f"s_add_u32 s{S_JJ}, s{S_JJ}, {WS_H}")
        loads = [f"buffer_load_dwordx4 v[20:23], v2, {srd(R_WS)}, s{S_JJ} offen {self.LP}",
                 f"buffer_load_dwordx4 v[24:27], v2, {srd(R_WS)}, s{S_JJ} offen offset:1024 {self.LP}"]
        self.poll_issue(loads, range(20, 28))
        self.tile_afrags(AB)
        self.stamp(16)
        self.poll_pipe(loads, range(20, 28), 17, sleep=self.GSL, issued=True)
        self.stamp(8)
        for i in range(8):
            A(f"v_lshlrev_b32 v{F+2*i}, 16, v{20+i}")
            A(f"v_and_b32 v{F+2*i+1}, 0xffff0000, v{20+i}")
        S1, S2, T1, T2, VMB, VRS = 144, 146, 148, 149, 150, 152
        self.ln_stats(F, D, S1, S2, T1, T2, VMB, VRS)
        for i in range(8):
            self.ln_apply(48 + i, F + 2*i, VMB, VRS, 154 + 2 * (i % 2))
        A(f"ds_write_b128 v14, v[48:51]")
        A(f"ds_write_b128 v14, v[52:55] offset:1024")
        A("s_waitcnt lgkmcnt(0)")
        A("s_barrier")
        for s_ in range(4):
            A(f"ds_read_b128 {vr(32+4*s_,4)}, v{232+s_}")
        A("s_waitcnt lgkmcnt(0)")
        self.mfma16(AB, [32, 36, 40, 44], 48)
        self.red_write(48)
        A("s_waitcnt vmcnt(0)")
        A("s_barrier")
        self.red_sum(8, 20)
        self.rnd_bf16(20, 20)
        lup = A.label()
        A(f"s_bitcmp1_b32 s{S_H}, 0")
        A(f"s_cbranch_scc1 {lup}")
        A(f"""
        v_mul_f32 v17, v20, v20
        v_mul_f32 v18, v17, v20
        v_mul_f32 v18, 0x3d372713, v18
        v_add_f32 v18, v20, v18
        v_mul_f32 v18, 0x3f4c422a, v18
        v_mul_f32 v18, 0x4038aa3b, v18
        v_min_f32 v18, 0x42700000, v18
        v_exp_f32 v18, v18
        v_add_f32 v19, 1.0, v18
        v_rcp_f32 v19, v19
        v_mul_f32 v18, v18, v19
        v_mul_f32 v20, v20, v18
        """)
        A.place(lup)
        A(f"""
        v_mov_b32_dpp v17, v20 quad_perm:[1,1,3,3] row_mask:0xf bank_mask:0xf
        v_cvt_pk_bf16_f32 v20, v20, v17
        v_min_u32 v20, -2, v20
        """)
        self.even_gather(20, 20)
        A(f"s_mov_b64 exec, s[{S_ME}:{S_ME+1}]")
        self.store_sel(f"buffer_store_dwordx4 v[20:23], v15, {srd(R_WS)}, s{S_OFF} offen")
        A(f"s_mov_b64 exec, -1")
        self.stamp(9)
        A("s_branch L_end")

    def role_D(self):
        A = self.A
        A.place("L_roleD")
        AB = 160
        RW = 224
        A(f"""
        v_lshrrev_b32 v4, 1, v1
        v_xor_b32 v4, s{S_WAVE}, v4
        v_lshlrev_b32 v4, 4, v4
        v_and_b32 v5, 1, v1
        v_lshlrev_b32 v5, 3, v5
        v_add_u32 v4, v4, v5
        s_lshl_b32 s{S_T0}, s{S_WAVE}, 9
        s_add_u32 s{S_T0}, s{S_T0}, {LDS_RED}
        v_add_u32 v{RW+8}, s{S_T0}, v4
        s_lshl_b32 s{S_T0}, s{S_B}, 15
        s_lshl_b32 s{S_T1}, s{S_WAVE}, 12
        s_add_u32 s{S_T0}, s{S_T0}, s{S_T1}
        s_sub_u32 s{S_T1}, s{S_H}, 22
        s_lshl_b32 s{S_T1}, s{S_T1}, 9
        s_add_u32 s{S_T0}, s{S_T0}, s{S_T1}
        s_add_u32 s{S_OFF}, s{S_T0}, {WS_DP}
        v_lshlrev_b32 v15, 3, v1
        """)
        lno = A.label(); lgo = A.label()
        A(f"s_cmp_eq_u32 s{S_WAVE}, 7")
        A(f"s_cbranch_scc0 {lgo}")
        A("s_waitcnt vmcnt(0)")
        A("s_barrier")
        A(f"s_branch {lno}")
        A.place(lgo)
        A(f"""
        v_lshrrev_b32 v4, 4, v1
        v_and_b32 v5, 15, v1
        v_lshrrev_b32 v6, 2, v5
        v_and_b32 v5, 3, v5
        v_lshrrev_b32 v7, 1, v6
        v_and_b32 v8, 1, v4
        v_lshlrev_b32 v8, 1, v8
        v_or_b32 v7, v7, v8
        v_lshlrev_b32 v8, 3, v4
        v_add_u32 v8, v8, v6
        v_lshlrev_b32 v8, 7, v8
        v_lshlrev_b32 v5, 3, v5
        v_add_u32 v8, v8, v5
        s_lshl_b32 s{S_T0}, s{S_WAVE}, 13
        v_add_u32 v8, s{S_T0}, v8
        """)
        for cb in range(4):
            A(f"v_xor_b32 v{9+cb}, {cb}, v7")
            A(f"v_lshlrev_b32 v{9+cb}, 5, v{9+cb}")
            A(f"v_add_u32 v{9+cb}, v{9+cb}, v8")
        A(f"""
        v_and_b32 v4, 15, v1
        v_lshrrev_b32 v5, 4, v1
        s_lshl_b32 s{S_T0}, s{S_WAVE}, 12
        s_add_u32 s{S_T0}, s{S_T0}, {LDS_RED}
        v_lshlrev_b32 v6, 9, v4
        v_add_u32 v6, s{S_T0}, v6
        """)
        for cb in range(8):
            A(f"v_add_u32 v7, {4*cb}, v5")
            A(f"v_xor_b32 v7, v7, v4")
            A(f"v_lshlrev_b32 v7, 4, v7")
            A(f"v_add_u32 v{RW+cb}, v7, v6")
        A(f"""
        v_and_b32 v4, 7, v1
        v_mul_u32_u24 v4, 7168, v4
        v_bfe_u32 v5, v1, 3, 1
        v_lshlrev_b32 v5, 6, v5
        v_add_u32 v4, v4, v5
        v_lshrrev_b32 v5, 4, v1
        v_lshlrev_b32 v5, 4, v5
        v_add_u32 v16, v4, v5
        s_mul_i32 s{S_T0}, s{S_B}, 7
        s_add_u32 s{S_T0}, s{S_T0}, s{S_WAVE}
        s_lshl_b32 s{S_T0}, s{S_T0}, 7
        s_add_u32 s{S_T0}, s{S_T0}, {WS_GU}
        s_add_u32 s{S_T1}, s{S_T0}, 57344
        s_lshl_b32 s{S_T2}, s{S_WAVE}, 11
        s_add_u32 s{S_T2}, s{S_T2}, {WS_H}
        v_lshlrev_b32 v17, 5, v1
        """)
        A(f"s_mov_b32 s{S_T2}, s{S_T0}")
        A(f"s_mov_b32 s{S_T3}, s{S_T1}")
        self.sample_wait(True, 17, 18, self.HS)
        loads = [f"buffer_load_dwordx4 v[32:35], v16, {srd(R_WS)}, s{S_T2} offen {self.LP}",
                 f"buffer_load_dwordx4 v[36:39], v16, {srd(R_WS)}, s{S_T3} offen {self.LP}"]
        self.poll_issue(loads, range(32, 40))
        for s_ in range(2):
            for cb in range(8):
                r = AB + (s_ * 8 + cb) * 4
                off = s_ * 4096 + (cb // 4) * 57344
                A(f"ds_read_b64_tr_b16 {vr(r,2)}, v{9+cb%4} offset:{off}")
                A(f"ds_read_b64_tr_b16 {vr(r+2,2)}, v{9+cb%4} offset:{off+512}")
        self.stamp(16)
        self.poll_pipe(loads, range(32, 40), 17, sleep=0, issued=True)
        self.stamp(8)
        for i in range(0, 4, 2):
            g, u = 32 + i, 36 + i
            A(f"v_lshlrev_b32 v64, 16, v{g}")
            A(f"v_and_b32 v65, 0xffff0000, v{g}")
            A(f"v_lshlrev_b32 v66, 16, v{u}")
            A(f"v_and_b32 v67, 0xffff0000, v{u}")
            A(f"v_lshlrev_b32 v68, 16, v{g+1}")
            A(f"v_and_b32 v69, 0xffff0000, v{g+1}")
            A(f"v_lshlrev_b32 v70, 16, v{u+1}")
            A(f"v_and_b32 v71, 0xffff0000, v{u+1}")
            A(f"v_pk_mul_f32 v[64:65], v[64:65], v[66:67]")
            A(f"v_pk_mul_f32 v[68:69], v[68:69], v[70:71]")
            A(f"v_cvt_pk_bf16_f32 v{72+i}, v64, v65")
            A(f"v_cvt_pk_bf16_f32 v{73+i}, v68, v69")
        for e in range(4):
            A(f"v_mov_b32_dpp v{76+e}, v{72+e} row_shl:8 row_mask:0xf bank_mask:0xf")
        A("s_waitcnt lgkmcnt(0)")
        ACC = 88
        for cb in range(8):
            A(f"v_mfma_f32_16x16x32_bf16 {vr(ACC+4*cb,4)}, {vr(AB+cb*4,4)}, v[72:75], 0")
        for cb in range(8):
            A(f"v_mfma_f32_16x16x32_bf16 {vr(ACC+4*cb,4)}, {vr(AB+(8+cb)*4,4)}, v[76:79], {vr(ACC+4*cb,4)}")
        A(f"s_mov_b64 exec, s[{S_MJ8}:{S_MJ8+1}]")
        for cb in range(8):
            A(f"ds_write_b128 v{RW+cb}, {vr(ACC+4*cb,4)}")
        A("s_mov_b64 exec, -1")
        A("s_waitcnt lgkmcnt(0)")
        A.place(lno)
        A("s_barrier")
        for v in range(7):
            A(f"ds_read_b64 {vr(20+2*v,2)}, v{RW+8} offset:{v*4096}")
        A("s_waitcnt lgkmcnt(0)")
        A(f"""
        v_pk_add_f32 v[20:21], v[20:21], v[22:23]
        v_pk_add_f32 v[24:25], v[24:25], v[26:27]
        v_pk_add_f32 v[28:29], v[28:29], v[30:31]
        v_pk_add_f32 v[20:21], v[20:21], v[24:25]
        v_pk_add_f32 v[28:29], v[28:29], v[32:33]
        v_pk_add_f32 v[20:21], v[20:21], v[28:29]
        v_min_u32 v20, -2, v20
        v_min_u32 v21, -2, v21
        v_mov_b32_dpp v22, v20 quad_perm:[1,1,3,3] row_mask:0xf bank_mask:0xf
        v_mov_b32_dpp v23, v21 quad_perm:[1,1,3,3] row_mask:0xf bank_mask:0xf
        s_mov_b32 s{S_T2}, 0x55555555
        s_mov_b32 s{S_T3}, 0x55555555
        s_mov_b64 exec, s[{S_T2}:{S_T3}]
        buffer_store_dwordx4 v[20:23], v15, {srd(R_WS)}, s{S_OFF} offen sc0 sc1
        s_mov_b64 exec, -1
        """)
        self.stamp(9)
        A("s_branch L_end")

    def role_F(self):
        A = self.A
        A.place("L_roleF")
        self.mk_srd(R_OUT, S_OUT, 16384)
        A(f"""
        s_sub_u32 s{S_T2}, s{S_H}, 30
        s_lshl_b32 s{S_T0}, s{S_B}, 1
        s_add_u32 s{S_T2}, s{S_T2}, s{S_T0}
        v_lshrrev_b32 v4, 4, v1
        v_lshlrev_b32 v4, 15, v4
        v_and_b32 v5, 15, v1
        v_lshlrev_b32 v6, 4, v5
        v_add_u32 v16, v4, v6
        v_lshlrev_b32 v15, 3, v5
        s_lshl_b32 s{S_T0}, s{S_WAVE}, 12
        s_lshl_b32 s{S_T1}, s{S_T2}, 8
        s_add_u32 s{S_T0}, s{S_T0}, s{S_T1}
        s_add_u32 s{S_T0}, s{S_T0}, {WS_DP}
        s_add_u32 s{S_T1}, s{S_T0}, 131072
        s_lshl_b32 s{S_PITCH}, s{S_WAVE}, 11
        s_lshl_b32 s{S_T3}, s{S_T2}, 7
        s_add_u32 s{S_PITCH}, s{S_PITCH}, s{S_T3}
        s_add_u32 s{S_T2}, s{S_PITCH}, {WS_H}
        s_mul_i32 s{S_T3}, s{S_WAVE}, 7168
        s_add_u32 s{S_T3}, s{S_T3}, {WS_GU}
        v_lshlrev_b32 v17, 7, v1
        s_mov_b32 s{S_EX}, -1
        s_mov_b32 s{S_EX+1}, 0x00ffffff
        """)
        self.sample_wait(True, 17, 18, self.HS)
        self.stamp(16)
        loads = [f"buffer_load_dwordx4 v[32:35], v16, {srd(R_WS)}, s{S_T0} offen {self.LP}",
                 f"buffer_load_dwordx4 v[36:39], v16, {srd(R_WS)}, s{S_T1} offen {self.LP}",
                 f"buffer_load_dwordx2 v[40:41], v15, {srd(R_WS)}, s{S_T2} offen {self.LP}"]
        self.poll_pipe(loads, range(32, 42), 17, sleep=self.FSL)
        self.stamp(8)
        A(f"""
        v_pk_add_f32 v[20:21], v[32:33], v[36:37]
        v_pk_add_f32 v[22:23], v[34:35], v[38:39]
        """)
        for sw in ("v_permlane16_swap_b32", "v_permlane32_swap_b32"):
            for e in range(4):
                A(f"v_mov_b32 v{24+e}, v{20+e}")
            for e in range(4):
                A(f"{sw} v{20+e}, v{24+e}")
            A(f"v_pk_add_f32 v[20:21], v[20:21], v[24:25]")
            A(f"v_pk_add_f32 v[22:23], v[22:23], v[26:27]")
        A(f"""
        v_cvt_pk_bf16_f32 v24, v20, v21
        v_cvt_pk_bf16_f32 v25, v22, v23
        v_lshlrev_b32 v20, 16, v24
        v_and_b32 v21, 0xffff0000, v24
        v_lshlrev_b32 v22, 16, v25
        v_and_b32 v23, 0xffff0000, v25
        v_lshlrev_b32 v24, 16, v40
        v_and_b32 v25, 0xffff0000, v40
        v_lshlrev_b32 v26, 16, v41
        v_and_b32 v27, 0xffff0000, v41
        v_pk_add_f32 v[20:21], v[20:21], v[24:25]
        v_pk_add_f32 v[22:23], v[22:23], v[26:27]
        v_cvt_pk_bf16_f32 v20, v20, v21
        v_cvt_pk_bf16_f32 v21, v22, v23
        s_mov_b64 exec, 0xffff
        buffer_store_dwordx2 v[20:21], v15, {srd(R_OUT)}, s{S_PITCH} offen
        s_mov_b64 exec, -1
        """)
        lne = A.label()
        A(f"""
        s_cmp_eq_u32 s2, 240
        s_cbranch_scc0 {lne}
        s_cmp_eq_u32 s{S_WAVE}, 0
        s_cbranch_scc0 {lne}
        v_mov_b32 v20, 0
        v_mov_b32 v21, s{S_TAG}
        s_mov_b32 s{S_T1}, {WS_EPOCH}
        s_mov_b64 exec, 1
        buffer_store_dword v21, v20, {srd(R_WS)}, s{S_T1} offen sc0 sc1
        s_mov_b64 exec, -1
        """)
        A.place(lne)
        self.stamp(9)

    def build(self):
        A = self.A
        self.entry()
        self.service()
        self.stream()
        self.tail()
        A.place("L_end")
        if self.stamps in ("tail", "early", "svc", "entry"):
            A("s_cmp_ge_u32 s2, 256")
            A("s_cbranch_scc1 L_end2")
            A("s_memrealtime s[18:19]")
            A("s_waitcnt lgkmcnt(0)")
            A(f"s_lshl_b32 s3, s{S_WG}, 3")
            A(f"s_add_u32 s3, s3, s{S_WAVE}")
            A(f"s_lshl_b32 s3, s3, 7")
            A(f"s_add_u32 s3, s3, {WS_DBG + 0x100000}")
            A(f"s_mov_b64 exec, 1")
            A(f"v_mov_b32 v255, 0")
            A(f"v_mov_b32 v254, s18")
            A(f"v_mov_b32 v255, 0")
            A(f"buffer_store_dword v254, v255, {srd(R_WS)}, s3 offen offset:120")
            A("s_getreg_b32 s16, hwreg(HW_REG_XCC_ID)")
            A(f"v_mov_b32 v254, s16")
            A(f"buffer_store_dword v254, v255, {srd(R_WS)}, s3 offen offset:124")
            for idx, j in self.LIGHT.items():
                A(f"v_mov_b32 v254, s{4+2*j}")
                A(f"buffer_store_dword v254, v255, {srd(R_WS)}, s3 offen offset:{idx*4}")
            A.place("L_end2")
        A("s_endpgm")
        A.footer(256, 102, 256)
        A.fix_hazards()
        return A.text()

if __name__ == "__main__":
    import argparse
    ap = argparse.ArgumentParser()
    ap.add_argument("-o", default="main.s")
    ap.add_argument("--N", type=int, default=5)
    ap.add_argument("--NP", type=int, default=8)
    ap.add_argument("--LP", default="sc1")
    ap.add_argument("--PD", type=int, default=1)
    ap.add_argument("--HG", type=int, default=48)
    ap.add_argument("--HD", type=int, default=64)
    ap.add_argument("--HS", type=int, default=2)
    ap.add_argument("--nolocal", action="store_true")
    ap.add_argument("--pace", action="store_true")
    ap.add_argument("--DE", type=int, default=0)
    ap.add_argument("--EB", type=int, default=13)
    ap.add_argument("--rot", type=int, default=0)
    ap.add_argument("--defer", action="store_true")
    ap.add_argument("--JU", type=int, default=12)
    ap.add_argument("--NOK", type=int, default=6)
    ap.add_argument("--NOV", type=int, default=5)
    ap.add_argument("--NT", type=int, default=6)
    ap.add_argument("--NTD", type=int, default=3)
    ap.add_argument("--NW", default=None)
    ap.add_argument("--NMIN", type=int, default=5)
    ap.add_argument("--GTH", default="")
    ap.add_argument("--GM", type=int, default=16)
    ap.add_argument("--bias", action="store_true")
    ap.add_argument("--GH", type=int, default=6)
    ap.add_argument("--GL", type=int, default=2)
    ap.add_argument("--DMAX", type=int, default=7)
    ap.add_argument("--TH", default="16")
    ap.add_argument("--GSL", type=int, default=1)
    ap.add_argument("--FSL", type=int, default=1)
    ap.add_argument("--KP", default="nt")
    ap.add_argument("--VP", default="nt")
    ap.add_argument("--WP", default="nt")
    ap.add_argument("--PS", type=int, default=1)
    ap.add_argument("--debug", action="store_true")
    ap.add_argument("--stamps", default=None)
    ap.add_argument("--stop", default=None)
    a = ap.parse_args()
    g = Gen(N=a.N, NP=a.NP, LP=a.LP, PD=a.PD, PS=a.PS, HG=a.HG, HD=a.HD, HS=a.HS, nolocal=a.nolocal, pace=a.pace, DE=a.DE, EB=a.EB, GTH=tuple(int(x) for x in a.GTH.split(',') if x), GM=a.GM, bias=a.bias, GH=a.GH, GL=a.GL, DMAX=a.DMAX, rot=a.rot, defer=a.defer, JU=a.JU, NOK=a.NOK, NOV=a.NOV, NT=a.NT, NTD=a.NTD, NW=(tuple(int(x) for x in a.NW.split(',')) if a.NW else None), NMIN=a.NMIN, TH=tuple(int(x) for x in a.TH.split(',')), GSL=a.GSL, FSL=a.FSL, KP=a.KP, VP=a.VP, WP=a.WP, debug=a.debug, stamps=a.stamps, stop_after=a.stop)
    open(a.o, "w").write(g.build())
```

```python
import re
KN = "sequential_preLN__mha_block_cached__geglu_ffn__decode_kernel"

TRANS = ("v_exp_f32", "v_log_f32", "v_rcp_f32", "v_rsq_f32", "v_sqrt_f32", "v_sin_f32", "v_cos_f32", "v_rcp_iflag_f32")

def _regs(tok):
    tok = tok.strip()
    neg = tok.lstrip("-")
    m = re.fullmatch(r"(?:abs\()?([vas])(\d+)\)?", neg)
    if m:
        return {(m.group(1), int(m.group(2)))}
    m = re.fullmatch(r"([vas])\[(\d+):(\d+)\]", neg)
    if m:
        return {(m.group(1), i) for i in range(int(m.group(2)), int(m.group(3)) + 1)}
    if neg == "vcc":
        return {("s", 106), ("s", 107)}
    if neg == "vcc_lo":
        return {("s", 106)}
    if neg == "vcc_hi":
        return {("s", 107)}
    if neg == "exec":
        return {("s", 126), ("s", 127)}
    if neg == "exec_hi":
        return {("s", 127)}
    if neg == "exec_lo":
        return {("s", 126)}
    if neg == "m0":
        return {("s", 124)}
    return set()

class Ins:
    def __init__(self, line):
        self.line = line
        body = line.split(";")[0].strip()
        self.body = body
        self.is_label = body.endswith(":")
        self.is_dir = body.startswith(".")
        self.op = ""
        self.ops = []
        self.mods = ""
        if not body or self.is_label or self.is_dir:
            return
        parts = body.split(None, 1)
        self.op = parts[0]
        rest = parts[1] if len(parts) > 1 else ""
        toks = []
        depth = 0
        cur = ""
        for ch in rest:
            if ch == "[":
                depth += 1
            if ch == "]":
                depth -= 1
            if ch == "," and depth == 0:
                toks.append(cur.strip()); cur = ""
            else:
                cur += ch
        if cur.strip():
            toks.append(cur.strip())
        if toks:
            last = toks[-1].split(None, 1)
            toks[-1] = last[0]
            self.mods = last[1] if len(last) > 1 else ""
        self.ops = toks
        self.classify()
    def classify(self):
        op = self.op
        o = self.ops
        self.valu = op.startswith("v_") and not op.startswith("v_mfma")
        self.mfma = op.startswith("v_mfma")
        self.salu = op.startswith("s_")
        self.ds = op.startswith("ds_")
        self.vmem = op.startswith("buffer_") or op.startswith("global_")
        self.dpp = self.valu and ("row_" in self.mods or "quad_perm" in self.mods or op.endswith("_dpp"))
        self.trans = any(op.startswith(t) for t in TRANS)
        self.dot = op.startswith("v_dot")
        self.permlane = op.startswith("v_permlane")
        self.readlane = op.startswith("v_readlane") or op.startswith("v_readfirstlane")
        W = set(); R = set()
        if self.mfma:
            W |= _regs(o[0]); self.A = _regs(o[1]); self.B = _regs(o[2]); self.C = _regs(o[3])
            R |= self.A | self.B | self.C
        elif self.valu:
            if op.startswith("v_cmp"):
                W |= _regs(o[0])
                for t in o[1:]: R |= _regs(t)
                if op.startswith("v_cmpx"): W |= _regs("exec")
            elif self.permlane and "swap" in op:
                W |= _regs(o[0]) | _regs(o[1]); R |= _regs(o[0]) | _regs(o[1])
            elif op.startswith("v_add_co") or op.startswith("v_sub_co") or op.startswith("v_addc_co") or op.startswith("v_div_scale") or op.startswith("v_subb_co"):
                W |= _regs(o[0]) | _regs(o[1])
                for t in o[2:]: R |= _regs(t)
            else:
                W |= _regs(o[0])
                for t in o[1:]: R |= _regs(t)
                if op.startswith("v_fmac") or op.startswith("v_dot2c") or op.startswith("v_mac") or self.dpp or op.startswith("v_writelane"):
                    R |= _regs(o[0])
                if op.startswith("v_cndmask") and len(o) == 3:
                    R |= _regs("vcc")
        elif self.ds:
            if op.startswith("ds_read") or op.startswith("ds_bpermute") or op.startswith("ds_permute") or op.startswith("ds_swizzle") or "_rtn" in op:
                W |= _regs(o[0])
                for t in o[1:]: R |= _regs(t)
            else:
                for t in o: R |= _regs(t)
        elif self.vmem:
            lds = " lds" in (" " + self.mods)
            if op in ("buffer_wbl2", "buffer_inv"):
                pass
            elif op.startswith("buffer_load") and lds:
                for t in o: R |= _regs(t)
                R |= _regs("m0")
            elif op.startswith("global_load_lds"):
                for t in o: R |= _regs(t)
                R |= _regs("m0")
            elif "_load" in op:
                W |= _regs(o[0])
                for t in o[1:]: R |= _regs(t)
            elif "atomic" in op:
                for t in o: R |= _regs(t)
                if "sc0" in self.mods:
                    W |= _regs(o[0])
            else:
                for t in o: R |= _regs(t)
        elif self.salu:
            if op.startswith("s_cmp") or op.startswith("s_cbranch") or op.startswith("s_branch") or op in ("s_waitcnt", "s_nop", "s_barrier", "s_endpgm", "s_sleep", "s_setprio"):
                for t in o: R |= _regs(t)
            else:
                if o:
                    W |= _regs(o[0])
                    for t in o[1:]: R |= _regs(t)
                if "saveexec" in op:
                    W |= _regs("exec"); R |= _regs("exec")
        self.W = W; self.R = R
        self.widestore = self.vmem and ("store_dwordx4" in op or "store_dwordx3" in op)
        self.store_data = set()
        if self.widestore:
            if op.startswith("buffer"):
                self.store_data = _regs(o[0])
            else:
                self.store_data = _regs(o[1])
    def states(self):
        if self.op == "s_nop":
            return int(self.ops[0], 0) + 1
        return 1

def is_vgpr(r): return r[0] in ("v", "a")

def need(prod, cons):
    n = 0
    pW = prod.W
    if not pW and not prod.widestore and not prod.mfma:
        return 0
    vW = {r for r in pW if is_vgpr(r)}
    sW = {r for r in pW if not is_vgpr(r)}
    if prod.mfma:
        D = vW
        if cons.mfma:
            if D & (cons.A | cons.B): n = max(n, 8)
            if D & cons.C:
                if cons.C == D: n = max(n, 0)
                else: n = max(n, 6)
            elif D & cons.W and cons.C != D: n = max(n, 8)
        else:
            if (D & cons.R) or (D & cons.W): n = max(n, 8)
        if cons.valu and (prod.C & cons.W): n = max(n, 3)
    if prod.valu:
        if cons.mfma and (vW & cons.R): n = max(n, 2)
        if cons.dpp and (vW & cons.R): n = max(n, 2)
        if cons.valu and cons.permlane and (vW & cons.R): n = max(n, 2)
        if cons.valu and cons.readlane and (vW & cons.R): n = max(n, 1)
        if prod.trans and cons.valu and not cons.trans and (vW & cons.R): n = max(n, 1)
        if prod.trans and cons.mfma and (vW & cons.R): n = max(n, 2)
        if prod.dot:
            if cons.op == prod.op:
                ab = set()
                for t in cons.ops[1:3]: ab |= _regs(t)
                if vW & ab: n = max(n, 3)
            elif (vW & cons.R) or (vW & cons.W): n = max(n, 3)
        if sW:
            if cons.valu and (sW & cons.R): n = max(n, 4 if cons.readlane else 2)
            if cons.vmem and (sW & cons.R): n = max(n, 5)
            if cons.salu and (sW & cons.R) and not cons.op.startswith("s_cbranch"): n = max(n, 1)
            if cons.dpp and (_regs("exec") & sW): n = max(n, 5)
        if "sdwa" in prod.op and cons.valu and (vW & cons.R): n = max(n, 1)
    if (prod.ds or prod.vmem) and vW:
        if cons.dpp and (vW & cons.R): n = max(n, 2)
    if prod.salu and (("s", 124) in sW):
        if cons.vmem and (("s", 124) in cons.R): n = max(n, 1)
    if prod.widestore:
        if (cons.valu or cons.mfma) and (prod.store_data & cons.W): n = max(n, 2)
        elif (prod.store_data & cons.W): n = max(n, 1)
    return n

class Asm:
    def __init__(self):
        self.L = []
        self.nlab = 0
    def __call__(self, s):
        for line in s.split("\n"):
            line = line.strip()
            if line:
                self.L.append(line)
    def c(self, s):
        self.L.append("; " + s)
    def label(self, name=None):
        if name is None:
            name = f"L{self.nlab}"
            self.nlab += 1
        return name
    def place(self, name):
        self.L.append(f"{name}:")
    def header(self, grid, block, lds, comments=()):
        for cmt in comments:
            self.L.append("; " + cmt)
        self.L.append(f"; @launch grid=({grid},1,1) block=({block},1,1) lds={lds}")
        self.L.append('.amdgcn_target "amdgcn-amd-amdhsa--gfx950"')
        self.L.append(".text")
        self.L.append(f".globl {KN}")
        self.L.append(".p2align 8")
        self.L.append(f".type {KN},@function")
        self.L.append(f"{KN}:")
    def footer(self, nvgpr, nsgpr, accum):
        self.L.append('.section .rodata,"a"')
        self.L.append(".p2align 6")
        self.L.append(f".amdhsa_kernel {KN}")
        self.L.append(f"  .amdhsa_next_free_vgpr {nvgpr}")
        self.L.append(f"  .amdhsa_next_free_sgpr {nsgpr}")
        self.L.append(f"  .amdhsa_accum_offset {accum}")
        self.L.append("  .amdhsa_group_segment_fixed_size 0")
        self.L.append("  .amdhsa_kernarg_size 96")
        self.L.append("  .amdhsa_user_sgpr_count 2")
        self.L.append("  .amdhsa_user_sgpr_kernarg_segment_ptr 1")
        self.L.append("  .amdhsa_system_sgpr_workgroup_id_x 1")
        self.L.append(".end_amdhsa_kernel")
    def fix_hazards(self, window=12):
        ins = [Ins(l) if not l.startswith(";") else None for l in self.L]
        labpos = {}
        for i, x in enumerate(ins):
            if x is not None and x.is_label:
                labpos[x.body[:-1]] = i
        jumps = {}
        for i, x in enumerate(ins):
            if x is not None and x.op and (x.op.startswith("s_cbranch") or x.op == "s_branch"):
                tgt = x.ops[0]
                if tgt in labpos:
                    jumps.setdefault(labpos[tgt], []).append(i)
        extra = {}
        def real(x): return x is not None and x.op != "" and not x.is_label and not x.is_dir
        def back_check(i, cons):
            req = 0
            stack = [(i - 1, 0)]
            seen = set()
            while stack:
                j, dist = stack.pop()
                while j >= 0 and dist < window:
                    if (j, dist) in seen: break
                    seen.add((j, dist))
                    x = ins[j]
                    if x is not None and x.is_label:
                        for b in jumps.get(j, []):
                            stack.append((b, dist))
                        j -= 1
                        continue
                    if not real(x):
                        j -= 1
                        continue
                    if x.op in ("s_branch", "s_endpgm") and j != i - 1 and not (j + 1 <= i - 1 and False):
                        pass
                    nd = need(x, cons)
                    if nd > dist:
                        req = max(req, nd - dist)
                    dist += x.states() + 0
                    dist += extra.get(j, 0)
                    if x.op in ("s_branch", "s_endpgm"):
                        pass
                    j -= 1
            return req
        for i, x in enumerate(ins):
            if not real(x): continue
            r = back_check(i, x)
            if r > 0:
                extra[i] = r
        out = []
        nn = 0
        for i, l in enumerate(self.L):
            if i in extra:
                k = extra[i]
                while k > 0:
                    t = min(k, 16)
                    out.append(f"s_nop {t-1}")
                    k -= t
                nn += 1
            out.append(l)
        self.L = out
        return nn
    def text(self):
        return "\n".join(self.L) + "\n"
```

```python
import sys
from asmlib import *

LDS_WQ = 98304
LDS_SC = 131072
LDS_MISC = 147456
LDS_XN = LDS_MISC
LDS_Q = LDS_MISC + 2304
LDS_CNT = LDS_MISC + 2560
LDS_WM = LDS_MISC + 2624
LDS_WS = LDS_MISC + 2688
LDS_ORED = LDS_MISC + 4096
LDS_XCC = LDS_MISC + 8192
LDS_BLK = LDS_MISC + 2576
LDS_N = LDS_MISC + 2580
LDS_RED = LDS_SC
LDS_XN2 = LDS_MISC
LDS_BYTES = 163840

WS_QP = 0x000000
WS_SLOT = 0x100000
WS_OB = WS_SLOT + 0x00000
WS_OP = WS_SLOT + 0x10000
WS_H = WS_SLOT + 0x30000
WS_GU = WS_SLOT + 0x34000
WS_DP = WS_SLOT + 0x50000
WS_C2 = WS_SLOT + 0x90000
WS_C3 = WS_SLOT + 0x90100
WS_PROG = WS_SLOT + 0xA0000
WS_GP = WS_SLOT + 0xB0000
WS_BIAS = WS_SLOT + 0xC0000
WS_FLAG = 0x200000
WS_EPOCH = 0x210000
WS_DBG = 0x300000
WS_SIZE = 0x600000
SPIN = 1 << 20

S_WG = 2
S_X, S_K, S_V, S_WQ, S_WO, S_BX, S_WG_, S_WU, S_WD, S_OUT, S_DBG, S_WS = 16, 18, 20, 22, 24, 26, 28, 30, 32, 34, 36, 38
R_K, R_V, R_X, R_WQ, R_WT, R_WS, R_OUT = 40, 44, 48, 52, 56, 60, 68
S_WAVE, S_H, S_B, S_SW = 72, 73, 74, 75
S_T0, S_T1, S_T2, S_T3, S_T4, S_T5 = 76, 77, 78, 79, 80, 81
S_OFF, S_CNT, S_PITCH, S_NJ, S_ROLE = 82, 83, 84, 85, 86
S_M1, S_M2, S_M3 = 88, 90, 92
S_MJ8 = 94
S_EX = 96
S_TAG = 98
S_MQ = 64
S_JJ = 100
S_ROT = 50
S_J1 = 51
S_DS, S_DM, S_DJ, S_DST = 52, 53, 54, 55
S_NCUR = 3
S_JA = 101
S_LOC = 87
S_XCC = 99
S_ME = 66
S_PM = 40
def srd(r): return f"s[{r}:{r+3}]"
def vr(a, n): return f"v[{a}:{a+n-1}]"

class Gen:
    def __init__(self, N=5, NP=8, PV=16, LP='sc1', PD=1, PS=1, HG=64, HD=64, HS=4, nolocal=False, ipf=0, DE=0, EB=13, rot=0, defer=False, JU=8, NOK=6, NOV=5, NT=16, NTD=4, pace=False, NW=None, NMIN=4, TH=(64, 192, 240), GTH=(), GM=16, DMAX=7, bias=False, THK=None, BT=0, RK=tuple(range(32)), GH=6, GL=2, GSL=1, FSL=1, KP='nt', VP='nt', WP='nt', debug=False, stamps=False, stop_after=None):
        self.A = Asm()
        self.N, self.NP, self.PV, self.LP = N, NP, PV, LP
        self.debug, self.stamps, self.stop_after = debug, stamps, stop_after
        self.OSLEEP, self.GSLEEP, self.DSLEEP = 1, 0, 0
        self.PD, self.PS = PD, PS
        self.nolocal = nolocal
        self.ipf = ipf
        self.DE, self.EB = DE, EB
        self.rot = rot
        self.defer, self.JU, self.NOK, self.NOV, self.NT = defer, (JU if defer else 24), NOK, NOV, NT
        self.NTD = NTD
        self.pace = pace
        self.GTH, self.GM = GTH, GM
        self.bias, self.GH, self.GL, self.NBASE = bias, GH, GL, NMIN
        self.BT = BT
        self.THK = THK or TH
        self.RMASK = sum(1 << k for k in RK)
        self.D = min(NMIN + len(TH) + (1 if (bias and not BT) else 0), DMAX) if pace else N
        if bias and GL > 0 and not BT: NMIN = NMIN - 1
        self.NW = NW
        if defer and not pace: self.D = max(N, NOK, NOV); NMIN = min(N, NOK, NOV)
        if NW:
            self.D = max(NW); NMIN = min(NW)
        self.NMIN, self.TH, self.PK0 = NMIN, TH, 2
        self.GSL, self.FSL = GSL, FSL
        self.KP, self.VP, self.WP = KP, VP, WP
        self.HG, self.HD, self.HS = HG, HD, HS

    def mk_srd(self, r, ptr, size, add_lo=None):
        A = self.A
        if add_lo is None:
            A(f"s_mov_b32 s{r}, s{ptr}")
            A(f"s_mov_b32 s{r+1}, s{ptr+1}")
        else:
            A(f"s_add_u32 s{r}, s{ptr}, {add_lo}")
            A(f"s_addc_u32 s{r+1}, s{ptr+1}, 0")
        A(f"s_mov_b32 s{r+2}, {size}")
        A(f"s_mov_b32 s{r+3}, 0x20000")

    def lds_signal(self, off, va, vd):
        A = self.A
        A(f"s_mov_b64 exec, 1")
        A(f"v_mov_b32 v{va}, {off}")
        A(f"v_mov_b32 v{vd}, 1")
        A(f"ds_add_u32 v{va}, v{vd}")
        A(f"s_mov_b64 exec, -1")

    def lds_wait(self, off, val, va, vd, sleep=1):
        A = self.A
        lp = A.label(); ex = A.label()
        A(f"v_mov_b32 v{va}, {off}")
        A(f"s_mov_b32 s{S_CNT}, 0")
        A.place(lp)
        A(f"ds_read_b32 v{vd}, v{va}")
        A(f"s_waitcnt lgkmcnt(0)")
        A(f"v_readfirstlane_b32 s{S_T5}, v{vd}")
        A(f"s_cmp_ge_u32 s{S_T5}, {val}")
        A(f"s_cbranch_scc1 {ex}")
        A(f"s_add_u32 s{S_CNT}, s{S_CNT}, 1")
        A(f"s_cmp_gt_u32 s{S_CNT}, {SPIN*4}")
        A(f"s_cbranch_scc1 {ex}")
        if sleep: A(f"s_sleep {sleep}")
        A(f"s_branch {lp}")
        A.place(ex)

    def allreduce2(self, a, b, ta, tb, op="v_add_f32"):
        A = self.A
        for r in (8, 4, 2, 1):
            A(f"{op}_dpp v{a}, v{a}, v{a} row_ror:{r} row_mask:0xf bank_mask:0xf")
            A(f"{op}_dpp v{b}, v{b}, v{b} row_ror:{r} row_mask:0xf bank_mask:0xf")
        for sw in ("v_permlane16_swap_b32", "v_permlane32_swap_b32"):
            A(f"v_mov_b32 v{ta}, v{a}")
            A(f"v_mov_b32 v{tb}, v{b}")
            A(f"{sw} v{a}, v{ta}")
            A(f"{sw} v{b}, v{tb}")
            A(f"{op} v{a}, v{a}, v{ta}")
            A(f"{op} v{b}, v{b}, v{tb}")

    def rnd_bf16(self, d, s):
        A = self.A
        A(f"v_cvt_pk_bf16_f32 v{d}, v{s}, v{s}")
        A(f"v_lshlrev_b32 v{d}, 16, v{d}")

    def ln_stats(self, F, D, s1, s2, t1, t2, vmb, vrs):
        A = self.A
        A(f"v_readfirstlane_b32 s{S_T4}, v{F}")
        for i in range(0, 16, 2):
            A(f"v_pk_add_f32 {vr(D+i,2)}, {vr(F+i,2)}, s[{S_T4}:{S_T4+1}] op_sel_hi:[1,0] neg_lo:[0,1] neg_hi:[0,1]")
        A(f"v_pk_add_f32 {vr(s1,2)}, {vr(D,2)}, {vr(D+2,2)}")
        A(f"v_pk_mul_f32 {vr(s2,2)}, {vr(D,2)}, {vr(D,2)}")
        A(f"v_pk_fma_f32 {vr(s2,2)}, {vr(D+2,2)}, {vr(D+2,2)}, {vr(s2,2)}")
        for i in range(4, 16, 2):
            A(f"v_pk_add_f32 {vr(s1,2)}, {vr(s1,2)}, {vr(D+i,2)}")
            A(f"v_pk_fma_f32 {vr(s2,2)}, {vr(D+i,2)}, {vr(D+i,2)}, {vr(s2,2)}")
        A(f"v_add_f32 v{s1}, v{s1}, v{s1+1}")
        A(f"v_add_f32 v{s2}, v{s2}, v{s2+1}")
        self.allreduce2(s1, s2, t1, t2)
        A(f"v_mul_f32 v{s1}, 0x3a800000, v{s1}")
        A(f"v_mul_f32 v{s2}, 0x3a800000, v{s2}")
        A(f"v_add_f32 v{vmb}, s{S_T4}, v{s1}")
        A(f"v_fma_f32 v{vrs}, -v{s1}, v{s1}, v{s2}")
        A(f"v_max_f32 v{vrs}, 0, v{vrs}")
        A(f"v_cvt_pk_bf16_f32 v{vmb}, v{vmb}, v{vrs}")
        A(f"v_and_b32 v{vrs}, 0xffff0000, v{vmb}")
        A(f"v_lshlrev_b32 v{vmb}, 16, v{vmb}")
        A(f"v_add_f32 v{vrs}, 0x3727c5ac, v{vrs}")
        self.rnd_bf16(vrs, vrs)
        A(f"v_sqrt_f32 v{vrs}, v{vrs}")
        self.rnd_bf16(vrs, vrs)
        A(f"v_rcp_f32 v{vrs}, v{vrs}")

    def ln_apply(self, d, f, vmb, vrs, t):
        A = self.A
        A(f"v_pk_add_f32 {vr(t,2)}, {vr(f,2)}, {vr(vmb,2)} op_sel_hi:[1,0] neg_lo:[0,1] neg_hi:[0,1]")
        A(f"v_cvt_pk_bf16_f32 v{t}, v{t}, v{t+1}")
        A(f"v_and_b32 v{t+1}, 0xffff0000, v{t}")
        A(f"v_lshlrev_b32 v{t}, 16, v{t}")
        A(f"v_pk_mul_f32 {vr(t,2)}, {vr(t,2)}, {vr(vrs,2)} op_sel_hi:[1,0]")
        A(f"v_cvt_pk_bf16_f32 v{d}, v{t}, v{t+1}")

    LIGHT_TAIL = {0: 0, 6: 1, 7: 2, 16: 3, 8: 4, 9: 5}
    LIGHT_EARLY = {0: 0, 15: 1, 3: 2, 4: 3, 14: 4, 6: 5}
    LIGHT_SVC = {0: 0, 13: 1, 1: 2, 11: 3, 2: 4, 12: 5}
    LIGHT_ENTRY = {0: 0, 10: 1, 12: 2, 13: 3, 1: 4, 29: 5}
    @property
    def LIGHT(self): return {"tail": self.LIGHT_TAIL, "early": self.LIGHT_EARLY, "svc": self.LIGHT_SVC, "entry": self.LIGHT_ENTRY}[self.stamps]
    def stamp(self, idx):
        if self.stamps in ("tail", "early", "svc", "entry"):
            if idx in self.LIGHT:
                j = 4 + 2 * self.LIGHT[idx]
                self.A(f"s_memrealtime s[{j}:{j+1}]")
            return
        if not self.stamps: return
        A = self.A
        A(f"s_memrealtime s[4:5]")
        A(f"s_waitcnt lgkmcnt(0)")
        A(f"s_lshl_b32 s6, s{S_WG}, 3")
        A(f"s_add_u32 s6, s6, s{S_WAVE}")
        A(f"s_lshl_b32 s6, s6, 7")
        A(f"s_add_u32 s6, s6, {WS_DBG + 0x100000 + idx*4}")
        A(f"s_mov_b64 s[8:9], exec")
        A(f"s_mov_b64 exec, 1")
        A(f"v_mov_b32 v254, s4")
        A(f"v_mov_b32 v255, 0")
        A(f"buffer_store_dword v254, v255, {srd(R_WS)}, s6 offen")
        A(f"s_mov_b64 exec, s[8:9]")

    def stampval(self, idx, sreg):
        if not self.stamps or self.stamps in ("tail", "early", "svc", "entry"): return
        A = self.A
        A(f"s_lshl_b32 s6, s{S_WG}, 3")
        A(f"s_add_u32 s6, s6, s{S_WAVE}")
        A(f"s_lshl_b32 s6, s6, 7")
        A(f"s_add_u32 s6, s6, {WS_DBG + 0x100000 + idx*4}")
        A(f"s_mov_b64 s[8:9], exec")
        A(f"s_mov_b64 exec, 1")
        A(f"v_mov_b32 v254, s{sreg}")
        A(f"v_mov_b32 v255, 0")
        A(f"buffer_store_dword v254, v255, {srd(R_WS)}, s6 offen")
        A(f"s_mov_b64 exec, s[8:9]")

    def cstamp(self, idx):
        if not self.stamps or self.stamps in ("tail", "early", "svc", "entry"): return
        A = self.A
        A(f"s_memtime s[10:11]")
        A(f"s_waitcnt lgkmcnt(0)")
        self.stampval(idx, 10)

    def quad_gather(self, d, src):
        A = self.A
        A(f"v_mov_b32_dpp v{d+1}, v{src} quad_perm:[1,1,1,1] row_mask:0xf bank_mask:0xf")
        A(f"v_mov_b32_dpp v{d+2}, v{src} quad_perm:[2,2,2,2] row_mask:0xf bank_mask:0xf")
        A(f"v_mov_b32_dpp v{d+3}, v{src} quad_perm:[3,3,3,3] row_mask:0xf bank_mask:0xf")
        if d != src: A(f"v_mov_b32 v{d}, v{src}")
    def even_gather(self, d, src):
        A = self.A
        A(f"v_mov_b32_dpp v{d+1}, v{src} row_shl:2 row_mask:0xf bank_mask:0xf")
        A(f"v_mov_b32_dpp v{d+2}, v{src} row_shl:4 row_mask:0xf bank_mask:0xf")
        A(f"v_mov_b32_dpp v{d+3}, v{src} row_shl:6 row_mask:0xf bank_mask:0xf")
        if d != src: A(f"v_mov_b32 v{d}, v{src}")

    def hint_add(self, off, va, vd):
        A = self.A
        A(f"v_mov_b32 v{va}, {off}")
        A(f"v_mov_b32 v{vd}, 1")
        A(f"s_mov_b64 exec, 1")
        A(f"buffer_atomic_add v{vd}, v{va}, {srd(R_WS)}, 0 offen sc1")
        A(f"s_mov_b64 exec, -1")
    def hint_wait(self, off, target, va, vd, sleep):
        A = self.A
        lp = A.label(); ex = A.label()
        A(f"s_cmp_eq_u32 s{S_WAVE}, 0")
        A(f"s_cbranch_scc0 {ex}")
        A(f"v_mov_b32 v{va}, {off}")
        A(f"s_mov_b32 s{S_CNT}, 0")
        A(f"s_mov_b64 exec, 1")
        A.place(lp)
        A(f"buffer_load_dword v{vd}, v{va}, {srd(R_WS)}, 0 offen {self.LP}")
        A("s_waitcnt vmcnt(0)")
        A(f"v_readfirstlane_b32 s{S_T5}, v{vd}")
        A(f"s_add_u32 s{S_T5}, s{S_T5}, 1")
        A(f"s_cmp_ge_u32 s{S_T5}, {target}")
        A(f"s_cbranch_scc1 {ex}")
        A(f"s_add_u32 s{S_CNT}, s{S_CNT}, 1")
        A(f"s_cmp_gt_u32 s{S_CNT}, {SPIN}")
        A(f"s_cbranch_scc1 {ex}")
        A(f"s_sleep {sleep}")
        A(f"s_branch {lp}")
        A.place(ex)
        A("s_mov_b64 exec, -1")
        A("s_barrier")

    def local_flag(self):
        A = self.A
        A(f"v_and_b32 v4, 31, v1")
        A(f"v_lshlrev_b32 v4, 5, v4")
        A(f"s_lshl_b32 s{S_T5}, s{S_B}, 2")
        A(f"s_add_u32 s{S_T5}, s{S_T5}, {LDS_XCC}")
        A(f"v_add_u32 v4, s{S_T5}, v4")
        A(f"ds_read_b32 v5, v4")
        A(f"s_waitcnt lgkmcnt(0)")
        A(f"v_readfirstlane_b32 s{S_LOC}, v5")
        A(f"v_cmp_ne_u32 vcc, s{S_LOC}, v5")
        A(f"s_cmp_eq_u64 vcc, 0")
        A(f"s_cselect_b32 s{S_LOC}, 1, 0")
        if self.nolocal: A(f"s_mov_b32 s{S_LOC}, 0")
    def store_sel(self, ins):
        A = self.A
        l1 = A.label(); l2 = A.label()
        A(f"s_cmp_eq_u32 s{S_LOC}, 1")
        A(f"s_cbranch_scc1 {l1}")
        A(f"{ins} sc0 sc1")
        A(f"s_branch {l2}")
        A.place(l1)
        A(ins)
        A.place(l2)

    def sample_wait(self, need_all, va, vd, sleep):
        A = self.A
        lp = A.label(); ex = A.label()
        A(f"s_cmp_eq_u32 s{S_WAVE}, 0")
        A(f"s_cbranch_scc0 {ex}")
        A(f"v_and_b32 v{vd}, 3, v1")
        A(f"v_lshlrev_b32 v{vd}, 12, v{vd}")
        A(f"v_lshlrev_b32 v{va}, 8, v1")
        A(f"v_add_u32 v{va}, v{va}, v{vd}")
        A(f"v_add_u32 v{va}, {WS_H + 128}, v{va}")
        A(f"s_mov_b32 s{S_CNT}, 0")
        A(f"s_mov_b64 exec, 0xff")
        A.place(lp)
        A(f"buffer_load_dword v{vd}, v{va}, {srd(R_WS)}, 0 offen {self.LP}")
        A("s_waitcnt vmcnt(0)")
        if need_all:
            A(f"v_cmp_eq_u32 vcc, -1, v{vd}")
            A(f"s_cbranch_vccz {ex}")
        else:
            A(f"v_cmp_ne_u32 vcc, -1, v{vd}")
            A(f"s_cbranch_vccnz {ex}")
        A(f"s_add_u32 s{S_CNT}, s{S_CNT}, 1")
        A(f"s_cmp_gt_u32 s{S_CNT}, 4000")
        A(f"s_cbranch_scc1 {ex}")
        A(f"s_sleep {sleep}")
        A(f"s_branch {lp}")
        A.place(ex)
        A("s_mov_b64 exec, -1")
        A("s_waitcnt vmcnt(0)")
        A("s_barrier")

    def maxred(self, tmp, regs):
        A = self.A
        rs = list(regs)
        if len(rs) == 1:
            return rs[0]
        if len(rs) == 2:
            A(f"v_max_u32 v{tmp}, v{rs[0]}, v{rs[1]}"); return tmp
        A(f"v_max3_u32 v{tmp}, v{rs[0]}, v{rs[1]}, v{rs[2]}")
        rs = rs[3:]
        while len(rs) >= 2:
            A(f"v_max3_u32 v{tmp}, v{tmp}, v{rs[0]}, v{rs[1]}")
            rs = rs[2:]
        if rs:
            A(f"v_max_u32 v{tmp}, v{tmp}, v{rs[0]}")
        return tmp

    def prepoll(self, load, reg, mask=None, sleep=4, need_all=False):
        A = self.A
        lp = A.label(); ex = A.label()
        if mask is not None:
            A(f"s_mov_b64 exec, s[{mask}:{mask+1}]")
        A(f"s_mov_b32 s{S_CNT}, 0")
        A.place(lp)
        A(load)
        A("s_waitcnt vmcnt(0)")
        if need_all:
            A(f"v_cmp_eq_u32 vcc, -1, v{reg}")
            A(f"s_cbranch_vccz {ex}")
        else:
            A(f"v_cmp_ne_u32 vcc, -1, v{reg}")
            A(f"s_cbranch_vccnz {ex}")
        A(f"s_add_u32 s{S_CNT}, s{S_CNT}, 1")
        A(f"s_cmp_gt_u32 s{S_CNT}, {SPIN}")
        A(f"s_cbranch_scc1 {ex}")
        A(f"s_sleep {sleep}")
        A(f"s_branch {lp}")
        A.place(ex)
        A(f"s_mov_b64 exec, -1")
        self.stamp(16)

    def poll_groups(self, groups, tmp, mask=None, sleep=0):
        A = self.A
        G = len(groups)
        lp = A.label(); ex = A.label()
        for g in range(G):
            m = S_PM + 2 * g
            if mask is None: A(f"s_mov_b64 s[{m}:{m+1}], -1")
            else: A(f"s_mov_b64 s[{m}:{m+1}], s[{mask}:{mask+1}]")
        A(f"s_mov_b32 s{S_CNT}, 0")
        A.place(lp)
        for g, (loads, regs) in enumerate(groups):
            m = S_PM + 2 * g
            sk = A.label()
            A(f"s_mov_b64 exec, s[{m}:{m+1}]")
            if G > 1: A(f"s_cbranch_execz {sk}")
            for l in loads: A(l)
            if G > 1: A.place(sk)
        A("s_waitcnt vmcnt(0)")
        for g, (loads, regs) in enumerate(groups):
            m = S_PM + 2 * g
            A(f"s_mov_b64 exec, s[{m}:{m+1}]")
            t = self.maxred(tmp, regs)
            A(f"v_cmp_eq_u32_e64 s[{m}:{m+1}], -1, v{t}")
        if G == 1:
            A(f"s_cmp_eq_u64 s[{S_PM}:{S_PM+1}], 0")
        else:
            A(f"s_or_b64 s[{S_EX}:{S_EX+1}], s[{S_PM}:{S_PM+1}], s[{S_PM+2}:{S_PM+3}]")
            for g in range(2, G):
                m = S_PM + 2 * g
                A(f"s_or_b64 s[{S_EX}:{S_EX+1}], s[{S_EX}:{S_EX+1}], s[{m}:{m+1}]")
            A(f"s_cmp_eq_u64 s[{S_EX}:{S_EX+1}], 0")
        A(f"s_cbranch_scc1 {ex}")
        A(f"s_add_u32 s{S_CNT}, s{S_CNT}, 1")
        if sleep: A(f"s_sleep {sleep}")
        A(f"s_cmp_gt_u32 s{S_CNT}, {SPIN}")
        A(f"s_cbranch_scc0 {lp}")
        A.place(ex)
        A(f"s_mov_b64 exec, -1")

    def poll_issue(self, loads, regs, mask=None):
        A = self.A
        if mask is not None:
            A(f"s_mov_b64 exec, s[{mask}:{mask+1}]")
        for l in loads: A(l)
        if mask is not None:
            A(f"s_mov_b64 exec, -1")

    def poll_pipe(self, loads, regs, tmp, mask=None, depth=1, sleep=2, issued=False):
        A = self.A
        lp = A.label(); ex = A.label(); chk = A.label()
        if mask is not None:
            A(f"s_mov_b64 exec, s[{mask}:{mask+1}]")
        A(f"s_mov_b32 s{S_CNT}, 0")
        if issued: A(f"s_branch {chk}")
        A.place(lp)
        for l in loads: A(l)
        if sleep: A(f"s_sleep {sleep}")
        A.place(chk)
        A(f"s_waitcnt vmcnt(0)")
        t = self.maxred(tmp, regs)
        A(f"v_cmp_eq_u32 vcc, -1, v{t}")
        A(f"s_cbranch_vccz {ex}")
        A(f"s_mov_b64 exec, vcc")
        A(f"s_add_u32 s{S_CNT}, s{S_CNT}, 1")
        A(f"s_cmp_gt_u32 s{S_CNT}, {SPIN}")
        A(f"s_cbranch_scc0 {lp}")
        A.place(ex)
        A(f"s_mov_b64 exec, -1")

    def role_params(self):
        A = self.A
        lG, lD, lN, lE = A.label(), A.label(), A.label(), A.label()
        A(f"""
        s_mov_b32 s{S_JJ}, 999
        s_mov_b32 s{S_JA}, 0
        s_cmp_ge_u32 s{S_H}, 8
        s_cbranch_scc1 {lG}
        s_mov_b32 s{S_ROLE}, 0
        s_mov_b32 s{S_J1}, 24
        s_mov_b32 s{S_PITCH}, 2048
        s_mov_b32 s{S_NJ}, 32
        s_lshr_b32 s{S_T0}, s{S_H}, 1
        s_lshl_b32 s{S_T0}, s{S_T0}, 21
        s_and_b32 s{S_T1}, s{S_H}, 1
        s_lshl_b32 s{S_T2}, s{S_B}, 1
        s_add_u32 s{S_T1}, s{S_T1}, s{S_T2}
        s_lshl_b32 s{S_T1}, s{S_T1}, 7
        s_add_u32 s{S_T0}, s{S_T0}, s{S_T1}
        s_add_u32 s{R_WT}, s{S_WO}, s{S_T0}
        s_addc_u32 s{R_WT+1}, s{S_WO+1}, 0
        s_sub_u32 s{R_WT+2}, {8<<20}, s{S_T0}
        s_branch {lE}
        """)
        A.place(lG)
        A(f"""
        s_cmp_ge_u32 s{S_H}, 22
        s_cbranch_scc1 {lD}
        s_mov_b32 s{S_ROLE}, 1
        s_mov_b32 s{S_J1}, {self.JU}
        s_mov_b32 s{S_PITCH}, 7168
        s_mov_b32 s{S_NJ}, 32
        s_sub_u32 s{S_T0}, s{S_H}, 8
        s_lshr_b32 s{S_T1}, s{S_T0}, 1
        s_mul_i32 s{S_T2}, s{S_B}, 7
        s_add_u32 s{S_T1}, s{S_T1}, s{S_T2}
        s_lshl_b32 s{S_T1}, s{S_T1}, 7
        s_bitcmp1_b32 s{S_T0}, 0
        s_cselect_b32 s{S_T2}, s{S_WU}, s{S_WG_}
        s_cselect_b32 s{S_T3}, s{S_WU+1}, s{S_WG_+1}
        s_add_u32 s{R_WT}, s{S_T2}, s{S_T1}
        s_addc_u32 s{R_WT+1}, s{S_T3}, 0
        s_sub_u32 s{R_WT+2}, {7340032}, s{S_T1}
        s_branch {lE}
        """)
        A.place(lD)
        A(f"""
        s_cmp_ge_u32 s{S_H}, 30
        s_cbranch_scc1 {lN}
        s_mov_b32 s{S_ROLE}, 2
        s_mov_b32 s{S_J1}, {self.JU}
        s_mov_b32 s{S_PITCH}, 2048
        s_mov_b32 s{S_NJ}, 28
        s_mov_b32 s{S_JJ}, 14
        s_mov_b32 s{S_JA}, {(128 - 448*2048) & 0xffffffff}
        s_mul_i32 s{S_T1}, s{S_B}, {448*2048}
        s_sub_u32 s{S_T0}, s{S_H}, 22
        s_lshl_b32 s{S_T0}, s{S_T0}, 8
        s_add_u32 s{S_T0}, s{S_T0}, s{S_T1}
        s_add_u32 s{R_WT}, s{S_WD}, s{S_T0}
        s_addc_u32 s{R_WT+1}, s{S_WD+1}, 0
        s_sub_u32 s{R_WT+2}, {7340032}, s{S_T0}
        s_branch {lE}
        """)
        A.place(lN)
        A(f"""
        s_mov_b32 s{S_ROLE}, 3
        s_mov_b32 s{S_J1}, 0
        s_mov_b32 s{S_PITCH}, 2048
        s_mov_b32 s{S_NJ}, 0
        s_mov_b32 s{R_WT}, s{S_WD}
        s_mov_b32 s{R_WT+1}, s{S_WD+1}
        s_mov_b32 s{R_WT+2}, 0
        """)
        A.place(lE)
        A(f"s_mov_b32 s{R_WT+3}, 0x20000")

    def entry(self):
        A = self.A
        A.header(256, 512, LDS_BYTES, comments=[
            "Fused decode layer: preLN + MHA over the KV cache + out-proj + preLN + GEGLU FFN in ONE persistent launch.",
            "256 workgroups x 512 threads, one per CU (160 KiB LDS). Workgroup w = (head w>>3, batch w&7).",
            "Waves 0-3 (service): LN(x), 1/8 K-slice of the q projection + exchange, bandwidth-fairness controller.",
            "Waves 4-7 (stream): nt streaming of K (dot2 + DPP), exact two-pass softmax, V (masked-B MFMA); weights via LDS-DMA.",
            "Tail roles per workgroup (i = w>>3): O out-proj tile + residual, G gate/up tile, D down tile, F final sum.",
            "Hand-offs between workgroups: sentinel-cleared slots in d_ws (cleared in this launch), epoch-tagged flags.",
            "kernarg: x, K, V, wq, wo, B_x(unused by the reference), w_gate, w_up, w_down, out, debug, ws",
        ])
        if self.stamps == "entry":
            A("s_memrealtime s[14:15]")
        A(f"""
        s_cmp_ge_u32 s2, 256
        s_cbranch_scc1 L_end
        s_load_dwordx16 s[16:31], s[0:1], 0
        s_load_dwordx8 s[32:39], s[0:1], 64
        v_and_b32 v1, 63, v0
        v_lshrrev_b32 v4, 6, v0
        v_lshlrev_b32 v2, 4, v1
        v_readfirstlane_b32 s{S_WAVE}, v4
        v_lshlrev_b32 v3, 2, v1
        s_lshr_b32 s{S_H}, s2, 3
        s_and_b32 s{S_B}, s2, 7
        s_mov_b32 s{S_M1}, 0x22222222
        s_mov_b32 s{S_M1+1}, 0x22222222
        s_mov_b32 s{S_M2}, 0x44444444
        s_mov_b32 s{S_M2+1}, 0x44444444
        s_mov_b32 s{S_M3}, 0x88888888
        s_mov_b32 s{S_M3+1}, 0x88888888
        s_mov_b32 s{S_MJ8}, 0x00ff00ff
        s_mov_b32 s{S_MJ8+1}, 0x00ff00ff
        s_mov_b32 s{S_MQ}, 0x11111111
        s_mov_b32 s{S_MQ+1}, 0x11111111
        s_mov_b32 s{S_ME}, 0x01010101
        s_mov_b32 s{S_ME+1}, 0x01010101
        v_mov_b32 v204, 0
        v_mov_b32 v4, {LDS_CNT}
        v_mov_b32 v6, 0
        v_mov_b32 v7, 0
        ds_write_b64 v4, v[6:7]
        ds_write_b64 v4, v[6:7] offset:8
        v_mov_b32 v7, {self.N}
        ds_write_b64 v4, v[6:7] offset:16
        s_and_b32 s{S_SW}, s{S_WAVE}, 3
        """)
        if self.stamps:
            for r_ in (4, 6, 8, 10, 12): A(f"s_mov_b64 s[{r_}:{r_+1}], 0")
            if self.stamps != "entry": A("s_mov_b64 s[14:15], 0")
        A(f"""
        s_cmp_ge_u32 s{S_WAVE}, 4
        s_cbranch_scc1 L_stream
        """)

    def service(self):
        A = self.A
        A.c("==== service waves: LN(x), q partial, exchange ====")
        A(f"""
        v_lshrrev_b32 v4, 4, v1
        v_and_b32 v5, 15, v1
        s_lshr_b32 s{S_T0}, s{S_SW}, 1
        s_lshl_b32 s{S_T0}, s{S_T0}, 2
        v_or_b32 v6, s{S_T0}, v4
        v_lshlrev_b32 v6, 1, v6
        v_xor_b32 v6, v6, v5
        v_lshlrev_b32 v6, 4, v6
        v_lshlrev_b32 v7, 13, v4
        v_add_u32 v6, v6, v7
        s_lshl_b32 s{S_T0}, s{S_B}, 20
        s_lshl_b32 s{S_T1}, s{S_SW}, 15
        s_add_u32 s{S_T0}, s{S_T0}, s{S_T1}
        s_lshl_b32 s{S_T1}, s{S_H}, 8
        s_add_u32 s{S_T0}, s{S_T0}, s{S_T1}
        s_lshl_b32 s{S_T1}, s{S_SW}, 10
        s_add_u32 s{S_T1}, s{S_T1}, {LDS_WQ}
        s_lshl_b32 s{S_T2}, s{S_SW}, 12
        v_mov_b32 v126, 0
        s_mov_b32 s{S_T3}, {WS_EPOCH}
        s_waitcnt lgkmcnt(0)
        """)
        self.mk_srd(R_X, S_X, 16384)
        A(f"buffer_load_dwordx4 v[8:11], v2, {srd(R_X)}, s{S_T2} offen")
        A(f"buffer_load_dwordx4 v[12:15], v2, {srd(R_X)}, s{S_T2} offen offset:1024")
        A(f"buffer_load_dwordx4 v[16:19], v2, {srd(R_X)}, s{S_T2} offen offset:2048")
        A(f"buffer_load_dwordx4 v[20:23], v2, {srd(R_X)}, s{S_T2} offen offset:3072")
        self.mk_srd(R_WQ, S_WQ, 8 << 20)
        for j in range(8):
            A(f"s_mov_b32 m0, s{S_T1}")
            A(f"s_add_u32 s{S_T1}, s{S_T1}, 4096")
            A(f"buffer_load_dwordx4 v6, {srd(R_WQ)}, s{S_T0} offen {self.WP} lds")
            if j < 7:
                A(f"s_add_u32 s{S_T0}, s{S_T0}, {4*32768}")
        self.mk_srd(R_WS, S_WS, WS_SIZE)
        A(f"buffer_load_dword v126, v126, {srd(R_WS)}, s{S_T3} offen {self.LP}")
        A("s_barrier")
        self.stamp(0)
        if self.stamps and self.stamps not in ("tail", "early", "svc", "entry"):
            A("s_getreg_b32 s10, hwreg(HW_REG_XCC_ID)")
            self.stampval(31, 10)
        A(f"""
        v_mov_b32 v24, -1
        v_mov_b32 v25, -1
        v_mov_b32 v26, -1
        v_mov_b32 v27, -1
        s_lshl_b32 s{S_T0}, s2, 12
        s_lshl_b32 s{S_T1}, s{S_SW}, 10
        s_add_u32 s{S_T0}, s{S_T0}, s{S_T1}
        s_add_u32 s{S_T0}, s{S_T0}, {WS_SLOT}
        buffer_store_dwordx4 v[24:27], v2, {srd(R_WS)}, s{S_T0} offen sc0 sc1
        """)
        nst = 2 if (self.stamps and self.stamps not in ('tail', 'early', 'svc', 'entry')) else 0
        self.role_params()
        A(f"s_waitcnt vmcnt({10 + nst})")
        self.stamp(10)
        F, D = 32, 48
        S1, S2, T1, T2, VMB, VRS = 64, 66, 68, 69, 70, 72
        for r in range(2):
            base = 8 + 8 * r
            for i in range(8):
                A(f"v_lshlrev_b32 v{F+2*i}, 16, v{base+i}")
                A(f"v_and_b32 v{F+2*i+1}, 0xffff0000, v{base+i}")
            self.ln_stats(F, D, S1, S2, T1, T2, VMB, VRS)
            lab = A.label()
            A(f"s_cmp_lt_u32 s{S_B}, 4")
            A(f"s_cbranch_scc1 {lab}")
            for i in range(0, 8, 2):
                A(f"v_pk_mov_b32 {vr(F+i,2)}, {vr(F+8+i,2)}, {vr(F+8+i,2)} op_sel:[0,1]")
            A.place(lab)
            for i in range(4):
                self.ln_apply(76 + i, F + 2*i, VMB, VRS, 74)
            A(f"""
            s_and_b32 s{S_T0}, s{S_B}, 3
            s_lshl_b32 s{S_T0}, s{S_T0}, 4
            s_mov_b64 s[{S_EX}:{S_EX+1}], 0xffff
            s_lshl_b64 s[{S_EX}:{S_EX+1}], s[{S_EX}:{S_EX+1}], s{S_T0}
            s_lshl_b32 s{S_T1}, s{S_SW}, 1
            s_add_u32 s{S_T1}, s{S_T1}, {r}
            s_mul_i32 s{S_T1}, s{S_T1}, 272
            s_add_u32 s{S_T1}, s{S_T1}, {LDS_XN}
            v_and_b32 v80, 15, v1
            v_lshlrev_b32 v80, 4, v80
            v_add_u32 v80, s{S_T1}, v80
            s_mov_b64 exec, s[{S_EX}:{S_EX+1}]
            ds_write_b128 v80, v[76:79]
            s_mov_b64 exec, -1
            """)
        self.stamp(12)
        A(f"""
        v_and_b32 v58, 7, v1
        v_mul_u32_u24 v58, 272, v58
        v_lshrrev_b32 v59, 4, v1
        v_lshlrev_b32 v60, 4, v59
        v_add_u32 v58, v58, v60
        v_add_u32 v58, {LDS_XN}, v58
        v_and_b32 v60, 15, v1
        v_lshrrev_b32 v61, 2, v60
        v_and_b32 v62, 3, v60
        v_and_b32 v63, 1, v59
        v_lshlrev_b32 v63, 2, v63
        v_or_b32 v63, v63, v61
        v_lshlrev_b32 v80, 3, v59
        v_add_u32 v80, v80, v61
        v_lshlrev_b32 v80, 8, v80
        v_lshlrev_b32 v62, 3, v62
        v_add_u32 v80, v80, v62
        v_add_u32 v80, {LDS_WQ}, v80
        s_lshl_b32 s{S_T0}, s{S_SW}, 1
        v_xor_b32 v81, s{S_T0}, v63
        v_lshlrev_b32 v81, 5, v81
        v_add_u32 v81, v81, v80
        s_add_u32 s{S_T0}, s{S_T0}, 1
        v_xor_b32 v82, s{S_T0}, v63
        v_lshlrev_b32 v82, 5, v82
        v_add_u32 v82, v82, v80
        v_and_b32 v56, 15, v1
        v_lshlrev_b32 v56, 12, v56
        v_lshlrev_b32 v60, 4, v59
        v_add_u32 v56, v56, v60
        """)
        A(f"s_waitcnt vmcnt({2 + 2*nst}) lgkmcnt(0)")
        self.stamp(13)
        self.lds_signal(LDS_CNT + 0, 124, 125)
        self.lds_wait(LDS_CNT + 0, 4, 124, 125, sleep=0)
        for s in range(4):
            A(f"ds_read_b128 {vr(64+4*s,4)}, v58 offset:{s*64}")
        for c in range(2):
            for s in range(4):
                r = 84 + (c * 4 + s) * 4
                A(f"ds_read_b64_tr_b16 {vr(r,2)}, v{81+c} offset:{s*8192}")
                A(f"ds_read_b64_tr_b16 {vr(r+2,2)}, v{81+c} offset:{s*8192+1024}")
        A(f"""
        s_lshl_b32 s{S_T0}, s{S_H}, 15
        s_lshl_b32 s{S_T1}, s{S_B}, 9
        s_add_u32 s{S_T0}, s{S_T0}, s{S_T1}
        s_lshl_b32 s{S_T1}, s{S_SW}, 7
        s_add_u32 s{S_T0}, s{S_T0}, s{S_T1}
        s_waitcnt lgkmcnt(0)
        """)
        for s in range(4):
            for c in range(2):
                r = 84 + (c * 4 + s) * 4
                acc = 116 + 4 * c
                src = "0" if s == 0 else vr(acc, 4)
                A(f"v_mfma_f32_16x16x32_bf16 {vr(acc,4)}, {vr(r,4)}, {vr(64+4*s,4)}, {src}")
        self.lds_signal(LDS_CNT + 4, 124, 125)
        A(f"""
        s_mov_b64 exec, s[{S_MJ8}:{S_MJ8+1}]
        buffer_store_dwordx4 v[116:119], v56, {srd(R_WS)}, s{S_T0} offen sc0 sc1
        buffer_store_dwordx4 v[120:123], v56, {srd(R_WS)}, s{S_T0} offen offset:64 sc0 sc1
        s_mov_b64 exec, -1
        s_lshl_b32 s{S_T0}, s{S_H}, 7
        s_add_u32 s{S_T0}, s{S_T0}, {WS_FLAG}
        s_lshl_b32 s{S_T1}, s{S_B}, 4
        s_lshl_b32 s{S_T2}, s{S_SW}, 2
        s_add_u32 s{S_T1}, s{S_T1}, s{S_T2}
        s_getreg_b32 s{S_XCC}, hwreg(HW_REG_XCC_ID)
        s_and_b32 s{S_XCC}, s{S_XCC}, 7
        s_lshl_b32 s{S_XCC}, s{S_XCC}, 24
        v_mov_b32 v58, s{S_T1}
        s_waitcnt vmcnt(0)
        v_readfirstlane_b32 s{S_TAG}, v126
        s_add_u32 s{S_TAG}, s{S_TAG}, 1
        s_add_u32 s{S_XCC}, s{S_XCC}, s{S_TAG}
        v_mov_b32 v59, s{S_XCC}
        s_mov_b64 exec, 1
        buffer_store_dword v59, v58, {srd(R_WS)}, s{S_T0} offen sc0 sc1
        s_mov_b64 exec, -1
        """)
        self.stamp(1)
        A(f"s_cmp_eq_u32 s{S_SW}, 0")
        A(f"s_cbranch_scc0 L_svc_done")
        lp = A.label(); ex = A.label()
        A(f"s_mov_b64 exec, 0xffffffff")
        A(f"s_mov_b32 s{S_CNT}, 0")
        A.place(lp)
        A(f"""
        buffer_load_dword v60, v3, {srd(R_WS)}, s{S_T0} offen {self.LP}
        s_waitcnt vmcnt(0)
        v_subrev_u32 v60, s{S_TAG}, v60
        v_and_b32 v60, 0xf8ffffff, v60
        v_cmp_ne_u32 vcc, 0, v60
        s_cbranch_vccz {ex}
        s_add_u32 s{S_CNT}, s{S_CNT}, 1
        s_cmp_gt_u32 s{S_CNT}, {SPIN}
        s_cbranch_scc0 {lp}
        """)
        A.place(ex)
        A("s_mov_b64 exec, -1")
        self.stamp(11)
        A(f"s_lshl_b32 s{S_T0}, s2, 12")
        for j in range(4):
            A(f"buffer_load_dwordx4 {vr(64+4*j,4)}, v2, {srd(R_WS)}, s{S_T0} offen offset:{j*1024} {self.LP}")
        A(f"""
        v_and_b32 v58, 31, v1
        v_lshlrev_b32 v58, 3, v58
        v_add_u32 v58, {LDS_Q}, v58
        s_waitcnt vmcnt(0)
        """)
        for e in range(0, 4, 2):
            A(f"v_pk_add_f32 {vr(64+e,2)}, {vr(64+e,2)}, {vr(68+e,2)}")
            A(f"v_pk_add_f32 {vr(72+e,2)}, {vr(72+e,2)}, {vr(76+e,2)}")
        for e in range(0, 4, 2):
            A(f"v_pk_add_f32 {vr(64+e,2)}, {vr(64+e,2)}, {vr(72+e,2)}")
        for e in range(4):
            A(f"v_mov_b32 v{68+e}, v{64+e}")
        for e in range(4):
            A(f"v_permlane32_swap_b32 v{64+e}, v{68+e}")
        for e in range(0, 4, 2):
            A(f"v_pk_add_f32 {vr(64+e,2)}, {vr(64+e,2)}, {vr(68+e,2)}")
        A(f"""
        v_cvt_pk_bf16_f32 v64, v64, v65
        v_cvt_pk_bf16_f32 v65, v66, v67
        ds_write_b64 v58, v[64:65]
        s_waitcnt lgkmcnt(0)
        """)
        self.lds_signal(LDS_CNT + 12, 124, 125)
        self.stamp(2)
        if self.debug:
            A(f"""
            v_and_b32 v58, 31, v1
            v_lshlrev_b32 v58, 3, v58
            s_lshl_b32 s{S_T0}, s2, 8
            s_add_u32 s{S_T0}, s{S_T0}, {WS_DBG}
            buffer_store_dwordx2 v[64:65], v58, {srd(R_WS)}, s{S_T0} offen
            """)
        lp = A.label(); ex = A.label()
        A(f"s_mov_b32 s{S_T0}, {WS_FLAG}")
        A(f"s_mov_b32 s{S_CNT}, 0")
        A.place(lp)
        for j in range(4):
            A(f"buffer_load_dwordx4 {vr(64+4*j,4)}, v2, {srd(R_WS)}, s{S_T0} offen offset:{j*1024} {self.LP}")
        A("s_waitcnt vmcnt(0)")
        for i in range(16):
            A(f"v_subrev_u32 v{64+i}, s{S_TAG}, v{64+i}")
        for i in range(16):
            A(f"v_and_b32 v{80+i}, 0xf8ffffff, v{64+i}")
        t = self.maxred(60, range(80, 96))
        A(f"""
        v_cmp_ne_u32 vcc, 0, v{t}
        s_cbranch_vccz {ex}
        s_add_u32 s{S_CNT}, s{S_CNT}, 1
        s_cmp_gt_u32 s{S_CNT}, {SPIN}
        s_cbranch_scc1 {ex}
        s_sleep 16
        s_branch {lp}
        """)
        A.place(ex)
        A(f"v_add_u32 v60, {LDS_XCC}, v3")
        for t in range(4):
            A(f"ds_write_b32 v60, v{64+4*t} offset:{t*256}")
        A("s_waitcnt lgkmcnt(0)")
        if self.pace:
            self.local_flag()
            self.controller(self.PK0, 13, self.THK)
            A("s_barrier")
            A("s_barrier")
            self.controller(16, (16 + self.EB - 2) if self.DE else 29)
            A("s_branch L_join3")
        A.place("L_svc_done")
        A("s_barrier")
        A("s_barrier")
        if self.ipf:
            A(f"s_cmp_eq_u32 s{S_SW}, 1")
            A(f"s_cbranch_scc0 L_join3")
            self.lds_wait(LDS_BLK, self.ipf, 124, 125, sleep=16)
            lpc = A.label()
            A(f"s_getpc_b64 s[{S_T0}:{S_T1}]")
            A.place(lpc)
            A(f"s_add_u32 s{S_T0}, s{S_T0}, L_join3-{lpc}")
            A(f"s_addc_u32 s{S_T1}, s{S_T1}, 0")
            A(f"v_lshlrev_b32 v60, 7, v1")
            A(f"s_mov_b32 exec_hi, 0x0007ffff")
            A(f"global_load_dword v61, v60, s[{S_T0}:{S_T1}]")
            A(f"s_mov_b64 exec, -1")
            A(f"s_waitcnt vmcnt(0)")
        A("s_branch L_join3")

    def controller(self, k0, k1, TH=None):
        A = self.A
        TH = TH or self.TH
        lp = A.label(); lw = A.label(); lx = A.label(); lend = A.label()
        A(f"s_cmp_eq_u32 s{S_LOC}, 1")
        A(f"s_cbranch_scc0 {lend}")
        A(f"s_mov_b32 s{S_T0}, {k0}")
        A(f"v_mov_b32 v60, {LDS_BLK}")
        A(f"v_mov_b32 v61, {LDS_N}")
        A(f"v_mov_b32 v62, 1")
        A(f"s_lshl_b32 s{S_T3}, s{S_H}, 2")
        A(f"v_mov_b32 v63, s{S_T3}")
        A.place(lp)
        A(f"s_mov_b32 s{S_CNT}, 0")
        A.place(lw)
        A(f"ds_read_b32 v64, v60")
        A(f"s_waitcnt lgkmcnt(0)")
        A(f"v_readfirstlane_b32 s{S_T1}, v64")
        A(f"s_cmp_gt_u32 s{S_T1}, s{S_T0}")
        A(f"s_cbranch_scc1 {lx}")
        A(f"s_add_u32 s{S_CNT}, s{S_CNT}, 1")
        A(f"s_cmp_gt_u32 s{S_CNT}, {SPIN}")
        A(f"s_cbranch_scc1 {lx}")
        A(f"s_sleep 8")
        A(f"s_branch {lw}")
        A.place(lx)
        A(f"s_sub_u32 s{S_T1}, s{S_T1}, 1")
        A(f"s_min_u32 s{S_T0}, s{S_T1}, {k1}")
        A(f"s_lshl_b32 s{S_T2}, s{S_T0}, 10")
        A(f"s_lshl_b32 s{S_T4}, s{S_B}, 7")
        A(f"s_add_u32 s{S_T2}, s{S_T2}, s{S_T4}")
        A(f"s_add_u32 s{S_T2}, s{S_T2}, {WS_PROG}")
        A(f"s_mov_b64 exec, 1")
        A(f"buffer_store_dword v62, v63, {srd(R_WS)}, s{S_T2} offen")
        if self.bias:
            A(f"s_lshl_b32 s{S_T4}, s{S_B}, 7")
            A(f"s_add_u32 s{S_OFF}, s{S_T4}, {WS_BIAS}")
            A(f"v_mov_b32 v66, 0")
            A(f"buffer_load_dword v67, v66, {srd(R_WS)}, s{S_OFF} offen {self.LP}")
        A(f"s_mov_b64 exec, 0xffffffff")
        A(f"buffer_load_dword v64, v3, {srd(R_WS)}, s{S_T2} offen {self.LP}")
        A(f"s_waitcnt vmcnt(0)")
        A(f"v_cmp_ne_u32 vcc, -1, v64")
        A(f"s_mov_b64 exec, -1")
        A(f"s_bcnt1_i32_b64 s{S_T4}, vcc")
        if self.bias:
            lg = A.label()
            A(f"v_readfirstlane_b32 s{S_PITCH}, v67")
            A(f"s_cmp_eq_u32 s{S_T4}, {self.GM}")
            A(f"s_cbranch_scc0 {lg}")
            A(f"s_mov_b32 s{S_T5}, {self.RMASK}")
            A(f"s_bitcmp1_b32 s{S_T5}, s{S_T0}")
            A(f"s_cbranch_scc0 {lg}")
            A(f"s_lshl_b32 s{S_T2}, s{S_T0}, 7")
            A(f"s_add_u32 s{S_T2}, s{S_T2}, {WS_GP}")
            A(f"s_lshl_b32 s{S_T5}, s{S_B}, 2")
            A(f"v_mov_b32 v65, s{S_T5}")
            A(f"s_mov_b64 exec, 1")
            A(f"buffer_store_dword v62, v65, {srd(R_WS)}, s{S_T2} offen sc0 sc1")
            A(f"s_mov_b64 exec, 0xff")
            A(f"buffer_load_dword v65, v3, {srd(R_WS)}, s{S_T2} offen {self.LP}")
            A(f"s_waitcnt vmcnt(0)")
            A(f"v_cmp_ne_u32 vcc, -1, v65")
            A(f"s_mov_b64 exec, -1")
            A(f"s_bcnt1_i32_b64 s{S_T2}, vcc")
            A(f"s_mov_b32 s{S_PITCH}, 1")
            A(f"s_cmp_ge_u32 s{S_T2}, {self.GH}")
            A(f"s_addc_u32 s{S_PITCH}, s{S_PITCH}, 0")
            A(f"s_cmp_le_u32 s{S_T2}, {self.GL}")
            A(f"s_subb_u32 s{S_PITCH}, s{S_PITCH}, 0")
            A(f"v_mov_b32 v65, s{S_PITCH}")
            A(f"s_mov_b64 exec, 1")
            A(f"buffer_store_dword v65, v66, {srd(R_WS)}, s{S_OFF} offen")
            A(f"s_mov_b64 exec, -1")
            A.place(lg)
            A(f"s_cmp_eq_u32 s{S_PITCH}, -1")
            A(f"s_cselect_b32 s{S_PITCH}, 1, s{S_PITCH}")
        A(f"s_mov_b32 s{S_T5}, {self.NBASE}")
        if self.bias and self.BT:
            A(f"s_mul_i32 s{S_PITCH}, s{S_PITCH}, {self.BT}")
            A(f"s_add_u32 s{S_T4}, s{S_T4}, s{S_PITCH}")
            for th in TH:
                A(f"s_cmp_gt_u32 s{S_T4}, {th + self.BT}")
                A(f"s_addc_u32 s{S_T5}, s{S_T5}, 0")
        else:
            for th in TH:
                A(f"s_cmp_gt_u32 s{S_T4}, {th}")
                A(f"s_addc_u32 s{S_T5}, s{S_T5}, 0")
            if self.bias:
                A(f"s_add_u32 s{S_T5}, s{S_T5}, s{S_PITCH}")
                A(f"s_sub_u32 s{S_T5}, s{S_T5}, 1")
                A(f"s_max_u32 s{S_T5}, s{S_T5}, {self.NMIN}")
        A(f"s_min_u32 s{S_T5}, s{S_T5}, {self.D}")
        A(f"v_mov_b32 v64, s{S_T5}")
        A(f"ds_write_b32 v61, v64")
        A(f"s_add_u32 s{S_T0}, s{S_T0}, 1")
        A(f"s_cmp_le_u32 s{S_T0}, {k1}")
        A(f"s_cbranch_scc1 {lp}")
        A(f"s_waitcnt lgkmcnt(0)")
        A.place(lend)

    RING = 64
    R = 32
    QF = 8
    VN = 200
    def slot(self, t): return self.RING + 4 * (t % self.R)
    def issue(self, t, which):
        A = self.A
        r = self.slot(t)
        A(f"buffer_load_dwordx4 {vr(r,4)}, v2, {srd(R_K if which == 'K' else R_V)}, s{S_OFF} offen {self.KP if which == 'K' else self.VP}")
        A(f"s_add_u32 s{S_OFF}, s{S_OFF}, 4096")
        if self.rot: A(f"s_and_b32 s{S_OFF}, s{S_OFF}, 0xfffff")

    def vwait(self):
        A = self.A
        if not self.pace and not self.NW and not (self.defer and self.D > self.N):
            A(f"s_waitcnt vmcnt({self.N-1})"); return
        L = A.label()
        lv = list(range(self.D, self.NMIN, -1))
        for n in lv:
            A(f"s_waitcnt vmcnt({n-1})")
            A(f"s_cmp_ge_u32 s{S_NCUR}, {n}")
            A(f"s_cbranch_scc1 {L}")
        A(f"s_waitcnt vmcnt({self.NMIN-1})")
        A.place(L)
    def blk_begin(self):
        if not self.pace: return
        A = self.A
        A(f"s_waitcnt lgkmcnt(0)")
        A(f"v_readfirstlane_b32 s{S_NCUR}, v{self.VN}")
        A(f"ds_read_b32 v{self.VN}, v{self.VN+1}")
    def blk_end(self):
        if not self.pace: return
        A = self.A
        L = A.label()
        A(f"v_add_u32 v{self.VN+2}, 1, v{self.VN+2}")
        A(f"s_cmp_eq_u32 s{S_SW}, 0")
        A(f"s_cbranch_scc0 {L}")
        A(f"ds_write_b32 v{self.VN+1}, v{self.VN+2} offset:-4".replace("offset:-4", "offset:0") if False else f"ds_write_b32 v{self.VN+3}, v{self.VN+2}")
        A.place(L)

    def k_block(self, t0, plan):
        A = self.A
        q = self.QF
        ACC = [12, 13, 14, 15]; B0, B1 = 16, 17; E = [18, 19, 20, 21]; M = 22
        MX = 24; SA = 25
        def reduce_group(c):
            a0, a1, a2, a3 = ACC
            e = E[c]
            A(f"v_add_f32_dpp v{B0}, v{a0}, v{a0} row_ror:8 row_mask:0xf bank_mask:0x3")
            A(f"v_add_f32_dpp v{B1}, v{a2}, v{a2} row_ror:8 row_mask:0xf bank_mask:0x3")
            A(f"v_add_f32_dpp v{B0}, v{a1}, v{a1} row_ror:8 row_mask:0xf bank_mask:0xc")
            A(f"v_add_f32_dpp v{B1}, v{a3}, v{a3} row_ror:8 row_mask:0xf bank_mask:0xc")
            A(f"v_add_f32_dpp v{e}, v{B0}, v{B0} row_half_mirror row_mask:0xf bank_mask:0x5")
            A(f"v_add_f32_dpp v{e}, v{B1}, v{B1} row_half_mirror row_mask:0xf bank_mask:0xa")
            A(f"v_add_f32_dpp v{e}, v{e}, v{e} quad_perm:[1,0,3,2] row_mask:0xf bank_mask:0xf")
            A(f"v_add_f32_dpp v{e}, v{e}, v{e} quad_perm:[2,3,0,1] row_mask:0xf bank_mask:0xf")
        self.blk_begin()
        for t in range(16):
            cnt, iss = plan(t0 + t)
            if cnt is None: self.vwait()
            else: A(f"s_waitcnt vmcnt({cnt})")
            if iss is not None:
                if iss[1] == 'V' and iss[0] == 0:
                    A(f"s_mov_b32 s{S_OFF}, s{S_ROT}")
                self.issue(iss[0], iss[1])
            r = self.slot(t0 + t)
            a = ACC[t % 4]
            A(f"v_dot2_f32_bf16 v{a}, v{r}, v{q}, 0")
            A(f"v_dot2_f32_bf16 v{a}, v{r+1}, v{q+1}, v{a}")
            A(f"v_dot2_f32_bf16 v{a}, v{r+2}, v{q+2}, v{a}")
            A(f"v_dot2_f32_bf16 v{a}, v{r+3}, v{q+3}, v{a}")
            if t % 4 == 3:
                reduce_group(t // 4)
        A(f"v_cndmask_b32 v{M}, v{E[0]}, v{E[1]}, s[{S_M1}:{S_M1+1}]")
        A(f"v_cndmask_b32 v{M}, v{M}, v{E[2]}, s[{S_M2}:{S_M2+1}]")
        A(f"v_cndmask_b32 v{M}, v{M}, v{E[3]}, s[{S_M3}:{S_M3+1}]")
        self.rnd_bf16(M, M)
        A(f"v_mul_f32 v{M}, 0x3db504f3, v{M}")
        self.rnd_bf16(M, M)
        A(f"ds_write_b32 v{SA}, v{M}")
        A(f"v_max_f32 v{MX}, v{MX}, v{M}")
        A(f"v_add_u32 v{SA}, 256, v{SA}")
        self.blk_end()

    def v_block(self, t0, plan, last=False):
        A = self.A
        P, PN, PA = 12, 13, 14
        MK = [16, 17, 18, 19]
        BS = [[20, 21, 22, 23], [24, 25, 26, 27]]
        ACC = 28
        A(f"s_waitcnt lgkmcnt(0)")
        A(f"v_mov_b32 v{P}, v{PN}")
        self.blk_begin()
        if not last:
            A(f"ds_read_b32 v{PN}, v{PA}")
            A(f"v_add_u32 v{PA}, 256, v{PA}")
        for t in range(16):
            cnt, iss = plan(t0 + t)
            if cnt is None: self.vwait()
            else: A(f"s_waitcnt vmcnt({cnt})")
            if iss is not None:
                self.issue(iss[0], iss[1])
            B = BS[t % 2]
            for j in range(4):
                A(f"v_and_b32_dpp v{B[j]}, v{P}, v{MK[j]} row_newbcast:{t} row_mask:0xf bank_mask:0xf")
            r = self.slot(t0 + t)
            A(f"v_mfma_f32_16x16x32_bf16 {vr(ACC,4)}, {vr(r,4)}, {vr(B[0],4)}, {vr(ACC,4)}")
        self.blk_end()

    def stream(self):
        A = self.A
        N, NP, PV, R = self.N, self.NP, self.PV, self.R
        A.place("L_stream")
        A.c("==== stream waves ====")
        A(f"""
        v_lshrrev_b32 v4, 3, v1
        v_and_b32 v5, 7, v1
        v_lshrrev_b32 v6, 4, v1
        v_and_b32 v6, 1, v6
        v_lshlrev_b32 v6, 1, v6
        v_xor_b32 v5, v5, v6
        s_and_b32 s{S_T0}, s{S_SW}, 1
        s_lshl_b32 s{S_T0}, s{S_T0}, 2
        v_xor_b32 v5, s{S_T0}, v5
        v_lshlrev_b32 v5, 4, v5
        s_waitcnt lgkmcnt(0)
        """)
        self.mk_srd(R_WS, S_WS, WS_SIZE)
        self.role_params()
        A(f"""
        s_lshl_b32 s{S_T0}, s{S_B}, 5
        s_add_u32 s{S_T0}, s{S_T0}, s{S_H}
        s_lshl_b32 s{S_T0}, s{S_T0}, 20
        """)
        self.mk_srd(R_K, S_K, 1 << 20, f"s{S_T0}")
        self.mk_srd(R_V, S_V, 1 << 20, f"s{S_T0}")
        A(f"""
        v_mul_lo_u32 v4, v4, s{S_PITCH}
        v_add_u32 v4, v4, v5
        s_lshl_b32 s{S_T0}, s{S_PITCH}, 3
        s_mul_i32 s{S_T1}, s{S_T0}, s{S_SW}
        s_lshl_b32 s{S_T0}, s{S_T0}, 2
        s_lshl_b32 s{S_T2}, s{S_SW}, 10
        s_mov_b32 s{S_T3}, 0
        s_barrier
        """)
        self.stamp(0)
        if self.stamps and self.stamps not in ("tail", "early", "svc", "entry"):
            A("s_getreg_b32 s4, hwreg(HW_REG_XCC_ID)")
            A(f"s_lshl_b32 s6, s{S_WG}, 3")
            A(f"s_add_u32 s6, s6, s{S_WAVE}")
            A(f"s_lshl_b32 s6, s6, 7")
            A(f"s_add_u32 s6, s6, {WS_DBG + 0x100000 + 31*4}")
            A(f"s_mov_b64 exec, 1")
            A(f"v_mov_b32 v254, s4")
            A(f"v_mov_b32 v255, 0")
            A(f"buffer_store_dword v254, v255, {srd(R_WS)}, s6 offen")
            A(f"s_mov_b64 exec, -1")
        lp1, lp2, ld = A.label(), A.label(), A.label()
        def dma_iter(wait):
            A(f"""
            s_mov_b32 m0, s{S_T2}
            s_waitcnt vmcnt({wait})
            buffer_load_dwordx4 v4, {srd(R_WT)}, s{S_T1} offen {self.WP} lds
            s_add_u32 s{S_T1}, s{S_T1}, s{S_T0}
            s_add_u32 s{S_T2}, s{S_T2}, 4096
            s_add_u32 s{S_T3}, s{S_T3}, 1
            s_cmp_eq_u32 s{S_T3}, s{S_JJ}
            s_cselect_b32 s{S_T4}, s{S_JA}, 0
            s_add_u32 s{S_T1}, s{S_T1}, s{S_T4}
            """)
        self.dma_iter = dma_iter
        A(f"s_cmp_eq_u32 s{S_J1}, 0")
        A(f"s_cbranch_scc1 {ld}")
        A.place(lp1)
        dma_iter(NP - 1)
        A(f"s_cmp_lt_u32 s{S_T3}, s{S_J1}")
        A(f"s_cbranch_scc1 {lp1}")
        A.place(ld)
        if self.rot:
            A(f"s_mul_i32 s{S_ROT}, s2, {self.rot}")
            A(f"s_and_b32 s{S_ROT}, s{S_ROT}, 255")
            A(f"s_lshl_b32 s{S_ROT}, s{S_ROT}, 12")
        else:
            A(f"s_mov_b32 s{S_ROT}, 0")
        A(f"s_lshl_b32 s{S_T5}, s{S_SW}, 10")
        A(f"s_add_u32 s{S_ROT}, s{S_ROT}, s{S_T5}")
        A(f"s_mov_b32 s{S_OFF}, s{S_ROT}")
        for t in range(R):
            A(f"s_waitcnt vmcnt({NP-1})")
            self.issue(t, 'K')
        self.stamp(15)
        ld2 = A.label()
        if self.defer:
            A(f"s_cmp_eq_u32 s{S_ROLE}, 0")
            A(f"s_cbranch_scc0 {ld2}")
        else:
            A(f"s_cmp_eq_u32 s{S_NJ}, 0")
            A(f"s_cbranch_scc1 {ld2}")
        self.lds_wait(LDS_CNT + 4, 4, 6, 7)
        A.place(lp2)
        dma_iter(NP - 1)
        A(f"s_cmp_lt_u32 s{S_T3}, s{S_NJ}")
        A(f"s_cbranch_scc1 {lp2}")
        A.place(ld2)
        A(f"s_mov_b32 s{S_DS}, s{S_T1}")
        A(f"s_mov_b32 s{S_DM}, s{S_T2}")
        A(f"s_mov_b32 s{S_DJ}, s{S_T3}")
        A(f"s_mov_b32 s{S_DST}, s{S_T0}")
        A(f"v_mov_b32 v204, v4")
        self.stamp(14)
        self.lds_wait(LDS_CNT + 12, 1, 6, 7)
        self.stamp(3)
        self.cstamp(20)
        A(f"""
        v_and_b32 v6, 15, v1
        v_lshlrev_b32 v6, 4, v6
        v_add_u32 v6, {LDS_Q}, v6
        ds_read_b128 v[8:11], v6
        v_mov_b32 v24, 0xff800000
        v_and_b32 v6, 3, v1
        v_lshlrev_b32 v6, 2, v6
        v_bfe_u32 v7, v1, 2, 1
        v_lshlrev_b32 v7, 1, v7
        v_bfe_u32 v5, v1, 3, 1
        v_or_b32 v7, v7, v5
        v_add_u32 v6, v6, v7
        v_and_b32 v7, 48, v1
        v_add_u32 v6, v6, v7
        v_lshlrev_b32 v6, 2, v6
        s_lshl_b32 s{S_T0}, s{S_SW}, 12
        s_add_u32 s{S_T0}, s{S_T0}, {LDS_SC}
        v_add_u32 v25, s{S_T0}, v6
        v_mov_b32 v201, {LDS_N}
        v_mov_b32 v202, 0
        v_mov_b32 v203, {LDS_BLK}
        ds_read_b32 v200, v201
        """)
        if self.defer and not self.pace:
            A(f"s_cmp_eq_u32 s{S_ROLE}, 0")
            A(f"s_cselect_b32 s{S_NCUR}, {self.NOK}, {self.N}")
        if self.NW:
            A(f"s_mov_b32 s{S_NCUR}, {self.NW[0]}")
            for w in range(1, 4):
                A(f"s_cmp_eq_u32 s{S_SW}, {w}")
                A(f"s_cselect_b32 s{S_NCUR}, {self.NW[w]}, s{S_NCUR}")
        A(f"""
        s_waitcnt lgkmcnt(0)
        """)
        D = self.D
        def plan_first(t):
            if t < R - D: return (R - 1 - t, None)
            return (None, (t + D, 'K'))
        def plan_mid(t): return (None, (t + D, 'K'))
        def plan_klast(t):
            if t + D < 256: return (None, (t + D, 'K'))
            return (None, (t + D - 256, 'V'))
        self.k_block(0, plan_first)
        self.k_block(16, plan_first)
        lp = A.label()
        A(f"s_mov_b32 s{S_T3}, 0")
        A.place(lp)
        self.k_block(32, plan_mid)
        self.k_block(48, plan_mid)
        A(f"s_add_u32 s{S_T3}, s{S_T3}, 1")
        A(f"s_cmp_lt_u32 s{S_T3}, 6")
        A(f"s_cbranch_scc1 {lp}")
        self.k_block(224, plan_mid)
        self.k_block(240, plan_klast)
        for t in range(D, PV):
            self.issue(t, 'V')
        self.stamp(4)
        MX, T = 24, 23
        for r in (8, 4, 2, 1):
            A(f"v_max_f32_dpp v{MX}, v{MX}, v{MX} row_ror:{r} row_mask:0xf bank_mask:0xf")
        A(f"""
        v_lshrrev_b32 v6, 4, v1
        v_lshlrev_b32 v6, 2, v6
        s_lshl_b32 s{S_T0}, s{S_SW}, 4
        v_add_u32 v6, s{S_T0}, v6
        v_add_u32 v7, {LDS_WM}, v6
        ds_write_b32 v7, v{MX}
        s_lshl_b32 s{S_T0}, s{S_SW}, 12
        s_add_u32 s{S_T0}, s{S_T0}, {LDS_SC}
        v_add_u32 v14, s{S_T0}, v3
        s_waitcnt lgkmcnt(0)
        """)
        for i in range(16):
            A(f"ds_read_b32 v{48+i}, v14 offset:{i*256}")
        A(f"""
        s_barrier
        v_mov_b32 v7, {LDS_WM}
        ds_read_b128 v[32:35], v7
        ds_read_b128 v[36:39], v7 offset:16
        ds_read_b128 v[40:43], v7 offset:32
        ds_read_b128 v[44:47], v7 offset:48
        s_mov_b32 s{S_T1}, 0x3fb8aa3b
        s_waitcnt lgkmcnt(0)
        """)
        A(f"v_max3_f32 v{MX}, v32, v33, v34")
        for i in range(35, 47, 2):
            A(f"v_max3_f32 v{MX}, v{MX}, v{i}, v{i+1}")
        A(f"v_max_f32 v{MX}, v{MX}, v47")
        for i in range(16):
            A(f"v_sub_f32 v{48+i}, v{48+i}, v{MX}")
        for i in range(16):
            A(f"v_mul_f32 v{48+i}, s{S_T1}, v{48+i}")
        for i in range(16):
            A(f"v_exp_f32 v{48+i}, v{48+i}")
        A(f"v_add_f32 v{T}, v48, v49")
        for i in range(2, 16):
            A(f"v_add_f32 v{T}, v{T}, v{48+i}")
        for r in (8, 4, 2, 1):
            A(f"v_add_f32_dpp v{T}, v{T}, v{T} row_ror:{r} row_mask:0xf bank_mask:0xf")
        A(f"""
        v_add_u32 v7, {LDS_WS}, v6
        ds_write_b32 v7, v{T}
        s_waitcnt lgkmcnt(0)
        s_barrier
        v_mov_b32 v7, {LDS_WS}
        ds_read_b128 v[32:35], v7
        ds_read_b128 v[36:39], v7 offset:16
        ds_read_b128 v[40:43], v7 offset:32
        ds_read_b128 v[44:47], v7 offset:48
        v_and_b32 v6, 15, v1
        v_lshrrev_b32 v7, 1, v6
        v_and_b32 v5, 1, v6
        v_lshlrev_b32 v5, 4, v5
        v_mov_b32 v4, 0xffff
        v_lshlrev_b32 v4, v5, v4
        """)
        for j in range(4):
            A(f"v_cmp_eq_u32 vcc, {j}, v7")
            A(f"v_cndmask_b32 v{16+j}, 0, v4, vcc")
        A("s_waitcnt lgkmcnt(0)")
        for i in range(0, 16, 2):
            A(f"v_add_f32 v{32+i}, v{32+i}, v{33+i}")
        for i in range(0, 16, 4):
            A(f"v_add_f32 v{32+i}, v{32+i}, v{34+i}")
        A(f"v_add_f32 v32, v32, v36")
        A(f"v_add_f32 v40, v40, v44")
        A(f"v_add_f32 v32, v32, v40")
        A(f"v_rcp_f32 v32, v32")
        for i in range(16):
            A(f"v_mul_f32 v{48+i}, v{48+i}, v32")
        for i in range(16):
            A(f"v_cvt_pk_bf16_f32 v{48+i}, v{48+i}, v{48+i}")
        for i in range(1, 16):
            A(f"ds_write_b32 v14, v{48+i} offset:{i*256}")
        A(f"""
        v_mov_b32 v13, v48
        v_add_u32 v14, 256, v14
        v_mov_b32 v28, 0
        v_mov_b32 v29, 0
        v_mov_b32 v30, 0
        v_mov_b32 v31, 0
        """)
        if self.defer and not self.pace:
            A(f"s_cmp_eq_u32 s{S_ROLE}, 0")
            A(f"s_cselect_b32 s{S_NCUR}, {self.NOV}, {self.N}")
        self.stamp(5)
        def plan_vfirst(t):
            if t < PV - D: return (PV - 1 - t, None)
            return (None, (t + D, 'V'))
        def plan_vmid(t): return (None, (t + D, 'V'))
        def plan_vlast(t):
            if t + D < 256: return (None, (t + D, 'V'))
            return (255 - t, None)
        assert PV == 16
        self.v_block(0, plan_vfirst)
        lp = A.label()
        A(f"s_mov_b32 s{S_T3}, 0")
        A.place(lp)
        self.v_block(16, plan_vmid)
        self.v_block(32, plan_vmid)
        A(f"s_add_u32 s{S_T3}, s{S_T3}, 1")
        if self.DE:
            DE = self.DE; EB = self.EB
            A(f"s_cmp_lt_u32 s{S_T3}, {(EB - 1) // 2}")
            A(f"s_cbranch_scc1 {lp}")
            for u in range(16 * EB + D, 16 * EB + DE):
                self.issue(u, 'V')
            def plan_vend(t):
                if t + DE < 256: return (DE - 1, (t + DE, 'V'))
                return (255 - t, None)
            for blk in range(EB, 16):
                self.v_block(16 * blk, plan_vend, last=(blk == 15))
        else:
            A(f"s_cmp_lt_u32 s{S_T3}, 7")
            A(f"s_cbranch_scc1 {lp}")
            self.v_block(240, plan_vlast, last=True)
        A(f"""
        v_lshrrev_b32 v6, 4, v1
        v_lshlrev_b32 v6, 7, v6
        v_and_b32 v7, 15, v1
        v_lshlrev_b32 v7, 2, v7
        v_add_u32 v6, v6, v7
        s_lshl_b32 s{S_T0}, s{S_SW}, 9
        s_add_u32 s{S_T0}, s{S_T0}, {LDS_ORED}
        v_add_u32 v6, s{S_T0}, v6
        s_mov_b64 exec, s[{S_MJ8}:{S_MJ8+1}]
        ds_write_b32 v6, v28
        ds_write_b32 v6, v29 offset:32
        ds_write_b32 v6, v30 offset:64
        ds_write_b32 v6, v31 offset:96
        s_mov_b64 exec, -1
        s_waitcnt lgkmcnt(0)
        """)
        self.stamp(6)
        self.cstamp(21)
        A.place("L_join3")

    def tile_afrags(self, base):
        A = self.A
        A(f"""
        v_lshrrev_b32 v4, 4, v1
        v_and_b32 v5, 15, v1
        v_lshrrev_b32 v6, 2, v5
        v_and_b32 v5, 3, v5
        v_lshrrev_b32 v7, 1, v6
        v_and_b32 v8, 1, v4
        v_lshlrev_b32 v8, 1, v8
        v_or_b32 v7, v7, v8
        v_lshlrev_b32 v8, 3, v4
        v_add_u32 v8, v8, v6
        v_lshlrev_b32 v8, 7, v8
        v_lshlrev_b32 v5, 3, v5
        v_add_u32 v8, v8, v5
        s_lshl_b32 s{S_T0}, s{S_WAVE}, 14
        v_add_u32 v8, s{S_T0}, v8
        """)
        for cb in range(4):
            A(f"v_xor_b32 v{9+cb}, {cb}, v7")
            A(f"v_lshlrev_b32 v{9+cb}, 5, v{9+cb}")
            A(f"v_add_u32 v{9+cb}, v{9+cb}, v8")
        for s in range(4):
            for cb in range(4):
                r = base + (s * 4 + cb) * 4
                A(f"ds_read_b64_tr_b16 {vr(r,2)}, v{9+cb} offset:{s*4096}")
                A(f"ds_read_b64_tr_b16 {vr(r+2,2)}, v{9+cb} offset:{s*4096+512}")

    RW = 240
    def red_addrs(self):
        A = self.A
        RW = self.RW
        A(f"""
        v_and_b32 v4, 15, v1
        v_lshrrev_b32 v5, 4, v1
        s_lshl_b32 s{S_T0}, s{S_WAVE}, 11
        s_add_u32 s{S_T0}, s{S_T0}, {LDS_RED}
        v_lshlrev_b32 v6, 8, v4
        v_add_u32 v6, s{S_T0}, v6
        """)
        for cb in range(4):
            A(f"v_add_u32 v7, {4*cb}, v5")
            A(f"v_xor_b32 v7, v7, v4")
            A(f"v_lshlrev_b32 v7, 4, v7")
            A(f"v_add_u32 v{RW+cb}, v7, v6")
        A(f"""
        v_lshrrev_b32 v4, 2, v1
        v_xor_b32 v4, s{S_WAVE}, v4
        v_lshlrev_b32 v4, 4, v4
        v_and_b32 v5, 3, v1
        v_lshlrev_b32 v5, 2, v5
        v_add_u32 v4, v4, v5
        s_lshl_b32 s{S_T0}, s{S_WAVE}, 8
        s_add_u32 s{S_T0}, s{S_T0}, {LDS_RED}
        v_add_u32 v{RW+4}, s{S_T0}, v4
        """)

    def mfma16(self, abase, bregs, acc):
        A = self.A
        for s in range(4):
            for cb in range(4):
                r = abase + (s * 4 + cb) * 4
                a = acc + 4 * cb
                src = "0" if s == 0 else vr(a, 4)
                A(f"v_mfma_f32_16x16x32_bf16 {vr(a,4)}, {vr(r,4)}, {vr(bregs[s],4)}, {src}")

    def red_write(self, acc):
        A = self.A
        A(f"s_mov_b64 exec, s[{S_MJ8}:{S_MJ8+1}]")
        for cb in range(4):
            A(f"ds_write_b128 v{self.RW+cb}, {vr(acc+4*cb,4)}")
        A("s_mov_b64 exec, -1")
        A("s_waitcnt lgkmcnt(0)")

    def red_sum(self, nw, dst):
        A = self.A
        for v in range(nw):
            A(f"ds_read_b32 v{dst+v}, v{self.RW+4} offset:{v*2048}")
        A("s_waitcnt lgkmcnt(0)")
        regs = [dst + v for v in range(nw)]
        while len(regs) > 1:
            nxt = []
            for i in range(0, len(regs) - 1, 2):
                A(f"v_add_f32 v{regs[i]}, v{regs[i]}, v{regs[i+1]}")
                nxt.append(regs[i])
            if len(regs) % 2: nxt.append(regs[-1])
            regs = nxt

    def tail(self):
        A = self.A
        A("s_barrier")
        lskip = A.label()
        A(f"s_cmp_eq_u32 s{S_WAVE}, 0")
        A(f"s_cbranch_scc0 {lskip}")
        A(f"""
        v_lshlrev_b32 v4, 3, v1
        v_add_u32 v4, {LDS_ORED}, v4
        ds_read_b64 v[8:9], v4
        ds_read_b64 v[10:11], v4 offset:512
        ds_read_b64 v[12:13], v4 offset:1024
        ds_read_b64 v[14:15], v4 offset:1536
        s_lshl_b32 s{S_T0}, s{S_B}, 13
        s_lshl_b32 s{S_T1}, s{S_H}, 8
        s_add_u32 s{S_T0}, s{S_T0}, s{S_T1}
        s_add_u32 s{S_T0}, s{S_T0}, {WS_OB}
        s_waitcnt lgkmcnt(0)
        v_pk_add_f32 v[8:9], v[8:9], v[10:11]
        v_pk_add_f32 v[12:13], v[12:13], v[14:15]
        v_pk_add_f32 v[8:9], v[8:9], v[12:13]
        v_cvt_pk_bf16_f32 v8, v8, v9
        v_min_u32 v8, -2, v8
        """)
        self.quad_gather(8, 8)
        A(f"""
        s_mov_b64 exec, s[{S_MQ}:{S_MQ+1}]
        buffer_store_dwordx4 v[8:11], v3, {srd(R_WS)}, s{S_T0} offen sc0 sc1
        s_mov_b64 exec, -1
        """)
        A.place(lskip)
        self.stamp(7)
        if self.defer:
            lnd = A.label(); lp = A.label()
            A("s_barrier")
            A(f"s_cmp_lt_u32 s{S_WAVE}, 4")
            A(f"s_cbranch_scc1 {lnd}")
            A(f"s_cmp_ge_u32 s{S_DJ}, s{S_NJ}")
            A(f"s_cbranch_scc1 {lnd}")
            A(f"s_mov_b32 s{S_T1}, s{S_DS}")
            A(f"s_mov_b32 s{S_T2}, s{S_DM}")
            A(f"s_mov_b32 s{S_T3}, s{S_DJ}")
            A(f"s_mov_b32 s{S_T0}, s{S_DST}")
            A(f"v_mov_b32 v4, v204")
            lpd = A.label()
            A(f"s_cmp_eq_u32 s{S_ROLE}, 2")
            A(f"s_cbranch_scc1 {lpd}")
            A.place(lp)
            self.dma_iter(self.NT - 1)
            A(f"s_cmp_lt_u32 s{S_T3}, s{S_NJ}")
            A(f"s_cbranch_scc1 {lp}")
            A(f"s_branch {lnd}")
            A.place(lpd)
            self.dma_iter(self.NTD - 1)
            A(f"s_cmp_lt_u32 s{S_T3}, s{S_NJ}")
            A(f"s_cbranch_scc1 {lpd}")
            A.place(lnd)
        if self.stop_after == "attn":
            A("s_branch L_end")
        A(f"""
        s_cmp_eq_u32 s{S_ROLE}, 0
        s_cbranch_scc1 L_roleO
        s_cmp_eq_u32 s{S_ROLE}, 1
        s_cbranch_scc1 L_roleG
        s_cmp_eq_u32 s{S_ROLE}, 2
        s_cbranch_scc1 L_roleD
        s_branch L_roleF
        """)
        self.role_O()
        self.role_G()
        self.role_D()
        self.role_F()

    def role_O(self):
        A = self.A
        A.place("L_roleO")
        AB = 64
        A(f"s_lshr_b32 s{S_NJ}, s{S_H}, 1")
        A(f"s_and_b32 s{S_PITCH}, s{S_H}, 1")
        A(f"s_lshl_b32 s{S_T0}, s{S_B}, 1")
        A(f"s_add_u32 s{S_PITCH}, s{S_PITCH}, s{S_T0}")
        A(f"""
        v_and_b32 v4, 15, v1
        v_lshlrev_b32 v4, 13, v4
        v_lshrrev_b32 v5, 4, v1
        v_lshlrev_b32 v5, 4, v5
        v_add_u32 v16, v4, v5
        s_lshl_b32 s{S_JJ}, s{S_NJ}, 11
        s_lshl_b32 s{S_T1}, s{S_WAVE}, 8
        s_add_u32 s{S_JJ}, s{S_JJ}, s{S_T1}
        s_add_u32 s{S_JJ}, s{S_JJ}, {WS_OB}
        """)
        oloads = [f"buffer_load_dwordx4 {vr(32+4*s_,4)}, v16, {srd(R_WS)}, s{S_JJ} offen offset:{s_*64} {self.LP}" for s_ in range(4)]
        self.poll_issue(oloads, range(32, 48), mask=S_MJ8)
        self.local_flag()
        self.mk_srd(R_X, S_X, 16384)
        A(f"""
        v_bfe_u32 v14, v1, 4, 1
        v_lshlrev_b32 v14, 11, v14
        v_and_b32 v15, 15, v1
        v_lshlrev_b32 v13, 3, v15
        v_add_u32 v13, v13, v14
        s_lshl_b32 s{S_T0}, s{S_PITCH}, 7
        s_lshl_b32 s{S_T1}, s{S_NJ}, 12
        s_add_u32 s{S_T0}, s{S_T0}, s{S_T1}
        buffer_load_dwordx2 v[28:29], v13, {srd(R_X)}, s{S_T0} offen
        s_add_u32 s{S_OFF}, s{S_T0}, {WS_H}
        v_lshrrev_b32 v15, 1, v15
        v_lshlrev_b32 v15, 4, v15
        v_add_u32 v14, v14, v15
        """)
        self.tile_afrags(AB)
        self.red_addrs()
        A(f"""
        v_bfe_u32 v4, v1, 4, 1
        s_lshl_b32 s{S_T0}, s{S_WAVE}, 1
        v_add_u32 v4, s{S_T0}, v4
        v_and_b32 v5, 15, v1
        v_xor_b32 v5, v5, v4
        v_lshlrev_b32 v5, 4, v5
        v_lshlrev_b32 v4, 8, v4
        v_add_u32 v4, v4, v5
        v_lshrrev_b32 v5, 5, v1
        v_lshlrev_b32 v5, 13, v5
        v_add_u32 v4, v4, v5
        v_add_u32 v19, {LDS_RED}, v4
        v_and_b32 v4, 31, v1
        v_lshlrev_b32 v13, 4, v4
        s_lshl_b32 s{S_T2}, s{S_PITCH}, 13
        s_add_u32 s{S_T2}, s{S_T2}, {WS_OP}
        s_lshl_b32 s{S_T1}, s{S_WAVE}, 11
        s_add_u32 s{S_T3}, s{S_T2}, s{S_T1}
        s_lshl_b32 s{S_T1}, s{S_NJ}, 9
        s_add_u32 s{S_T3}, s{S_T3}, s{S_T1}
        s_lshl_b32 s{S_T1}, s{S_NJ}, 11
        s_add_u32 s{S_T2}, s{S_T2}, s{S_T1}
        """)
        self.poll_pipe(oloads, range(32, 48), 17, mask=S_MJ8, sleep=self.PS, issued=True)
        self.stamp(8)
        A("s_waitcnt lgkmcnt(0)")
        self.mfma16(AB, [32, 36, 40, 44], 48)
        self.red_write(48)
        A("s_barrier")
        lr1 = A.label()
        A(f"s_cmp_ge_u32 s{S_WAVE}, 4")
        A(f"s_cbranch_scc1 {lr1}")
        for v in range(4):
            A(f"ds_read_b128 {vr(32+4*v,4)}, v19 offset:{v*2048}")
        A("s_waitcnt lgkmcnt(0)")
        for e in (0, 2):
            A(f"v_pk_add_f32 {vr(32+e,2)}, {vr(32+e,2)}, {vr(36+e,2)}")
            A(f"v_pk_add_f32 {vr(40+e,2)}, {vr(40+e,2)}, {vr(44+e,2)}")
        for e in (0, 2):
            A(f"v_pk_add_f32 {vr(32+e,2)}, {vr(32+e,2)}, {vr(40+e,2)}")
        for e in range(4):
            A(f"v_mov_b32 v{36+e}, v{32+e}")
        for e in range(4):
            A(f"v_permlane32_swap_b32 v{32+e}, v{36+e}")
        for e in (0, 2):
            A(f"v_pk_add_f32 {vr(32+e,2)}, {vr(32+e,2)}, {vr(36+e,2)}")
        for e in range(4):
            A(f"v_min_u32 v{32+e}, -2, v{32+e}")
        A("s_mov_b64 exec, 0xffffffff")
        self.store_sel(f"buffer_store_dwordx4 v[32:35], v13, {srd(R_WS)}, s{S_T3} offen")
        A("s_mov_b64 exec, -1")
        self.stamp(9)
        A("s_branch L_end")
        A.place(lr1)
        A(f"s_cmp_eq_u32 s{S_WAVE}, 4")
        A(f"s_cbranch_scc0 L_end")
        A(f"v_lshlrev_b32 v20, 16, v28")
        A(f"v_and_b32 v21, 0xffff0000, v28")
        A(f"v_lshlrev_b32 v22, 16, v29")
        A(f"v_and_b32 v23, 0xffff0000, v29")
        loads = [f"buffer_load_dwordx4 v[32:35], v2, {srd(R_WS)}, s{S_T2} offen {self.LP}",
                 f"buffer_load_dwordx4 v[36:39], v2, {srd(R_WS)}, s{S_T2} offen offset:1024 {self.LP}"]
        self.poll_pipe(loads, range(32, 40), 17, sleep=0)
        self.stamp(9)
        for e in (0, 2):
            A(f"v_pk_add_f32 {vr(40+e,2)}, {vr(32+e,2)}, {vr(36+e,2)}")
        for e in range(4):
            A(f"v_mov_b32 v{44+e}, v{40+e}")
        for e in range(4):
            A(f"v_permlane32_swap_b32 v{40+e}, v{44+e}")
        for e in (0, 2):
            A(f"v_pk_add_f32 {vr(40+e,2)}, {vr(40+e,2)}, {vr(44+e,2)}")
        A(f"""
        v_cvt_pk_bf16_f32 v44, v40, v41
        v_cvt_pk_bf16_f32 v45, v42, v43
        v_lshlrev_b32 v40, 16, v44
        v_and_b32 v41, 0xffff0000, v44
        v_lshlrev_b32 v42, 16, v45
        v_and_b32 v43, 0xffff0000, v45
        v_pk_add_f32 v[40:41], v[40:41], v[20:21]
        v_pk_add_f32 v[42:43], v[42:43], v[22:23]
        v_cvt_pk_bf16_f32 v48, v40, v41
        v_cvt_pk_bf16_f32 v49, v42, v43
        v_min_u32 v48, -2, v48
        v_min_u32 v49, -2, v49
        v_mov_b32_dpp v50, v48 quad_perm:[1,1,3,3] row_mask:0xf bank_mask:0xf
        v_mov_b32_dpp v51, v49 quad_perm:[1,1,3,3] row_mask:0xf bank_mask:0xf
        s_mov_b64 exec, 0x55555555
        buffer_store_dwordx4 v[48:51], v14, {srd(R_WS)}, s{S_OFF} offen sc0 sc1
        s_mov_b64 exec, -1
        """)
        self.stamp(16)
        A("s_branch L_end")

    def role_G(self):
        A = self.A
        A.place("L_roleG")
        AB = 160
        self.local_flag()
        self.red_addrs()
        F, D = 96, 128
        A(f"""
        s_lshl_b32 s{S_T0}, s{S_WAVE}, 1
        v_xor_b32 v14, s{S_T0}, v1
        v_lshlrev_b32 v14, 4, v14
        s_lshl_b32 s{S_T0}, s{S_WAVE}, 11
        s_add_u32 s{S_T0}, s{S_T0}, {LDS_XN2}
        v_add_u32 v14, s{S_T0}, v14
        v_and_b32 v17, 7, v1
        v_lshrrev_b32 v18, 4, v1
        v_lshlrev_b32 v19, 11, v17
        s_lshl_b32 s{S_T0}, s{S_WAVE}, 8
        s_add_u32 s{S_T0}, s{S_T0}, {LDS_XN2}
        v_add_u32 v19, s{S_T0}, v19
        v_lshlrev_b32 v17, 1, v17
        """)
        for s_ in range(4):
            A(f"v_add_u32 v28, {4*s_}, v18")
            A(f"v_xor_b32 v28, v28, v17")
            A(f"v_lshlrev_b32 v28, 4, v28")
            A(f"v_add_u32 v{232+s_}, v28, v19")
        A(f"""
        s_sub_u32 s{S_T0}, s{S_H}, 8
        s_and_b32 s{S_T1}, s{S_T0}, 1
        s_mul_i32 s{S_T1}, s{S_T1}, 57344
        s_lshr_b32 s{S_T0}, s{S_T0}, 1
        s_mul_i32 s{S_T2}, s{S_B}, 7
        s_add_u32 s{S_T0}, s{S_T0}, s{S_T2}
        s_lshl_b32 s{S_T0}, s{S_T0}, 7
        s_add_u32 s{S_T0}, s{S_T0}, s{S_T1}
        s_mul_i32 s{S_T1}, s{S_WAVE}, 7168
        s_add_u32 s{S_T0}, s{S_T0}, s{S_T1}
        s_add_u32 s{S_OFF}, s{S_T0}, {WS_GU}
        v_lshlrev_b32 v15, 1, v1
        s_lshl_b32 s{S_T0}, s{S_WAVE}, 13
        s_add_u32 s{S_T0}, s{S_T0}, {WS_OB}
        v_lshlrev_b32 v17, 8, v1
        s_mov_b64 s[{S_EX}:{S_EX+1}], 0xffffffff
        """)
        self.sample_wait(False, 17, 18, self.HS)
        A(f"s_lshl_b32 s{S_JJ}, s{S_WAVE}, 11")
        A(f"s_add_u32 s{S_JJ}, s{S_JJ}, {WS_H}")
        loads = [f"buffer_load_dwordx4 v[20:23], v2, {srd(R_WS)}, s{S_JJ} offen {self.LP}",
                 f"buffer_load_dwordx4 v[24:27], v2, {srd(R_WS)}, s{S_JJ} offen offset:1024 {self.LP}"]
        self.poll_issue(loads, range(20, 28))
        self.tile_afrags(AB)
        self.stamp(16)
        self.poll_pipe(loads, range(20, 28), 17, sleep=self.GSL, issued=True)
        self.stamp(8)
        for i in range(8):
            A(f"v_lshlrev_b32 v{F+2*i}, 16, v{20+i}")
            A(f"v_and_b32 v{F+2*i+1}, 0xffff0000, v{20+i}")
        S1, S2, T1, T2, VMB, VRS = 144, 146, 148, 149, 150, 152
        self.ln_stats(F, D, S1, S2, T1, T2, VMB, VRS)
        for i in range(8):
            self.ln_apply(48 + i, F + 2*i, VMB, VRS, 154 + 2 * (i % 2))
        A(f"ds_write_b128 v14, v[48:51]")
        A(f"ds_write_b128 v14, v[52:55] offset:1024")
        A("s_waitcnt lgkmcnt(0)")
        A("s_barrier")
        for s_ in range(4):
            A(f"ds_read_b128 {vr(32+4*s_,4)}, v{232+s_}")
        A("s_waitcnt lgkmcnt(0)")
        self.mfma16(AB, [32, 36, 40, 44], 48)
        self.red_write(48)
        A("s_waitcnt vmcnt(0)")
        A("s_barrier")
        self.red_sum(8, 20)
        self.rnd_bf16(20, 20)
        lup = A.label()
        A(f"s_bitcmp1_b32 s{S_H}, 0")
        A(f"s_cbranch_scc1 {lup}")
        A(f"""
        v_mul_f32 v17, v20, v20
        v_mul_f32 v18, v17, v20
        v_mul_f32 v18, 0x3d372713, v18
        v_add_f32 v18, v20, v18
        v_mul_f32 v18, 0x3f4c422a, v18
        v_mul_f32 v18, 0x4038aa3b, v18
        v_min_f32 v18, 0x42700000, v18
        v_exp_f32 v18, v18
        v_add_f32 v19, 1.0, v18
        v_rcp_f32 v19, v19
        v_mul_f32 v18, v18, v19
        v_mul_f32 v20, v20, v18
        """)
        A.place(lup)
        A(f"""
        v_mov_b32_dpp v17, v20 quad_perm:[1,1,3,3] row_mask:0xf bank_mask:0xf
        v_cvt_pk_bf16_f32 v20, v20, v17
        v_min_u32 v20, -2, v20
        """)
        self.even_gather(20, 20)
        A(f"s_mov_b64 exec, s[{S_ME}:{S_ME+1}]")
        self.store_sel(f"buffer_store_dwordx4 v[20:23], v15, {srd(R_WS)}, s{S_OFF} offen")
        A(f"s_mov_b64 exec, -1")
        self.stamp(9)
        A("s_branch L_end")

    def role_D(self):
        A = self.A
        A.place("L_roleD")
        AB = 160
        RW = 224
        A(f"""
        v_lshrrev_b32 v4, 1, v1
        v_xor_b32 v4, s{S_WAVE}, v4
        v_lshlrev_b32 v4, 4, v4
        v_and_b32 v5, 1, v1
        v_lshlrev_b32 v5, 3, v5
        v_add_u32 v4, v4, v5
        s_lshl_b32 s{S_T0}, s{S_WAVE}, 9
        s_add_u32 s{S_T0}, s{S_T0}, {LDS_RED}
        v_add_u32 v{RW+8}, s{S_T0}, v4
        s_lshl_b32 s{S_T0}, s{S_B}, 15
        s_lshl_b32 s{S_T1}, s{S_WAVE}, 12
        s_add_u32 s{S_T0}, s{S_T0}, s{S_T1}
        s_sub_u32 s{S_T1}, s{S_H}, 22
        s_lshl_b32 s{S_T1}, s{S_T1}, 9
        s_add_u32 s{S_T0}, s{S_T0}, s{S_T1}
        s_add_u32 s{S_OFF}, s{S_T0}, {WS_DP}
        v_lshlrev_b32 v15, 3, v1
        """)
        lno = A.label(); lgo = A.label()
        A(f"s_cmp_eq_u32 s{S_WAVE}, 7")
        A(f"s_cbranch_scc0 {lgo}")
        A("s_waitcnt vmcnt(0)")
        A("s_barrier")
        A(f"s_branch {lno}")
        A.place(lgo)
        A(f"""
        v_lshrrev_b32 v4, 4, v1
        v_and_b32 v5, 15, v1
        v_lshrrev_b32 v6, 2, v5
        v_and_b32 v5, 3, v5
        v_lshrrev_b32 v7, 1, v6
        v_and_b32 v8, 1, v4
        v_lshlrev_b32 v8, 1, v8
        v_or_b32 v7, v7, v8
        v_lshlrev_b32 v8, 3, v4
        v_add_u32 v8, v8, v6
        v_lshlrev_b32 v8, 7, v8
        v_lshlrev_b32 v5, 3, v5
        v_add_u32 v8, v8, v5
        s_lshl_b32 s{S_T0}, s{S_WAVE}, 13
        v_add_u32 v8, s{S_T0}, v8
        """)
        for cb in range(4):
            A(f"v_xor_b32 v{9+cb}, {cb}, v7")
            A(f"v_lshlrev_b32 v{9+cb}, 5, v{9+cb}")
            A(f"v_add_u32 v{9+cb}, v{9+cb}, v8")
        A(f"""
        v_and_b32 v4, 15, v1
        v_lshrrev_b32 v5, 4, v1
        s_lshl_b32 s{S_T0}, s{S_WAVE}, 12
        s_add_u32 s{S_T0}, s{S_T0}, {LDS_RED}
        v_lshlrev_b32 v6, 9, v4
        v_add_u32 v6, s{S_T0}, v6
        """)
        for cb in range(8):
            A(f"v_add_u32 v7, {4*cb}, v5")
            A(f"v_xor_b32 v7, v7, v4")
            A(f"v_lshlrev_b32 v7, 4, v7")
            A(f"v_add_u32 v{RW+cb}, v7, v6")
        A(f"""
        v_and_b32 v4, 7, v1
        v_mul_u32_u24 v4, 7168, v4
        v_bfe_u32 v5, v1, 3, 1
        v_lshlrev_b32 v5, 6, v5
        v_add_u32 v4, v4, v5
        v_lshrrev_b32 v5, 4, v1
        v_lshlrev_b32 v5, 4, v5
        v_add_u32 v16, v4, v5
        s_mul_i32 s{S_T0}, s{S_B}, 7
        s_add_u32 s{S_T0}, s{S_T0}, s{S_WAVE}
        s_lshl_b32 s{S_T0}, s{S_T0}, 7
        s_add_u32 s{S_T0}, s{S_T0}, {WS_GU}
        s_add_u32 s{S_T1}, s{S_T0}, 57344
        s_lshl_b32 s{S_T2}, s{S_WAVE}, 11
        s_add_u32 s{S_T2}, s{S_T2}, {WS_H}
        v_lshlrev_b32 v17, 5, v1
        """)
        A(f"s_mov_b32 s{S_T2}, s{S_T0}")
        A(f"s_mov_b32 s{S_T3}, s{S_T1}")
        self.sample_wait(True, 17, 18, self.HS)
        loads = [f"buffer_load_dwordx4 v[32:35], v16, {srd(R_WS)}, s{S_T2} offen {self.LP}",
                 f"buffer_load_dwordx4 v[36:39], v16, {srd(R_WS)}, s{S_T3} offen {self.LP}"]
        self.poll_issue(loads, range(32, 40))
        for s_ in range(2):
            for cb in range(8):
                r = AB + (s_ * 8 + cb) * 4
                off = s_ * 4096 + (cb // 4) * 57344
                A(f"ds_read_b64_tr_b16 {vr(r,2)}, v{9+cb%4} offset:{off}")
                A(f"ds_read_b64_tr_b16 {vr(r+2,2)}, v{9+cb%4} offset:{off+512}")
        self.stamp(16)
        self.poll_pipe(loads, range(32, 40), 17, sleep=0, issued=True)
        self.stamp(8)
        for i in range(0, 4, 2):
            g, u = 32 + i, 36 + i
            A(f"v_lshlrev_b32 v64, 16, v{g}")
            A(f"v_and_b32 v65, 0xffff0000, v{g}")
            A(f"v_lshlrev_b32 v66, 16, v{u}")
            A(f"v_and_b32 v67, 0xffff0000, v{u}")
            A(f"v_lshlrev_b32 v68, 16, v{g+1}")
            A(f"v_and_b32 v69, 0xffff0000, v{g+1}")
            A(f"v_lshlrev_b32 v70, 16, v{u+1}")
            A(f"v_and_b32 v71, 0xffff0000, v{u+1}")
            A(f"v_pk_mul_f32 v[64:65], v[64:65], v[66:67]")
            A(f"v_pk_mul_f32 v[68:69], v[68:69], v[70:71]")
            A(f"v_cvt_pk_bf16_f32 v{72+i}, v64, v65")
            A(f"v_cvt_pk_bf16_f32 v{73+i}, v68, v69")
        for e in range(4):
            A(f"v_mov_b32_dpp v{76+e}, v{72+e} row_shl:8 row_mask:0xf bank_mask:0xf")
        A("s_waitcnt lgkmcnt(0)")
        ACC = 88
        for cb in range(8):
            A(f"v_mfma_f32_16x16x32_bf16 {vr(ACC+4*cb,4)}, {vr(AB+cb*4,4)}, v[72:75], 0")
        for cb in range(8):
            A(f"v_mfma_f32_16x16x32_bf16 {vr(ACC+4*cb,4)}, {vr(AB+(8+cb)*4,4)}, v[76:79], {vr(ACC+4*cb,4)}")
        A(f"s_mov_b64 exec, s[{S_MJ8}:{S_MJ8+1}]")
        for cb in range(8):
            A(f"ds_write_b128 v{RW+cb}, {vr(ACC+4*cb,4)}")
        A("s_mov_b64 exec, -1")
        A("s_waitcnt lgkmcnt(0)")
        A.place(lno)
        A("s_barrier")
        for v in range(7):
            A(f"ds_read_b64 {vr(20+2*v,2)}, v{RW+8} offset:{v*4096}")
        A("s_waitcnt lgkmcnt(0)")
        A(f"""
        v_pk_add_f32 v[20:21], v[20:21], v[22:23]
        v_pk_add_f32 v[24:25], v[24:25], v[26:27]
        v_pk_add_f32 v[28:29], v[28:29], v[30:31]
        v_pk_add_f32 v[20:21], v[20:21], v[24:25]
        v_pk_add_f32 v[28:29], v[28:29], v[32:33]
        v_pk_add_f32 v[20:21], v[20:21], v[28:29]
        v_min_u32 v20, -2, v20
        v_min_u32 v21, -2, v21
        v_mov_b32_dpp v22, v20 quad_perm:[1,1,3,3] row_mask:0xf bank_mask:0xf
        v_mov_b32_dpp v23, v21 quad_perm:[1,1,3,3] row_mask:0xf bank_mask:0xf
        s_mov_b32 s{S_T2}, 0x55555555
        s_mov_b32 s{S_T3}, 0x55555555
        s_mov_b64 exec, s[{S_T2}:{S_T3}]
        buffer_store_dwordx4 v[20:23], v15, {srd(R_WS)}, s{S_OFF} offen sc0 sc1
        s_mov_b64 exec, -1
        """)
        self.stamp(9)
        A("s_branch L_end")

    def role_F(self):
        A = self.A
        A.place("L_roleF")
        self.mk_srd(R_OUT, S_OUT, 16384)
        A(f"""
        s_sub_u32 s{S_T2}, s{S_H}, 30
        s_lshl_b32 s{S_T0}, s{S_B}, 1
        s_add_u32 s{S_T2}, s{S_T2}, s{S_T0}
        v_lshrrev_b32 v4, 4, v1
        v_lshlrev_b32 v4, 15, v4
        v_and_b32 v5, 15, v1
        v_lshlrev_b32 v6, 4, v5
        v_add_u32 v16, v4, v6
        v_lshlrev_b32 v15, 3, v5
        s_lshl_b32 s{S_T0}, s{S_WAVE}, 12
        s_lshl_b32 s{S_T1}, s{S_T2}, 8
        s_add_u32 s{S_T0}, s{S_T0}, s{S_T1}
        s_add_u32 s{S_T0}, s{S_T0}, {WS_DP}
        s_add_u32 s{S_T1}, s{S_T0}, 131072
        s_lshl_b32 s{S_PITCH}, s{S_WAVE}, 11
        s_lshl_b32 s{S_T3}, s{S_T2}, 7
        s_add_u32 s{S_PITCH}, s{S_PITCH}, s{S_T3}
        s_add_u32 s{S_T2}, s{S_PITCH}, {WS_H}
        s_mul_i32 s{S_T3}, s{S_WAVE}, 7168
        s_add_u32 s{S_T3}, s{S_T3}, {WS_GU}
        v_lshlrev_b32 v17, 7, v1
        s_mov_b32 s{S_EX}, -1
        s_mov_b32 s{S_EX+1}, 0x00ffffff
        """)
        self.sample_wait(True, 17, 18, self.HS)
        self.stamp(16)
        loads = [f"buffer_load_dwordx4 v[32:35], v16, {srd(R_WS)}, s{S_T0} offen {self.LP}",
                 f"buffer_load_dwordx4 v[36:39], v16, {srd(R_WS)}, s{S_T1} offen {self.LP}",
                 f"buffer_load_dwordx2 v[40:41], v15, {srd(R_WS)}, s{S_T2} offen {self.LP}"]
        self.poll_pipe(loads, range(32, 42), 17, sleep=self.FSL)
        self.stamp(8)
        A(f"""
        v_pk_add_f32 v[20:21], v[32:33], v[36:37]
        v_pk_add_f32 v[22:23], v[34:35], v[38:39]
        """)
        for sw in ("v_permlane16_swap_b32", "v_permlane32_swap_b32"):
            for e in range(4):
                A(f"v_mov_b32 v{24+e}, v{20+e}")
            for e in range(4):
                A(f"{sw} v{20+e}, v{24+e}")
            A(f"v_pk_add_f32 v[20:21], v[20:21], v[24:25]")
            A(f"v_pk_add_f32 v[22:23], v[22:23], v[26:27]")
        A(f"""
        v_cvt_pk_bf16_f32 v24, v20, v21
        v_cvt_pk_bf16_f32 v25, v22, v23
        v_lshlrev_b32 v20, 16, v24
        v_and_b32 v21, 0xffff0000, v24
        v_lshlrev_b32 v22, 16, v25
        v_and_b32 v23, 0xffff0000, v25
        v_lshlrev_b32 v24, 16, v40
        v_and_b32 v25, 0xffff0000, v40
        v_lshlrev_b32 v26, 16, v41
        v_and_b32 v27, 0xffff0000, v41
        v_pk_add_f32 v[20:21], v[20:21], v[24:25]
        v_pk_add_f32 v[22:23], v[22:23], v[26:27]
        v_cvt_pk_bf16_f32 v20, v20, v21
        v_cvt_pk_bf16_f32 v21, v22, v23
        s_mov_b64 exec, 0xffff
        buffer_store_dwordx2 v[20:21], v15, {srd(R_OUT)}, s{S_PITCH} offen
        s_mov_b64 exec, -1
        """)
        lne = A.label()
        A(f"""
        s_cmp_eq_u32 s2, 240
        s_cbranch_scc0 {lne}
        s_cmp_eq_u32 s{S_WAVE}, 0
        s_cbranch_scc0 {lne}
        v_mov_b32 v20, 0
        v_mov_b32 v21, s{S_TAG}
        s_mov_b32 s{S_T1}, {WS_EPOCH}
        s_mov_b64 exec, 1
        buffer_store_dword v21, v20, {srd(R_WS)}, s{S_T1} offen sc0 sc1
        s_mov_b64 exec, -1
        """)
        A.place(lne)
        self.stamp(9)

    def build(self):
        A = self.A
        self.entry()
        self.service()
        self.stream()
        self.tail()
        A.place("L_end")
        if self.stamps in ("tail", "early", "svc", "entry"):
            A("s_cmp_ge_u32 s2, 256")
            A("s_cbranch_scc1 L_end2")
            A("s_memrealtime s[18:19]")
            A("s_waitcnt lgkmcnt(0)")
            A(f"s_lshl_b32 s3, s{S_WG}, 3")
            A(f"s_add_u32 s3, s3, s{S_WAVE}")
            A(f"s_lshl_b32 s3, s3, 7")
            A(f"s_add_u32 s3, s3, {WS_DBG + 0x100000}")
            A(f"s_mov_b64 exec, 1")
            A(f"v_mov_b32 v255, 0")
            A(f"v_mov_b32 v254, s18")
            A(f"v_mov_b32 v255, 0")
            A(f"buffer_store_dword v254, v255, {srd(R_WS)}, s3 offen offset:120")
            A("s_getreg_b32 s16, hwreg(HW_REG_XCC_ID)")
            A(f"v_mov_b32 v254, s16")
            A(f"buffer_store_dword v254, v255, {srd(R_WS)}, s3 offen offset:124")
            for idx, j in self.LIGHT.items():
                A(f"v_mov_b32 v254, s{4+2*j}")
                A(f"buffer_store_dword v254, v255, {srd(R_WS)}, s3 offen offset:{idx*4}")
            A.place("L_end2")
        A("s_endpgm")
        A.footer(256, 102, 256)
        A.fix_hazards()
        return A.text()

if __name__ == "__main__":
    import argparse
    ap = argparse.ArgumentParser()
    ap.add_argument("-o", default="main.s")
    ap.add_argument("--N", type=int, default=5)
    ap.add_argument("--NP", type=int, default=8)
    ap.add_argument("--LP", default="sc1")
    ap.add_argument("--PD", type=int, default=1)
    ap.add_argument("--HG", type=int, default=48)
    ap.add_argument("--HD", type=int, default=64)
    ap.add_argument("--HS", type=int, default=2)
    ap.add_argument("--nolocal", action="store_true")
    ap.add_argument("--pace", action="store_true")
    ap.add_argument("--ipf", type=int, default=0)
    ap.add_argument("--DE", type=int, default=0)
    ap.add_argument("--EB", type=int, default=13)
    ap.add_argument("--rot", type=int, default=0)
    ap.add_argument("--defer", action="store_true")
    ap.add_argument("--JU", type=int, default=12)
    ap.add_argument("--NOK", type=int, default=6)
    ap.add_argument("--NOV", type=int, default=5)
    ap.add_argument("--NT", type=int, default=6)
    ap.add_argument("--NTD", type=int, default=3)
    ap.add_argument("--NW", default=None)
    ap.add_argument("--NMIN", type=int, default=5)
    ap.add_argument("--GTH", default="")
    ap.add_argument("--GM", type=int, default=16)
    ap.add_argument("--bias", action="store_true")
    ap.add_argument("--BT", type=int, default=0)
    ap.add_argument("--THK", default=None)
    ap.add_argument("--RK", default=",".join(str(k) for k in range(32)))
    ap.add_argument("--GH", type=int, default=6)
    ap.add_argument("--GL", type=int, default=2)
    ap.add_argument("--DMAX", type=int, default=7)
    ap.add_argument("--TH", default="16")
    ap.add_argument("--GSL", type=int, default=1)
    ap.add_argument("--FSL", type=int, default=1)
    ap.add_argument("--KP", default="nt")
    ap.add_argument("--VP", default="nt")
    ap.add_argument("--WP", default="nt")
    ap.add_argument("--PS", type=int, default=1)
    ap.add_argument("--debug", action="store_true")
    ap.add_argument("--stamps", default=None)
    ap.add_argument("--stop", default=None)
    a = ap.parse_args()
    g = Gen(N=a.N, NP=a.NP, LP=a.LP, PD=a.PD, PS=a.PS, HG=a.HG, HD=a.HD, HS=a.HS, nolocal=a.nolocal, pace=a.pace, ipf=a.ipf, DE=a.DE, EB=a.EB, GTH=tuple(int(x) for x in a.GTH.split(',') if x), GM=a.GM, bias=a.bias, BT=a.BT, THK=(tuple(int(x) for x in a.THK.split(',')) if a.THK else None), RK=tuple(int(x) for x in a.RK.split(',')), GH=a.GH, GL=a.GL, DMAX=a.DMAX, rot=a.rot, defer=a.defer, JU=a.JU, NOK=a.NOK, NOV=a.NOV, NT=a.NT, NTD=a.NTD, NW=(tuple(int(x) for x in a.NW.split(',')) if a.NW else None), NMIN=a.NMIN, TH=tuple(int(x) for x in a.TH.split(',')), GSL=a.GSL, FSL=a.FSL, KP=a.KP, VP=a.VP, WP=a.WP, debug=a.debug, stamps=a.stamps, stop_after=a.stop)
    open(a.o, "w").write(g.build())
```
